```python
import torch

def _softmax(x, axis=-1):
    return torch.softmax(x, dim=axis)
def _gelu(x):
    return torch.nn.functional.gelu(x, approximate="tanh")
def _silu(x):
    return torch.nn.functional.silu(x)
def _sigmoid(x):
    return torch.sigmoid(x)
def _layernorm(x, axis=-1, eps=1e-5):
    m = x.mean(dim=axis, keepdim=True)
    v = x.var(dim=axis, keepdim=True, unbiased=False)
    return (x - m) / torch.sqrt(v + eps)
def _scatter_add(tgt, idx, src, axis=0):
    return tgt.clone().index_add_(axis, idx, src)
def _segment_sum(src, seg, n):
    out = torch.zeros((n,) + src.shape[1:], dtype=src.dtype)
    return out.index_add_(0, seg, src)
def _pad(x, pw):
    flat = tuple(v for pair in reversed(pw) for v in pair)
    return torch.nn.functional.pad(x, flat)

kernel_name = 'sequential_preLN__linear_attn_block__dense_activation_squared_relu__prompt'

def setup_inputs():

    _w = (lambda a: (lambda t: t.to(torch.bfloat16) if t.is_floating_point() else t)(torch.as_tensor(a)))
    def _A_setup():
        B, S, D = 1, 2048, 640
        return {
            "x": _w((lambda *s: torch.randn(*s, dtype=torch.bfloat16) * 0.05)(B, S, D)),
            "wqkv": _w((lambda *s: torch.randn(*s, dtype=torch.bfloat16) * 0.1)(D, 3 * D)),
            "wo": _w((lambda *s: torch.randn(*s, dtype=torch.bfloat16) * 0.05)(D, D)),
        }
    _A_in = _A_setup()

    def _B_setup():
        B, S, D, F = 1, 2048, 640, 1536
        return {
            "x": _w((lambda *s: torch.randn(*s, dtype=torch.bfloat16) * 0.05)(B, S, D)),
            "w1": _w((lambda *s: torch.randn(*s, dtype=torch.bfloat16) * 0.05)(D, F)),
            "b1": _w((lambda *s: torch.randn(*s, dtype=torch.bfloat16) * 0.4)(F)),
            "w2": _w((lambda *s: torch.randn(*s, dtype=torch.bfloat16) * 0.05)(F, D)),
            "b2": _w((lambda *s: torch.randn(*s, dtype=torch.bfloat16) * 1.6)(D)),
        }
    _B_in = _B_setup()

    return {
        "A_x": _A_in["x"],
        "A_wqkv": _A_in["wqkv"],
        "A_wo": _A_in["wo"],
        "B_x": _B_in["x"],
        "B_w1": _B_in["w1"],
        "B_b1": _B_in["b1"],
        "B_w2": _B_in["w2"],
        "B_b2": _B_in["b2"],
    }

def reference(A_x, A_wqkv, A_wo, B_x, B_w1, B_b1, B_w2, B_b2):
    def _A_ref(x, wqkv, wo):
        B, S, D = x.shape
        H = 32; Dh = D // H
        qkv = (lambda x, *d: x.permute(*d))((x @ wqkv).reshape(B, S, 3, H, Dh), 2, 0, 3, 1, 4)
        q, k, v = qkv[0], qkv[1], qkv[2]
        phi = lambda t: torch.where(t > 0, t + 1, torch.exp(t)) + 1e-6
        pq, pk = phi(q), phi(k)
        kv = torch.einsum("bhsd,bhse->bhde", pk, v)
        z = torch.einsum("bhsd->bhd", pk)
        num = torch.einsum("bhqd,bhde->bhqe", pq, kv)
        den = torch.einsum("bhqd,bhd->bhq", pq, z)[..., None] + 1e-6
        o = num / den
        return (lambda x, *d: x.permute(*d))(o, 0, 2, 1, 3).reshape(B, S, D) @ wo

    def _B_ref(x, w1, b1, w2, b2):
        h = torch.einsum("bsd,df->bsf", x, w1) + b1
        zero = torch.zeros_like(h)
        r = torch.where(h > zero, h, zero)
        h = r * r
        out = torch.einsum("bsf,fd->bsd", h, w2) + b2
        return out

    x = A_x
    h = x + _A_ref(_layernorm(x, axis=-1), A_wqkv, A_wo)
    h2 = h + _B_ref(_layernorm(h, axis=-1), B_w1, B_b1, B_w2, B_b2)
    return h2
```

```python
NAME = "sequential_preLN__linear_attn_block__dense_activation_squared_relu__prompt"

def v(i, n=1): return f"v{i}" if n == 1 else f"v[{i}:{i+n-1}]"
def a(i, n=1): return f"a{i}" if n == 1 else f"a[{i}:{i+n-1}]"
def s(i, n=1): return f"s{i}" if n == 1 else f"s[{i}:{i+n-1}]"

class Asm:
    def __init__(self):
        self.lines = []
        self.uid = 0
    def __call__(self, txt):
        for l in txt.split("\n"):
            l = l.strip()
            if l: self.lines.append("    " + l)
    def label(self, name): self.lines.append(name + ":")
    def raw(self, txt): self.lines.append(txt)
    def comment(self, txt): self.lines.append("    ; " + txt)
    def newlabel(self, p="L"):
        self.uid += 1
        return f"{p}_{self.uid}"
    def text(self): return "\n".join(self.lines) + "\n"

HEADER_COMMENT = """; Kernarg layout for this problem (88 bytes, ptrs only, base s[0:1]):
"""

def kernel_begin(A, label):
    A.raw(f".globl {label}")
    A.raw(".p2align 8")
    A.raw(f".type {label},@function")
    A.label(label)

def kd(label, vgpr, sgpr=102, accum=None):
    if accum is None: accum = min(256, (vgpr + 3)//4*4)
    return f""".p2align 6
.amdhsa_kernel {label}
  .amdhsa_next_free_vgpr {vgpr}
  .amdhsa_next_free_sgpr {sgpr}
  .amdhsa_accum_offset {accum}
  .amdhsa_group_segment_fixed_size 0
  .amdhsa_kernarg_size 88
  .amdhsa_user_sgpr_count 2
  .amdhsa_user_sgpr_kernarg_segment_ptr 1
  .amdhsa_system_sgpr_workgroup_id_x 1
  .amdhsa_float_denorm_mode_32 3
.end_amdhsa_kernel
"""

def file_text(launch_lines, body, kds):
    return HEADER_COMMENT + "\n".join(launch_lines) + "\n" + '.amdgcn_target "amdgcn-amd-amdhsa--gfx950"\n.text\n' + body + '.section .rodata,"a"\n' + "".join(kds)

def srd(A, d, base, nbytes):
    A(f"s_mov_b32 {s(d)}, {s(base)}")
    A(f"s_and_b32 {s(d+1)}, {s(base+1)}, 0xffff")
    A(f"s_mov_b32 {s(d+2)}, {nbytes}")
    A(f"s_mov_b32 {s(d+3)}, 0x00020000")
```

```python
import re

TRANS = ("v_exp_f32","v_log_f32","v_rcp_f32","v_rsq_f32","v_sqrt_f32","v_sin_f32","v_cos_f32","v_rcp_iflag_f32","v_exp_f16","v_rcp_f16")
RMW = ("v_fmac","v_dot2c","v_mac","v_pk_fmac","v_dot4c","v_dot8c")

def split_ops(s):
    ops=[]; depth=0; cur=""
    for ch in s:
        if ch in "[(": depth+=1
        if ch in "])": depth-=1
        if ch=="," and depth==0:
            ops.append(cur.strip()); cur=""
        else: cur+=ch
    if cur.strip(): ops.append(cur.strip())
    return ops

REG_RE = re.compile(r"^(?:-|\|)?(?:abs\()?([vas])(?:(\d+)|\[(\d+):(\d+)\])")
def regs(op):
    op = op.strip()
    tok = op.split()[0] if op else ""
    if tok in ("vcc","vcc_lo","vcc_hi"): return {("s","vcc")}
    if tok in ("exec","exec_lo","exec_hi"): return {("s","exec")}
    if tok == "m0": return {("s","m0")}
    m = REG_RE.match(tok)
    if not m: return set()
    k = m.group(1)
    if m.group(2) is not None: lo=hi=int(m.group(2))
    else: lo,hi=int(m.group(3)),int(m.group(4))
    return {(k,i) for i in range(lo,hi+1)}

class Ins:
    __slots__=("text","mn","ops","cls","w","r","srcA","srcB","srcC","passes","data","addr","isdpp","ws","target","uncond","lds_dma","wide_store","sreads_const")
    def __init__(self,text):
        self.text=text
        t=text.split(";")[0].strip()
        parts=t.split(None,1)
        self.mn=parts[0]
        self.ops=split_ops(parts[1]) if len(parts)>1 else []
        mn=self.mn; ops=self.ops
        self.w=set(); self.r=set(); self.srcA=set(); self.srcB=set(); self.srcC=set(); self.passes=0
        self.data=set(); self.addr=set(); self.isdpp=("_dpp" in mn) or (" row_" in t) or ("quad_perm" in t); self.ws=1
        self.target=None; self.uncond=False; self.lds_dma=False; self.wide_store=False
        R=lambda i: regs(ops[i]) if i<len(ops) else set()
        if mn.startswith("v_mfma"):
            self.cls="mfma"; self.w=R(0); self.srcA=R(1); self.srcB=R(2); self.srcC=R(3); self.r=self.srcA|self.srcB|self.srcC
            self.passes = 8 if "32x32" in mn else 4
        elif mn.startswith("v_"):
            self.cls="trans" if mn.replace("_e32","").replace("_e64","") in TRANS else "valu"
            if mn.startswith("v_permlane") and "swap" in mn:
                self.w=R(0)|R(1); self.r=R(0)|R(1)
            elif mn.startswith(("v_add_co","v_sub_co","v_subrev_co","v_addc_co","v_subb_co","v_div_scale","v_mad_u64","v_mad_i64")):
                self.w=R(0)|R(1)
                for i in range(2,len(ops)): self.r|=R(i)
            elif mn=="v_nop": pass
            else:
                self.w=R(0)
                for i in range(1,len(ops)): self.r|=R(i)
                if mn.startswith(RMW): self.r|=R(0)
                if mn.startswith("v_cmpx"): self.w|={("s","exec")}
                if mn.startswith("v_writelane"): self.r|=R(0)
                if self.isdpp: self.r|=R(0)
        elif mn.startswith("buffer_") :
            self.cls="vmem"
            if mn in ("buffer_inv","buffer_wbl2"): pass
            elif re.search(r"\blds\b",t):
                self.lds_dma=True; self.addr=R(0); self.r=R(0)|R(1)|R(2)|{("s","m0")}
            elif mn.startswith("buffer_load"):
                self.w=R(0); self.addr=R(1); self.r=R(1)|R(2)|R(3)
            else:
                self.data=R(0); self.addr=R(1); self.r=R(0)|R(1)|R(2)|R(3)
                if "atomic" in mn and " sc0" in t: self.w=R(0)
                if mn.endswith(("x3","x4")): self.wide_store=True
        elif mn.startswith(("global_","flat_","scratch_")):
            self.cls="vmem"
            if "load_lds" in mn:
                self.lds_dma=True; self.r=R(0)|R(1)|{("s","m0")}
            elif "_load" in mn:
                self.w=R(0); self.r=R(1)|R(2)
            elif "atomic" in mn:
                if " sc0" in t: self.w=R(0); self.r=R(1)|R(2)|R(3); self.data=R(2)
                else: self.r=R(0)|R(1)|R(2); self.data=R(1)
            else:
                self.r=R(0)|R(1)|R(2); self.data=R(1)
                if mn.endswith(("x3","x4")): self.wide_store=True
        elif mn.startswith("ds_"):
            self.cls="ds"
            if mn.startswith(("ds_read","ds_bpermute","ds_permute","ds_swizzle")) or "_rtn" in mn:
                self.w=R(0)
                for i in range(1,len(ops)): self.r|=R(i)
            else:
                for i in range(len(ops)): self.r|=R(i)
        elif mn.startswith("s_"):
            self.cls="salu"
            if mn=="s_nop": self.ws=int(ops[0],0)+1
            elif mn.startswith("s_cbranch") : self.target=ops[0]
            elif mn=="s_branch": self.target=ops[0]; self.uncond=True
            elif mn=="s_endpgm": self.uncond=True
            elif mn.startswith(("s_cmp","s_waitcnt","s_barrier","s_sleep","s_setprio","s_bitcmp")):
                for i in range(len(ops)): self.r|=R(i)
            else:
                self.w=R(0)
                for i in range(1,len(ops)): self.r|=R(i)
                if "saveexec" in mn: self.w|={("s","exec")}
        else:
            raise ValueError("unknown instr: "+text)

def isvalu(i): return i.cls in ("valu","trans")
def vregs(S): return {x for x in S if x[0] in "va"}
def sregs(S): return {x for x in S if x[0]=="s"}

def need(p,c):
    n=0
    if isvalu(p):
        pw=vregs(p.w); ps=sregs(p.w)
        if c.cls=="mfma" and pw & c.r: n=max(n,2)
        if c.cls=="mfma" and ("s","exec") in ps: n=max(n,4)
        if isvalu(c):
            if p.cls=="trans" and c.cls!="trans" and pw & c.r: n=max(n,1)
            if p.cls=="trans" and c.cls=="trans" and pw & c.r: n=max(n,1)
            if c.mn.startswith("v_permlane") and pw & c.r: n=max(n,2)
            if c.isdpp and pw & c.r: n=max(n,2)
            if c.mn.startswith(("v_readlane","v_readfirstlane")) and pw & c.r: n=max(n,1)
            if ps & sregs(c.r):
                n=max(n,2)
                if c.mn.startswith(("v_readlane","v_writelane","v_div_fmas")): n=max(n,4)
            if ("s","exec") in ps and (c.isdpp): n=max(n,5)
            if ("s","exec") in ps and c.mn.startswith(("v_readlane","v_readfirstlane","v_writelane","v_permlane")): n=max(n,4)
            if ("sdwa" in p.mn or "op_sel:" in p.text) and not p.mn.startswith("v_pk_") and pw & (c.r|c.w): n=max(n,1)
        if c.cls in ("vmem",) and ps & sregs(c.r): n=max(n,5)
        if c.cls=="salu" and ps & sregs(c.r): n=max(n,1)
    if p.cls=="mfma":
        big = p.passes==8
        if c.cls=="mfma":
            if p.w & (c.srcA|c.srcB): n=max(n,12 if big else 8)
            if p.w & c.srcC:
                if not (p.w==c.srcC and p.passes==c.passes): n=max(n,10 if big else 6)
            elif p.w & c.w: n=max(n,10 if big else 6)
        elif isvalu(c):
            if p.w & (c.r|c.w): n=max(n,12 if big else 8)
            if p.srcC & c.w: n=max(n,7 if big else 3)
        elif c.cls in ("vmem","ds"):
            if p.w & (c.r|c.w): n=max(n,12 if big else 8)
    if p.cls=="salu" and ("s","m0") in p.w and c.lds_dma: n=max(n,1)
    if p.cls=="vmem" and p.wide_store and (p.data & c.w):
        n=max(n,2 if isvalu(c) else 1)
    return n

MAXW=12
class Node:
    __slots__=("kind","obj","pad")
    def __init__(self,kind,obj): self.kind=kind; self.obj=obj; self.pad=0
def fix(lines):
    items=[]
    for l in lines:
        s=l.strip()
        if not s or s.startswith(";") or s.startswith("."): items.append(Node("x",l)); continue
        if re.match(r"^[\w.$]+:$",s): items.append(Node("l",s[:-1])); continue
        items.append(Node("i",Ins(s)))
    labels={n.obj:i for i,n in enumerate(items) if n.kind=="l"}
    jumps={}
    for i,n in enumerate(items):
        if n.kind=="i" and n.obj.target is not None and n.obj.target in labels:
            jumps.setdefault(labels[n.obj.target],[]).append(i)
    preds={}
    for i,n in enumerate(items):
        if n.kind!="i": continue
        P=[]; t=i-1
        while t>=0:
            m=items[t]
            if m.kind=="l": P+=jumps.get(t,[])
            elif m.kind=="x":
                if m.obj.strip().startswith(".p2align 8"): break
            else:
                if not m.obj.uncond: P.append(t)
                break
            t-=1
        preds[i]=P
    inserted=0
    changed=True
    while changed:
        changed=False
        for i,n in enumerate(items):
            if n.kind!="i" or n.obj.mn=="s_nop": continue
            o=n.obj; worst=0
            stack=[(p,n.pad) for p in preds[i]]; seen=set()
            while stack:
                j,d=stack.pop()
                if d>=MAXW or (j,d) in seen: continue
                seen.add((j,d))
                oo=items[j].obj
                k=need(oo,o)
                if k>d: worst=max(worst,k-d)
                d2=d+oo.ws+items[j].pad
                for p in preds[j]: stack.append((p,d2))
            if worst>0:
                n.pad+=worst; inserted+=1; changed=True
    out=[]
    for n in items:
        if n.kind=="i":
            if n.pad: out.append(f"    s_nop {n.pad-1}")
            out.append("    "+n.obj.text)
        elif n.kind=="l": out.append(n.obj+":")
        else: out.append(n.obj)
    return out, inserted
```

```python
import sys
sys.path.insert(0, "dev")
from asmgen import *
import hazard

WS_O  = 0
WS_H  = WS_O + 2621440
WS_R  = WS_H + 2621440
WS_WO = WS_R + 6291456
WS_W1 = WS_WO + 819200
WS_W2 = WS_W1 + 1966080
WS_KV = WS_W2 + 1966080
KV_STRIDE = 3584
WS_ST = WS_KV + 256*KV_STRIDE
WS_END = WS_ST + 131072
LOG2E = 0x3fb8aa3b
EPS6 = 0x358637bd
EPS5 = 0x3727c5ac
INV640 = 0x3acccccd
ONES = 0x3f803f80

class LG:
    def __init__(self, A): self.A = A; self.q = []
    def issue(self, tag, txt): self.A(txt); self.q.append(tag)
    def wait(self, tag):
        if tag not in self.q: return
        idx = len(self.q) - 1 - self.q[::-1].index(tag)
        n = len(self.q) - 1 - idx
        self.A(f"s_waitcnt lgkmcnt({min(n,15)})")
        if n <= 15: self.q = self.q[idx+1:]
        else: self.q = self.q[len(self.q)-15:]
    def wait_all(self):
        self.A("s_waitcnt lgkmcnt(0)"); self.q = []

def mfma(A, d, x, y, c=None):
    A(f"v_mfma_f32_16x16x32_bf16 {d}, {x}, {y}, {d if c is None else c}")

def prologue(A, nwg=256):
    A(f"s_cmp_ge_u32 s2, {nwg}")
    A(f"s_cbranch_scc1 {A.endl}")
    A("s_load_dwordx16 s[4:19], s[0:1], 0")
    A("s_load_dwordx4 s[20:23], s[0:1], 64")
    A("s_load_dwordx2 s[24:25], s[0:1], 80")
    A("v_and_b32 v1, 63, v0")
    A("v_lshrrev_b32 v2, 6, v0")
    A("v_readfirstlane_b32 s26, v2")
    A("s_and_b32 s27, s2, 7")
    A("s_lshr_b32 s28, s2, 3")

def map_ig(A, si, sg):
    A(f"s_lshr_b32 {s(si)}, s27, 1"); A(f"s_lshl_b32 {s(si)}, {s(si)}, 2"); A(f"s_and_b32 {s(sg)}, s28, 3"); A(f"s_add_u32 {s(si)}, {s(si)}, {s(sg)}")
    A(f"s_and_b32 {s(sg)}, s27, 1"); A(f"s_lshl_b32 {s(sg)}, {s(sg)}, 3"); A(f"s_lshr_b32 s29, s28, 2"); A(f"s_add_u32 {s(sg)}, {s(sg)}, s29")
def map_jc(A, sj, sc):
    A(f"s_lshr_b32 {s(sj)}, s27, 1"); A(f"s_lshl_b32 {s(sj)}, {s(sj)}, 3")
    A(f"s_and_b32 s29, s28, 3"); A(f"s_lshl_b32 s29, s29, 1"); A(f"s_add_u32 {s(sj)}, {s(sj)}, s29")
    A(f"s_lshr_b32 s29, s28, 2"); A(f"s_and_b32 s29, s29, 1"); A(f"s_add_u32 {s(sj)}, {s(sj)}, s29")
    A(f"s_and_b32 {s(sc)}, s27, 1"); A(f"s_lshl_b32 {s(sc)}, {s(sc)}, 2"); A(f"s_lshr_b32 s29, s28, 3"); A(f"s_add_u32 {s(sc)}, {s(sc)}, s29")

def kperm(A, dst, p, t1, t2):
    A(f"v_and_b32 {v(t1)}, 12, {v(p)}"); A(f"v_lshlrev_b32 {v(t1)}, 1, {v(t1)}")
    A(f"v_lshrrev_b32 {v(t2)}, 4, {v(p)}"); A(f"v_lshlrev_b32 {v(t2)}, 2, {v(t2)}")
    A(f"v_and_b32 {v(dst)}, 3, {v(p)}")
    A(f"v_or3_b32 {v(dst)}, {v(dst)}, {v(t1)}, {v(t2)}")

def round_bf16(A, r):
    A(f"v_cvt_pk_bf16_f32 {v(r)}, {v(r)}, {v(r)}")
    A(f"v_and_b32 {v(r)}, 0xffff0000, {v(r)}")

def ln_stats(A, vsum, vssq, t):
    A(f"v_mul_f32 {v(vsum)}, 0x{INV640:x}, {v(vsum)}")
    A(f"v_mul_f32 {v(t)}, {v(vsum)}, {v(vsum)}")
    A(f"v_mov_b32 {v(t+1)}, 0x{INV640:x}")
    A(f"v_fma_f32 {v(vssq)}, {v(vssq)}, {v(t+1)}, -{v(t)}")
    A(f"v_max_f32 {v(vssq)}, 0, {v(vssq)}")
    round_bf16(A, vssq)
    A(f"v_add_f32 {v(vssq)}, 0x{EPS5:x}, {v(vssq)}")
    round_bf16(A, vssq)
    A(f"v_sqrt_f32 {v(vssq)}, {v(vssq)}")
    round_bf16(A, vssq)
    A(f"v_rcp_f32 {v(vssq)}, {v(vssq)}")
    round_bf16(A, vsum)
    A(f"v_xor_b32 {v(vsum)}, 0x80000000, {v(vsum)}")

def gen_k1(A):
    A.endl = "K1_end"
    kernel_begin(A, "k1_kernel")
    prologue(A)
    SI, SG = 30, 31
    map_ig(A, SI, SG)
    SX, SW, SWS, SD, SP = 32, 36, 40, 44, 48
    MISC = 131072
    L_KVN = MISC; L_KVD = MISC + 6144; L_RSTD = MISC + 6400; L_NMEAN = L_RSTD + 512; L_CS = L_NMEAN + 512
    L_PACK = MISC + 8192
    vXa, vXb, vWa, vWb = 4, 5, 6, 7
    vXr = [8, 9]; vWr = list(range(10, 18)); vCr = [18, 19]
    vONE = 20
    vT = 24
    vXF = 40
    vWF = 56
    vAK = 136
    vAQ = 176
    vAS = 200
    vASS = 208
    vAC = 216
    vG = 224
    XF = lambda sp, mt: vXF + (sp*2+mt)*4
    WF = lambda sp, t: vWF + (sp*10+t)*4
    AK = lambda mt, t: vAK + (mt*5+t)*4
    AQ = lambda mt, t: vAQ + (mt*3+t)*4
    t0, t1, t2, t3, t4, t5 = range(vT, vT+6)
    A(f"v_lshrrev_b32 {v(t0)}, 3, v1")
    A(f"v_and_b32 {v(t1)}, 7, v1")
    A(f"v_lshrrev_b32 {v(t2)}, 1, {v(t0)}")
    A(f"v_xor_b32 {v(t3)}, {v(t1)}, {v(t2)}")
    A(f"v_xor_b32 {v(t4)}, 4, {v(t3)}")
    A(f"s_lshl_b32 s52, {s(SI)}, 7"); A("s_lshl_b32 s53, s26, 5"); A("s_add_u32 s52, s52, s53")
    A(f"v_add_u32 {v(t0)}, s52, {v(t0)}")
    A(f"v_mul_u32_u24 {v(t0)}, 1280, {v(t0)}")
    A(f"v_lshl_add_u32 {v(vXa)}, {v(t3)}, 4, {v(t0)}")
    A(f"v_lshl_add_u32 {v(vXb)}, {v(t4)}, 4, {v(t0)}")
    A(f"v_add_u32 {v(vXb)}, {8*1280}, {v(vXb)}")
    A(f"s_mul_i32 s53, {s(SG)}, 80")
    for jj, dst in ((0, vWa), (1, vWb)):
        A(f"v_lshrrev_b32 {v(t0)}, 4, v1")
        A(f"s_lshl_b32 s54, s26, 3"); A(f"s_add_u32 s54, s54, {4*jj}")
        A(f"v_add_u32 {v(t0)}, s54, {v(t0)}")
        A(f"v_bfe_u32 {v(t1)}, v1, 1, 3")
        A(f"v_and_b32 {v(t2)}, 7, {v(t0)}")
        A(f"v_xor_b32 {v(t1)}, {v(t1)}, {v(t2)}")
        A(f"v_and_b32 {v(t2)}, 1, v1")
        A(f"v_lshl_or_b32 {v(t1)}, {v(t1)}, 1, {v(t2)}")
        A(f"v_min_u32 {v(t1)}, 14, {v(t1)}")
        A(f"v_mov_b32 {v(t2)}, 1280")
        A(f"v_mov_b32 {v(t3)}, {2560-80}")
        A(f"v_cmp_le_u32 vcc, 5, {v(t1)}")
        A(f"v_cndmask_b32 {v(t2)}, {v(t2)}, {v(t3)}, vcc")
        A(f"v_mov_b32 {v(t3)}, -160")
        A(f"v_cmp_le_u32 vcc, 10, {v(t1)}")
        A(f"v_cndmask_b32 {v(t2)}, {v(t2)}, {v(t3)}, vcc")
        A(f"v_lshl_add_u32 {v(t1)}, {v(t1)}, 4, {v(t2)}")
        kperm(A, t2, t0, t3, t4)
        A(f"v_mul_u32_u24 {v(t2)}, 3840, {v(t2)}")
        A(f"v_add3_u32 {v(dst)}, {v(t1)}, {v(t2)}, s53")
    A("s_waitcnt lgkmcnt(0)")
    srd(A, SX, 4, 2048*1280); srd(A, SW, 6, 640*3840); srd(A, SWS, 24, WS_END); srd(A, SD, 22, 256)
    A("s_lshl_b32 s59, s26, 12"); A("s_add_u32 s59, s59, 16384")
    A("s_lshl_b32 s60, s26, 11")
    def issue_dma():
        A("s_add_u32 s61, s58, s60")
        A("s_add_u32 s62, s58, s59")
        for sp in range(2):
            A(f"s_add_u32 m0, s61, {sp*8192}")
            if sp: A("s_add_u32 s63, s57, 122880")
            sw = "s63" if sp else "s57"
            A(f"buffer_load_dwordx4 {v(vWa)}, {s(SW,4)}, {sw} offen lds")
            A(f"s_add_u32 m0, s61, {sp*8192+1024}")
            A(f"buffer_load_dwordx4 {v(vWb)}, {s(SW,4)}, {sw} offen lds")
            A(f"s_add_u32 m0, s62, {sp*2048}")
            if sp: A("s_add_u32 s63, s56, 20480")
            sx = "s63" if sp else "s56"
            A(f"buffer_load_dwordx4 {v(vXa)}, {s(SX,4)}, {sx} offen lds")
            A(f"s_add_u32 m0, s62, {sp*2048+1024}")
            A(f"buffer_load_dwordx4 {v(vXb)}, {s(SX,4)}, {sx} offen lds")
        A("s_add_u32 s56, s56, 128"); A("s_add_u32 s57, s57, 245760")
    A("s_mov_b32 s56, 0"); A("s_mov_b32 s57, 0")
    for slot in (0, 1, 3):
        A(f"s_mov_b32 s58, {slot*32768}")
        issue_dma()
    A(f"s_mov_b32 s58, {2*32768}")
    A(f"v_and_b32 {v(t0)}, 15, v1")
    A(f"v_lshrrev_b32 {v(t1)}, 4, v1")
    A(f"v_bfe_u32 {v(t2)}, v1, 1, 3")
    A(f"v_xor_b32 {v(t2)}, {v(t1)}, {v(t2)}")
    A(f"v_lshl_add_u32 {v(t2)}, {v(t0)}, 3, {v(t2)}")
    A(f"v_lshlrev_b32 {v(t2)}, 4, {v(t2)}")
    A(f"v_add_u32 {v(vXr[0])}, s59, {v(t2)}")
    A(f"v_xor_b32 {v(vXr[1])}, 64, {v(vXr[0])}")
    A(f"v_lshrrev_b32 {v(t0)}, 2, v1")
    A(f"v_and_b32 {v(t1)}, 7, {v(t0)}")
    A(f"v_lshlrev_b32 {v(t0)}, 8, {v(t0)}")
    A(f"v_lshl_or_b32 {v(t0)}, {v(t1)}, 5, {v(t0)}")
    A(f"v_and_b32 {v(t1)}, 3, v1")
    A(f"v_lshl_or_b32 {v(vWr[0])}, {v(t1)}, 3, {v(t0)}")
    for t in range(1, 8): A(f"v_xor_b32 {v(vWr[t])}, {t*32}, {v(vWr[0])}")
    A("s_lshl_b32 s64, s26, 6")
    A(f"v_xor_b32 {v(vCr[0])}, s64, {v(vWr[0])}")
    A(f"v_xor_b32 {v(vCr[1])}, 32, {v(vCr[0])}")
    for r in range(4): A(f"v_mov_b32 {v(vONE+r)}, 0x{ONES:x}")
    for r in range(vAK, vAC+8): A(f"v_mov_b32 {v(r)}, 0")
    for r in list(range(XF(1,0), XF(1,0)+8)) + list(range(WF(1,0), WF(1,0)+40)): A(f"v_mov_b32 {v(r)}, 0")
    A(f"v_mov_b32 {v(t2)}, 0"); A(f"v_mov_b32 {v(t3)}, 0"); A(f"v_mov_b32 {v(t4)}, 0"); A(f"v_mov_b32 {v(t5)}, 0")
    A(f"v_lshlrev_b32 {v(t0)}, 4, v0"); A(f"v_add_u32 {v(t0)}, {L_KVN}, {v(t0)}")
    A(f"ds_write_b128 {v(t0)}, {v(t2,4)}")
    A(f"v_cmp_gt_u32 vcc, 144, v0"); A("s_and_saveexec_b64 s[66:67], vcc")
    A(f"ds_write_b128 {v(t0)}, {v(t2,4)} offset:4096")
    A("s_mov_b64 exec, s[66:67]")
    g0, g1, g2, g3 = vG, vG+1, vG+2, vG+3
    A(f"v_mul_u32_u24 {v(t0)}, 13108, v0"); A(f"v_lshrrev_b32 {v(t0)}, 16, {v(t0)}")
    A(f"v_mul_u32_u24 {v(t1)}, 5, {v(t0)}"); A(f"v_sub_u32 {v(t1)}, v0, {v(t1)}")
    A(f"v_cmp_le_u32 vcc, 21, {v(t0)}")
    A(f"v_cndmask_b32 {v(t2)}, 0, 1, vcc")
    A(f"v_mul_u32_u24 {v(t3)}, 21, {v(t2)}"); A(f"v_sub_u32 {v(t0)}, {v(t0)}, {v(t3)}")
    A(f"v_mul_u32_u24 {v(t3)}, 5, {v(t2)}"); A(f"v_add_u32 {v(t1)}, {v(t1)}, {v(t3)}")
    A(f"v_mul_u32_u24 {v(t3)}, 20, {v(t2)}"); A(f"v_add_u32 {v(t3)}, {v(t3)}, {v(t0)}")
    A(f"v_add_u32 {v(t4)}, 40, {v(t3)}")
    A(f"v_cmp_eq_u32 vcc, 20, {v(t0)}")
    A(f"v_cndmask_b32 {v(t4)}, {v(t4)}, 32, vcc")
    A(f"v_lshlrev_b32 {v(t3)}, 7, {v(t3)}"); A(f"v_add_u32 {v(t3)}, {L_KVN}, {v(t3)}")
    A(f"v_lshlrev_b32 {v(t2)}, 7, {v(t2)}"); A(f"v_add_u32 {v(t2)}, {L_KVD}, {v(t2)}")
    A(f"v_cndmask_b32 {v(t3)}, {v(t3)}, {v(t2)}, vcc")
    A(f"v_lshrrev_b32 {v(t0)}, 2, {v(t1)}"); A(f"v_and_b32 {v(t1)}, 3, {v(t1)}")
    A(f"v_lshrrev_b32 {v(t2)}, 1, {v(t0)}"); A(f"v_lshl_add_u32 {v(t3)}, {v(t2)}, 6, {v(t3)}")
    A(f"v_lshl_add_u32 {v(t3)}, {v(t1)}, 4, {v(t3)}")
    A(f"v_and_b32 {v(t2)}, 1, {v(t0)}"); A(f"v_lshl_add_u32 {v(g2)}, {v(t2)}, 3, {v(t3)}")
    A(f"v_lshrrev_b32 {v(t2)}, 4, {v(t4)}"); A(f"v_add_u32 {v(t2)}, -2, {v(t2)}")
    A(f"v_mul_u32_u24 {v(t3)}, 5, {v(t0)}"); A(f"v_lshrrev_b32 {v(t3)}, 1, {v(t3)}")
    A(f"v_add_u32 {v(t2)}, {v(t2)}, {v(t3)}"); A(f"v_lshlrev_b32 {v(t2)}, 10, {v(t2)}")
    A(f"v_and_b32 {v(t4)}, 15, {v(t4)}"); A(f"v_lshl_add_u32 {v(t4)}, {v(t1)}, 4, {v(t4)}")
    A(f"v_lshl_add_u32 {v(g0)}, {v(t4)}, 4, {v(t2)}")
    A(f"s_mul_i32 s65, {s(SG)}, {16*KV_STRIDE}"); A(f"s_add_u32 s65, s65, {WS_KV}")
    A(f"v_lshlrev_b32 {v(g1)}, 4, v0"); A(f"v_add_u32 {v(g1)}, s65, {v(g1)}")
    def mfmas(sp):
        L = []
        for mt in range(2):
            L.append(("x", f"v_mfma_f32_16x16x32_bf16 {v(vAS+4*mt,4)}, {v(vONE,4)}, {v(XF(sp,mt),4)}, {v(vAS+4*mt,4)}"))
            L.append(("x", f"v_mfma_f32_16x16x32_bf16 {v(vASS+4*mt,4)}, {v(XF(sp,mt),4)}, {v(XF(sp,mt),4)}, {v(vASS+4*mt,4)}"))
        for t in range(5):
            for mt in range(2):
                L.append((t, f"v_mfma_f32_16x16x32_bf16 {v(AK(mt,t),4)}, {v(XF(sp,mt),4)}, {v(WF(sp,t),4)}, {v(AK(mt,t),4)}"))
        for t in range(3):
            for mt in range(2):
                L.append((5+t, f"v_mfma_f32_16x16x32_bf16 {v(AQ(mt,t),4)}, {v(WF(sp,5+t),4)}, {v(XF(sp,mt),4)}, {v(AQ(mt,t),4)}"))
        for i in range(2):
            L.append((8+i, f"v_mfma_f32_16x16x32_bf16 {v(vAC+4*i,4)}, {v(vONE,4)}, {v(WF(sp,8+i),4)}, {v(vAC+4*i,4)}"))
        return L
    def reads(sp):
        L = []
        for mt in range(2): L.append(f"ds_read_b128 {v(XF(sp,mt),4)}, {v(vXr[sp])} offset:{mt*2048}")
        for t in range(10):
            ar = vWr[t] if t < 8 else vCr[t-8]
            for jj in range(2): L.append(f"ds_read_b64_tr_b16 {v(WF(sp,t)+2*jj,2)}, {v(ar)} offset:{sp*8192+jj*4096}")
        return L
    def interleave(M, R):
        for k, (_, m) in enumerate(M):
            A(m)
            if k < len(R): A(R[k])
        for r in R[len(M):]: A(r)
    A("s_mov_b32 s55, 0"); A("s_mov_b32 s68, 32768")
    A.label("K1_loop")
    A("s_cmp_lt_u32 s55, 8"); A("s_cbranch_scc1 K1_w16")
    A("s_cmp_eq_u32 s55, 8"); A("s_cbranch_scc1 K1_w8")
    A("s_waitcnt vmcnt(0)")
    A.label("K1_w8"); A("s_waitcnt vmcnt(8)")
    A.label("K1_w16"); A("s_waitcnt vmcnt(16) lgkmcnt(0)")
    A("s_barrier")
    A("s_cmp_ge_u32 s55, 7"); A("s_cbranch_scc1 K1_nodma")
    issue_dma()
    A("s_xor_b32 s69, s68, 98304")
    A("s_xor_b32 s58, s58, s69")
    A.label("K1_nodma")
    interleave(mfmas(1), reads(0))
    A("s_cmp_eq_u32 s55, 10"); A("s_cbranch_scc1 K1_done")
    A("s_waitcnt lgkmcnt(0)")
    interleave(mfmas(0), reads(1))
    for r in vXr + vWr + vCr: A(f"v_xor_b32 {v(r)}, s68, {v(r)}")
    A("s_xor_b32 s68, s68, 98304")
    A("s_add_u32 s55, s55, 1")
    A("s_branch K1_loop")
    A.label("K1_done")
    A("s_waitcnt lgkmcnt(0)")
    lg = LG(A)
    A(f"v_and_b32 {v(t0)}, 3, v1")
    A(f"v_cmp_eq_u32 s[70:71], 1, {v(t0)}"); A(f"v_cmp_eq_u32 s[72:73], 2, {v(t0)}"); A(f"v_cmp_eq_u32 s[74:75], 3, {v(t0)}")
    A(f"v_bfe_u32 {v(t0)}, v1, 2, 2"); A(f"v_lshrrev_b32 {v(t1)}, 4, v1")
    A(f"v_cmp_eq_u32 s[76:77], {v(t0)}, {v(t1)}")
    A(f"v_and_b32 {v(t2)}, 15, v1"); A("s_lshl_b32 s64, s26, 7")
    A(f"v_lshl_add_u32 {v(t2)}, {v(t2)}, 2, s64")
    A(f"v_add_u32 {v(t2)}, {L_RSTD}, {v(t2)}")
    for mt in range(2):
        q_ = vASS + 4*mt
        A(f"v_cndmask_b32 {v(q_)}, {v(q_)}, {v(q_+1)}, s[70:71]")
        A(f"v_cndmask_b32 {v(q_)}, {v(q_)}, {v(q_+2)}, s[72:73]")
        A(f"v_cndmask_b32 {v(q_)}, {v(q_)}, {v(q_+3)}, s[74:75]")
        ln_stats(A, vAS+4*mt, q_, t3)
    A("s_mov_b64 exec, s[76:77]")
    for mt in range(2):
        A(f"ds_write_b32 {v(t2)}, {v(vASS+4*mt)} offset:{mt*64}")
        A(f"ds_write_b32 {v(t2)}, {v(vAS+4*mt)} offset:{512+mt*64}")
    A("s_mov_b64 exec, 0xffff")
    A(f"v_lshl_add_u32 {v(t3)}, v1, 2, s64"); A(f"v_add_u32 {v(t3)}, {L_CS}, {v(t3)}")
    A(f"ds_write_b32 {v(t3)}, {v(vAC)}"); A(f"ds_write_b32 {v(t3)}, {v(vAC+4)} offset:64")
    A("s_mov_b64 exec, -1")
    A("s_waitcnt lgkmcnt(0)"); A("s_barrier")
    RS = 56; NM = 64; RL2 = 72; CSK = 80; rl = 86; nl = 88; rl2 = 90; CSQ = 92
    A(f"v_lshrrev_b32 {v(t0)}, 4, v1"); A(f"v_lshl_add_u32 {v(t0)}, {v(t0)}, 4, s64"); A(f"v_add_u32 {v(t0)}, {L_RSTD}, {v(t0)}")
    for mt in range(2):
        A(f"ds_read_b128 {v(RS+4*mt,4)}, {v(t0)} offset:{mt*64}")
        A(f"ds_read_b128 {v(NM+4*mt,4)}, {v(t0)} offset:{512+mt*64}")
    A(f"v_and_b32 {v(t1)}, 15, v1"); A(f"v_lshlrev_b32 {v(t1)}, 2, {v(t1)}"); A(f"v_add_u32 {v(t1)}, {L_CS}, {v(t1)}")
    for t in range(5): A(f"ds_read_b32 {v(CSK+t)}, {v(t1)} offset:{t*64}")
    for mt in range(2):
        A(f"ds_read_b32 {v(rl+mt)}, {v(t2)} offset:{mt*64}")
        A(f"ds_read_b32 {v(nl+mt)}, {v(t2)} offset:{512+mt*64}")
    A(f"v_lshrrev_b32 {v(t1)}, 4, v1"); A(f"v_lshlrev_b32 {v(t1)}, 4, {v(t1)}"); A(f"v_add_u32 {v(t1)}, {L_CS+320}, {v(t1)}")
    for t in range(3): A(f"ds_read_b128 {v(CSQ+4*t,4)}, {v(t1)} offset:{t*64}")
    A("s_waitcnt lgkmcnt(0)")
    A(f"s_mov_b32 s78, 0x{LOG2E:x}"); A(f"s_mov_b32 s79, 0x{EPS6:x}")
    for r in range(8): A(f"v_mul_f32 {v(RL2+r)}, s78, {v(RS+r)}")
    for mt in range(2): A(f"v_mul_f32 {v(rl2+mt)}, s78, {v(rl+mt)}")
    PK = 104; PV = 116
    def phi(c, rs, r2, tmp):
        A(f"v_mul_f32 {v(tmp)}, {v(c)}, {v(r2)}")
        A(f"v_fma_f32 {v(c)}, {v(c)}, {v(rs)}, s79")
        A(f"v_exp_f32 {v(tmp)}, {v(tmp)} clamp")
        A(f"v_max_f32 {v(c)}, s79, {v(c)}")
        A(f"v_add_f32 {v(c)}, {v(c)}, {v(tmp)}")
    for t in range(5):
        for mt in range(2):
            for r in range(4):
                A(f"v_fma_f32 {v(AK(mt,t)+r)}, {v(NM+4*mt+r)}, {v(CSK+t)}, {v(AK(mt,t)+r)}")
        if t >= 2:
            for mt in range(2):
                for r in range(4): A(f"v_mul_f32 {v(vT+4*mt+r)}, {v(AK(mt,t)+r)}, {v(RS+4*mt+r)}")
                for h in range(2): A(f"v_cvt_pk_bf16_f32 {v(PV+4*(t-2)+2*mt+h)}, {v(vT+4*mt+2*h)}, {v(vT+4*mt+2*h+1)}")
        if t <= 2:
            for mt in range(2):
                for r in range(4): phi(AK(mt,t)+r, RS+4*mt+r, RL2+4*mt+r, vT+8+r)
                for h in range(2): A(f"v_cvt_pk_bf16_f32 {v(PK+4*t+2*mt+h)}, {v(AK(mt,t)+2*h)}, {v(AK(mt,t)+2*h+1)}")
    A(f"v_and_b32 {v(t0)}, 15, v1"); A(f"v_cmp_gt_u32 vcc, 8, {v(t0)}")
    for r in range(4): A(f"v_cndmask_b32 {v(PV+r)}, {v(PV+r)}, {v(vONE)}, vcc")
    prods = [(0,2),(0,3),(1,2),(1,3),(1,4),(2,2),(2,3),(2,4)]
    KVP = 136
    for n, (ta, tb) in enumerate(prods):
        mfma(A, v(KVP+4*n,4), v(PK+4*ta,4), v(PV+4*(tb-2),4), "0")
    A("s_lshl_b32 s64, s26, 13")
    A(f"v_lshl_add_u32 {v(t0)}, v1, 4, s64")
    for n in range(8): A(f"ds_write_b128 {v(t0)}, {v(KVP+4*n,4)} offset:{n*1024}")
    A("s_waitcnt lgkmcnt(0)"); A("s_barrier")
    A("v_cmp_gt_u32 vcc, 210, v0"); A("s_and_saveexec_b64 s[66:67], vcc"); A("s_cbranch_execz K1_nopub")
    for w in range(4): A(f"ds_read_b128 {v(KVP+4*w,4)}, {v(g0)} offset:{w*8192}")
    A("s_waitcnt lgkmcnt(0)")
    for r in range(4):
        A(f"v_add_f32 {v(KVP+r)}, {v(KVP+r)}, {v(KVP+4+r)}"); A(f"v_add_f32 {v(KVP+8+r)}, {v(KVP+8+r)}, {v(KVP+12+r)}")
    for r in range(4): A(f"v_add_f32 {v(KVP+r)}, {v(KVP+r)}, {v(KVP+8+r)}")
    A(f"s_mul_i32 s64, {s(SI)}, {KV_STRIDE}")
    A(f"buffer_store_dwordx4 {v(KVP,4)}, {v(g1)}, {s(SWS,4)}, s64 offen sc1")
    A.label("K1_nopub")
    A("s_mov_b64 exec, s[66:67]")
    A("s_waitcnt vmcnt(0)"); A("s_barrier")
    A(f"s_lshl_b32 s64, {s(SG)}, 4")
    A(f"v_mov_b32 {v(g3)}, s64")
    A("s_cmp_lg_u32 s26, 0"); A("s_cbranch_scc1 K1_noinc")
    A("s_mov_b64 exec, 1")
    A(f"v_mov_b32 {v(t0)}, 1")
    A(f"buffer_atomic_add {v(t0)}, {v(g3)}, {s(SD,4)}, 0 offen sc1")
    A("s_mov_b64 exec, -1")
    A.label("K1_noinc")
    pa, pr = vG+4, vG+5
    A("s_lshl_b32 s80, s2, 2"); A("s_add_u32 s80, s80, s26")
    A("s_lshl_b32 s81, s26, 12"); A(f"s_add_u32 s81, s81, {L_PACK}")
    A(f"v_lshrrev_b32 {v(t0)}, 2, v1"); A(f"v_bfe_u32 {v(t1)}, v1, 3, 2")
    A(f"v_lshlrev_b32 {v(t0)}, 7, {v(t0)}"); A(f"v_lshl_or_b32 {v(t0)}, {v(t1)}, 5, {v(t0)}")
    A(f"v_and_b32 {v(t1)}, 3, v1"); A(f"v_lshl_or_b32 {v(t0)}, {v(t1)}, 3, {v(t0)}")
    A(f"v_add_u32 {v(pr)}, s81, {v(t0)}")
    A.label("K1_pack")
    A("s_cmp_lt_u32 s80, 200"); A("s_cbranch_scc1 K1_p_wo")
    A("s_cmp_lt_u32 s80, 680"); A("s_cbranch_scc1 K1_p_w1")
    A("s_sub_u32 s87, s80, 680"); A(f"s_mov_b32 {s(SP)}, s16"); A(f"s_and_b32 {s(SP+1)}, s17, 0xffff"); A(f"s_mov_b32 {s(SP+2)}, {1536*1280}")
    A(f"s_mov_b32 s85, {WS_W2}"); A("s_movk_i32 s86, 192"); A("s_branch K1_p_d10")
    A.label("K1_p_w1")
    A("s_sub_u32 s87, s80, 200"); A(f"s_mov_b32 {s(SP)}, s12"); A(f"s_and_b32 {s(SP+1)}, s13, 0xffff"); A(f"s_mov_b32 {s(SP+2)}, {640*3072}")
    A(f"s_mov_b32 s85, {WS_W1}"); A("s_movk_i32 s86, 80"); A("s_movk_i32 s84, 3072")
    A("s_mul_i32 s82, s87, 2731"); A("s_lshr_b32 s82, s82, 16"); A("s_mul_i32 s83, s82, 24"); A("s_sub_u32 s83, s87, s83")
    A("s_branch K1_p_go")
    A.label("K1_p_wo")
    A("s_mov_b32 s87, s80"); A(f"s_mov_b32 {s(SP)}, s8"); A(f"s_and_b32 {s(SP+1)}, s9, 0xffff"); A(f"s_mov_b32 {s(SP+2)}, {640*1280}")
    A(f"s_mov_b32 s85, {WS_WO}"); A("s_movk_i32 s86, 80")
    A.label("K1_p_d10")
    A("s_movk_i32 s84, 1280")
    A("s_mul_i32 s82, s87, 6554"); A("s_lshr_b32 s82, s82, 16"); A("s_mul_i32 s83, s82, 10"); A("s_sub_u32 s83, s87, s83")
    A.label("K1_p_go")
    A(f"s_mov_b32 {s(SP+3)}, 0x00020000")
    A("s_lshl_b32 s87, s82, 5"); A("s_mul_i32 s87, s87, s84"); A("s_lshl_b32 s88, s83, 7"); A("s_add_u32 s87, s87, s88")
    for j in range(4):
        A(f"v_lshrrev_b32 {v(t0)}, 3, v1"); A(f"v_add_u32 {v(t0)}, {8*j}, {v(t0)}")
        kperm(A, t1, t0, t2, t3)
        A(f"v_mul_lo_u32 {v(t1)}, {v(t1)}, s84")
        A(f"v_bfe_u32 {v(t2)}, v1, 1, 2"); A(f"v_bfe_u32 {v(t3)}, {v(t0)}, 1, 2"); A(f"v_xor_b32 {v(t2)}, {v(t2)}, {v(t3)}")
        A(f"v_and_b32 {v(t3)}, 1, v1"); A(f"v_lshl_or_b32 {v(t2)}, {v(t2)}, 1, {v(t3)}")
        A(f"v_lshl_add_u32 {v(t1)}, {v(t2)}, 4, {v(t1)}")
        A(f"s_add_u32 m0, s81, {j*1024}")
        A(f"buffer_load_dwordx4 {v(t1)}, {s(SP,4)}, s87 offen lds")
    A("s_lshl_b32 s88, s83, 2"); A("s_mul_i32 s88, s88, s86"); A("s_lshl_b32 s89, s82, 2"); A("s_add_u32 s88, s88, s89")
    A("s_lshl_b32 s88, s88, 8"); A("s_add_u32 s88, s88, s85"); A("s_lshl_b32 s86, s86, 8")
    A(f"v_lshlrev_b32 {v(pa)}, 4, v1")
    A("s_waitcnt vmcnt(0)")
    PF = KVP
    for t in range(4):
        A(f"v_xor_b32 {v(t0)}, {t*32}, {v(pr)}")
        for jj in range(2): A(f"ds_read_b64_tr_b16 {v(PF+4*t+2*jj,2)}, {v(t0)} offset:{jj*2048}")
    A("s_waitcnt lgkmcnt(0)")
    for t in range(4):
        A(f"buffer_store_dwordx4 {v(PF+4*t,4)}, {v(pa)}, {s(SWS,4)}, s88 offen")
        A("s_add_u32 s88, s88, s86")
    A("s_add_u32 s80, s80, 1024")
    A("s_cmp_lt_u32 s80, 1160"); A("s_cbranch_scc1 K1_pack")
    PQ = 104
    for mt in range(2):
        for t in range(3):
            for r in range(4):
                A(f"v_fma_f32 {v(AQ(mt,t)+r)}, {v(nl+mt)}, {v(CSQ+4*t+r)}, {v(AQ(mt,t)+r)}")
            for r in range(4): phi(AQ(mt,t)+r, rl+mt, rl2+mt, vT+8+r)
            for h in range(2): A(f"v_cvt_pk_bf16_f32 {v(PQ+8*mt+2*t+h)}, {v(AQ(mt,t)+2*h)}, {v(AQ(mt,t)+2*h+1)}")
        A(f"v_mov_b32 {v(PQ+8*mt+6)}, 0"); A(f"v_mov_b32 {v(PQ+8*mt+7)}, 0")
    A("s_cmp_lg_u32 s26, 0"); A("s_cbranch_scc1 K1_polled")
    A("s_mov_b32 s90, 0")
    A.label("K1_poll")
    A(f"buffer_load_dword {v(t0)}, {v(g3)}, {s(SD,4)}, 0 offen sc1")
    A("s_waitcnt vmcnt(0)")
    A(f"v_readfirstlane_b32 s91, {v(t0)}")
    A("s_cmp_ge_u32 s91, 16"); A("s_cbranch_scc1 K1_polled")
    A("s_add_u32 s90, s90, 1"); A("s_cmp_lt_u32 s90, 100000"); A("s_cbranch_scc0 K1_polled")
    A("s_sleep 1"); A("s_branch K1_poll")
    A.label("K1_polled")
    A("s_barrier")
    GA = 136
    A("v_cmp_gt_u32 vcc, 210, v0"); A("s_and_saveexec_b64 s[66:67], vcc"); A("s_cbranch_execz K1_nogat")
    for i in range(16):
        A(f"s_mov_b32 s64, {i*KV_STRIDE}")
        A(f"buffer_load_dwordx4 {v(GA+4*i,4)}, {v(g1)}, {s(SWS,4)}, s64 offen sc1")
    for i in range(1, 16):
        A(f"s_waitcnt vmcnt({15-i})")
        for r in range(4): A(f"v_add_f32 {v(GA+r)}, {v(GA+r)}, {v(GA+4*i+r)}")
    A(f"v_cvt_pk_bf16_f32 {v(GA)}, {v(GA)}, {v(GA+1)}"); A(f"v_cvt_pk_bf16_f32 {v(GA+1)}, {v(GA+2)}, {v(GA+3)}")
    A(f"ds_write_b64 {v(g2)}, {v(GA,2)}")
    A.label("K1_nogat")
    A("s_mov_b64 exec, s[66:67]")
    A("s_waitcnt lgkmcnt(0)"); A("s_barrier")
    AN = 136; AD = 160
    A(f"v_and_b32 {v(t0)}, 15, v1"); A(f"v_lshrrev_b32 {v(t1)}, 4, v1"); A(f"v_lshlrev_b32 {v(t1)}, 4, {v(t1)}")
    A(f"v_lshl_add_u32 {v(t2)}, {v(t0)}, 7, {v(t1)}"); A(f"v_add_u32 {v(t2)}, {L_KVN}, {v(t2)}")
    A(f"v_add_u32 {v(t3)}, {L_KVD}, {v(t1)}")
    A(f"v_cmp_le_u32 vcc, 4, {v(t0)}"); A(f"v_add_u32 {v(t4)}, 128, {v(t3)}")
    A(f"v_cndmask_b32 {v(t5)}, {v(t3)}, {v(t4)}, vcc")
    for te in range(3):
        for st in range(2):
            A(f"ds_read_b128 {v(AN+8*te+4*st,4)}, {v(t2)} offset:{te*2048+st*64}")
            A(f"ds_read_b128 {v(AD+8*te+4*st,4)}, {v([t3,t5,t4][te])} offset:{st*64}")
    A("s_waitcnt lgkmcnt(0)")
    ON = 184; OD = 208
    for te in range(3):
        for mt in range(2):
            for (acc, aop) in ((ON, AN), (OD, AD)):
                d = v(acc+8*te+4*mt, 4)
                mfma(A, d, v(aop+8*te,4), v(PQ+8*mt,4), "0")
                mfma(A, d, v(aop+8*te+4,4), v(PQ+8*mt+4,4))
    OP = 56
    A(f"s_lshl_b32 s64, {s(SI)}, 3"); A("s_lshl_b32 s65, s26, 1"); A("s_add_u32 s64, s64, s65"); A("s_mul_i32 s64, s64, 80")
    A(f"s_mul_i32 s65, {s(SG)}, 5"); A("s_add_u32 s64, s64, s65"); A("s_lshl_b32 s64, s64, 8"); A(f"s_add_u32 s64, s64, {WS_O}")
    A(f"v_bfe_u32 {v(t1)}, v1, 4, 1"); A(f"v_mul_u32_u24 {v(t1)}, {80*256}, {v(t1)}")
    A(f"v_lshrrev_b32 {v(t2)}, 5, v1"); A(f"v_lshl_add_u32 {v(t1)}, {v(t2)}, 8, {v(t1)}")
    A(f"v_lshl_add_u32 {v(t1)}, {v(t0)}, 4, {v(t1)}")
    for te in range(3):
        for mt in range(2):
            for r in range(4):
                dn = OD+8*te+4*mt+r
                A(f"v_add_f32 {v(dn)}, s79, {v(dn)}")
                A(f"v_rcp_f32 {v(dn)}, {v(dn)}")
            for r in range(4):
                A(f"v_mul_f32 {v(ON+8*te+4*mt+r)}, {v(ON+8*te+4*mt+r)}, {v(OD+8*te+4*mt+r)}")
            for h in range(2): A(f"v_cvt_pk_bf16_f32 {v(OP+4*te+2*mt+h)}, {v(ON+8*te+4*mt+2*h)}, {v(ON+8*te+4*mt+2*h+1)}")
        for h in range(2): A(f"v_permlane16_swap_b32 {v(OP+4*te+h)}, {v(OP+4*te+2+h)}")
        if te == 2: A("s_mov_b64 exec, 0xffffffff")
        A(f"buffer_store_dwordx4 {v(OP+4*te,4)}, {v(t1)}, {s(SWS,4)}, s64 offen offset:{te*512}")
    A.label("K1_end")
    A("s_endpgm")
    return kd("k1_kernel", 232)

def gen_k24(A, which):
    nm = f"K{which}"
    A.endl = nm + "_end"
    kernel_begin(A, f"k{which}_kernel")
    prologue(A)
    SJ, SC = 30, 31
    map_jc(A, SJ, SC)
    SX, SWS, SO, SB = 32, 40, 36, 44
    KO = 80 if which == 2 else 192
    KS = KO // 16
    WSA = WS_O if which == 2 else WS_R
    WSB = WS_WO if which == 2 else WS_W2
    L_RED = 0; L_X = 61440; L_OUT = 61440
    t0, t1, t2, t3, t4, t5 = range(4, 10)
    vL16 = 10; vXr = 11; vRw = 12; vRr = 13
    vH = 14
    vB2 = 24
    ACC = 36
    FR = 116
    acc = lambda m, t: ACC + (m*5+t)*4
    A(f"v_lshlrev_b32 {v(vL16)}, 4, v1")
    for m in range(4):
        A(f"s_add_u32 s60, s26, {m}"); A("s_and_b32 s60, s60, 3"); A(f"s_lshl_b32 s61, {s(SJ)}, 2"); A("s_add_u32 s60, s60, s61")
        A(f"s_mul_i32 s60, s60, {KO}"); A(f"s_mul_i32 s61, s26, {KS*4}"); A("s_add_u32 s60, s60, s61"); A("s_lshl_b32 s60, s60, 8")
        A(f"s_add_u32 {s(52+m)}, s60, {WSA}")
    A(f"s_mul_i32 s60, {s(SC)}, {5*KO}"); A("s_add_u32 s60, s60, s61"); A("s_lshl_b32 s60, s60, 8"); A(f"s_add_u32 s56, s60, {WSB}")
    for t in range(1, 5): A(f"s_add_u32 {s(56+t)}, s56, {t*KO*256}")
    A("s_waitcnt lgkmcnt(0)")
    srd(A, SX, 4, 2048*1280); srd(A, SWS, 24, WS_END); srd(A, SO, 20, 2048*1280); srd(A, SB, 18, 1280)
    NST = 5
    def load_step(sp):
        b = (sp % NST)*36
        off = (sp % 4)*1024
        if sp and sp % 4 == 0:
            for r in range(52, 61): A(f"s_add_u32 {s(r)}, {s(r)}, 4096")
        for t in range(5): A(f"buffer_load_dwordx4 {a(b+16+4*t,4)}, {v(vL16)}, {s(SWS,4)}, {s(56+t)} offen offset:{off}")
        for m in range(4): A(f"buffer_load_dwordx4 {a(b+4*m,4)}, {v(vL16)}, {s(SWS,4)}, {s(52+m)} offen offset:{off}")
    for sp in range(NST): load_step(sp)
    extra = 0
    A(f"v_and_b32 {v(t0)}, 15, v1"); A(f"v_lshrrev_b32 {v(t1)}, 4, v1")
    if which == 2:
        A(f"s_lshl_b32 s62, {s(SJ)}, 6"); A("s_lshl_b32 s63, s26, 4"); A("s_add_u32 s62, s62, s63"); A("s_mul_i32 s62, s62, 1280")
        A(f"s_mul_i32 s63, {s(SC)}, 160"); A("s_add_u32 s62, s62, s63")
        A("s_lshl_b32 s63, s26, 12"); A(f"s_add_u32 s63, s63, {L_X}")
        for j in range(4):
            A(f"v_add_u32 {v(t2)}, {4*j}, {v(t1)}")
            A(f"v_xor_b32 {v(t3)}, {v(t0)}, {v(t2)}")
            A(f"v_cmp_gt_u32 vcc, 10, {v(t3)}")
            A(f"v_mul_u32_u24 {v(t2)}, 1280, {v(t2)}"); A(f"v_lshl_add_u32 {v(t2)}, {v(t3)}, 4, {v(t2)}")
            A(f"s_add_u32 m0, s63, {j*1024}")
            A("s_mov_b64 exec, vcc")
            A(f"buffer_load_dwordx4 {v(t2)}, {s(SX,4)}, s62 offen lds")
            A("s_mov_b64 exec, -1")
        extra = 4
        A(f"v_lshrrev_b32 {v(t2)}, 1, {v(t1)}"); A(f"v_xor_b32 {v(t2)}, {v(t2)}, {v(t0)}"); A(f"v_lshlrev_b32 {v(t2)}, 4, {v(t2)}")
        A(f"v_lshl_or_b32 {v(t2)}, {v(t0)}, 8, {v(t2)}"); A(f"v_and_b32 {v(t3)}, 1, {v(t1)}"); A(f"v_lshl_or_b32 {v(t2)}, {v(t3)}, 3, {v(t2)}")
        A(f"v_add_u32 {v(vXr)}, s63, {v(t2)}")
    else:
        A(f"s_lshl_b32 s62, {s(SJ)}, 2"); A("s_add_u32 s62, s62, s26"); A("s_mul_i32 s62, s62, 80"); A(f"s_mul_i32 s63, {s(SC)}, 10")
        A("s_add_u32 s62, s62, s63"); A("s_lshl_b32 s62, s62, 8"); A(f"s_add_u32 s62, s62, {WS_H}")
        A(f"v_lshrrev_b32 {v(t2)}, 1, {v(t1)}"); A(f"v_lshlrev_b32 {v(t2)}, 8, {v(t2)}"); A(f"v_lshl_or_b32 {v(t2)}, {v(t0)}, 4, {v(t2)}")
        A(f"v_and_b32 {v(t3)}, 1, {v(t1)}"); A(f"v_lshl_or_b32 {v(t2)}, {v(t3)}, 3, {v(t2)}")
        for t in range(5): A(f"buffer_load_dwordx2 {v(vH+2*t,2)}, {v(t2)}, {s(SWS,4)}, s62 offen offset:{t*512}")
        A(f"s_mul_i32 s63, {s(SC)}, 160"); A(f"v_lshlrev_b32 {v(t3)}, 3, {v(t1)}")
        for t in range(5): A(f"buffer_load_dwordx2 {v(vB2+2*t,2)}, {v(t3)}, {s(SB,4)}, s63 offen offset:{t*32}")
        extra = 10
    A("s_mul_i32 s64, s26, 15360")
    A(f"v_add_u32 {v(vRr)}, s64, {v(vL16)}")
    outstanding = [("s", sp) for sp in range(NST) for _ in range(9)] + [("e", 0)]*extra
    for sp in range(KS):
        last = max(i for i, o in enumerate(outstanding) if o == ("s", sp))
        first = min(i for i, o in enumerate(outstanding) if o == ("s", sp))
        b = (sp % NST)*36
        for m in range(4):
            n = len(outstanding) - 1 - (first + 5 + m)
            A(f"s_waitcnt vmcnt({n})")
            for t in range(5):
                mfma(A, v(acc(m,t),4), a(b+16+4*t,4), a(b+4*m,4), "0" if sp == 0 else None)
        outstanding = outstanding[last+1:]
        if sp + NST < KS:
            load_step(sp + NST); outstanding += [("s", sp+NST)]*9
    for m in range(1, 4):
        A(f"s_add_u32 s64, s26, {m}"); A("s_and_b32 s64, s64, 3"); A("s_mul_i32 s64, s64, 15360"); A(f"s_add_u32 s64, s64, {(m-1)*5120}")
        A(f"v_add_u32 {v(vRw)}, s64, {v(vL16)}")
        for t in range(5): A(f"ds_write_b128 {v(vRw)}, {v(acc(m,t),4)} offset:{t*1024}")
    A("s_waitcnt vmcnt(0) lgkmcnt(0)"); A("s_barrier")
    lg = LG(A)
    RD = FR
    for t in range(5):
        for sl in range(3): lg.issue(("r", t), f"ds_read_b128 {v(RD+(t*3+sl)*4,4)}, {v(vRr)} offset:{sl*5120+t*1024}")
        if which == 2:
            A(f"v_xor_b32 {v(t2)}, {32*t}, {v(vXr)}")
            lg.issue(("r", t), f"ds_read_b64 {v(vH+2*t,2)}, {v(t2)}")
    P = FR + 64
    vS, vQ = FR+80, FR+81
    if which == 2:
        A(f"v_mov_b32 {v(vS)}, 0"); A(f"v_mov_b32 {v(vQ)}, 0"); A(f"v_mov_b32 {v(FR+82)}, 0x{ONES:x}")
    for t in range(5):
        lg.wait(("r", t))
        for r in range(4):
            A(f"v_add_f32 {v(acc(0,t)+r)}, {v(acc(0,t)+r)}, {v(RD+(t*3)*4+r)}")
            A(f"v_add_f32 {v(RD+(t*3+1)*4+r)}, {v(RD+(t*3+1)*4+r)}, {v(RD+(t*3+2)*4+r)}")
        for h in range(2):
            A(f"v_lshlrev_b32 {v(t2)}, 16, {v(vH+2*t+h)}"); A(f"v_and_b32 {v(t3)}, 0xffff0000, {v(vH+2*t+h)}")
            A(f"v_add_f32 {v(acc(0,t)+2*h)}, {v(acc(0,t)+2*h)}, {v(t2)}"); A(f"v_add_f32 {v(acc(0,t)+2*h+1)}, {v(acc(0,t)+2*h+1)}, {v(t3)}")
            if which == 4:
                A(f"v_lshlrev_b32 {v(t2)}, 16, {v(vB2+2*t+h)}"); A(f"v_and_b32 {v(t3)}, 0xffff0000, {v(vB2+2*t+h)}")
                A(f"v_add_f32 {v(acc(0,t)+2*h)}, {v(acc(0,t)+2*h)}, {v(t2)}"); A(f"v_add_f32 {v(acc(0,t)+2*h+1)}, {v(acc(0,t)+2*h+1)}, {v(t3)}")
        for r in range(4): A(f"v_add_f32 {v(acc(0,t)+r)}, {v(acc(0,t)+r)}, {v(RD+(t*3+1)*4+r)}")
        for h in range(2):
            A(f"v_cvt_pk_bf16_f32 {v(P+2*t+h)}, {v(acc(0,t)+2*h)}, {v(acc(0,t)+2*h+1)}")
            if which == 2:
                A(f"v_dot2c_f32_bf16 {v(vS)}, {v(P+2*t+h)}, {v(FR+82)}")
                A(f"v_dot2c_f32_bf16 {v(vQ)}, {v(P+2*t+h)}, {v(P+2*t+h)}")
    if which == 2:
        A(f"s_lshl_b32 s62, {s(SJ)}, 2"); A("s_add_u32 s62, s62, s26"); A("s_mul_i32 s62, s62, 80"); A(f"s_mul_i32 s63, {s(SC)}, 10")
        A("s_add_u32 s62, s62, s63"); A("s_lshl_b32 s62, s62, 8"); A(f"s_add_u32 s62, s62, {WS_H}")
        A(f"v_and_b32 {v(t2)}, 1, {v(t1)}"); A(f"v_lshlrev_b32 {v(t2)}, 9, {v(t2)}"); A(f"v_lshrrev_b32 {v(t3)}, 1, {v(t1)}")
        A(f"v_lshl_or_b32 {v(t2)}, {v(t3)}, 8, {v(t2)}"); A(f"v_lshl_or_b32 {v(t2)}, {v(t0)}, 4, {v(t2)}")
        A(f"v_mov_b32 {v(P+10)}, 0"); A(f"v_mov_b32 {v(P+11)}, 0")
        for pr in range(3):
            for h in range(2): A(f"v_permlane16_swap_b32 {v(P+4*pr+h)}, {v(P+4*pr+2+h)}")
            if pr == 2: A("s_mov_b32 exec_lo, 0xffff"); A("s_mov_b32 exec_hi, 0xffff")
            A(f"buffer_store_dwordx4 {v(P+4*pr,4)}, {v(t2)}, {s(SWS,4)}, s62 offen offset:{pr*1024}")
        A("s_mov_b64 exec, -1")
        for op in ("v_permlane16_swap_b32", "v_permlane32_swap_b32"):
            A(f"v_mov_b32 {v(t3)}, {v(vS)}"); A(f"v_mov_b32 {v(t4)}, {v(vQ)}")
            A(f"{op} {v(t3)}, {v(vS)}"); A(f"{op} {v(t4)}, {v(vQ)}")
            A(f"v_add_f32 {v(vS)}, {v(vS)}, {v(t3)}"); A(f"v_add_f32 {v(vQ)}, {v(vQ)}, {v(t4)}")
        A(f"s_lshl_b32 s62, {s(SC)}, 11"); A(f"s_lshl_b32 s63, {s(SJ)}, 6"); A("s_add_u32 s62, s62, s63"); A("s_lshl_b32 s63, s26, 4")
        A("s_add_u32 s62, s62, s63"); A("s_lshl_b32 s62, s62, 3"); A(f"s_add_u32 s62, s62, {WS_ST}")
        A(f"v_lshlrev_b32 {v(t2)}, 3, {v(t0)}")
        A("s_mov_b64 exec, 0xffff")
        A(f"buffer_store_dwordx2 {v(vS,2)}, {v(t2)}, {s(SWS,4)}, s62 offen")
    else:
        A("s_mul_i32 s63, s26, 2816"); A(f"s_add_u32 s63, s63, {L_OUT}")
        A(f"v_mul_u32_u24 {v(t2)}, 176, {v(t0)}"); A(f"v_lshl_add_u32 {v(t2)}, {v(t1)}, 3, {v(t2)}"); A(f"v_add_u32 {v(t2)}, s63, {v(t2)}")
        for t in range(5): A(f"ds_write_b64 {v(t2)}, {v(P+2*t,2)} offset:{t*32}")
        A(f"s_lshl_b32 s62, {s(SJ)}, 6"); A("s_lshl_b32 s64, s26, 4"); A("s_add_u32 s62, s62, s64"); A("s_mul_i32 s62, s62, 1280")
        A(f"s_mul_i32 s64, {s(SC)}, 160"); A("s_add_u32 s62, s62, s64")
        for n in range(3):
            A(f"v_add_u32 {v(t2)}, {64*n}, v1")
            A(f"v_mul_u32_u24 {v(t3)}, 6554, {v(t2)}"); A(f"v_lshrrev_b32 {v(t3)}, 16, {v(t3)}")
            A(f"v_mul_u32_u24 {v(t4)}, 10, {v(t3)}"); A(f"v_sub_u32 {v(t4)}, {v(t2)}, {v(t4)}"); A(f"v_lshlrev_b32 {v(t4)}, 4, {v(t4)}")
            A(f"v_mul_u32_u24 {v(t2)}, 176, {v(t3)}"); A(f"v_add3_u32 {v(t2)}, {v(t2)}, {v(t4)}, s63")
            A(f"v_mul_u32_u24 {v(t3)}, 1280, {v(t3)}"); A(f"v_add_u32 {v(RD+16+n)}, {v(t3)}, {v(t4)}")
            if n == 0: A("s_waitcnt lgkmcnt(0)")
            A(f"ds_read_b128 {v(RD+4*n,4)}, {v(t2)}")
        for n in range(3):
            A(f"s_waitcnt lgkmcnt({2-n})")
            if n == 2: A("s_mov_b64 exec, 0xffffffff")
            A(f"buffer_store_dwordx4 {v(RD+4*n,4)}, {v(RD+16+n)}, {s(SO,4)}, s62 offen")
    A.label(nm + "_end")
    A("s_endpgm")
    return kd(f"k{which}_kernel", 200 + NST*36, accum=200)

def gen_k3(A):
    A.endl = "K3_end"
    kernel_begin(A, "k3_kernel")
    prologue(A)
    SI, SC = 30, 31
    map_ig(A, SI, SC)
    SWS, SB = 40, 44
    L_CS = 122880
    t0, t1, t2, t3, t4, t5 = range(4, 10)
    vL16 = 10; vB = [11, 12]; vC = [13, 14]
    vONE = 16; vST = 20
    vB1 = 28
    ACC = 40
    CSA = 88
    BF = 112
    CF = 160
    acc = lambda t, mt: ACC + (t*2+mt)*4
    A(f"v_lshlrev_b32 {v(vL16)}, 4, v1")
    A(f"s_mul_i32 s52, {s(SC)}, 122880"); A(f"s_add_u32 s52, s52, {WS_W1}"); A("s_lshl_b32 s53, s26, 10"); A("s_add_u32 s52, s52, s53")
    A(f"s_lshl_b32 s54, {s(SI)}, 3"); A("s_lshl_b32 s55, s26, 1"); A("s_add_u32 s54, s54, s55"); A("s_mul_i32 s54, s54, 20480"); A(f"s_add_u32 s54, s54, {WS_H}")
    A("s_add_u32 s55, s54, 20480")
    A("s_waitcnt lgkmcnt(0)")
    srd(A, SWS, 24, WS_END); srd(A, SB, 14, 3072)
    def issue_round(rho):
        for t in range(6):
            A(f"s_add_u32 m0, s53, {t*20480+rho*4096}")
            A(f"s_add_u32 s56, s52, {t*20480+rho*4096}")
            A(f"buffer_load_dwordx4 {v(vL16)}, {s(SWS,4)}, s56 offen lds")
        for sp in range(4):
            for mt in range(2):
                A(f"buffer_load_dwordx4 {a((rho*4+sp)*8+mt*4,4)}, {v(vL16)}, {s(SWS,4)}, {s(54+mt)} offen offset:{sp*1024}")
        A("s_add_u32 s54, s54, 4096"); A("s_add_u32 s55, s55, 4096")
    for rho in range(3): issue_round(rho)
    A(f"v_and_b32 {v(t0)}, 15, v1"); A(f"v_lshrrev_b32 {v(t1)}, 4, v1")
    A(f"s_lshl_b32 s57, {s(SI)}, 7"); A("s_lshl_b32 s58, s26, 5"); A("s_add_u32 s57, s57, s58"); A("s_lshl_b32 s57, s57, 3"); A(f"s_add_u32 s57, s57, {WS_ST}")
    A("s_add_u32 s58, s57, 16384")
    A(f"v_lshlrev_b32 {v(t2)}, 15, {v(t1)}"); A(f"v_lshl_or_b32 {v(t2)}, {v(t0)}, 3, {v(t2)}")
    for mt in range(2):
        for cc in range(2): A(f"buffer_load_dwordx2 {v(vST+mt*4+cc*2,2)}, {v(t2)}, {s(SWS,4)}, {s(57+cc)} offen offset:{mt*128}")
    A(f"s_mul_i32 s59, {s(SC)}, 192"); A(f"v_lshlrev_b32 {v(t3)}, 3, {v(t1)}")
    for t in range(6): A(f"buffer_load_dwordx2 {v(vB1+2*t,2)}, {v(t3)}, {s(SB,4)}, s59 offen offset:{t*32}")
    A(f"v_mov_b32 {v(vB[0])}, {v(vL16)}"); A(f"v_add_u32 {v(vB[1])}, 61440, {v(vL16)}")
    A(f"v_add_u32 {v(vC[0])}, s53, {v(vL16)}"); A(f"v_add_u32 {v(vC[1])}, 61440, {v(vC[0])}")
    for r in range(4): A(f"v_mov_b32 {v(vONE+r)}, 0x{ONES:x}")
    out = [("r", rho) for rho in range(3) for _ in range(14)] + [("e", 0)]*10
    lg = LG(A)
    def rd(s_, buf):
        for t in range(6): lg.issue(("b", s_, t), f"ds_read_b128 {v(BF+buf*24+4*t,4)}, {v(vB[t//3])} offset:{(t%3)*20480+s_*1024}")
    for rho in range(5):
        last = max(i for i, o in enumerate(out) if o == ("r", rho))
        A(f"s_waitcnt vmcnt({len(out)-1-last})"); out = out[last+1:]
        A("s_barrier")
        if rho + 3 < 5: issue_round(rho+3); out += [("r", rho+3)]*14
        rd(4*rho, 0)
        for t in range(6): lg.issue(("c", t), f"ds_read_b128 {v(CF+4*t,4)}, {v(vC[t//3])} offset:{(t%3)*20480+rho*4096}")
        for sp in range(4):
            s_ = 4*rho + sp
            for t in range(6):
                lg.wait(("b", s_, t))
                for mt in range(2):
                    mfma(A, v(acc(t,mt),4), v(BF+(sp%2)*24+4*t,4), a(s_*8+mt*4,4), "0" if s_ == 0 else None)
                if sp < 3: lg.issue(("b", s_+1, t), f"ds_read_b128 {v(BF+((sp+1)%2)*24+4*t,4)}, {v(vB[t//3])} offset:{(t%3)*20480+(s_+1)*1024}")
            if sp == 0:
                for t in range(6):
                    lg.wait(("c", t))
                    mfma(A, v(CSA+4*t,4), v(CF+4*t,4), v(vONE,4), "0" if rho == 0 else None)
    A("s_mul_i32 s60, s26, 384"); A(f"s_add_u32 s60, s60, {L_CS}")
    A(f"v_lshlrev_b32 {v(t2)}, 4, {v(t1)}"); A(f"v_add_u32 {v(t3)}, s60, {v(t2)}")
    A("s_mov_b32 exec_lo, 0x00010001"); A("s_mov_b32 exec_hi, 0x00010001")
    for t in range(6): A(f"ds_write_b128 {v(t3)}, {v(CSA+4*t,4)} offset:{t*64}")
    A("s_mov_b64 exec, -1")
    A("s_waitcnt vmcnt(0) lgkmcnt(0)"); A("s_barrier")
    A(f"v_add_u32 {v(t3)}, {L_CS}, {v(t2)}")
    for w in range(4):
        for t in range(6): A(f"ds_read_b128 {v(BF+(w%3)*24+4*t if w else CSA+4*t,4)}, {v(t3)} offset:{w*384+t*64}")
        if w == 1: A("s_waitcnt lgkmcnt(6)")
    for mt in range(2):
        b = vST + 4*mt
        A(f"v_add_f32 {v(b)}, {v(b)}, {v(b+2)}"); A(f"v_add_f32 {v(b+1)}, {v(b+1)}, {v(b+3)}")
        for op in ("v_permlane16_swap_b32", "v_permlane32_swap_b32"):
            A(f"v_mov_b32 {v(b+2)}, {v(b)}"); A(f"v_mov_b32 {v(b+3)}, {v(b+1)}")
            A(f"{op} {v(b+2)}, {v(b)}"); A(f"{op} {v(b+3)}, {v(b+1)}")
            A(f"v_add_f32 {v(b)}, {v(b)}, {v(b+2)}"); A(f"v_add_f32 {v(b+1)}, {v(b+1)}, {v(b+3)}")
        ln_stats(A, b, b+1, t4)
        A(f"v_mul_f32 {v(b)}, {v(b)}, {v(b+1)}")
    A("s_waitcnt lgkmcnt(0)")
    for r in range(24):
        A(f"v_add_f32 {v(CSA+r)}, {v(CSA+r)}, {v(BF+24+r)}"); A(f"v_add_f32 {v(BF+48+r)}, {v(BF+48+r)}, {v(BF+r)}")
    for r in range(24): A(f"v_add_f32 {v(CSA+r)}, {v(CSA+r)}, {v(BF+48+r)}")
    A(f"s_lshl_b32 s62, {s(SI)}, 3"); A("s_lshl_b32 s63, s26, 1"); A("s_add_u32 s62, s62, s63"); A("s_mul_i32 s62, s62, 192")
    A(f"s_mul_i32 s63, {s(SC)}, 12"); A("s_add_u32 s62, s62, s63"); A("s_lshl_b32 s62, s62, 8"); A(f"s_add_u32 s62, s62, {WS_R}")
    A(f"v_and_b32 {v(t2)}, 1, {v(t1)}"); A(f"v_mul_u32_u24 {v(t2)}, {192*256}, {v(t2)}"); A(f"v_lshrrev_b32 {v(t3)}, 1, {v(t1)}")
    A(f"v_lshl_add_u32 {v(t2)}, {v(t3)}, 8, {v(t2)}"); A(f"v_lshl_add_u32 {v(t2)}, {v(t0)}, 4, {v(t2)}")
    P = BF; BU = BF + 24; U = BF + 28
    for t in range(6):
        for h in range(2):
            A(f"v_lshlrev_b32 {v(BU+2*h)}, 16, {v(vB1+2*t+h)}"); A(f"v_and_b32 {v(BU+2*h+1)}, 0xffff0000, {v(vB1+2*t+h)}")
        for mt in range(2):
            b = vST + 4*mt
            for r in range(4):
                A(f"v_fma_f32 {v(U+r)}, {v(b)}, {v(CSA+4*t+r)}, {v(BU+r)}")
            for r in range(4):
                A(f"v_fma_f32 {v(U+r)}, {v(acc(t,mt)+r)}, {v(b+1)}, {v(U+r)}")
            for r in range(4): A(f"v_max_f32 {v(U+r)}, 0, {v(U+r)}")
            for r in range(4): A(f"v_mul_f32 {v(U+r)}, {v(U+r)}, {v(U+r)}")
            for h in range(2): A(f"v_cvt_pk_bf16_f32 {v(P+4*t+2*mt+h)}, {v(U+2*h)}, {v(U+2*h+1)}")
        for h in range(2): A(f"v_permlane16_swap_b32 {v(P+4*t+h)}, {v(P+4*t+2+h)}")
        A(f"buffer_store_dwordx4 {v(P+4*t,4)}, {v(t2)}, {s(SWS,4)}, s62 offen offset:{t*512}")
    A.label("K3_end")
    A("s_endpgm")
    return kd("k3_kernel", 184+160, accum=184)

def main(path):
    A = Asm()
    kds = [gen_k1(A), gen_k24(A, 2), gen_k3(A), gen_k24(A, 4)]
    lines, n = hazard.fix(A.lines)
    launches = ["; @launch kernel=k1_kernel grid=(256,1,1) block=(256,1,1) lds=163840",
                "; @launch kernel=k2_kernel grid=(256,1,1) block=(256,1,1) lds=77824",
                "; @launch kernel=k3_kernel grid=(256,1,1) block=(256,1,1) lds=124416",
                "; @launch kernel=k4_kernel grid=(256,1,1) block=(256,1,1) lds=77824"]
    open(path, "w").write(file_text(launches, "\n".join(lines) + "\n", kds))
    print("nops inserted:", n, "lines:", len(lines))
if __name__ == "__main__":
    main(sys.argv[1] if len(sys.argv) > 1 else "v1.s")
```

```python
import sys
sys.path.insert(0, "dev")
from asmgen import *
import hazard

WS_O  = 0
WS_H  = WS_O + 2621440
WS_R  = WS_H + 2621440
WS_WO = WS_R + 6291456
WS_W1 = WS_WO + 819200
WS_W2 = WS_W1 + 1966080
WS_KV = WS_W2 + 1966080
KV_STRIDE = 3584
WS_ST = WS_KV + 256*KV_STRIDE
WS_END = WS_ST + 131072
LOG2E = 0x3fb8aa3b
EPS6 = 0x358637bd
EPS5 = 0x3727c5ac
INV640 = 0x3acccccd
ONES = 0x3f803f80

STAMPS = False
import os
NOMFMA = os.environ.get('NOMFMA')=='1'
NOLOAD = os.environ.get('NOLOAD')=='1'
NODS = os.environ.get('NODS')=='1'
WS_TS = WS_END
if True: WS_END = WS_END + 4*256*128
def stamp(A, n):
    if not STAMPS: return
    A("s_memrealtime s[100:101]"); A("s_memtime s[98:99]"); A("s_waitcnt lgkmcnt(0)"); A(f"v_writelane_b32 v3, s100, {n}"); A(f"v_writelane_b32 v3, s98, {n+16}")
def stamp_flush(A, k, sws):
    if not STAMPS: return
    A("s_waitcnt vmcnt(0)")
    stamp(A, 15)
    A("s_cmp_lg_u32 s26, 0"); A(f"s_cbranch_scc1 {A.endl}")
    A("s_mov_b64 exec, 0xffffffff")
    A("s_lshl_b32 s100, s2, 7"); A(f"s_add_u32 s100, s100, {WS_TS + k*32768}")
    A("v_lshlrev_b32 v2, 2, v1")
    A(f"buffer_store_dword v3, v2, {s(sws,4)}, s100 offen")

class LG:
    def __init__(self, A): self.A = A; self.q = []
    def issue(self, tag, txt): self.A(txt); self.q.append(tag)
    def wait(self, tag):
        if tag not in self.q: return
        idx = len(self.q) - 1 - self.q[::-1].index(tag)
        n = len(self.q) - 1 - idx
        self.A(f"s_waitcnt lgkmcnt({min(n,15)})")
        if n <= 15: self.q = self.q[idx+1:]
        else: self.q = self.q[len(self.q)-15:]
    def wait_all(self):
        self.A("s_waitcnt lgkmcnt(0)"); self.q = []

def mfma(A, d, x, y, c=None):
    A(f"v_mfma_f32_16x16x32_bf16 {d}, {x}, {y}, {d if c is None else c}")

def prologue(A, nwg=256):
    A(f"s_cmp_ge_u32 s2, {nwg}")
    A(f"s_cbranch_scc1 {A.endl}")
    if STAMPS: A("v_mov_b32 v3, 0")
    stamp(A, 0)
    A("s_load_dwordx16 s[4:19], s[0:1], 0")
    A("s_load_dwordx4 s[20:23], s[0:1], 64")
    A("s_load_dwordx2 s[24:25], s[0:1], 80")
    A("v_and_b32 v1, 63, v0")
    A("v_lshrrev_b32 v2, 6, v0")
    A("v_readfirstlane_b32 s26, v2")
    A("s_and_b32 s27, s2, 7")
    A("s_lshr_b32 s28, s2, 3")

def map_ig(A, si, sg):
    A(f"s_lshr_b32 {s(si)}, s27, 1"); A(f"s_lshl_b32 {s(si)}, {s(si)}, 2"); A(f"s_and_b32 {s(sg)}, s28, 3"); A(f"s_add_u32 {s(si)}, {s(si)}, {s(sg)}")
    A(f"s_and_b32 {s(sg)}, s27, 1"); A(f"s_lshl_b32 {s(sg)}, {s(sg)}, 3"); A(f"s_lshr_b32 s29, s28, 2"); A(f"s_add_u32 {s(sg)}, {s(sg)}, s29")
def map_jc(A, sj, sc):
    A(f"s_lshr_b32 {s(sj)}, s27, 1"); A(f"s_lshl_b32 {s(sj)}, {s(sj)}, 3")
    A(f"s_and_b32 s29, s28, 3"); A(f"s_lshl_b32 s29, s29, 1"); A(f"s_add_u32 {s(sj)}, {s(sj)}, s29")
    A(f"s_lshr_b32 s29, s28, 2"); A(f"s_and_b32 s29, s29, 1"); A(f"s_add_u32 {s(sj)}, {s(sj)}, s29")
    A(f"s_and_b32 {s(sc)}, s27, 1"); A(f"s_lshl_b32 {s(sc)}, {s(sc)}, 2"); A(f"s_lshr_b32 s29, s28, 3"); A(f"s_add_u32 {s(sc)}, {s(sc)}, s29")

def kperm(A, dst, p, t1, t2):
    A(f"v_and_b32 {v(t1)}, 12, {v(p)}"); A(f"v_lshlrev_b32 {v(t1)}, 1, {v(t1)}")
    A(f"v_lshrrev_b32 {v(t2)}, 4, {v(p)}"); A(f"v_lshlrev_b32 {v(t2)}, 2, {v(t2)}")
    A(f"v_and_b32 {v(dst)}, 3, {v(p)}")
    A(f"v_or3_b32 {v(dst)}, {v(dst)}, {v(t1)}, {v(t2)}")

def round_bf16(A, r):
    A(f"v_cvt_pk_bf16_f32 {v(r)}, {v(r)}, {v(r)}")
    A(f"v_and_b32 {v(r)}, 0xffff0000, {v(r)}")

def ln_stats(A, vsum, vssq, t):
    A(f"v_mul_f32 {v(vsum)}, 0x{INV640:x}, {v(vsum)}")
    A(f"v_mul_f32 {v(t)}, {v(vsum)}, {v(vsum)}")
    A(f"v_mov_b32 {v(t+1)}, 0x{INV640:x}")
    A(f"v_fma_f32 {v(vssq)}, {v(vssq)}, {v(t+1)}, -{v(t)}")
    A(f"v_max_f32 {v(vssq)}, 0, {v(vssq)}")
    round_bf16(A, vssq)
    A(f"v_add_f32 {v(vssq)}, 0x{EPS5:x}, {v(vssq)}")
    round_bf16(A, vssq)
    A(f"v_sqrt_f32 {v(vssq)}, {v(vssq)}")
    round_bf16(A, vssq)
    A(f"v_rcp_f32 {v(vssq)}, {v(vssq)}")
    round_bf16(A, vsum)
    A(f"v_xor_b32 {v(vsum)}, 0x80000000, {v(vsum)}")

def gen_k1(A):
    A.endl = "K1_end"
    kernel_begin(A, "k1_kernel")
    prologue(A)
    SI, SG = 30, 31
    map_ig(A, SI, SG)
    SX, SW, SWS, SD, SP = 32, 36, 40, 44, 48
    MISC = 131072
    L_KVN = MISC; L_KVD = MISC + 6144; L_RSTD = MISC + 6400; L_NMEAN = L_RSTD + 512; L_CS = L_NMEAN + 512
    L_PACK = MISC + 8192
    vXa, vXb, vWa, vWb = 4, 5, 6, 7
    vXr = [8, 9]; vWr = list(range(10, 18)); vCr = [18, 19]
    vONE = 20
    vT = 24
    vXF = 40
    vWF = 56
    vAK = 136
    vAQ = 176
    vAS = 200
    vASS = 208
    vAC = 216
    vG = 224
    XF = lambda sp, mt: vXF + (sp*2+mt)*4
    WF = lambda sp, t: vWF + (sp*10+t)*4
    AK = lambda mt, t: vAK + (mt*5+t)*4
    AQ = lambda mt, t: vAQ + (mt*3+t)*4
    t0, t1, t2, t3, t4, t5 = range(vT, vT+6)
    A(f"v_lshrrev_b32 {v(t0)}, 3, v1")
    A(f"v_and_b32 {v(t1)}, 7, v1")
    A(f"v_lshrrev_b32 {v(t2)}, 1, {v(t0)}")
    A(f"v_xor_b32 {v(t3)}, {v(t1)}, {v(t2)}")
    A(f"v_xor_b32 {v(t4)}, 4, {v(t3)}")
    A(f"s_lshl_b32 s52, {s(SI)}, 7"); A("s_lshl_b32 s53, s26, 5"); A("s_add_u32 s52, s52, s53")
    A(f"v_add_u32 {v(t0)}, s52, {v(t0)}")
    A(f"v_mul_u32_u24 {v(t0)}, 1280, {v(t0)}")
    A(f"v_lshl_add_u32 {v(vXa)}, {v(t3)}, 4, {v(t0)}")
    A(f"v_lshl_add_u32 {v(vXb)}, {v(t4)}, 4, {v(t0)}")
    A(f"v_add_u32 {v(vXb)}, {8*1280}, {v(vXb)}")
    A(f"s_mul_i32 s53, {s(SG)}, 80")
    for jj, dst in ((0, vWa), (1, vWb)):
        A(f"v_lshrrev_b32 {v(t0)}, 4, v1")
        A(f"s_lshl_b32 s54, s26, 3"); A(f"s_add_u32 s54, s54, {4*jj}")
        A(f"v_add_u32 {v(t0)}, s54, {v(t0)}")
        A(f"v_bfe_u32 {v(t1)}, v1, 1, 3")
        A(f"v_and_b32 {v(t2)}, 7, {v(t0)}")
        A(f"v_xor_b32 {v(t1)}, {v(t1)}, {v(t2)}")
        A(f"v_and_b32 {v(t2)}, 1, v1")
        A(f"v_lshl_or_b32 {v(t1)}, {v(t1)}, 1, {v(t2)}")
        A(f"v_min_u32 {v(t1)}, 14, {v(t1)}")
        A(f"v_mov_b32 {v(t2)}, 1280")
        A(f"v_mov_b32 {v(t3)}, {2560-80}")
        A(f"v_cmp_le_u32 vcc, 5, {v(t1)}")
        A(f"v_cndmask_b32 {v(t2)}, {v(t2)}, {v(t3)}, vcc")
        A(f"v_mov_b32 {v(t3)}, -160")
        A(f"v_cmp_le_u32 vcc, 10, {v(t1)}")
        A(f"v_cndmask_b32 {v(t2)}, {v(t2)}, {v(t3)}, vcc")
        A(f"v_lshl_add_u32 {v(t1)}, {v(t1)}, 4, {v(t2)}")
        kperm(A, t2, t0, t3, t4)
        A(f"v_mul_u32_u24 {v(t2)}, 3840, {v(t2)}")
        A(f"v_add3_u32 {v(dst)}, {v(t1)}, {v(t2)}, s53")
    A("s_waitcnt lgkmcnt(0)")
    srd(A, SX, 4, 2048*1280); srd(A, SW, 6, 640*3840); srd(A, SWS, 24, WS_END); srd(A, SD, 22, 256)
    A("s_lshl_b32 s59, s26, 12"); A("s_add_u32 s59, s59, 16384")
    A("s_lshl_b32 s60, s26, 11")
    def dma_ops():
        ops = []
        pre = ["s_add_u32 s61, s58, s60", "s_add_u32 s62, s58, s59", "s_add_u32 s63, s57, 122880", "s_add_u32 s92, s56, 20480"]
        for sp in range(2):
            sw = "s63" if sp else "s57"; sx = "s92" if sp else "s56"
            ops.append([f"s_add_u32 m0, s61, {sp*8192}", f"buffer_load_dwordx4 {v(vWa)}, {s(SW,4)}, {sw} offen lds"])
            ops.append([f"s_add_u32 m0, s62, {sp*2048}", f"buffer_load_dwordx4 {v(vXa)}, {s(SX,4)}, {sx} offen lds"])
            ops.append([f"s_add_u32 m0, s61, {sp*8192+1024}", f"buffer_load_dwordx4 {v(vWb)}, {s(SW,4)}, {sw} offen lds"])
            ops.append([f"s_add_u32 m0, s62, {sp*2048+1024}", f"buffer_load_dwordx4 {v(vXb)}, {s(SX,4)}, {sx} offen lds"])
        post = ["s_add_u32 s56, s56, 128", "s_add_u32 s57, s57, 245760"]
        return pre, ops, post
    A("s_mov_b32 s56, 0"); A("s_mov_b32 s57, 0")
    for slot in (0, 1):
        A(f"s_mov_b32 s58, {slot*32768}")
        pre, ops, post = dma_ops()
        for x in pre: A(x)
        for o in ops:
            for x in o: A(x)
        for x in post: A(x)
    A(f"s_mov_b32 s58, {3*32768}")
    A(f"v_and_b32 {v(t0)}, 15, v1")
    A(f"v_lshrrev_b32 {v(t1)}, 4, v1")
    A(f"v_bfe_u32 {v(t2)}, v1, 1, 3")
    A(f"v_xor_b32 {v(t2)}, {v(t1)}, {v(t2)}")
    A(f"v_lshl_add_u32 {v(t2)}, {v(t0)}, 3, {v(t2)}")
    A(f"v_lshlrev_b32 {v(t2)}, 4, {v(t2)}")
    A(f"v_add_u32 {v(vXr[0])}, s59, {v(t2)}")
    A(f"v_xor_b32 {v(vXr[1])}, 64, {v(vXr[0])}")
    A(f"v_lshrrev_b32 {v(t0)}, 2, v1")
    A(f"v_and_b32 {v(t1)}, 7, {v(t0)}")
    A(f"v_lshlrev_b32 {v(t0)}, 8, {v(t0)}")
    A(f"v_lshl_or_b32 {v(t0)}, {v(t1)}, 5, {v(t0)}")
    A(f"v_and_b32 {v(t1)}, 3, v1")
    A(f"v_lshl_or_b32 {v(vWr[0])}, {v(t1)}, 3, {v(t0)}")
    for t in range(1, 8): A(f"v_xor_b32 {v(vWr[t])}, {t*32}, {v(vWr[0])}")
    A("s_lshl_b32 s64, s26, 6")
    A(f"v_xor_b32 {v(vCr[0])}, s64, {v(vWr[0])}")
    A(f"v_xor_b32 {v(vCr[1])}, 32, {v(vCr[0])}")
    for r in range(4): A(f"v_mov_b32 {v(vONE+r)}, 0x{ONES:x}")
    for r in range(vAK, vAC+8): A(f"v_mov_b32 {v(r)}, 0")
    for r in list(range(XF(1,0), XF(1,0)+8)) + list(range(WF(1,0), WF(1,0)+40)): A(f"v_mov_b32 {v(r)}, 0")
    A(f"v_mov_b32 {v(t2)}, 0"); A(f"v_mov_b32 {v(t3)}, 0"); A(f"v_mov_b32 {v(t4)}, 0"); A(f"v_mov_b32 {v(t5)}, 0")
    A(f"v_lshlrev_b32 {v(t0)}, 4, v0"); A(f"v_add_u32 {v(t0)}, {L_KVN}, {v(t0)}")
    A(f"ds_write_b128 {v(t0)}, {v(t2,4)}")
    A(f"v_cmp_gt_u32 vcc, 144, v0"); A("s_and_saveexec_b64 s[66:67], vcc")
    A(f"ds_write_b128 {v(t0)}, {v(t2,4)} offset:4096")
    A("s_mov_b64 exec, s[66:67]")
    g0, g1, g2, g3 = vG, vG+1, vG+2, vG+3
    A(f"v_mul_u32_u24 {v(t0)}, 13108, v0"); A(f"v_lshrrev_b32 {v(t0)}, 16, {v(t0)}")
    A(f"v_mul_u32_u24 {v(t1)}, 5, {v(t0)}"); A(f"v_sub_u32 {v(t1)}, v0, {v(t1)}")
    A(f"v_cmp_le_u32 vcc, 21, {v(t0)}")
    A(f"v_cndmask_b32 {v(t2)}, 0, 1, vcc")
    A(f"v_mul_u32_u24 {v(t3)}, 21, {v(t2)}"); A(f"v_sub_u32 {v(t0)}, {v(t0)}, {v(t3)}")
    A(f"v_mul_u32_u24 {v(t3)}, 5, {v(t2)}"); A(f"v_add_u32 {v(t1)}, {v(t1)}, {v(t3)}")
    A(f"v_mul_u32_u24 {v(t3)}, 20, {v(t2)}"); A(f"v_add_u32 {v(t3)}, {v(t3)}, {v(t0)}")
    A(f"v_add_u32 {v(t4)}, 40, {v(t3)}")
    A(f"v_cmp_eq_u32 vcc, 20, {v(t0)}")
    A(f"v_cndmask_b32 {v(t4)}, {v(t4)}, 32, vcc")
    A(f"v_lshlrev_b32 {v(t3)}, 7, {v(t3)}"); A(f"v_add_u32 {v(t3)}, {L_KVN}, {v(t3)}")
    A(f"v_lshlrev_b32 {v(t2)}, 7, {v(t2)}"); A(f"v_add_u32 {v(t2)}, {L_KVD}, {v(t2)}")
    A(f"v_cndmask_b32 {v(t3)}, {v(t3)}, {v(t2)}, vcc")
    A(f"v_lshrrev_b32 {v(t0)}, 2, {v(t1)}"); A(f"v_and_b32 {v(t1)}, 3, {v(t1)}")
    A(f"v_lshrrev_b32 {v(t2)}, 1, {v(t0)}"); A(f"v_lshl_add_u32 {v(t3)}, {v(t2)}, 6, {v(t3)}")
    A(f"v_lshl_add_u32 {v(t3)}, {v(t1)}, 4, {v(t3)}")
    A(f"v_and_b32 {v(t2)}, 1, {v(t0)}"); A(f"v_lshl_add_u32 {v(g2)}, {v(t2)}, 3, {v(t3)}")
    A(f"v_lshrrev_b32 {v(t2)}, 4, {v(t4)}"); A(f"v_add_u32 {v(t2)}, -2, {v(t2)}")
    A(f"v_mul_u32_u24 {v(t3)}, 5, {v(t0)}"); A(f"v_lshrrev_b32 {v(t3)}, 1, {v(t3)}")
    A(f"v_add_u32 {v(t2)}, {v(t2)}, {v(t3)}"); A(f"v_lshlrev_b32 {v(t2)}, 10, {v(t2)}")
    A(f"v_and_b32 {v(t4)}, 15, {v(t4)}"); A(f"v_lshl_add_u32 {v(t4)}, {v(t1)}, 4, {v(t4)}")
    A(f"v_lshl_add_u32 {v(g0)}, {v(t4)}, 4, {v(t2)}")
    A(f"s_mul_i32 s65, {s(SG)}, {16*KV_STRIDE}"); A(f"s_add_u32 s65, s65, {WS_KV}")
    A(f"v_lshlrev_b32 {v(g1)}, 4, v0"); A(f"v_add_u32 {v(g1)}, s65, {v(g1)}")
    def mfmas(sp):
        L = []
        for mt in range(2):
            L.append(("x", f"v_mfma_f32_16x16x32_bf16 {v(vAS+4*mt,4)}, {v(vONE,4)}, {v(XF(sp,mt),4)}, {v(vAS+4*mt,4)}"))
            L.append(("x", f"v_mfma_f32_16x16x32_bf16 {v(vASS+4*mt,4)}, {v(XF(sp,mt),4)}, {v(XF(sp,mt),4)}, {v(vASS+4*mt,4)}"))
        for t in range(5):
            for mt in range(2):
                L.append((t, f"v_mfma_f32_16x16x32_bf16 {v(AK(mt,t),4)}, {v(XF(sp,mt),4)}, {v(WF(sp,t),4)}, {v(AK(mt,t),4)}"))
        for t in range(3):
            for mt in range(2):
                L.append((5+t, f"v_mfma_f32_16x16x32_bf16 {v(AQ(mt,t),4)}, {v(WF(sp,5+t),4)}, {v(XF(sp,mt),4)}, {v(AQ(mt,t),4)}"))
        for i in range(2):
            L.append((8+i, f"v_mfma_f32_16x16x32_bf16 {v(vAC+4*i,4)}, {v(vONE,4)}, {v(WF(sp,8+i),4)}, {v(vAC+4*i,4)}"))
        return L
    def reads(sp):
        L = []
        for mt in range(2): L.append(f"ds_read_b128 {v(XF(sp,mt),4)}, {v(vXr[sp])} offset:{mt*2048}")
        for t in range(10):
            ar = vWr[t] if t < 8 else vCr[t-8]
            for jj in range(2): L.append(f"ds_read_b64_tr_b16 {v(WF(sp,t)+2*jj,2)}, {v(ar)} offset:{sp*8192+jj*4096}")
        return L
    def interleave(M, R, D, tag):
        for k, (_, m) in enumerate(M):
            A(m)
            if k < len(R): A(R[k])
            if k % 5 == 2 and k//5 < len(D):
                lab = f"K1_sk{tag}{k}"
                A(D[k//5][0])
                A(f"s_cbranch_vccnz {lab}")
                A(D[k//5][1])
                A.label(lab)
        for r in R[len(M):]: A(r)
    stamp(A, 1)
    A("s_mov_b32 s55, 0"); A("s_mov_b32 s68, 32768"); A("s_mov_b64 vcc, 0")
    A.label("K1_loop")
    A("s_cmp_lt_u32 s55, 9"); A("s_cbranch_scc1 K1_w8")
    A("s_waitcnt vmcnt(0)")
    A.label("K1_w8"); A("s_waitcnt vmcnt(8) lgkmcnt(0)")
    A("s_barrier")
    A("s_cmp_ge_u32 s55, 8"); A("s_cselect_b64 vcc, -1, 0")
    pre, ops, post = dma_ops()
    for x in pre: A(x)
    interleave(mfmas(1), reads(0), ops[:4], "a")
    A("s_cmp_eq_u32 s55, 10"); A("s_cbranch_scc1 K1_done")
    A("s_waitcnt lgkmcnt(0)")
    interleave(mfmas(0), reads(1), ops[4:], "b")
    for x in post: A(x)
    A("s_xor_b32 s58, s58, s68")
    for r in vXr + vWr + vCr: A(f"v_xor_b32 {v(r)}, s68, {v(r)}")
    A("s_xor_b32 s68, s68, 98304")
    A("s_add_u32 s55, s55, 1")
    A("s_branch K1_loop")
    A.label("K1_done")
    stamp(A, 2)
    A("s_waitcnt lgkmcnt(0)")
    lg = LG(A)
    A(f"v_and_b32 {v(t0)}, 3, v1")
    A(f"v_cmp_eq_u32 s[70:71], 1, {v(t0)}"); A(f"v_cmp_eq_u32 s[72:73], 2, {v(t0)}"); A(f"v_cmp_eq_u32 s[74:75], 3, {v(t0)}")
    A(f"v_bfe_u32 {v(t0)}, v1, 2, 2"); A(f"v_lshrrev_b32 {v(t1)}, 4, v1")
    A(f"v_cmp_eq_u32 s[76:77], {v(t0)}, {v(t1)}")
    A(f"v_and_b32 {v(t2)}, 15, v1"); A("s_lshl_b32 s64, s26, 7")
    A(f"v_lshl_add_u32 {v(t2)}, {v(t2)}, 2, s64")
    A(f"v_add_u32 {v(t2)}, {L_RSTD}, {v(t2)}")
    for mt in range(2):
        q_ = vASS + 4*mt
        A(f"v_cndmask_b32 {v(q_)}, {v(q_)}, {v(q_+1)}, s[70:71]")
        A(f"v_cndmask_b32 {v(q_)}, {v(q_)}, {v(q_+2)}, s[72:73]")
        A(f"v_cndmask_b32 {v(q_)}, {v(q_)}, {v(q_+3)}, s[74:75]")
        ln_stats(A, vAS+4*mt, q_, t3)
    A("s_mov_b64 exec, s[76:77]")
    for mt in range(2):
        A(f"ds_write_b32 {v(t2)}, {v(vASS+4*mt)} offset:{mt*64}")
        A(f"ds_write_b32 {v(t2)}, {v(vAS+4*mt)} offset:{512+mt*64}")
    A("s_mov_b64 exec, 0xffff")
    A(f"v_lshl_add_u32 {v(t3)}, v1, 2, s64"); A(f"v_add_u32 {v(t3)}, {L_CS}, {v(t3)}")
    A(f"ds_write_b32 {v(t3)}, {v(vAC)}"); A(f"ds_write_b32 {v(t3)}, {v(vAC+4)} offset:64")
    A("s_mov_b64 exec, -1")
    A("s_waitcnt lgkmcnt(0)"); A("s_barrier")
    RS = 56; NM = 64; RL2 = 72; CSK = 80; rl = 86; nl = 88; rl2 = 90; CSQ = 92
    A(f"v_lshrrev_b32 {v(t0)}, 4, v1"); A(f"v_lshl_add_u32 {v(t0)}, {v(t0)}, 4, s64"); A(f"v_add_u32 {v(t0)}, {L_RSTD}, {v(t0)}")
    for mt in range(2):
        A(f"ds_read_b128 {v(RS+4*mt,4)}, {v(t0)} offset:{mt*64}")
        A(f"ds_read_b128 {v(NM+4*mt,4)}, {v(t0)} offset:{512+mt*64}")
    A(f"v_and_b32 {v(t1)}, 15, v1"); A(f"v_lshlrev_b32 {v(t1)}, 2, {v(t1)}"); A(f"v_add_u32 {v(t1)}, {L_CS}, {v(t1)}")
    for t in range(5): A(f"ds_read_b32 {v(CSK+t)}, {v(t1)} offset:{t*64}")
    for mt in range(2):
        A(f"ds_read_b32 {v(rl+mt)}, {v(t2)} offset:{mt*64}")
        A(f"ds_read_b32 {v(nl+mt)}, {v(t2)} offset:{512+mt*64}")
    A(f"v_lshrrev_b32 {v(t1)}, 4, v1"); A(f"v_lshlrev_b32 {v(t1)}, 4, {v(t1)}"); A(f"v_add_u32 {v(t1)}, {L_CS+320}, {v(t1)}")
    for t in range(3): A(f"ds_read_b128 {v(CSQ+4*t,4)}, {v(t1)} offset:{t*64}")
    A("s_waitcnt lgkmcnt(0)")
    A(f"s_mov_b32 s78, 0x{LOG2E:x}"); A(f"s_mov_b32 s79, 0x{EPS6:x}")
    for r in range(8): A(f"v_mul_f32 {v(RL2+r)}, s78, {v(RS+r)}")
    for mt in range(2): A(f"v_mul_f32 {v(rl2+mt)}, s78, {v(rl+mt)}")
    PK = 104; PV = 116
    def phi(c, rs, r2, tmp):
        A(f"v_mul_f32 {v(tmp)}, {v(c)}, {v(r2)}")
        A(f"v_fma_f32 {v(c)}, {v(c)}, {v(rs)}, s79")
        A(f"v_exp_f32 {v(tmp)}, {v(tmp)} clamp")
        A(f"v_max_f32 {v(c)}, s79, {v(c)}")
        A(f"v_add_f32 {v(c)}, {v(c)}, {v(tmp)}")
    for t in range(5):
        for mt in range(2):
            for r in range(4):
                A(f"v_fma_f32 {v(AK(mt,t)+r)}, {v(NM+4*mt+r)}, {v(CSK+t)}, {v(AK(mt,t)+r)}")
        if t >= 2:
            for mt in range(2):
                for r in range(4): A(f"v_mul_f32 {v(vT+4*mt+r)}, {v(AK(mt,t)+r)}, {v(RS+4*mt+r)}")
                for h in range(2): A(f"v_cvt_pk_bf16_f32 {v(PV+4*(t-2)+2*mt+h)}, {v(vT+4*mt+2*h)}, {v(vT+4*mt+2*h+1)}")
        if t <= 2:
            for mt in range(2):
                for r in range(4): phi(AK(mt,t)+r, RS+4*mt+r, RL2+4*mt+r, vT+8+r)
                for h in range(2): A(f"v_cvt_pk_bf16_f32 {v(PK+4*t+2*mt+h)}, {v(AK(mt,t)+2*h)}, {v(AK(mt,t)+2*h+1)}")
    A(f"v_and_b32 {v(t0)}, 15, v1"); A(f"v_cmp_gt_u32 vcc, 8, {v(t0)}")
    for r in range(4): A(f"v_cndmask_b32 {v(PV+r)}, {v(PV+r)}, {v(vONE)}, vcc")
    prods = [(0,2),(0,3),(1,2),(1,3),(1,4),(2,2),(2,3),(2,4)]
    KVP = 136
    for n, (ta, tb) in enumerate(prods):
        mfma(A, v(KVP+4*n,4), v(PK+4*ta,4), v(PV+4*(tb-2),4), "0")
    A("s_lshl_b32 s64, s26, 13")
    A(f"v_lshl_add_u32 {v(t0)}, v1, 4, s64")
    for n in range(8): A(f"ds_write_b128 {v(t0)}, {v(KVP+4*n,4)} offset:{n*1024}")
    A("s_waitcnt lgkmcnt(0)"); A("s_barrier")
    A("v_cmp_gt_u32 vcc, 210, v0"); A("s_and_saveexec_b64 s[66:67], vcc"); A("s_cbranch_execz K1_nopub")
    for w in range(4): A(f"ds_read_b128 {v(KVP+4*w,4)}, {v(g0)} offset:{w*8192}")
    A("s_waitcnt lgkmcnt(0)")
    for r in range(4):
        A(f"v_add_f32 {v(KVP+r)}, {v(KVP+r)}, {v(KVP+4+r)}"); A(f"v_add_f32 {v(KVP+8+r)}, {v(KVP+8+r)}, {v(KVP+12+r)}")
    for r in range(4): A(f"v_add_f32 {v(KVP+r)}, {v(KVP+r)}, {v(KVP+8+r)}")
    A(f"s_mul_i32 s64, {s(SI)}, {KV_STRIDE}")
    A(f"buffer_store_dwordx4 {v(KVP,4)}, {v(g1)}, {s(SWS,4)}, s64 offen sc1")
    A.label("K1_nopub")
    A("s_mov_b64 exec, s[66:67]")
    A("s_waitcnt vmcnt(0)"); A("s_barrier")
    A(f"s_lshl_b32 s64, {s(SG)}, 4")
    A(f"v_mov_b32 {v(g3)}, s64")
    A("s_cmp_lg_u32 s26, 0"); A("s_cbranch_scc1 K1_noinc")
    A("s_mov_b64 exec, 1")
    A(f"v_mov_b32 {v(t0)}, 1")
    A(f"buffer_atomic_add {v(t0)}, {v(g3)}, {s(SD,4)}, 0 offen sc1")
    A("s_mov_b64 exec, -1")
    A.label("K1_noinc")
    stamp(A, 3)
    pa, pr = vG+4, vG+5
    A("s_lshl_b32 s80, s2, 2"); A("s_add_u32 s80, s80, s26")
    A("s_lshl_b32 s81, s26, 12"); A(f"s_add_u32 s81, s81, {L_PACK}")
    A(f"v_lshrrev_b32 {v(t0)}, 2, v1"); A(f"v_bfe_u32 {v(t1)}, v1, 3, 2")
    A(f"v_lshlrev_b32 {v(t0)}, 7, {v(t0)}"); A(f"v_lshl_or_b32 {v(t0)}, {v(t1)}, 5, {v(t0)}")
    A(f"v_and_b32 {v(t1)}, 3, v1"); A(f"v_lshl_or_b32 {v(t0)}, {v(t1)}, 3, {v(t0)}")
    A(f"v_add_u32 {v(pr)}, s81, {v(t0)}")
    A.label("K1_pack")
    A("s_cmp_lt_u32 s80, 200"); A("s_cbranch_scc1 K1_p_wo")
    A("s_cmp_lt_u32 s80, 680"); A("s_cbranch_scc1 K1_p_w1")
    A("s_sub_u32 s87, s80, 680"); A(f"s_mov_b32 {s(SP)}, s16"); A(f"s_and_b32 {s(SP+1)}, s17, 0xffff"); A(f"s_mov_b32 {s(SP+2)}, {1536*1280}")
    A(f"s_mov_b32 s85, {WS_W2}"); A("s_movk_i32 s86, 192"); A("s_branch K1_p_d10")
    A.label("K1_p_w1")
    A("s_sub_u32 s87, s80, 200"); A(f"s_mov_b32 {s(SP)}, s12"); A(f"s_and_b32 {s(SP+1)}, s13, 0xffff"); A(f"s_mov_b32 {s(SP+2)}, {640*3072}")
    A(f"s_mov_b32 s85, {WS_W1}"); A("s_movk_i32 s86, 80"); A("s_movk_i32 s84, 3072")
    A("s_mul_i32 s82, s87, 2731"); A("s_lshr_b32 s82, s82, 16"); A("s_mul_i32 s83, s82, 24"); A("s_sub_u32 s83, s87, s83")
    A("s_branch K1_p_go")
    A.label("K1_p_wo")
    A("s_mov_b32 s87, s80"); A(f"s_mov_b32 {s(SP)}, s8"); A(f"s_and_b32 {s(SP+1)}, s9, 0xffff"); A(f"s_mov_b32 {s(SP+2)}, {640*1280}")
    A(f"s_mov_b32 s85, {WS_WO}"); A("s_movk_i32 s86, 80")
    A.label("K1_p_d10")
    A("s_movk_i32 s84, 1280")
    A("s_mul_i32 s82, s87, 6554"); A("s_lshr_b32 s82, s82, 16"); A("s_mul_i32 s83, s82, 10"); A("s_sub_u32 s83, s87, s83")
    A.label("K1_p_go")
    A(f"s_mov_b32 {s(SP+3)}, 0x00020000")
    A("s_lshl_b32 s87, s82, 5"); A("s_mul_i32 s87, s87, s84"); A("s_lshl_b32 s88, s83, 7"); A("s_add_u32 s87, s87, s88")
    for j in range(4):
        A(f"v_lshrrev_b32 {v(t0)}, 3, v1"); A(f"v_add_u32 {v(t0)}, {8*j}, {v(t0)}")
        kperm(A, t1, t0, t2, t3)
        A(f"v_mul_lo_u32 {v(t1)}, {v(t1)}, s84")
        A(f"v_bfe_u32 {v(t2)}, v1, 1, 2"); A(f"v_bfe_u32 {v(t3)}, {v(t0)}, 1, 2"); A(f"v_xor_b32 {v(t2)}, {v(t2)}, {v(t3)}")
        A(f"v_and_b32 {v(t3)}, 1, v1"); A(f"v_lshl_or_b32 {v(t2)}, {v(t2)}, 1, {v(t3)}")
        A(f"v_lshl_add_u32 {v(t1)}, {v(t2)}, 4, {v(t1)}")
        A(f"s_add_u32 m0, s81, {j*1024}")
        A(f"buffer_load_dwordx4 {v(t1)}, {s(SP,4)}, s87 offen lds")
    A("s_lshl_b32 s88, s83, 2"); A("s_mul_i32 s88, s88, s86"); A("s_lshl_b32 s89, s82, 2"); A("s_add_u32 s88, s88, s89")
    A("s_lshl_b32 s88, s88, 8"); A("s_add_u32 s88, s88, s85"); A("s_lshl_b32 s86, s86, 8")
    A(f"v_lshlrev_b32 {v(pa)}, 4, v1")
    A("s_waitcnt vmcnt(0)")
    PF = KVP
    for t in range(4):
        A(f"v_xor_b32 {v(t0)}, {t*32}, {v(pr)}")
        for jj in range(2): A(f"ds_read_b64_tr_b16 {v(PF+4*t+2*jj,2)}, {v(t0)} offset:{jj*2048}")
    A("s_waitcnt lgkmcnt(0)")
    for t in range(4):
        A(f"buffer_store_dwordx4 {v(PF+4*t,4)}, {v(pa)}, {s(SWS,4)}, s88 offen")
        A("s_add_u32 s88, s88, s86")
    A("s_add_u32 s80, s80, 1024")
    A("s_cmp_lt_u32 s80, 1160"); A("s_cbranch_scc1 K1_pack")
    stamp(A, 4)
    PQ = 104
    for mt in range(2):
        for t in range(3):
            for r in range(4):
                A(f"v_fma_f32 {v(AQ(mt,t)+r)}, {v(nl+mt)}, {v(CSQ+4*t+r)}, {v(AQ(mt,t)+r)}")
            for r in range(4): phi(AQ(mt,t)+r, rl+mt, rl2+mt, vT+8+r)
            for h in range(2): A(f"v_cvt_pk_bf16_f32 {v(PQ+8*mt+2*t+h)}, {v(AQ(mt,t)+2*h)}, {v(AQ(mt,t)+2*h+1)}")
        A(f"v_mov_b32 {v(PQ+8*mt+6)}, 0"); A(f"v_mov_b32 {v(PQ+8*mt+7)}, 0")
    stamp(A, 5)
    A("s_cmp_lg_u32 s26, 0"); A("s_cbranch_scc1 K1_polled")
    A("s_mov_b32 s90, 0")
    A.label("K1_poll")
    A(f"buffer_load_dword {v(t0)}, {v(g3)}, {s(SD,4)}, 0 offen sc1")
    A("s_waitcnt vmcnt(0)")
    A(f"v_readfirstlane_b32 s91, {v(t0)}")
    A("s_cmp_ge_u32 s91, 16"); A("s_cbranch_scc1 K1_polled")
    A("s_add_u32 s90, s90, 1"); A("s_cmp_lt_u32 s90, 100000"); A("s_cbranch_scc0 K1_polled")
    A("s_sleep 1"); A("s_branch K1_poll")
    A.label("K1_polled")
    stamp(A, 6)
    A("s_barrier")
    GA = 136
    A("v_cmp_gt_u32 vcc, 210, v0"); A("s_and_saveexec_b64 s[66:67], vcc"); A("s_cbranch_execz K1_nogat")
    for i in range(16):
        A(f"s_mov_b32 s64, {i*KV_STRIDE}")
        A(f"buffer_load_dwordx4 {v(GA+4*i,4)}, {v(g1)}, {s(SWS,4)}, s64 offen sc1")
    for i in range(1, 16):
        A(f"s_waitcnt vmcnt({15-i})")
        for r in range(4): A(f"v_add_f32 {v(GA+r)}, {v(GA+r)}, {v(GA+4*i+r)}")
    A(f"v_cvt_pk_bf16_f32 {v(GA)}, {v(GA)}, {v(GA+1)}"); A(f"v_cvt_pk_bf16_f32 {v(GA+1)}, {v(GA+2)}, {v(GA+3)}")
    A(f"ds_write_b64 {v(g2)}, {v(GA,2)}")
    A.label("K1_nogat")
    A("s_mov_b64 exec, s[66:67]")
    A("s_waitcnt lgkmcnt(0)"); A("s_barrier")
    stamp(A, 7)
    AN = 136; AD = 160
    A(f"v_and_b32 {v(t0)}, 15, v1"); A(f"v_lshrrev_b32 {v(t1)}, 4, v1"); A(f"v_lshlrev_b32 {v(t1)}, 4, {v(t1)}")
    A(f"v_lshl_add_u32 {v(t2)}, {v(t0)}, 7, {v(t1)}"); A(f"v_add_u32 {v(t2)}, {L_KVN}, {v(t2)}")
    A(f"v_add_u32 {v(t3)}, {L_KVD}, {v(t1)}")
    A(f"v_cmp_le_u32 vcc, 4, {v(t0)}"); A(f"v_add_u32 {v(t4)}, 128, {v(t3)}")
    A(f"v_cndmask_b32 {v(t5)}, {v(t3)}, {v(t4)}, vcc")
    for te in range(3):
        for st in range(2):
            A(f"ds_read_b128 {v(AN+8*te+4*st,4)}, {v(t2)} offset:{te*2048+st*64}")
            A(f"ds_read_b128 {v(AD+8*te+4*st,4)}, {v([t3,t5,t4][te])} offset:{st*64}")
    A("s_waitcnt lgkmcnt(0)")
    ON = 184; OD = 208
    for te in range(3):
        for mt in range(2):
            for (acc, aop) in ((ON, AN), (OD, AD)):
                d = v(acc+8*te+4*mt, 4)
                mfma(A, d, v(aop+8*te,4), v(PQ+8*mt,4), "0")
                mfma(A, d, v(aop+8*te+4,4), v(PQ+8*mt+4,4))
    OP = 56
    A(f"s_lshl_b32 s64, {s(SI)}, 3"); A("s_lshl_b32 s65, s26, 1"); A("s_add_u32 s64, s64, s65"); A("s_mul_i32 s64, s64, 80")
    A(f"s_mul_i32 s65, {s(SG)}, 5"); A("s_add_u32 s64, s64, s65"); A("s_lshl_b32 s64, s64, 8"); A(f"s_add_u32 s64, s64, {WS_O}")
    A(f"v_bfe_u32 {v(t1)}, v1, 4, 1"); A(f"v_mul_u32_u24 {v(t1)}, {80*256}, {v(t1)}")
    A(f"v_lshrrev_b32 {v(t2)}, 5, v1"); A(f"v_lshl_add_u32 {v(t1)}, {v(t2)}, 8, {v(t1)}")
    A(f"v_lshl_add_u32 {v(t1)}, {v(t0)}, 4, {v(t1)}")
    for te in range(3):
        for mt in range(2):
            for r in range(4):
                dn = OD+8*te+4*mt+r
                A(f"v_add_f32 {v(dn)}, s79, {v(dn)}")
                A(f"v_rcp_f32 {v(dn)}, {v(dn)}")
            for r in range(4):
                A(f"v_mul_f32 {v(ON+8*te+4*mt+r)}, {v(ON+8*te+4*mt+r)}, {v(OD+8*te+4*mt+r)}")
            for h in range(2): A(f"v_cvt_pk_bf16_f32 {v(OP+4*te+2*mt+h)}, {v(ON+8*te+4*mt+2*h)}, {v(ON+8*te+4*mt+2*h+1)}")
        for h in range(2): A(f"v_permlane16_swap_b32 {v(OP+4*te+h)}, {v(OP+4*te+2+h)}")
        if te == 2: A("s_mov_b64 exec, 0xffffffff")
        A(f"buffer_store_dwordx4 {v(OP+4*te,4)}, {v(t1)}, {s(SWS,4)}, s64 offen offset:{te*512}")
    stamp_flush(A, 0, SWS)
    A.label("K1_end")
    A("s_endpgm")
    return kd("k1_kernel", 232)

def gen_k24(A, which):
    nm = f"K{which}"
    A.endl = nm + "_end"
    kernel_begin(A, f"k{which}_kernel")
    prologue(A)
    SJ, SC = 30, 31
    map_jc(A, SJ, SC)
    SX, SWS, SO, SB = 32, 40, 36, 44
    KO = 80 if which == 2 else 192
    KS = KO // 16
    WSA = WS_O if which == 2 else WS_R
    WSB = WS_WO if which == 2 else WS_W2
    L_RED = 0; L_X = 61440; L_OUT = 61440
    t0, t1, t2, t3, t4, t5 = range(4, 10)
    vL16 = 10; vXr = 11; vRw = 12; vRr = 13
    vH = 14
    vB2 = 24
    ACC = 36
    FR = 116
    acc = lambda m, t: ACC + (m*5+t)*4
    A(f"v_lshlrev_b32 {v(vL16)}, 4, v1")
    for m in range(4):
        A(f"s_add_u32 s60, s26, {m}"); A("s_and_b32 s60, s60, 3"); A(f"s_lshl_b32 s61, {s(SJ)}, 2"); A("s_add_u32 s60, s60, s61")
        A(f"s_mul_i32 s60, s60, {KO}"); A(f"s_mul_i32 s61, s26, {KS*4}"); A("s_add_u32 s60, s60, s61"); A("s_lshl_b32 s60, s60, 8")
        A(f"s_add_u32 {s(52+m)}, s60, {WSA}")
    A(f"s_mul_i32 s60, {s(SC)}, {5*KO}"); A("s_add_u32 s60, s60, s61"); A("s_lshl_b32 s60, s60, 8"); A(f"s_add_u32 s56, s60, {WSB}")
    for t in range(1, 5): A(f"s_add_u32 {s(56+t)}, s56, {t*KO*256}")
    A("s_waitcnt lgkmcnt(0)")
    srd(A, SX, 4, 2048*1280); srd(A, SWS, 24, WS_END); srd(A, SO, 20, 2048*1280); srd(A, SB, 18, 1280)
    NST = 5 if which == 2 else 4
    def load_ops(sp):
        b = (sp % NST)*36
        off = (sp % 4)*1024
        ops = []
        for t in range(5): ops.append([f"buffer_load_dwordx4 {a(b+16+4*t,4)}, {v(vL16)}, {s(SWS,4)}, {s(56+t)} offen offset:{off}"])
        for m in range(4): ops.append([f"buffer_load_dwordx4 {a(b+4*m,4)}, {v(vL16)}, {s(SWS,4)}, {s(52+m)} offen offset:{off}"])
        if sp and sp % 4 == 0:
            ops[0] = [f"s_add_u32 {s(r)}, {s(r)}, 4096" for r in range(52, 61)] + ops[0]
        return ops
    NPRE = 5 if which == 2 else 3
    for sp in range(NPRE):
        for o in load_ops(sp):
            for x in o: A(x)
    extra = 0
    A(f"v_and_b32 {v(t0)}, 15, v1"); A(f"v_lshrrev_b32 {v(t1)}, 4, v1")
    if which == 2:
        A(f"s_lshl_b32 s62, {s(SJ)}, 6"); A("s_lshl_b32 s63, s26, 4"); A("s_add_u32 s62, s62, s63"); A("s_mul_i32 s62, s62, 1280")
        A(f"s_mul_i32 s63, {s(SC)}, 160"); A("s_add_u32 s62, s62, s63")
        A("s_lshl_b32 s63, s26, 12"); A(f"s_add_u32 s63, s63, {L_X}")
        for j in range(4):
            A(f"v_add_u32 {v(t2)}, {4*j}, {v(t1)}")
            A(f"v_xor_b32 {v(t3)}, {v(t0)}, {v(t2)}")
            A(f"v_cmp_gt_u32 vcc, 10, {v(t3)}")
            A(f"v_mul_u32_u24 {v(t2)}, 1280, {v(t2)}"); A(f"v_lshl_add_u32 {v(t2)}, {v(t3)}, 4, {v(t2)}")
            A(f"s_add_u32 m0, s63, {j*1024}")
            A("s_mov_b64 exec, vcc")
            A(f"buffer_load_dwordx4 {v(t2)}, {s(SX,4)}, s62 offen lds")
            A("s_mov_b64 exec, -1")
        extra = 4
        A(f"v_lshrrev_b32 {v(t2)}, 1, {v(t1)}"); A(f"v_xor_b32 {v(t2)}, {v(t2)}, {v(t0)}"); A(f"v_lshlrev_b32 {v(t2)}, 4, {v(t2)}")
        A(f"v_lshl_or_b32 {v(t2)}, {v(t0)}, 8, {v(t2)}"); A(f"v_and_b32 {v(t3)}, 1, {v(t1)}"); A(f"v_lshl_or_b32 {v(t2)}, {v(t3)}, 3, {v(t2)}")
        A(f"v_add_u32 {v(vXr)}, s63, {v(t2)}")
    else:
        A(f"s_lshl_b32 s62, {s(SJ)}, 2"); A("s_add_u32 s62, s62, s26"); A("s_mul_i32 s62, s62, 80"); A(f"s_mul_i32 s63, {s(SC)}, 10")
        A("s_add_u32 s62, s62, s63"); A("s_lshl_b32 s62, s62, 8"); A(f"s_add_u32 s62, s62, {WS_H}")
        A(f"v_lshrrev_b32 {v(t2)}, 1, {v(t1)}"); A(f"v_lshlrev_b32 {v(t2)}, 8, {v(t2)}"); A(f"v_lshl_or_b32 {v(t2)}, {v(t0)}, 4, {v(t2)}")
        A(f"v_and_b32 {v(t3)}, 1, {v(t1)}"); A(f"v_lshl_or_b32 {v(t2)}, {v(t3)}, 3, {v(t2)}")
        for t in range(5): A(f"buffer_load_dwordx2 {v(vH+2*t,2)}, {v(t2)}, {s(SWS,4)}, s62 offen offset:{t*512}")
        A(f"s_mul_i32 s63, {s(SC)}, 160"); A(f"v_lshlrev_b32 {v(t3)}, 3, {v(t1)}")
        for t in range(5): A(f"buffer_load_dwordx2 {v(vB2+2*t,2)}, {v(t3)}, {s(SB,4)}, s63 offen offset:{t*32}")
        extra = 10
    stamp(A, 1)
    A("s_mul_i32 s64, s26, 15360")
    A(f"v_add_u32 {v(vRr)}, s64, {v(vL16)}")
    outstanding = [("s", sp, k) for sp in range(NPRE) for k in range(9)] + [("e", 0, 0)]*extra
    for sp in range(KS):
        b = (sp % NST)*36
        ops = load_ops(sp + NPRE) if sp + NPRE < KS else []
        cnt = 0
        for m in range(4):
            idx = outstanding.index(("s", sp, 5+m))
            A(f"s_waitcnt vmcnt({len(outstanding)-1-idx})")
            outstanding = outstanding[idx+1:]
            for t in range(5):
                mfma(A, v(acc(m,t),4), a(b+16+4*t,4), a(b+4*m,4), "0" if sp == 0 else None)
                cnt += 1
                if cnt % 2 == 0 and cnt//2 - 1 < len(ops):
                    for x in ops[cnt//2-1]: A(x)
                    outstanding.append(("s", sp+NPRE, cnt//2-1))
    stamp(A, 2)
    for m in range(1, 4):
        A(f"s_add_u32 s64, s26, {m}"); A("s_and_b32 s64, s64, 3"); A("s_mul_i32 s64, s64, 15360"); A(f"s_add_u32 s64, s64, {(m-1)*5120}")
        A(f"v_add_u32 {v(vRw)}, s64, {v(vL16)}")
        for t in range(5): A(f"ds_write_b128 {v(vRw)}, {v(acc(m,t),4)} offset:{t*1024}")
    A("s_waitcnt vmcnt(0) lgkmcnt(0)"); A("s_barrier")
    stamp(A, 3)
    lg = LG(A)
    RD = FR
    for t in range(5):
        for sl in range(3): lg.issue(("r", t), f"ds_read_b128 {v(RD+(t*3+sl)*4,4)}, {v(vRr)} offset:{sl*5120+t*1024}")
        if which == 2:
            A(f"v_xor_b32 {v(t2)}, {32*t}, {v(vXr)}")
            lg.issue(("r", t), f"ds_read_b64 {v(vH+2*t,2)}, {v(t2)}")
    P = FR + 64
    vS, vQ = FR+80, FR+81
    if which == 2:
        A(f"v_mov_b32 {v(vS)}, 0"); A(f"v_mov_b32 {v(vQ)}, 0"); A(f"v_mov_b32 {v(FR+82)}, 0x{ONES:x}")
    for t in range(5):
        lg.wait(("r", t))
        for r in range(4):
            A(f"v_add_f32 {v(acc(0,t)+r)}, {v(acc(0,t)+r)}, {v(RD+(t*3)*4+r)}")
            A(f"v_add_f32 {v(RD+(t*3+1)*4+r)}, {v(RD+(t*3+1)*4+r)}, {v(RD+(t*3+2)*4+r)}")
        for h in range(2):
            A(f"v_lshlrev_b32 {v(t2)}, 16, {v(vH+2*t+h)}"); A(f"v_and_b32 {v(t3)}, 0xffff0000, {v(vH+2*t+h)}")
            A(f"v_add_f32 {v(acc(0,t)+2*h)}, {v(acc(0,t)+2*h)}, {v(t2)}"); A(f"v_add_f32 {v(acc(0,t)+2*h+1)}, {v(acc(0,t)+2*h+1)}, {v(t3)}")
            if which == 4:
                A(f"v_lshlrev_b32 {v(t2)}, 16, {v(vB2+2*t+h)}"); A(f"v_and_b32 {v(t3)}, 0xffff0000, {v(vB2+2*t+h)}")
                A(f"v_add_f32 {v(acc(0,t)+2*h)}, {v(acc(0,t)+2*h)}, {v(t2)}"); A(f"v_add_f32 {v(acc(0,t)+2*h+1)}, {v(acc(0,t)+2*h+1)}, {v(t3)}")
        for r in range(4): A(f"v_add_f32 {v(acc(0,t)+r)}, {v(acc(0,t)+r)}, {v(RD+(t*3+1)*4+r)}")
        for h in range(2):
            A(f"v_cvt_pk_bf16_f32 {v(P+2*t+h)}, {v(acc(0,t)+2*h)}, {v(acc(0,t)+2*h+1)}")
            if which == 2:
                A(f"v_dot2c_f32_bf16 {v(vS)}, {v(P+2*t+h)}, {v(FR+82)}")
                A(f"v_dot2c_f32_bf16 {v(vQ)}, {v(P+2*t+h)}, {v(P+2*t+h)}")
    if which == 2:
        A(f"s_lshl_b32 s62, {s(SJ)}, 2"); A("s_add_u32 s62, s62, s26"); A("s_mul_i32 s62, s62, 80"); A(f"s_mul_i32 s63, {s(SC)}, 10")
        A("s_add_u32 s62, s62, s63"); A("s_lshl_b32 s62, s62, 8"); A(f"s_add_u32 s62, s62, {WS_H}")
        A(f"v_and_b32 {v(t2)}, 1, {v(t1)}"); A(f"v_lshlrev_b32 {v(t2)}, 9, {v(t2)}"); A(f"v_lshrrev_b32 {v(t3)}, 1, {v(t1)}")
        A(f"v_lshl_or_b32 {v(t2)}, {v(t3)}, 8, {v(t2)}"); A(f"v_lshl_or_b32 {v(t2)}, {v(t0)}, 4, {v(t2)}")
        A(f"v_mov_b32 {v(P+10)}, 0"); A(f"v_mov_b32 {v(P+11)}, 0")
        for pr in range(3):
            for h in range(2): A(f"v_permlane16_swap_b32 {v(P+4*pr+h)}, {v(P+4*pr+2+h)}")
            if pr == 2: A("s_mov_b32 exec_lo, 0xffff"); A("s_mov_b32 exec_hi, 0xffff")
            A(f"buffer_store_dwordx4 {v(P+4*pr,4)}, {v(t2)}, {s(SWS,4)}, s62 offen offset:{pr*1024}")
        A("s_mov_b64 exec, -1")
        for op in ("v_permlane16_swap_b32", "v_permlane32_swap_b32"):
            A(f"v_mov_b32 {v(t3)}, {v(vS)}"); A(f"v_mov_b32 {v(t4)}, {v(vQ)}")
            A(f"{op} {v(t3)}, {v(vS)}"); A(f"{op} {v(t4)}, {v(vQ)}")
            A(f"v_add_f32 {v(vS)}, {v(vS)}, {v(t3)}"); A(f"v_add_f32 {v(vQ)}, {v(vQ)}, {v(t4)}")
        A(f"s_lshl_b32 s62, {s(SC)}, 11"); A(f"s_lshl_b32 s63, {s(SJ)}, 6"); A("s_add_u32 s62, s62, s63"); A("s_lshl_b32 s63, s26, 4")
        A("s_add_u32 s62, s62, s63"); A("s_lshl_b32 s62, s62, 3"); A(f"s_add_u32 s62, s62, {WS_ST}")
        A(f"v_lshlrev_b32 {v(t2)}, 3, {v(t0)}")
        A("s_mov_b64 exec, 0xffff")
        A(f"buffer_store_dwordx2 {v(vS,2)}, {v(t2)}, {s(SWS,4)}, s62 offen")
    else:
        A("s_mul_i32 s63, s26, 2816"); A(f"s_add_u32 s63, s63, {L_OUT}")
        A(f"v_mul_u32_u24 {v(t2)}, 176, {v(t0)}"); A(f"v_lshl_add_u32 {v(t2)}, {v(t1)}, 3, {v(t2)}"); A(f"v_add_u32 {v(t2)}, s63, {v(t2)}")
        for t in range(5): A(f"ds_write_b64 {v(t2)}, {v(P+2*t,2)} offset:{t*32}")
        A(f"s_lshl_b32 s62, {s(SJ)}, 6"); A("s_lshl_b32 s64, s26, 4"); A("s_add_u32 s62, s62, s64"); A("s_mul_i32 s62, s62, 1280")
        A(f"s_mul_i32 s64, {s(SC)}, 160"); A("s_add_u32 s62, s62, s64")
        for n in range(3):
            A(f"v_add_u32 {v(t2)}, {64*n}, v1")
            A(f"v_mul_u32_u24 {v(t3)}, 6554, {v(t2)}"); A(f"v_lshrrev_b32 {v(t3)}, 16, {v(t3)}")
            A(f"v_mul_u32_u24 {v(t4)}, 10, {v(t3)}"); A(f"v_sub_u32 {v(t4)}, {v(t2)}, {v(t4)}"); A(f"v_lshlrev_b32 {v(t4)}, 4, {v(t4)}")
            A(f"v_mul_u32_u24 {v(t2)}, 176, {v(t3)}"); A(f"v_add3_u32 {v(t2)}, {v(t2)}, {v(t4)}, s63")
            A(f"v_mul_u32_u24 {v(t3)}, 1280, {v(t3)}"); A(f"v_add_u32 {v(RD+16+n)}, {v(t3)}, {v(t4)}")
            if n == 0: A("s_waitcnt lgkmcnt(0)")
            A(f"ds_read_b128 {v(RD+4*n,4)}, {v(t2)}")
        for n in range(3):
            A(f"s_waitcnt lgkmcnt({2-n})")
            if n == 2: A("s_mov_b64 exec, 0xffffffff")
            A(f"buffer_store_dwordx4 {v(RD+4*n,4)}, {v(RD+16+n)}, {s(SO,4)}, s62 offen")
    stamp_flush(A, which-1, SWS)
    A.label(nm + "_end")
    A("s_endpgm")
    return kd(f"k{which}_kernel", 200 + NST*36, accum=200)

def gen_k3(A):
    A.endl = "K3_end"
    kernel_begin(A, "k3_kernel")
    prologue(A)
    SI, SC = 30, 31
    map_ig(A, SI, SC)
    SWS, SB = 40, 44
    L_CS = 122880
    t0, t1, t2, t3, t4, t5 = range(4, 10)
    vL16 = 10; vB = [11, 12]; vC = [13, 14]
    vONE = 16; vST = 20
    vB1 = 28
    ACC = 40
    CSA = 88
    BF = 112
    CF = 160
    acc = lambda t, mt: ACC + (t*2+mt)*4
    A(f"v_lshlrev_b32 {v(vL16)}, 4, v1")
    A(f"s_mul_i32 s52, {s(SC)}, 122880"); A(f"s_add_u32 s52, s52, {WS_W1}"); A("s_lshl_b32 s53, s26, 10"); A("s_add_u32 s52, s52, s53")
    A(f"s_lshl_b32 s54, {s(SI)}, 3"); A("s_lshl_b32 s55, s26, 1"); A("s_add_u32 s54, s54, s55"); A("s_mul_i32 s54, s54, 20480"); A(f"s_add_u32 s54, s54, {WS_H}")
    A("s_add_u32 s55, s54, 20480")
    A("s_waitcnt lgkmcnt(0)")
    srd(A, SWS, 24, WS_END); srd(A, SB, 14, 3072)
    def round_ops(rho):
        ops = []
        for t in range(6):
            ops.append([f"s_add_u32 m0, s53, {t*20480+rho*4096}", f"s_add_u32 s56, s52, {t*20480+rho*4096}", f"buffer_load_dwordx4 {v(vL16)}, {s(SWS,4)}, s56 offen lds"])
        for sp in range(4):
            for mt in range(2):
                ops.append([f"buffer_load_dwordx4 {a((rho*4+sp)*8+mt*4,4)}, {v(vL16)}, {s(SWS,4)}, {s(54+mt)} offen offset:{sp*1024}"])
        ops[-1] += ["s_add_u32 s54, s54, 4096", "s_add_u32 s55, s55, 4096"]
        return ops
    NPRE = 2
    for rho in range(NPRE):
        for o in round_ops(rho):
            for x in o: A(x)
    A(f"v_and_b32 {v(t0)}, 15, v1"); A(f"v_lshrrev_b32 {v(t1)}, 4, v1")
    A(f"s_lshl_b32 s57, {s(SI)}, 7"); A("s_lshl_b32 s58, s26, 5"); A("s_add_u32 s57, s57, s58"); A("s_lshl_b32 s57, s57, 3"); A(f"s_add_u32 s57, s57, {WS_ST}")
    A("s_add_u32 s58, s57, 16384")
    A(f"v_lshlrev_b32 {v(t2)}, 15, {v(t1)}"); A(f"v_lshl_or_b32 {v(t2)}, {v(t0)}, 3, {v(t2)}")
    for mt in range(2):
        for cc in range(2): A(f"buffer_load_dwordx2 {v(vST+mt*4+cc*2,2)}, {v(t2)}, {s(SWS,4)}, {s(57+cc)} offen offset:{mt*128}")
    A(f"s_mul_i32 s59, {s(SC)}, 192"); A(f"v_lshlrev_b32 {v(t3)}, 3, {v(t1)}")
    for t in range(6): A(f"buffer_load_dwordx2 {v(vB1+2*t,2)}, {v(t3)}, {s(SB,4)}, s59 offen offset:{t*32}")
    A(f"v_mov_b32 {v(vB[0])}, {v(vL16)}"); A(f"v_add_u32 {v(vB[1])}, 61440, {v(vL16)}")
    A(f"v_add_u32 {v(vC[0])}, s53, {v(vL16)}"); A(f"v_add_u32 {v(vC[1])}, 61440, {v(vC[0])}")
    for r in range(4): A(f"v_mov_b32 {v(vONE+r)}, 0x{ONES:x}")
    stamp(A, 1)
    out = [("r", rho) for rho in range(NPRE) for _ in range(14)] + [("e", 0)]*10
    lg = LG(A)
    def rd(s_, buf):
        for t in range(6): lg.issue(("b", s_, t), f"ds_read_b128 {v(BF+buf*24+4*t,4)}, {v(vB[t//3])} offset:{(t%3)*20480+s_*1024}")
    for rho in range(5):
        last = max(i for i, o in enumerate(out) if o == ("r", rho))
        A(f"s_waitcnt vmcnt({len(out)-1-last})"); out = out[last+1:]
        A("s_barrier")
        ops = round_ops(rho+NPRE) if rho + NPRE < 5 else []
        out += [("r", rho+NPRE)]*len(ops)
        rd(4*rho, 0)
        for t in range(6): lg.issue(("c", t), f"ds_read_b128 {v(CF+4*t,4)}, {v(vC[t//3])} offset:{(t%3)*20480+rho*4096}")
        cnt = 0
        for sp in range(4):
            s_ = 4*rho + sp
            for t in range(6):
                lg.wait(("b", s_, t))
                for mt in range(2):
                    mfma(A, v(acc(t,mt),4), v(BF+(sp%2)*24+4*t,4), a(s_*8+mt*4,4), "0" if s_ == 0 else None)
                if sp < 3: lg.issue(("b", s_+1, t), f"ds_read_b128 {v(BF+((sp+1)%2)*24+4*t,4)}, {v(vB[t//3])} offset:{(t%3)*20480+(s_+1)*1024}")
                if ops and (cnt % 3 != 2):
                    for x in ops.pop(0): A(x)
                cnt += 1
            if sp == 0:
                for t in range(6):
                    lg.wait(("c", t))
                    mfma(A, v(CSA+4*t,4), v(CF+4*t,4), v(vONE,4), "0" if rho == 0 else None)
        assert not ops
    stamp(A, 2)
    A("s_mul_i32 s60, s26, 384"); A(f"s_add_u32 s60, s60, {L_CS}")
    A(f"v_lshlrev_b32 {v(t2)}, 4, {v(t1)}"); A(f"v_add_u32 {v(t3)}, s60, {v(t2)}")
    A("s_mov_b32 exec_lo, 0x00010001"); A("s_mov_b32 exec_hi, 0x00010001")
    for t in range(6): A(f"ds_write_b128 {v(t3)}, {v(CSA+4*t,4)} offset:{t*64}")
    A("s_mov_b64 exec, -1")
    A("s_waitcnt vmcnt(0) lgkmcnt(0)"); A("s_barrier")
    A(f"v_add_u32 {v(t3)}, {L_CS}, {v(t2)}")
    for w in range(4):
        for t in range(6): A(f"ds_read_b128 {v(BF+(w%3)*24+4*t if w else CSA+4*t,4)}, {v(t3)} offset:{w*384+t*64}")
        if w == 1: A("s_waitcnt lgkmcnt(6)")
    for mt in range(2):
        b = vST + 4*mt
        A(f"v_add_f32 {v(b)}, {v(b)}, {v(b+2)}"); A(f"v_add_f32 {v(b+1)}, {v(b+1)}, {v(b+3)}")
        for op in ("v_permlane16_swap_b32", "v_permlane32_swap_b32"):
            A(f"v_mov_b32 {v(b+2)}, {v(b)}"); A(f"v_mov_b32 {v(b+3)}, {v(b+1)}")
            A(f"{op} {v(b+2)}, {v(b)}"); A(f"{op} {v(b+3)}, {v(b+1)}")
            A(f"v_add_f32 {v(b)}, {v(b)}, {v(b+2)}"); A(f"v_add_f32 {v(b+1)}, {v(b+1)}, {v(b+3)}")
        ln_stats(A, b, b+1, t4)
        A(f"v_mul_f32 {v(b)}, {v(b)}, {v(b+1)}")
    A("s_waitcnt lgkmcnt(0)")
    for r in range(24):
        A(f"v_add_f32 {v(CSA+r)}, {v(CSA+r)}, {v(BF+24+r)}"); A(f"v_add_f32 {v(BF+48+r)}, {v(BF+48+r)}, {v(BF+r)}")
    for r in range(24): A(f"v_add_f32 {v(CSA+r)}, {v(CSA+r)}, {v(BF+48+r)}")
    A(f"s_lshl_b32 s62, {s(SI)}, 3"); A("s_lshl_b32 s63, s26, 1"); A("s_add_u32 s62, s62, s63"); A("s_mul_i32 s62, s62, 192")
    A(f"s_mul_i32 s63, {s(SC)}, 12"); A("s_add_u32 s62, s62, s63"); A("s_lshl_b32 s62, s62, 8"); A(f"s_add_u32 s62, s62, {WS_R}")
    A(f"v_and_b32 {v(t2)}, 1, {v(t1)}"); A(f"v_mul_u32_u24 {v(t2)}, {192*256}, {v(t2)}"); A(f"v_lshrrev_b32 {v(t3)}, 1, {v(t1)}")
    A(f"v_lshl_add_u32 {v(t2)}, {v(t3)}, 8, {v(t2)}"); A(f"v_lshl_add_u32 {v(t2)}, {v(t0)}, 4, {v(t2)}")
    P = BF; BU = BF + 24; U = BF + 28
    for t in range(6):
        for h in range(2):
            A(f"v_lshlrev_b32 {v(BU+2*h)}, 16, {v(vB1+2*t+h)}"); A(f"v_and_b32 {v(BU+2*h+1)}, 0xffff0000, {v(vB1+2*t+h)}")
        for mt in range(2):
            b = vST + 4*mt
            for r in range(4):
                A(f"v_fma_f32 {v(U+r)}, {v(b)}, {v(CSA+4*t+r)}, {v(BU+r)}")
            for r in range(4):
                A(f"v_fma_f32 {v(U+r)}, {v(acc(t,mt)+r)}, {v(b+1)}, {v(U+r)}")
            for r in range(4): A(f"v_max_f32 {v(U+r)}, 0, {v(U+r)}")
            for r in range(4): A(f"v_mul_f32 {v(U+r)}, {v(U+r)}, {v(U+r)}")
            for h in range(2): A(f"v_cvt_pk_bf16_f32 {v(P+4*t+2*mt+h)}, {v(U+2*h)}, {v(U+2*h+1)}")
        for h in range(2): A(f"v_permlane16_swap_b32 {v(P+4*t+h)}, {v(P+4*t+2+h)}")
        A(f"buffer_store_dwordx4 {v(P+4*t,4)}, {v(t2)}, {s(SWS,4)}, s62 offen offset:{t*512}")
    stamp_flush(A, 2, SWS)
    A.label("K3_end")
    A("s_endpgm")
    return kd("k3_kernel", 184+160, accum=184)

def main(path, stamps=False):
    global STAMPS
    STAMPS = stamps
    A = Asm()
    kds = [gen_k1(A), gen_k24(A, 2), gen_k3(A), gen_k24(A, 4)]
    L = A.lines
    if NOMFMA: L = [l for l in L if "v_mfma" not in l]
    if NODS: L = [l for l in L if "ds_read" not in l]
    if NOLOAD: L = [l for l in L if not ("buffer_load_dwordx4" in l and "sc1" not in l)]
    lines, n = hazard.fix(L)
    launches = ["; @launch kernel=k1_kernel grid=(256,1,1) block=(256,1,1) lds=163840",
                "; @launch kernel=k2_kernel grid=(256,1,1) block=(256,1,1) lds=77824",
                "; @launch kernel=k3_kernel grid=(256,1,1) block=(256,1,1) lds=124416",
                "; @launch kernel=k4_kernel grid=(256,1,1) block=(256,1,1) lds=77824"]
    open(path, "w").write(file_text(launches, "\n".join(lines) + "\n", kds))
    print("nops inserted:", n, "lines:", len(lines))
if __name__ == "__main__":
    main(sys.argv[1] if len(sys.argv) > 1 else "v2.s")
```

```python
import sys
sys.path.insert(0, "dev")
import gen2
gen2.main("f_base.s")
base = open("f_base.s").read()
ls = [l for l in base.split("\n") if l.startswith("; @launch")]
blk = "\n".join(ls) + "\n"
def w(name, order):
    open(f"t/{name}.s", "w").write(base.replace(blk, "\n".join(ls[i] for i in order) + "\n"))
w("f_dbl", [0,1,2,3,0,1,2,3])
w("f_k1", [0,0,1,2,3])
w("f_k4", [0,1,2,3,3])
w("f_k3", [0,1,2,2,3])
```

```python
import sys, os
sys.path.insert(0, "dev")
from asmgen import *
import hazard

WS_O  = 0
WS_H  = WS_O + 2621440
WS_R  = WS_H + 2621440
WS_WO = WS_R + 6291456
WS_W1 = WS_WO + 819200
WS_W2 = WS_W1 + 1966080
WS_KV = WS_W2 + 1966080
KV_STRIDE = 3584
WS_ST = WS_KV + 256*KV_STRIDE
WS_FP = WS_ST + 131072
WS_FKV = WS_FP + 2048
WS_FO = WS_FKV + 2048
WS_FH = WS_FO + 2048
WS_FR = WS_FH + 2048
WS_TS = WS_FR + 2048
WS_END = WS_TS + 256*256
LOG2E = 0x3fb8aa3b; EPS6 = 0x358637bd; EPS5 = 0x3727c5ac; INV640 = 0x3acccccd; ONES = 0x3f803f80
SPIN = 40000
STAMPS = False
OPT = dict(chk=int(os.environ.get("CHK", "7")), slow=int(os.environ.get("SLOW", "0")), nonce=os.environ.get("NONCE", "v"), dummy=int(os.environ.get("DUMMY", "1")), map=os.environ.get("MAP", "2x16"), rot=int(os.environ.get("ROT", "0")),
           n_w2a=int(os.environ.get("NW2A", "16")), n_w2b=int(os.environ.get("NW2B", "12")), n_w2c=int(os.environ.get("NW2C", "10")))

PF = dict(kvE=12, kvW=6, qE=10, oE=6, oS=6, oF=8, p2E=4, hS=6, p3L=26, rE=4, rS=6, kinit=10, p3init=10, kfly=10, p3fly=10)
for k in list(PF):
    if os.environ.get("PF_"+k): PF[k] = int(os.environ["PF_"+k])
def stamp(A, n):
    if not STAMPS: return
    A("s_memrealtime s[100:101]"); A("s_memtime s[98:99]"); A("s_waitcnt lgkmcnt(0)")
    A(f"v_writelane_b32 v3, s100, {n}"); A(f"v_writelane_b32 v3, s98, {n+32}")

class Cnt:
    def __init__(self, A, name, cap): self.A = A; self.q = []; self.name = name; self.cap = cap
    def issue(self, tag, txt):
        for l in (txt if isinstance(txt, list) else [txt]): self.A(l)
        self.q.append(tag)
    def wait(self, tag):
        if tag not in self.q: return
        idx = len(self.q) - 1 - self.q[::-1].index(tag)
        n = len(self.q) - 1 - idx
        self.A(f"s_waitcnt {self.name}({min(n, self.cap)})")
        self.q = self.q[idx+1:] if n <= self.cap else self.q[len(self.q)-self.cap:]
    def drained(self): self.q = []

class Emit:
    def __init__(self): self.l = []
    def __call__(self, t): self.l.append(t)

def merge(A, vm, stream, side, every=None):
    n = len(stream); k = len(side)
    if k == 0:
        for t in stream: A(t)
        return
    step = every if every else max(1, n // (k + 1))
    j = 0
    for i, t in enumerate(stream):
        A(t)
        if (i + 1) % step == 0 and j < k:
            vm.issue(*side[j]); j += 1
    while j < k:
        vm.issue(*side[j]); j += 1

def mfma(A, d, x, y, c=None):
    A(f"v_mfma_f32_16x16x32_bf16 {d}, {x}, {y}, {d if c is None else c}")

def kperm(A, dst, p, t1, t2):
    A(f"v_and_b32 {v(t1)}, 12, {v(p)}"); A(f"v_lshlrev_b32 {v(t1)}, 1, {v(t1)}")
    A(f"v_lshrrev_b32 {v(t2)}, 4, {v(p)}"); A(f"v_lshlrev_b32 {v(t2)}, 2, {v(t2)}")
    A(f"v_and_b32 {v(dst)}, 3, {v(p)}")
    A(f"v_or3_b32 {v(dst)}, {v(dst)}, {v(t1)}, {v(t2)}")

def ln_stats2(E, pairs, tmps):
    def each(f):
        for k, (a_, b_) in enumerate(pairs): f(a_, b_, tmps[k])
    def rnd(r): return [f"v_cvt_pk_bf16_f32 {v(r)}, {v(r)}, {v(r)}", f"v_and_b32 {v(r)}, 0xffff0000, {v(r)}"]
    each(lambda a_, b_, t: E(f"v_mul_f32 {v(a_)}, s93, {v(a_)}"))
    each(lambda a_, b_, t: E(f"v_mul_f32 {v(t)}, {v(a_)}, {v(a_)}"))
    each(lambda a_, b_, t: E(f"v_fma_f32 {v(b_)}, {v(b_)}, s93, -{v(t)}"))
    each(lambda a_, b_, t: E(f"v_max_f32 {v(b_)}, 0, {v(b_)}"))
    each(lambda a_, b_, t: E(rnd(b_)[0])); each(lambda a_, b_, t: E(rnd(a_)[0]))
    each(lambda a_, b_, t: E(rnd(b_)[1])); each(lambda a_, b_, t: E(rnd(a_)[1]))
    each(lambda a_, b_, t: E(f"v_add_f32 {v(b_)}, 0x{EPS5:x}, {v(b_)}"))
    each(lambda a_, b_, t: E(f"v_xor_b32 {v(a_)}, 0x80000000, {v(a_)}"))
    each(lambda a_, b_, t: E(rnd(b_)[0])); each(lambda a_, b_, t: E(rnd(b_)[1]))
    each(lambda a_, b_, t: E(f"v_sqrt_f32 {v(b_)}, {v(b_)}"))
    each(lambda a_, b_, t: E(rnd(b_)[0])); each(lambda a_, b_, t: E(rnd(b_)[1]))
    each(lambda a_, b_, t: E(f"v_rcp_f32 {v(b_)}, {v(b_)}"))

def gen(A):
    K = NAME + "_kernel"
    kernel_begin(A, K)
    SI, SG, SJ, SC = 30, 31, 28, 29
    SX, SW, SWS, SD, SP = 32, 36, 40, 44, 48
    NON = 94
    vL16 = 2
    vm = Cnt(A, "vmcnt", 63); lg = Cnt(A, "lgkmcnt", 15)

    SFA, SSL = 84, 88
    def dual(txt):
        return [txt.replace("SRD", s(SFA,4)), txt.replace("SRD", s(SSL,4)) + " sc1"]
    def set_flag2(off_sgpr, tmp):
        lab = A.newlabel("nf")
        A("s_cmp_lg_u32 s26, 0"); A(f"s_cbranch_scc1 {lab}")
        A(f"v_mov_b32 {v(tmp)}, {s(NON)}"); A(f"v_mov_b32 {v(tmp+1)}, {s(NON+1)}"); A(f"v_mov_b32 {v(tmp+2)}, 0")
        A("s_mov_b64 exec, 1")
        for x in dual(f"buffer_store_dwordx2 {v(tmp,2)}, {v(tmp+2)}, SRD, {s(off_sgpr)} offen"): A(x)
        A("s_mov_b64 exec, -1")
        A.label(lab)
    def set_flag(off_sgpr, tmp):
        lab = A.newlabel("nf")
        A("s_cmp_lg_u32 s26, 0"); A(f"s_cbranch_scc1 {lab}")
        A(f"v_mov_b32 {v(tmp)}, {s(NON)}"); A(f"v_mov_b32 {v(tmp+1)}, {s(NON+1)}"); A(f"v_mov_b32 {v(tmp+2)}, 0")
        A("s_mov_b64 exec, 1")
        A(f"buffer_store_dwordx2 {v(tmp,2)}, {v(tmp+2)}, {s(SWS,4)}, {s(off_sgpr)} offen sc1")
        A("s_mov_b64 exec, -1")
        A.label(lab)
    def poll(off_sgpr, tmp, mask=15, first_issued=False):
        lab = A.newlabel("pl"); done = A.newlabel("pd"); chk = A.newlabel("pc")
        if not first_issued:
            A(f"v_and_b32 {v(tmp+2)}, {mask}, v1"); A(f"v_lshlrev_b32 {v(tmp+2)}, 3, {v(tmp+2)}")
        A("s_mov_b32 s96, 0")
        if first_issued: A(f"s_branch {chk}")
        A.label(lab)
        A(f"buffer_load_dwordx2 {v(tmp,2)}, {v(tmp+2)}, {s(SWS,4)}, {s(off_sgpr)} offen sc1")
        A.label(chk)
        A("s_waitcnt vmcnt(0)")
        A(f"v_cmp_ne_u64 vcc, {s(NON,2)}, {v(tmp,2)}")
        A("s_add_u32 s96, s96, 1")
        A(f"s_cbranch_vccz {done}")
        A(f"s_cmp_lt_u32 s96, {SPIN}"); A(f"s_cbranch_scc1 {lab}")
        A.label(done)
        vm.drained()

    A("s_cmp_ge_u32 s2, 256"); A("s_cbranch_scc1 L_end")
    if STAMPS: A("v_mov_b32 v3, 0")
    stamp(A, 0)
    A("s_load_dwordx16 s[4:19], s[0:1], 0")
    A("s_load_dwordx4 s[20:23], s[0:1], 64")
    A("s_load_dwordx2 s[24:25], s[0:1], 80")
    A(f"s_memrealtime {s(NON,2)}")
    A("v_and_b32 v1, 63, v0"); A("v_lshrrev_b32 v2, 6, v0"); A("v_readfirstlane_b32 s26, v2")
    A(f"v_lshlrev_b32 {v(vL16)}, 4, v1")
    A("s_and_b32 s27, s2, 7"); A("s_lshr_b32 s52, s2, 3")
    if OPT["map"] == "2x16":
        A(f"s_lshl_b32 {s(SI)}, s27, 1"); A("s_and_b32 s53, s52, 1"); A(f"s_add_u32 {s(SI)}, {s(SI)}, s53"); A(f"s_lshr_b32 {s(SG)}, s52, 1")
        A(f"s_lshl_b32 {s(SJ)}, {s(SI)}, 1"); A(f"s_and_b32 s53, {s(SG)}, 1"); A(f"s_add_u32 {s(SJ)}, {s(SJ)}, s53"); A(f"s_lshr_b32 {s(SC)}, {s(SG)}, 1")
        A(f"s_mul_i32 s54, {s(SG)}, 5"); A("s_lshr_b32 s54, s54, 3"); A(f"s_and_b32 s53, {s(SI)}, 1"); A("s_mul_i32 s53, s53, 5"); A("s_add_u32 s54, s54, s53")
    else:
        A(f"s_lshr_b32 {s(SI)}, s27, 1"); A(f"s_lshl_b32 {s(SI)}, {s(SI)}, 2"); A("s_and_b32 s53, s52, 3"); A(f"s_add_u32 {s(SI)}, {s(SI)}, s53")
        A(f"s_and_b32 {s(SG)}, s27, 1"); A(f"s_lshl_b32 {s(SG)}, {s(SG)}, 3"); A("s_lshr_b32 s53, s52, 2"); A(f"s_add_u32 {s(SG)}, {s(SG)}, s53")
        A(f"s_lshl_b32 {s(SJ)}, {s(SI)}, 1"); A(f"s_and_b32 s53, {s(SG)}, 1"); A(f"s_add_u32 {s(SJ)}, {s(SJ)}, s53"); A(f"s_lshr_b32 {s(SC)}, {s(SG)}, 1")
        A(f"s_and_b32 s54, {s(SG)}, 7"); A(f"s_and_b32 s53, {s(SI)}, 3"); A("s_mul_i32 s53, s53, 5"); A("s_lshr_b32 s53, s53, 1"); A("s_add_u32 s54, s54, s53")
    A("s_cmp_ge_u32 s54, 10"); A("s_cselect_b32 s53, 10, 0"); A("s_sub_u32 s54, s54, s53")
    if not OPT["rot"]: A("s_mov_b32 s54, 0")
    MISC = 131072
    L_KVN = MISC; L_KVD = MISC + 6144; L_RSTD = MISC + 6400; L_NMEAN = L_RSTD + 512; L_CS = L_NMEAN + 512
    L_PACK = MISC + 8192
    L_XT = MISC + 8192
    L_RED2 = 77824; L_CS3 = MISC + 8192 + 10240
    W1P1 = 12
    vXa, vXb, vWa, vWb = 4, 5, 6, 7
    vXr = [8, 9]; vWr = list(range(10, 18)); vCr = [18, 19]
    vONE = 20; vT = 24; vXF = 40; vWF = 56; vAK = 136; vAQ = 176; vAS = 200; vASS = 208; vAC = 216; vG = 224
    XF = lambda sp, mt: vXF + (sp*2+mt)*4
    WF = lambda sp, t: vWF + (sp*10+t)*4
    AK = lambda mt, t: vAK + (mt*5+t)*4
    AQ = lambda mt, t: vAQ + (mt*3+t)*4
    t0, t1, t2, t3, t4, t5 = range(vT, vT+6)
    A(f"v_lshrrev_b32 {v(t0)}, 3, v1"); A(f"v_and_b32 {v(t1)}, 7, v1"); A(f"v_lshrrev_b32 {v(t2)}, 1, {v(t0)}")
    A(f"v_xor_b32 {v(t3)}, {v(t1)}, {v(t2)}"); A(f"v_xor_b32 {v(t4)}, 4, {v(t3)}")
    A(f"s_lshl_b32 s52, {s(SI)}, 7"); A("s_lshl_b32 s53, s26, 5"); A("s_add_u32 s52, s52, s53")
    A(f"v_add_u32 {v(t0)}, s52, {v(t0)}"); A(f"v_mul_u32_u24 {v(t0)}, 1280, {v(t0)}")
    A(f"v_lshl_add_u32 {v(vXa)}, {v(t3)}, 4, {v(t0)}"); A(f"v_lshl_add_u32 {v(vXb)}, {v(t4)}, 4, {v(t0)}")
    A(f"v_add_u32 {v(vXb)}, {8*1280}, {v(vXb)}")
    A(f"s_mul_i32 s53, {s(SG)}, 80")
    for jj, dst in ((0, vWa), (1, vWb)):
        A(f"v_lshrrev_b32 {v(t0)}, 4, v1")
        A(f"s_lshl_b32 s55, s26, 3"); A(f"s_add_u32 s55, s55, {4*jj}")
        A(f"v_add_u32 {v(t0)}, s55, {v(t0)}")
        A(f"v_bfe_u32 {v(t1)}, v1, 1, 3"); A(f"v_and_b32 {v(t2)}, 7, {v(t0)}"); A(f"v_xor_b32 {v(t1)}, {v(t1)}, {v(t2)}")
        A(f"v_and_b32 {v(t2)}, 1, v1"); A(f"v_lshl_or_b32 {v(t1)}, {v(t1)}, 1, {v(t2)}"); A(f"v_min_u32 {v(t1)}, 14, {v(t1)}")
        A(f"v_mov_b32 {v(t2)}, 1280"); A(f"v_mov_b32 {v(t3)}, {2560-80}")
        A(f"v_cmp_le_u32 vcc, 5, {v(t1)}"); A(f"v_cndmask_b32 {v(t2)}, {v(t2)}, {v(t3)}, vcc")
        A(f"v_mov_b32 {v(t3)}, -160")
        A(f"v_cmp_le_u32 vcc, 10, {v(t1)}"); A(f"v_cndmask_b32 {v(t2)}, {v(t2)}, {v(t3)}, vcc")
        A(f"v_lshl_add_u32 {v(t1)}, {v(t1)}, 4, {v(t2)}")
        kperm(A, t2, t0, t3, t4)
        A(f"v_mul_u32_u24 {v(t2)}, 3840, {v(t2)}")
        A(f"v_add3_u32 {v(dst)}, {v(t1)}, {v(t2)}, s53")
    A("s_lshl_b32 s59, s26, 12"); A("s_add_u32 s59, s59, 16384")
    A("s_lshl_b32 s60, s26, 11")
    def dma_ops():
        pre = ["s_add_u32 s61, s58, s60", "s_add_u32 s62, s58, s59", "s_add_u32 s63, s57, 122880", "s_add_u32 s92, s56, 20480"]
        ops = []
        for sp in range(2):
            sw = "s63" if sp else "s57"; sx = "s92" if sp else "s56"
            ops.append([f"s_add_u32 m0, s61, {sp*8192}", f"buffer_load_dwordx4 {v(vWa)}, {s(SW,4)}, {sw} offen lds"])
            ops.append([f"s_add_u32 m0, s62, {sp*2048}", f"buffer_load_dwordx4 {v(vXa)}, {s(SX,4)}, {sx} offen lds"])
            ops.append([f"s_add_u32 m0, s61, {sp*8192+1024}", f"buffer_load_dwordx4 {v(vWb)}, {s(SW,4)}, {sw} offen lds"])
            ops.append([f"s_add_u32 m0, s62, {sp*2048+1024}", f"buffer_load_dwordx4 {v(vXb)}, {s(SX,4)}, {sx} offen lds"])
        post = ["s_add_u32 s56, s56, 128", "s_add_u32 s57, s57, 245760", "s_cmp_eq_u32 s56, 1280", "s_cselect_b32 s56, 0, s56", "s_cselect_b32 s57, 0, s57"]
        return pre, ops, post
    A("s_lshl_b32 s56, s54, 7"); A("s_mul_i32 s57, s54, 245760"); A("s_mov_b32 s58, 0")
    pre, ops, post = dma_ops()
    for x in pre: A(x)
    A("s_waitcnt lgkmcnt(0)")
    srd(A, SW, 6, 640*3840); srd(A, SX, 4, 2048*1280)
    for o in ops:
        for x in o: A(x)
    for x in post: A(x)
    stamp(A, 1)
    srd(A, SWS, 24, WS_END); srd(A, SD, 22, 256)
    A("s_or_b32 s53, s2, s26"); A("s_cmp_lg_u32 s53, 0"); A("s_cbranch_scc1 N_skip")
    A(f"v_mov_b32 {v(t0)}, {s(NON)}"); A(f"v_mov_b32 {v(t1)}, {s(NON+1)}"); A(f"v_mov_b32 {v(t2)}, 0")
    A("s_mov_b64 exec, 1")
    A(f"buffer_store_dwordx2 {v(t0,2)}, {v(t2)}, {s(SD,4)}, 0 offen sc1")
    A("s_mov_b64 exec, -1")
    A.label("N_skip")
    A("s_lshl_b32 s80, s2, 2"); A("s_add_u32 s80, s80, s26")
    PKR = vWF; PCH = vWF + 4; PAD = vWF + 8
    for j in range(4):
        A(f"v_lshrrev_b32 {v(t0)}, 3, v1"); A(f"v_add_u32 {v(t0)}, {8*j}, {v(t0)}")
        kperm(A, PKR+j, t0, t2, t3)
        A(f"v_bfe_u32 {v(t2)}, v1, 1, 2"); A(f"v_bfe_u32 {v(t3)}, {v(t0)}, 1, 2"); A(f"v_xor_b32 {v(t2)}, {v(t2)}, {v(t3)}")
        A(f"v_and_b32 {v(t3)}, 1, v1"); A(f"v_lshl_or_b32 {v(t2)}, {v(t2)}, 1, {v(t3)}")
        A(f"v_lshlrev_b32 {v(PCH+j)}, 4, {v(t2)}")
    A("s_cmp_lt_u32 s80, 200"); A("s_cbranch_scc1 P_wo")
    A("s_cmp_lt_u32 s80, 680"); A("s_cbranch_scc1 P_w1")
    A("s_sub_u32 s87, s80, 680"); A(f"s_mov_b32 {s(SP)}, s16"); A(f"s_and_b32 {s(SP+1)}, s17, 0xffff"); A(f"s_mov_b32 {s(SP+2)}, {1536*1280}")
    A(f"s_mov_b32 s85, {WS_W2}"); A("s_movk_i32 s86, 192"); A("s_branch P_d10")
    A.label("P_w1")
    A("s_sub_u32 s87, s80, 200"); A(f"s_mov_b32 {s(SP)}, s12"); A(f"s_and_b32 {s(SP+1)}, s13, 0xffff"); A(f"s_mov_b32 {s(SP+2)}, {640*3072}")
    A(f"s_mov_b32 s85, {WS_W1}"); A("s_movk_i32 s86, 80"); A("s_movk_i32 s84, 3072")
    A("s_mul_i32 s82, s87, 2731"); A("s_lshr_b32 s82, s82, 16"); A("s_mul_i32 s83, s82, 24"); A("s_sub_u32 s83, s87, s83")
    A("s_branch P_go")
    A.label("P_wo")
    A("s_mov_b32 s87, s80"); A(f"s_mov_b32 {s(SP)}, s8"); A(f"s_and_b32 {s(SP+1)}, s9, 0xffff"); A(f"s_mov_b32 {s(SP+2)}, {640*1280}")
    A(f"s_mov_b32 s85, {WS_WO}"); A("s_movk_i32 s86, 80")
    A.label("P_d10")
    A("s_movk_i32 s84, 1280")
    A("s_mul_i32 s82, s87, 6554"); A("s_lshr_b32 s82, s82, 16"); A("s_mul_i32 s83, s82, 10"); A("s_sub_u32 s83, s87, s83")
    A.label("P_go")
    A(f"s_mov_b32 {s(SP+3)}, 0x00020000")
    A("s_lshl_b32 s87, s82, 5"); A("s_mul_i32 s87, s87, s84"); A("s_lshl_b32 s88, s83, 7"); A("s_add_u32 s87, s87, s88")
    A("s_lshl_b32 s81, s26, 12"); A(f"s_add_u32 s81, s81, {L_PACK}")
    for j in range(4):
        A(f"v_mad_u32_u24 {v(PAD+j)}, {v(PKR+j)}, s84, {v(PCH+j)}")
        A(f"s_add_u32 m0, s81, {j*1024}")
        A(f"buffer_load_dwordx4 {v(PAD+j)}, {s(SP,4)}, s87 offen lds")
    A("s_lshl_b32 s88, s83, 2"); A("s_mul_i32 s88, s88, s86"); A("s_lshl_b32 s89, s82, 2"); A("s_add_u32 s88, s88, s89")
    A("s_lshl_b32 s88, s88, 8"); A("s_add_u32 s88, s88, s85"); A("s_lshl_b32 s86, s86, 8")
    A("s_and_b32 s53, s2, 3"); A("s_cmp_eq_u32 s53, s26"); A("s_cselect_b32 s90, 1, 0")
    A("s_cmp_lt_u32 s2, 136"); A("s_cselect_b32 s90, s90, 0")
    A("s_cmp_eq_u32 s90, 0"); A("s_cbranch_scc1 P_no2")
    A("s_add_u32 s87, s2, 344")
    A("s_mul_i32 s82, s87, 6554"); A("s_lshr_b32 s82, s82, 16"); A("s_mul_i32 s83, s82, 10"); A("s_sub_u32 s83, s87, s83")
    A(f"s_mov_b32 {s(SP)}, s16"); A(f"s_and_b32 {s(SP+1)}, s17, 0xffff"); A(f"s_mov_b32 {s(SP+2)}, {1536*1280}")
    A("s_mul_i32 s87, s82, 40960"); A("s_lshl_b32 s91, s83, 7"); A("s_add_u32 s87, s87, s91")
    A("s_movk_i32 s84, 1280")
    for j in range(4):
        A(f"v_mad_u32_u24 {v(PAD+j)}, {v(PKR+j)}, s84, {v(PCH+j)}")
        A(f"s_mov_b32 m0, {L_PACK+16384+j*1024}")
        A(f"buffer_load_dwordx4 {v(PAD+j)}, {s(SP,4)}, s87 offen lds")
    A("s_mul_i32 s91, s83, 768"); A("s_lshl_b32 s89, s82, 2"); A("s_add_u32 s91, s91, s89"); A("s_lshl_b32 s91, s91, 8"); A(f"s_add_u32 s91, s91, {WS_W2}")
    A.label("P_no2")
    E = Emit()
    pr = vG+5
    E(f"v_lshrrev_b32 {v(t0)}, 2, v1"); E(f"v_bfe_u32 {v(t1)}, v1, 3, 2")
    E(f"v_lshlrev_b32 {v(t0)}, 7, {v(t0)}"); E(f"v_lshl_or_b32 {v(t0)}, {v(t1)}, 5, {v(t0)}")
    E(f"v_and_b32 {v(t1)}, 3, v1"); E(f"v_lshl_or_b32 {v(pr)}, {v(t1)}, 3, {v(t0)}")
    E(f"v_and_b32 {v(t0)}, 15, v1"); E(f"v_lshrrev_b32 {v(t1)}, 4, v1"); E(f"v_bfe_u32 {v(t2)}, v1, 1, 3")
    E(f"v_xor_b32 {v(t2)}, {v(t1)}, {v(t2)}"); E(f"v_lshl_add_u32 {v(t2)}, {v(t0)}, 3, {v(t2)}"); E(f"v_lshlrev_b32 {v(t2)}, 4, {v(t2)}")
    E(f"v_add_u32 {v(vXr[0])}, s59, {v(t2)}"); E(f"v_xor_b32 {v(vXr[1])}, 64, {v(vXr[0])}")
    E(f"v_lshrrev_b32 {v(t0)}, 2, v1"); E(f"v_and_b32 {v(t1)}, 7, {v(t0)}"); E(f"v_lshlrev_b32 {v(t0)}, 8, {v(t0)}")
    E(f"v_lshl_or_b32 {v(t0)}, {v(t1)}, 5, {v(t0)}"); E(f"v_and_b32 {v(t1)}, 3, v1"); E(f"v_lshl_or_b32 {v(vWr[0])}, {v(t1)}, 3, {v(t0)}")
    for t in range(1, 8): E(f"v_xor_b32 {v(vWr[t])}, {t*32}, {v(vWr[0])}")
    E("s_lshl_b32 s64, s26, 6")
    E(f"v_xor_b32 {v(vCr[0])}, s64, {v(vWr[0])}"); E(f"v_xor_b32 {v(vCr[1])}, 32, {v(vCr[0])}")
    for r in range(4): E(f"v_mov_b32 {v(vONE+r)}, 0x{ONES:x}")
    E(f"v_mov_b64 {v(t2,2)}, 0"); E(f"v_mov_b64 {v(t4,2)}, 0")
    E(f"v_lshlrev_b32 {v(t0)}, 4, v0"); E(f"v_min_u32 {v(t1)}, {6384-4096}, {v(t0)}")
    E(f"v_add_u32 {v(t0)}, {L_KVN}, {v(t0)}"); E(f"v_add_u32 {v(t1)}, {L_KVN+4096}, {v(t1)}")
    E(f"ds_write_b128 {v(t0)}, {v(t2,4)}"); E(f"ds_write_b128 {v(t1)}, {v(t2,4)}")
    g0, g1, g2 = vG, vG+1, vG+2
    E(f"v_mul_u32_u24 {v(t0)}, 13108, v0"); E(f"v_lshrrev_b32 {v(t0)}, 16, {v(t0)}")
    E(f"v_mul_u32_u24 {v(t1)}, 5, {v(t0)}"); E(f"v_sub_u32 {v(t1)}, v0, {v(t1)}")
    E(f"v_cmp_le_u32 vcc, 21, {v(t0)}"); E(f"v_cndmask_b32 {v(t2)}, 0, 1, vcc")
    E(f"v_mul_u32_u24 {v(t3)}, 21, {v(t2)}"); E(f"v_sub_u32 {v(t0)}, {v(t0)}, {v(t3)}")
    E(f"v_mul_u32_u24 {v(t3)}, 5, {v(t2)}"); E(f"v_add_u32 {v(t1)}, {v(t1)}, {v(t3)}")
    E(f"v_mul_u32_u24 {v(t3)}, 20, {v(t2)}"); E(f"v_add_u32 {v(t3)}, {v(t3)}, {v(t0)}")
    E(f"v_add_u32 {v(t4)}, 40, {v(t3)}"); E(f"v_cmp_eq_u32 vcc, 20, {v(t0)}"); E(f"v_cndmask_b32 {v(t4)}, {v(t4)}, 32, vcc")
    E(f"v_lshlrev_b32 {v(t3)}, 7, {v(t3)}"); E(f"v_add_u32 {v(t3)}, {L_KVN}, {v(t3)}")
    E(f"v_lshlrev_b32 {v(t2)}, 7, {v(t2)}"); E(f"v_add_u32 {v(t2)}, {L_KVD}, {v(t2)}")
    E(f"v_cndmask_b32 {v(t3)}, {v(t3)}, {v(t2)}, vcc")
    E(f"v_lshrrev_b32 {v(t0)}, 2, {v(t1)}"); E(f"v_and_b32 {v(t1)}, 3, {v(t1)}")
    E(f"v_lshrrev_b32 {v(t2)}, 1, {v(t0)}"); E(f"v_lshl_add_u32 {v(t3)}, {v(t2)}, 6, {v(t3)}")
    E(f"v_lshl_add_u32 {v(t3)}, {v(t1)}, 4, {v(t3)}")
    E(f"v_and_b32 {v(t2)}, 1, {v(t0)}"); E(f"v_lshl_add_u32 {v(g2)}, {v(t2)}, 3, {v(t3)}")
    E(f"v_lshrrev_b32 {v(t2)}, 4, {v(t4)}"); E(f"v_add_u32 {v(t2)}, -2, {v(t2)}")
    E(f"v_mul_u32_u24 {v(t3)}, 5, {v(t0)}"); E(f"v_lshrrev_b32 {v(t3)}, 1, {v(t3)}")
    E(f"v_add_u32 {v(t2)}, {v(t2)}, {v(t3)}"); E(f"v_lshlrev_b32 {v(t2)}, 10, {v(t2)}")
    E(f"v_and_b32 {v(t4)}, 15, {v(t4)}"); E(f"v_lshl_add_u32 {v(t4)}, {v(t1)}, 4, {v(t4)}")
    E(f"v_lshl_add_u32 {v(g0)}, {v(t4)}, 4, {v(t2)}")
    E(f"s_mul_i32 s65, {s(SG)}, {16*KV_STRIDE}"); E(f"s_add_u32 s65, s65, {WS_KV}")
    E(f"v_lshlrev_b32 {v(g1)}, 4, v0"); E(f"v_add_u32 {v(g1)}, s65, {v(g1)}")
    vOA, vHA, vRA, vSA, vM1 = 236, 237, 238, 239, 240
    sO, sH, sR, sST, sKV = 4, 5, 6, 7, 8
    E(f"v_and_b32 {v(t0)}, 15, v1"); E(f"v_bfe_u32 {v(t1)}, v1, 4, 1"); E(f"v_lshrrev_b32 {v(t2)}, 5, v1")
    E(f"v_lshlrev_b32 {v(t2)}, 8, {v(t2)}"); E(f"v_lshl_or_b32 {v(t2)}, {v(t0)}, 4, {v(t2)}")
    E(f"v_mul_u32_u24 {v(vOA)}, {80*256}, {v(t1)}"); E(f"v_add_u32 {v(vOA)}, {v(vOA)}, {v(t2)}")
    E(f"v_mul_u32_u24 {v(vRA)}, {192*256}, {v(t1)}"); E(f"v_add_u32 {v(vRA)}, {v(vRA)}, {v(t2)}")
    E(f"v_lshl_add_u32 {v(vHA)}, {v(t1)}, 9, {v(t2)}"); E(f"v_lshlrev_b32 {v(vSA)}, 3, {v(t0)}")
    E(f"v_mov_b64 {v(vM1,2)}, -1"); E(f"v_mov_b64 {v(vM1+2,2)}, -1")
    E(f"s_lshl_b32 s64, {s(SI)}, 3"); E("s_lshl_b32 s65, s26, 1"); E("s_add_u32 s64, s64, s65")
    E(f"s_mul_i32 {s(sO)}, s64, 80"); E(f"s_mul_i32 s65, {s(SG)}, 5"); E(f"s_add_u32 {s(sO)}, {s(sO)}, s65"); E(f"s_lshl_b32 {s(sO)}, {s(sO)}, 8"); E(f"s_add_u32 {s(sO)}, {s(sO)}, {WS_O}")
    E(f"s_mul_i32 {s(sR)}, s64, 192"); E(f"s_mul_i32 s65, {s(SG)}, 12"); E(f"s_add_u32 {s(sR)}, {s(sR)}, s65"); E(f"s_lshl_b32 {s(sR)}, {s(sR)}, 8"); E(f"s_add_u32 {s(sR)}, {s(sR)}, {WS_R}")
    E(f"s_lshl_b32 s64, {s(SJ)}, 2"); E("s_add_u32 s64, s64, s26")
    E(f"s_mul_i32 {s(sH)}, s64, 80"); E(f"s_mul_i32 s65, {s(SC)}, 10"); E(f"s_add_u32 {s(sH)}, {s(sH)}, s65"); E(f"s_lshl_b32 {s(sH)}, {s(sH)}, 8"); E(f"s_add_u32 {s(sH)}, {s(sH)}, {WS_H}")
    E(f"s_lshl_b32 s65, {s(SC)}, 7"); E("s_add_u32 s64, s64, s65"); E(f"s_lshl_b32 {s(sST)}, s64, 7"); E(f"s_add_u32 {s(sST)}, {s(sST)}, {WS_ST}")
    E(f"s_mul_i32 {s(sKV)}, {s(SI)}, {KV_STRIDE}")
    E(f"v_cmp_gt_u32 vcc, 210, v0"); E("s_mov_b64 s[10:11], vcc")
    fl = vG + 6
    E(f"v_lshlrev_b32 {v(fl+2)}, 3, v0")
    for r in range(vAK+16, vAC+8, 2): E(f"v_mov_b64 {v(r,2)}, 0")
    for r in list(range(XF(1,0), XF(1,0)+8, 2)) + list(range(WF(1,0), WF(1,0)+40, 2)): E(f"v_mov_b64 {v(r,2)}, 0")
    A("s_mov_b32 s58, 32768")
    pre, ops, post = dma_ops()
    for x in pre: A(x)
    merge(A, vm, E.l, [(("p1",), o) for o in ops])
    for x in post: A(x)
    A(f"s_mov_b32 s58, {3*32768}")
    PFR = vAK
    A("s_waitcnt vmcnt(8)")
    def pack_out(ldsbase, sdst, sstride):
        for t in range(4):
            A(f"v_xor_b32 {v(t0)}, {t*32}, {v(pr)}"); A(f"v_add_u32 {v(t0)}, {ldsbase}, {v(t0)}")
            for jj in range(2): A(f"ds_read_b64_tr_b16 {v(PFR+4*t+2*jj,2)}, {v(t0)} offset:{jj*2048}")
        for t in range(4):
            A(f"s_waitcnt lgkmcnt({6-2*t})")
            A(f"buffer_store_dwordx4 {v(PFR+4*t,4)}, {v(vL16)}, {s(SWS,4)}, {sdst} offen sc1")
            A(f"s_add_u32 {sdst}, {sdst}, {sstride}")
    pack_out("s81", "s88", "s86")
    A("s_cmp_eq_u32 s90, 0"); A("s_cbranch_scc1 P_no2b")
    A("s_nop 1")
    pack_out(str(L_PACK+16384), "s91", str(192*256))
    A.label("P_no2b")
    A("s_mov_b64 exec, s[10:11]")
    A(f"buffer_store_dwordx4 {v(vM1,4)}, {v(g1)}, {s(SWS,4)}, {s(sKV)} offen sc1")
    A("s_mov_b64 exec, -1")
    for r in range(vAK, vAK+16, 2): A(f"v_mov_b64 {v(r,2)}, 0")
    vm.drained()
    def mfmas(sp):
        L = []
        for mt in range(2):
            L.append(f"v_mfma_f32_16x16x32_bf16 {v(vAS+4*mt,4)}, {v(vONE,4)}, {v(XF(sp,mt),4)}, {v(vAS+4*mt,4)}")
            L.append(f"v_mfma_f32_16x16x32_bf16 {v(vASS+4*mt,4)}, {v(XF(sp,mt),4)}, {v(XF(sp,mt),4)}, {v(vASS+4*mt,4)}")
        for t in range(5):
            for mt in range(2): L.append(f"v_mfma_f32_16x16x32_bf16 {v(AK(mt,t),4)}, {v(XF(sp,mt),4)}, {v(WF(sp,t),4)}, {v(AK(mt,t),4)}")
        for t in range(3):
            for mt in range(2): L.append(f"v_mfma_f32_16x16x32_bf16 {v(AQ(mt,t),4)}, {v(WF(sp,5+t),4)}, {v(XF(sp,mt),4)}, {v(AQ(mt,t),4)}")
        for i in range(2): L.append(f"v_mfma_f32_16x16x32_bf16 {v(vAC+4*i,4)}, {v(vONE,4)}, {v(WF(sp,8+i),4)}, {v(vAC+4*i,4)}")
        return L
    def reads(sp, upd):
        L = []
        for mt in range(2):
            x = [f"ds_read_b128 {v(XF(sp,mt),4)}, {v(vXr[sp])} offset:{mt*2048}"]
            if mt == 1: x.append(f"v_xor_b32 {v(vXr[sp])}, s68, {v(vXr[sp])}")
            L.append(x)
        for t in range(10):
            ar = vWr[t] if t < 8 else vCr[t-8]
            for jj in range(2):
                x = [f"ds_read_b64_tr_b16 {v(WF(sp,t)+2*jj,2)}, {v(ar)} offset:{sp*8192+jj*4096}"]
                if upd and jj == 1: x.append(f"v_xor_b32 {v(ar)}, s68, {v(ar)}")
                L.append(x)
        return L
    def interleave(M, R, D, extra=(), tail=()):
        rd = [x[0] for x in R]; upd = [x[1] for x in R if len(x) > 1]
        side = []
        k = 0
        per = (len(upd) + len(extra) + len(D) - 1) // len(D)
        rest = list(upd) + list(extra)
        for d in D:
            side += [d[0]] + rest[:1] + [d[1]] + rest[1:per]; rest = rest[per:]
        side += rest + list(tail)
        for m in M:
            A(m)
            for _ in range(2):
                if rd: A(rd.pop(0))
                elif side: A(side.pop(0))
        for x in side: A(x)
    stamp(A, 2)
    A("s_mov_b32 s17, 0"); A("s_mov_b32 s55, 0"); A("s_mov_b32 s68, 32768"); A(f"s_movk_i32 s69, {6 | (3 << OPT['chk'])}")
    A.label("P1_loop")
    A("s_waitcnt vmcnt(8) lgkmcnt(0)")
    A("s_barrier")
    if STAMPS:
        A("s_memrealtime s[100:101]"); A("s_add_u32 m0, s55, 20"); A("s_waitcnt lgkmcnt(0)"); A("v_writelane_b32 v3, s100, m0")
    A("s_bitcmp1_b32 s69, s55"); A("s_cbranch_scc1 P1_early")
    A.label("P1_back")
    pre, ops, post = dma_ops()
    interleave(mfmas(1), reads(0, False), [[pre[0] + "\n" + ops[0][0], ops[0][1]], [pre[1] + "\n" + ops[1][0], ops[1][1]], ops[2], ops[3]], pre[2:],
               tail=post + ["s_xor_b32 s58, s58, s68", "s_cmp_eq_u32 s55, 10"])
    A("s_cbranch_scc1 P1_done")
    A("s_waitcnt lgkmcnt(0)")
    interleave(mfmas(0), reads(1, True), ops[4:], [], tail=["s_add_u32 s55, s55, 1"])
    A("s_xor_b32 s68, s68, 98304")
    A("s_cmp_eq_u32 s55, 8"); A(f"s_cselect_b32 {s(SX+2)}, 0, {s(SX+2)}"); A(f"s_cselect_b32 {s(SW+2)}, 0, {s(SW+2)}")
    A("s_branch P1_loop")
    A.label("P1_early")
    A("s_cmp_eq_u32 s55, 2"); A("s_cbranch_scc1 P1_e2")
    A(f"s_cmp_eq_u32 s55, {OPT['chk']}"); A("s_cbranch_scc1 P1_e7")
    A(f"s_cmp_eq_u32 s55, {OPT['chk']+1}"); A("s_cbranch_scc1 P1_e8")
    A(f"v_mov_b32 {v(t2)}, 0")
    A(f"buffer_load_dwordx2 {v(t0,2)}, {v(t2)}, {s(SD,4)}, 0 offen sc1")
    A("s_branch P1_back")
    A.label("P1_e2")
    A("s_mov_b32 s96, 0")
    A.label("P1_e2l")
    A(f"v_readfirstlane_b32 {s(NON)}, {v(t0)}"); A(f"v_readfirstlane_b32 {s(NON+1)}, {v(t1)}")
    A(f"s_or_b32 s97, {s(NON)}, {s(NON+1)}"); A("s_cmp_lg_u32 s97, 0"); A("s_cbranch_scc1 P1_e2d")
    A(f"buffer_load_dwordx2 {v(t0,2)}, {v(t2)}, {s(SD,4)}, 0 offen sc1"); A("s_waitcnt vmcnt(0)")
    A("s_add_u32 s96, s96, 1"); A(f"s_cmp_lt_u32 s96, {SPIN}"); A("s_cbranch_scc1 P1_e2l")
    A.label("P1_e2d")
    A("s_getreg_b32 s12, hwreg(HW_REG_XCC_ID, 0, 4)")
    A(f"s_lshl_b32 s13, {s(NON+1)}, 4"); A("s_or_b32 s12, s12, s13")
    A(f"s_lshl_b32 s97, {s(SI)}, 4"); A(f"s_add_u32 s97, s97, {s(SG)}"); A("s_lshl_b32 s97, s97, 3"); A(f"s_add_u32 s97, s97, {WS_FP}")
    A("s_cmp_lg_u32 s26, 0"); A("s_cbranch_scc1 P1_back")
    A(f"v_mov_b32 {v(t0)}, {s(NON)}"); A(f"v_mov_b32 {v(t1)}, s12")
    A("s_mov_b64 exec, 1")
    A(f"buffer_store_dwordx2 {v(t0,2)}, {v(t2)}, {s(SWS,4)}, s97 offen sc1")
    A("s_mov_b64 exec, -1")
    A("s_branch P1_back")
    A.label("P1_e7")
    A(f"s_mov_b32 s97, {WS_FP}"); A(f"s_lshl_b32 s16, {s(SI)}, 7"); A(f"s_add_u32 s16, s16, {WS_FP}")
    A(f"buffer_load_dwordx2 {v(fl,2)}, {v(fl+2)}, {s(SWS,4)}, s97 offen sc1")
    A(f"buffer_load_dwordx2 {v(t0,2)}, {v(vSA)}, {s(SWS,4)}, s16 offen sc1")
    A("s_branch P1_back")
    A.label("P1_e8")
    A("s_mov_b32 s96, 0")
    A.label("P1_e8l")
    A(f"v_lshrrev_b32 {v(t2)}, 4, {v(fl+1)}"); A(f"v_lshrrev_b32 {v(t3)}, 4, {v(t1)}")
    A(f"v_xor_b32 {v(t2)}, {s(NON+1)}, {v(t2)}"); A(f"v_xor_b32 {v(t3)}, {s(NON+1)}, {v(t3)}")
    A(f"v_xor_b32 {v(t4)}, {s(NON)}, {v(fl)}"); A(f"v_xor_b32 {v(t5)}, {s(NON)}, {v(t0)}")
    A(f"v_or3_b32 {v(t2)}, {v(t2)}, {v(t3)}, {v(t4)}"); A(f"v_or_b32 {v(t2)}, {v(t2)}, {v(t5)}")
    A(f"v_cmp_ne_u32 vcc, 0, {v(t2)}")
    A("s_add_u32 s96, s96, 1")
    A("s_cbranch_vccz P1_e8d")
    A(f"buffer_load_dwordx2 {v(fl,2)}, {v(fl+2)}, {s(SWS,4)}, s97 offen sc1")
    A(f"buffer_load_dwordx2 {v(t0,2)}, {v(vSA)}, {s(SWS,4)}, s16 offen sc1"); A("s_waitcnt vmcnt(0)")
    A(f"s_cmp_lt_u32 s96, {SPIN}"); A("s_cbranch_scc1 P1_e8l")
    A.label("P1_e8d")
    A(f"v_cmp_ne_u32 vcc, s12, {v(t1)}")
    A("s_cmp_eq_u64 vcc, 0")
    if OPT["slow"]: A("s_cmp_eq_u32 s26, 99")
    A("s_cselect_b32 s17, 1, 0")
    A("s_branch P1_back")
    A.label("P1_done")
    stamp(A, 3)
    A(f"s_mov_b32 {s(SX+2)}, {2048*1280}")
    A("s_cmp_eq_u32 s17, 1")
    A(f"s_cselect_b32 {s(SFA+2)}, {WS_END}, 0"); A(f"s_cselect_b32 {s(SSL+2)}, 0, {WS_END}")
    A(f"s_mov_b32 {s(SFA)}, s24"); A(f"s_and_b32 {s(SFA+1)}, s25, 0xffff"); A(f"s_mov_b32 {s(SFA+3)}, 0x00020000")
    A(f"s_mov_b32 {s(SSL)}, s24"); A(f"s_and_b32 {s(SSL+1)}, s25, 0xffff"); A(f"s_mov_b32 {s(SSL+3)}, 0x00020000")
    A(f"s_mov_b32 s93, 0x{INV640:x}")
    A(f"v_and_b32 {v(t0)}, 3, v1")
    A(f"v_cmp_eq_u32 s[70:71], 1, {v(t0)}"); A(f"v_cmp_eq_u32 s[72:73], 2, {v(t0)}"); A(f"v_cmp_eq_u32 s[74:75], 3, {v(t0)}")
    A(f"v_bfe_u32 {v(t0)}, v1, 2, 2"); A(f"v_lshrrev_b32 {v(t1)}, 4, v1")
    A(f"v_cmp_eq_u32 s[76:77], {v(t0)}, {v(t1)}")
    A(f"v_and_b32 {v(t2)}, 15, v1"); A("s_lshl_b32 s64, s26, 7")
    A(f"v_lshl_add_u32 {v(t2)}, {v(t2)}, 2, s64"); A(f"v_add_u32 {v(t2)}, {L_RSTD}, {v(t2)}")
    A(f"v_lshl_add_u32 {v(t3)}, v1, 2, s64"); A(f"v_add_u32 {v(t3)}, {L_CS}, {v(t3)}")
    A("s_mov_b64 exec, 0xffff")
    A(f"ds_write_b32 {v(t3)}, {v(vAC)}"); A(f"ds_write_b32 {v(t3)}, {v(vAC+4)} offset:64")
    A("s_mov_b64 exec, -1")
    for k in range(3):
        for mt in range(2):
            q_ = vASS + 4*mt
            A(f"v_cndmask_b32 {v(q_)}, {v(q_)}, {v(q_+1+k)}, s[{70+2*k}:{71+2*k}]")
    ln_stats2(A, [(vAS, vASS), (vAS+4, vASS+4)], [t4, t5])
    A("s_mov_b64 exec, s[76:77]")
    for mt in range(2):
        A(f"ds_write_b32 {v(t2)}, {v(vASS+4*mt)} offset:{mt*64}")
        A(f"ds_write_b32 {v(t2)}, {v(vAS+4*mt)} offset:{512+mt*64}")
    A("s_mov_b64 exec, -1")
    A("s_waitcnt vmcnt(0) lgkmcnt(0)"); A("s_barrier")
    RS = 56; NM = 64; RL2 = 72; CSK = 80; rl = 90; nl = 94; rl2 = 98; CSQ = 102
    A(f"v_lshrrev_b32 {v(t0)}, 4, v1"); A(f"v_lshl_add_u32 {v(t0)}, {v(t0)}, 4, s64"); A(f"v_add_u32 {v(t0)}, {L_RSTD}, {v(t0)}")
    A(f"v_and_b32 {v(t1)}, 15, v1"); A(f"v_lshlrev_b32 {v(t1)}, 2, {v(t1)}"); A(f"v_add_u32 {v(t1)}, {L_CS}, {v(t1)}")
    for mt in range(2): A(f"ds_read_b128 {v(NM+4*mt,4)}, {v(t0)} offset:{512+mt*64}")
    for t in range(5): A(f"ds_read_b32 {v(CSK+2*t)}, {v(t1)} offset:{t*64}")
    for mt in range(2): A(f"ds_read_b128 {v(RS+4*mt,4)}, {v(t0)} offset:{mt*64}")
    for mt in range(2):
        A(f"ds_read_b32 {v(rl+2*mt)}, {v(t2)} offset:{mt*64}")
        A(f"ds_read_b32 {v(nl+2*mt)}, {v(t2)} offset:{512+mt*64}")
    A(f"v_lshrrev_b32 {v(t1)}, 4, v1"); A(f"v_lshlrev_b32 {v(t1)}, 4, {v(t1)}"); A(f"v_add_u32 {v(t1)}, {L_CS+320}, {v(t1)}")
    A("s_waitcnt lgkmcnt(6)")
    for t in range(3): A(f"ds_read_b128 {v(CSQ+4*t,4)}, {v(t1)} offset:{t*64}")
    A(f"s_mov_b32 s78, 0x{LOG2E:x}"); A(f"s_mov_b32 s79, 0x{EPS6:x}"); A("s_mov_b32 s77, s79"); A("s_mov_b32 s76, s79")
    def k_offsets(KO, WSA, WSB):
        KS = KO // 16
        A(f"s_mul_i32 s61, s26, {KS*4}")
        for m in range(4):
            A(f"s_add_u32 s60, s26, {m}"); A("s_and_b32 s60, s60, 3"); A(f"s_lshl_b32 s62, {s(SJ)}, 2"); A("s_add_u32 s60, s60, s62")
            A(f"s_mul_i32 s60, s60, {KO}"); A("s_add_u32 s60, s60, s61"); A("s_lshl_b32 s60, s60, 8")
            A(f"s_add_u32 {s(52+m)}, s60, {WSA}")
    def b_base(dst, KO, WSB):
        KS = KO // 16
        A(f"s_mul_i32 s61, s26, {KS*4}")
        A(f"s_mul_i32 {s(dst)}, {s(SC)}, {5*KO}"); A(f"s_add_u32 {s(dst)}, {s(dst)}, s61"); A(f"s_lshl_b32 {s(dst)}, {s(dst)}, 8"); A(f"s_add_u32 {s(dst)}, {s(dst)}, {WSB}")
    b_base(56, 80, WS_WO)
    b_base(57, 192, WS_W2)
    def frag_load(dst, sbase, off, tmp="s63", flags=""):
        hi, lo = off & ~4095, off & 4095
        if hi == 0: return [f"buffer_load_dwordx4 {dst}, {v(vL16)}, {s(SWS,4)}, {s(sbase)} offen offset:{lo} {flags}".rstrip()]
        return [f"s_add_u32 {tmp}, {s(sbase)}, {hi}", f"buffer_load_dwordx4 {dst}, {v(vL16)}, {s(SWS,4)}, {tmp} offen offset:{lo} {flags}".rstrip()]
    WOF = lambda sp, t: (sp*5+t)*4
    wo_loads = [(("wo", sp, t), frag_load(a(WOF(sp,t),4), 56, t*80*256 + sp*1024)) for sp in range(5) for t in range(5)]
    W2slot = {}
    order = [(sp, t) for sp in range(12) for t in range(5)]
    for n, (sp, t) in enumerate(order): W2slot[(sp, t)] = 100 + 4*n if n < 39 else 4*(n-39)
    w2_loads = [(("w2", sp, t), frag_load(a(W2slot[(sp,t)],4), 57, t*192*256 + sp*1024)) for (sp, t) in order]
    xa = vG + 9
    A(f"s_lshl_b32 s62, {s(SJ)}, 6"); A("s_mul_i32 s62, s62, 1280"); A(f"s_mul_i32 s63, {s(SC)}, 160"); A("s_add_u32 s58, s62, s63")
    xt_loads = []
    for n in range(3):
        A(f"v_add_u32 {v(t4)}, {256*n}, v0")
        A(f"v_mul_u32_u24 {v(t5)}, 6554, {v(t4)}"); A(f"v_lshrrev_b32 {v(t5)}, 16, {v(t5)}")
        A(f"v_mul_u32_u24 {v(xa+n)}, 1120, {v(t5)}"); A(f"v_lshl_add_u32 {v(xa+n)}, {v(t4)}, 4, {v(xa+n)}")
    A("s_cmp_ge_u32 s26, 2"); A("s_cselect_b32 s59, 0x7fffffff, s58")
    A("s_lshl_b32 s60, s26, 10"); A(f"s_add_u32 s60, s60, {L_XT}")
    for n in range(3):
        xt_loads.append((("xt",), [f"s_add_u32 m0, s60, {n*4096}", "s_nop 0", f"buffer_load_dwordx4 {v(xa+n)}, {s(SX,4)}, {'s59' if n == 2 else 's58'} offen lds"]))
    A("s_waitcnt lgkmcnt(0)")
    E = Emit()
    for r in range(0, 8, 2): E(f"v_pk_mul_f32 {v(RL2+r,2)}, {v(RS+r,2)}, s[78:79] op_sel_hi:[1,0]")
    for mt in range(2): E(f"v_mul_f32 {v(rl2+2*mt)}, s78, {v(rl+2*mt)}")
    PK = 114; PV = 126 - 0
    PK = 116; PV = 40
    def phi2(E, c, rs, r2, tmp, bc):
        sel2 = " op_sel_hi:[1,0]" if bc else ""; sel3 = " op_sel_hi:[1,0,1]" if bc else ""
        E(f"v_pk_mul_f32 {v(tmp,2)}, {v(c,2)}, {v(r2,2)}{sel2}")
        E(f"v_pk_fma_f32 {v(c,2)}, {v(c,2)}, {v(rs,2)}, s[76:77]{sel3}")
        E(f"v_exp_f32 {v(tmp)}, {v(tmp)} clamp"); E(f"v_exp_f32 {v(tmp+1)}, {v(tmp+1)} clamp")
        E(f"v_max_f32 {v(c)}, s79, {v(c)}"); E(f"v_max_f32 {v(c+1)}, s79, {v(c+1)}")
        E(f"v_pk_add_f32 {v(c,2)}, {v(c,2)}, {v(tmp,2)}")
    for t in range(5):
        for mt in range(2):
            for r in (0, 2): E(f"v_pk_fma_f32 {v(AK(mt,t)+r,2)}, {v(NM+4*mt+r,2)}, {v(CSK+2*t,2)}, {v(AK(mt,t)+r,2)} op_sel_hi:[1,0,1]")
        if t >= 2:
            for mt in range(2):
                for r in (0, 2): E(f"v_pk_mul_f32 {v(vT+4*mt+r,2)}, {v(AK(mt,t)+r,2)}, {v(RS+4*mt+r,2)}")
            for mt in range(2):
                for h in range(2): E(f"v_cvt_pk_bf16_f32 {v(PV+4*(t-2)+2*mt+h)}, {v(vT+4*mt+2*h)}, {v(vT+4*mt+2*h+1)}")
        if t <= 2:
            for mt in range(2):
                for r in (0, 2): phi2(E, AK(mt,t)+r, RS+4*mt+r, RL2+4*mt+r, vT+8+4*mt+r, False)
            for mt in range(2):
                for h in range(2): E(f"v_cvt_pk_bf16_f32 {v(PK+4*t+2*mt+h)}, {v(AK(mt,t)+2*h)}, {v(AK(mt,t)+2*h+1)}")
    E(f"v_and_b32 {v(t0)}, 15, v1"); E(f"v_cmp_gt_u32 vcc, 8, {v(t0)}")
    for r in range(4): E(f"v_cndmask_b32 {v(PV+r)}, {v(PV+r)}, {v(vONE)}, vcc")
    Q1 = xt_loads + wo_loads
    def take(Q, n):
        out = Q[:n]; del Q[:n]; return out
    merge(A, vm, E.l, take(Q1, PF["kvE"]))
    prods = [(0,2),(0,3),(1,2),(1,3),(1,4),(2,2),(2,3),(2,4)]
    KVP = 136
    for n, (ta, tb) in enumerate(prods):
        mfma(A, v(KVP+4*n,4), v(PK+4*ta,4), v(PV+4*(tb-2),4), "0")
    A("s_lshl_b32 s64, s26, 13"); A(f"v_add_u32 {v(t0)}, s64, {v(vL16)}")
    for n in range(8):
        A(f"ds_write_b128 {v(t0)}, {v(KVP+4*n,4)} offset:{n*1024}")
        if n < PF["kvW"]:
            for x in take(Q1, 1): vm.issue(*x)
    A("s_waitcnt lgkmcnt(0)"); A("s_barrier")
    for w in range(4): A(f"ds_read_b128 {v(KVP+4*w,4)}, {v(g0)} offset:{w*8192}")
    A("s_mov_b32 s9, -2")
    A("s_waitcnt lgkmcnt(0)")
    for r in (0, 2):
        A(f"v_pk_add_f32 {v(KVP+r,2)}, {v(KVP+r,2)}, {v(KVP+4+r,2)}"); A(f"v_pk_add_f32 {v(KVP+8+r,2)}, {v(KVP+8+r,2)}, {v(KVP+12+r,2)}")
    for r in (0, 2): A(f"v_pk_add_f32 {v(KVP+r,2)}, {v(KVP+r,2)}, {v(KVP+8+r,2)}")
    for r in range(4): A(f"v_min_u32 {v(KVP+r)}, s9, {v(KVP+r)}")
    A("s_mov_b64 exec, s[10:11]")
    vm.issue(("kvst",), f"buffer_store_dwordx4 {v(KVP,4)}, {v(g1)}, {s(SWS,4)}, {s(sKV)} offen sc1")
    A("s_mov_b64 exec, -1")
    A("s_barrier")
    stamp(A, 4)
    A(f"s_mul_i32 s61, {s(SG)}, 122880"); A(f"s_add_u32 s61, s61, {WS_W1}")
    for k in range(3):
        A(f"s_add_u32 s62, s26, {4*k}"); A("s_cmp_ge_u32 s62, 6"); A("s_cselect_b32 s63, 6, 0"); A("s_cselect_b32 s65, 1024, 0"); A("s_sub_u32 s62, s62, s63")
        A("s_mul_i32 s62, s62, 20480"); A("s_add_u32 s62, s62, s65"); A(f"s_add_u32 {s(80+k)}, s62, s61")
    A("s_lshl_b32 s83, s26, 10")
    def w1_load(G, k):
        return (("w1", G), [f"s_add_u32 m0, s83, {(12*G+4*k)*1024}", f"s_add_u32 s63, {s(80+k)}, {G*2048}", f"buffer_load_dwordx4 {v(vL16)}, {s(SWS,4)}, s63 offen lds"])
    w1_loads = [w1_load(G, k) for G in range(10) for k in range(3)]
    PQ = 116
    E = Emit()
    for mt in range(2):
        for t in range(3):
            for r in (0, 2): E(f"v_pk_fma_f32 {v(AQ(mt,t)+r,2)}, {v(CSQ+4*t+r,2)}, {v(nl+2*mt,2)}, {v(AQ(mt,t)+r,2)} op_sel_hi:[1,0,1]")
            for r in (0, 2): phi2(E, AQ(mt,t)+r, rl+2*mt, rl2+2*mt, vT+8+r, True)
            for h in range(2): E(f"v_cvt_pk_bf16_f32 {v(PQ+8*mt+2*t+h)}, {v(AQ(mt,t)+2*h)}, {v(AQ(mt,t)+2*h+1)}")
        E(f"v_mov_b64 {v(PQ+8*mt+6,2)}, 0")
    E(f"v_and_b32 {v(t0)}, 15, v1"); E(f"v_lshrrev_b32 {v(t1)}, 4, v1"); E(f"v_lshlrev_b32 {v(t1)}, 4, {v(t1)}")
    E(f"v_lshl_add_u32 {v(t2)}, {v(t0)}, 7, {v(t1)}"); E(f"v_add_u32 {v(t2)}, {L_KVN}, {v(t2)}")
    E(f"v_add_u32 {v(t3)}, {L_KVD}, {v(t1)}")
    E(f"v_cmp_le_u32 vcc, 4, {v(t0)}"); E(f"v_add_u32 {v(t4)}, 128, {v(t3)}")
    E(f"v_cndmask_b32 {v(t5)}, {v(t3)}, {v(t4)}, vcc")
    Q1 += w1_loads[:W1P1//2*3]
    merge(A, vm, E.l, take(Q1, PF["qE"]))
    stamp(A, 5)
    GA = 136; GS = 200; GM = 204
    A("s_mov_b32 s96, 0")
    A("s_mov_b64 exec, s[10:11]")
    A.label("KV_poll")
    for i in range(16):
        if i % 1 == 0:
            hi, lo = (i*KV_STRIDE) & ~4095, (i*KV_STRIDE) & 4095
            A(f"s_mov_b32 s64, {hi}")
            A(f"buffer_load_dwordx4 {v(GA+4*i,4)}, {v(g1)}, {s(SWS,4)}, s64 offen offset:{lo} sc1")
    for i in range(0, 16, 2):
        A(f"s_waitcnt vmcnt({14-i})")
        if i == 0:
            for r in (0, 2): A(f"v_pk_add_f32 {v(GS+r,2)}, {v(GA+r,2)}, {v(GA+4+r,2)}")
            A(f"v_max3_u32 {v(GM)}, {v(GA)}, {v(GA+1)}, {v(GA+2)}")
            A(f"v_max3_u32 {v(GM+1)}, {v(GA+3)}, {v(GA+4)}, {v(GA+5)}")
            A(f"v_max3_u32 {v(GM)}, {v(GM)}, {v(GA+6)}, {v(GA+7)}")
        else:
            b = GA + 4*i
            for r in (0, 2): A(f"v_pk_add_f32 {v(GS+r,2)}, {v(GS+r,2)}, {v(b+r,2)}")
            A(f"v_max3_u32 {v(GM)}, {v(GM)}, {v(b)}, {v(b+1)}"); A(f"v_max3_u32 {v(GM+1)}, {v(GM+1)}, {v(b+2)}, {v(b+3)}")
            for r in (0, 2): A(f"v_pk_add_f32 {v(GS+r,2)}, {v(GS+r,2)}, {v(b+4+r,2)}")
            A(f"v_max3_u32 {v(GM)}, {v(GM)}, {v(b+4)}, {v(b+5)}"); A(f"v_max3_u32 {v(GM+1)}, {v(GM+1)}, {v(b+6)}, {v(b+7)}")
    A(f"v_max_u32 {v(GM)}, {v(GM)}, {v(GM+1)}")
    A(f"v_cmp_eq_u32 vcc, -1, {v(GM)}")
    A("s_add_u32 s96, s96, 1")
    A("s_cbranch_vccz KV_done")
    A(f"s_cmp_lt_u32 s96, {SPIN}"); A("s_cbranch_scc1 KV_poll")
    A.label("KV_done")
    vm.drained()
    A(f"v_cvt_pk_bf16_f32 {v(GS)}, {v(GS)}, {v(GS+1)}"); A(f"v_cvt_pk_bf16_f32 {v(GS+1)}, {v(GS+2)}, {v(GS+3)}")
    A(f"ds_write_b64 {v(g2)}, {v(GS,2)}")
    A("s_mov_b64 exec, -1")
    AN = 136; AD = 160
    A("s_waitcnt lgkmcnt(0)"); A("s_barrier")
    stamp(A, 7)
    for te in range(3):
        for st in range(2):
            lg.issue(("d", te), f"ds_read_b128 {v(AD+8*te+4*st,4)}, {v([t3,t5,t4][te])} offset:{st*64}")
            lg.issue(("n", te), f"ds_read_b128 {v(AN+8*te+4*st,4)}, {v(t2)} offset:{te*2048+st*64}")
    ON = 184; OD = 208
    for te in range(3):
        lg.wait(("n", te))
        for (acc_, aop) in ((OD, AD), (ON, AN)):
            for mt in range(2):
                mfma(A, v(acc_+8*te+4*mt,4), v(aop+8*te,4), v(PQ+8*mt,4), "0")
            for mt in range(2):
                mfma(A, v(acc_+8*te+4*mt,4), v(aop+8*te+4,4), v(PQ+8*mt+4,4))
            if PF["oE"] > 2*te + (acc_ == ON):
                for x in take(Q1, 1): vm.issue(*x)
    OP = 56
    for te in range(3):
        for r in range(0, 8, 2): A(f"v_pk_add_f32 {v(OD+8*te+r,2)}, {v(OD+8*te+r,2)}, s[76:77]")
        for r in range(8): A(f"v_rcp_f32 {v(OD+8*te+r)}, {v(OD+8*te+r)}")
        for r in range(0, 8, 2): A(f"v_pk_mul_f32 {v(ON+8*te+r,2)}, {v(ON+8*te+r,2)}, {v(OD+8*te+r,2)}")
        for h in range(4): A(f"v_cvt_pk_bf16_f32 {v(OP+4*te+h)}, {v(ON+8*te+2*h)}, {v(ON+8*te+2*h+1)}")
        for h in range(2): A(f"v_permlane16_swap_b32 {v(OP+4*te+h)}, {v(OP+4*te+2+h)}")
        if te == 2: A("s_mov_b64 exec, 0xffffffff")
        for x in dual(f"buffer_store_dwordx4 {v(OP+4*te,4)}, {v(vOA)}, SRD, {s(sO)} offen offset:{te*512}"): vm.issue(("ost",), x)
    A("s_mov_b64 exec, -1")
    Q2 = list(w2_loads)
    for x in take(Q1, PF["oS"]): vm.issue(*x)
    A(f"s_lshl_b32 s66, {s(SI)}, 7"); A(f"s_add_u32 s66, s66, {WS_FO}"); A(f"s_lshl_b32 s97, {s(SG)}, 3"); A("s_add_u32 s97, s97, s66")
    vm.wait(("ost",)); A("s_barrier")
    set_flag2(97, t0)
    stamp(A, 8)
    for x in take(Q1, 99): vm.issue(*x)
    ACC = 40; AF = 120
    HRES = 246
    acc = lambda m, t: ACC + (m*5+t)*4
    vRw, vRr = 10, 11
    u0, u1, u2, u3, u4 = 4, 5, 6, 7, 8
    vCN, vCA, vMX = 16, 17, 18
    def k_gemm(name, KS, bfrag, lred, nwin, soff, st0):
        seq = [(m, sp) for m in (1, 2, 3, 0) for sp in range(KS)]
        def aload(n):
            m, sp = seq[n]
            return (("a", n), frag_load(v(AF+4*(n % nwin),4), 52+m, sp*1024, flags="sc1"))
        nl = PF["kinit"]
        for m in (1, 2, 3):
            A(f"s_add_u32 s64, s26, {m}"); A("s_and_b32 s64, s64, 3"); A("s_mul_i32 s64, s64, 15360"); A(f"s_add_u32 s64, s64, {lred+(m-1)*5120}")
            A(f"v_add_u32 {v(vRw+2+m)}, s64, {v(vL16)}")
        A("s_mul_i32 s64, s26, 15360"); A(f"s_add_u32 s64, s64, {lred}"); A(f"v_add_u32 {v(vRr)}, s64, {v(vL16)}")
        poll(66, 16)
        stamp(A, st0)
        for n in range(nl): vm.issue(*aload(n))
        pend = []
        for n, (m, sp) in enumerate(seq):
            vm.wait(("a", n))
            for t in range(5):
                mfma(A, v(acc(m,t),4), bfrag(sp, t), v(AF+4*(n % nwin),4), "0" if sp == 0 else None)
                if t in (0, 2) and nl < len(seq) and nl - nwin < n and nl - n <= PF["kfly"]:
                    vm.issue(*aload(nl)); nl += 1
                if (t == 3 or (t == 1 and KS < 6 and sp == 1)) and pend and sp >= 1: A(pend.pop(0))
            if sp == KS-1 and m != 0:
                assert not pend
                pend = [f"ds_write_b128 {v(vRw+2+m)}, {v(acc(m,t),4)} offset:{t*1024}" for t in range(5)]
        assert not pend
    def red_read(RD):
        A("s_waitcnt lgkmcnt(0)"); A("s_barrier"); lg.drained()
        for t in range(5):
            for sl in range(3): lg.issue(("r", t), f"ds_read_b128 {v(RD+(t*3+sl)*4,4)}, {v(vRr)} offset:{sl*5120+t*1024}")
    k_offsets(80, WS_O, WS_WO)
    A(f"v_and_b32 {v(u0)}, 15, v1"); A(f"v_lshrrev_b32 {v(u1)}, 4, v1")
    A("s_mul_i32 s62, s26, 2560"); A(f"s_add_u32 s62, s62, {L_XT}")
    A(f"v_mul_u32_u24 {v(9)}, 160, {v(u0)}"); A(f"v_lshl_add_u32 {v(9)}, {v(u1)}, 3, {v(9)}"); A(f"v_add_u32 {v(9)}, s62, {v(9)}")
    CSA, CSB = 212, 216; vCa, vCb = 220, 221; vONE3 = 20
    for r in range(4): A(f"v_mov_b32 {v(vONE3+r)}, 0x{ONES:x}")
    A("s_mul_i32 s62, s26, 5"); A("s_add_u32 s62, s62, 1"); A("s_mul_i32 s62, s62, 43"); A("s_lshr_b32 s62, s62, 7"); A("s_lshl_b32 s62, s62, 10")
    A(f"v_add_u32 {v(vCa)}, s62, {v(vL16)}")
    A("s_lshr_b32 s62, s26, 1"); A("s_mul_i32 s62, s62, 3072"); A("s_add_u32 s62, s62, 1024"); A("s_and_b32 s63, s26, 1"); A("s_mul_i32 s63, s63, 6144"); A("s_add_u32 s62, s62, s63")
    A(f"v_add_u32 {v(vCb)}, s62, {v(vL16)}")
    A(f"v_add_u32 {v(vCa+2)}, 61440, {v(vCa)}"); A(f"v_add_u32 {v(vCb+2)}, 61440, {v(vCb)}")
    def colsum(steps, first, TMP):
        fr = []
        for s_ in steps:
            fr.append((CSA, vCa + 2*(s_ >= 10), (s_ % 10)*6144))
            if s_ % 2 == 0: fr.append((CSB, vCb + 2*(s_ >= 10), (s_ % 10)*6144))
        seen = set() if first else {CSA, CSB}
        for n, (d, ad, off) in enumerate(fr): lg.issue(("c", n), f"ds_read_b128 {v(TMP+4*n,4)}, {v(ad)} offset:{off}")
        for n, (d, ad, off) in enumerate(fr):
            lg.wait(("c", n))
            mfma(A, v(d,4), v(TMP+4*n,4), v(vONE3,4), None if d in seen else "0"); seen.add(d)
    for x in take(Q2, PF["oF"]): vm.issue(*x)
    assert PF["oF"] <= 39
    k_gemm("P2", 5, lambda sp, t: a(WOF(sp,t),4), L_RED2, 20, "s84", 9)
    stamp(A, 10)
    XH = 24
    for t in range(5): lg.issue(("x",), f"ds_read_b64 {v(XH+2*t,2)}, {v(9)} offset:{t*32}")
    RD = AF
    red_read(RD)
    side = take(Q2, PF["p2E"])
    P = 200; vS, vQ = 36, 37
    A(f"v_mov_b64 {v(vS,2)}, 0")
    A(f"v_mov_b64 {v(P+10,2)}, 0")
    for t in range(5):
        lg.wait(("r", t))
        if t == 2:
            lg.wait(("r", 4)); A("s_barrier")
        for h in range(2):
            A(f"v_lshlrev_b32 {v(34)}, 16, {v(XH+2*t+h)}"); A(f"v_and_b32 {v(35)}, 0xffff0000, {v(XH+2*t+h)}")
            A(f"v_pk_add_f32 {v(acc(0,t)+2*h,2)}, {v(acc(0,t)+2*h,2)}, {v(RD+(t*3)*4+2*h,2)}")
            A(f"v_pk_add_f32 {v(RD+(t*3+1)*4+2*h,2)}, {v(RD+(t*3+1)*4+2*h,2)}, {v(RD+(t*3+2)*4+2*h,2)}")
            A(f"v_pk_add_f32 {v(acc(0,t)+2*h,2)}, {v(acc(0,t)+2*h,2)}, {v(34,2)}")
            A(f"v_pk_add_f32 {v(acc(0,t)+2*h,2)}, {v(acc(0,t)+2*h,2)}, {v(RD+(t*3+1)*4+2*h,2)}")
            A(f"v_cvt_pk_bf16_f32 {v(P+2*t+h)}, {v(acc(0,t)+2*h)}, {v(acc(0,t)+2*h+1)}")
            A(f"v_dot2c_f32_bf16 {v(vS)}, {v(P+2*t+h)}, {v(vONE3)}")
            A(f"v_dot2c_f32_bf16 {v(vQ)}, {v(P+2*t+h)}, {v(P+2*t+h)}")
            for x in take(side, 1): vm.issue(*x)
        A(f"v_mov_b64 {v(HRES+2*t,2)}, {v(P+2*t,2)}")
        if t in (1, 3, 4):
            pr_ = t//2
            for h in range(2): A(f"v_permlane16_swap_b32 {v(P+4*pr_+h)}, {v(P+4*pr_+2+h)}")
            if pr_ == 2: A("s_mov_b32 exec_lo, 0xffff"); A("s_mov_b32 exec_hi, 0xffff")
            for x in dual(f"buffer_store_dwordx4 {v(P+4*pr_,4)}, {v(vHA)}, SRD, {s(sH)} offen offset:{pr_*1024}"): vm.issue(("hst",), x)
    A("s_mov_b64 exec, -1")
    for op in ("v_permlane16_swap_b32", "v_permlane32_swap_b32"):
        A(f"v_mov_b64 {v(34,2)}, {v(vS,2)}")
        A(f"{op} {v(34)}, {v(vS)}"); A(f"{op} {v(35)}, {v(vQ)}")
        A(f"v_pk_add_f32 {v(vS,2)}, {v(vS,2)}, {v(34,2)}")
    A("s_mov_b64 exec, 0xffff")
    for x in dual(f"buffer_store_dwordx2 {v(vS,2)}, {v(vSA)}, SRD, {s(sST)} offen"): vm.issue(("hst",), x)
    A("s_mov_b64 exec, -1")
    for x in w1_loads[W1P1//2*3:] + side: vm.issue(*x)
    A(f"s_lshl_b32 s66, {s(SI)}, 7"); A(f"s_add_u32 s66, s66, {WS_FH}"); A(f"s_lshl_b32 s97, {s(SG)}, 3"); A("s_add_u32 s97, s97, s66")
    colsum(range(12), True, 48)
    vm.wait(("hst",)); A("s_barrier")
    set_flag2(97, 16)
    stamp(A, 11)
    srd(A, SD, 14, 3072)
    vB1 = 36
    A(f"s_mul_i32 s59, {s(SG)}, 192"); A(f"v_lshlrev_b32 {v(u3)}, 3, {v(u1)}")
    for t in range(6): vm.issue(("b1",), f"buffer_load_dwordx2 {v(vB1+2*t,2)}, {v(u3)}, {s(SD,4)}, s59 offen offset:{t*32}")
    for x in take(Q2, PF["hS"]): vm.issue(*x)
    ACC3 = 48; BF = 96; AW = 144; NW3 = 16; CS = 208
    vST = 24; vB = [12, 13]
    acc3 = lambda t, mt: ACC3 + (t*2+mt)*4
    A(f"v_mov_b32 {v(vB[0])}, {v(vL16)}"); A(f"v_add_u32 {v(vB[1])}, 61440, {v(vL16)}")
    A(f"s_lshl_b32 s54, {s(SI)}, 3"); A("s_lshl_b32 s55, s26, 1"); A("s_add_u32 s54, s54, s55"); A("s_mul_i32 s54, s54, 20480"); A(f"s_add_u32 s54, s54, {WS_H}")
    A("s_add_u32 s55, s54, 20480")
    A(f"s_lshl_b32 s52, {s(SI)}, 7"); A("s_lshl_b32 s53, s26, 5"); A("s_add_u32 s52, s52, s53"); A("s_lshl_b32 s52, s52, 3"); A(f"s_add_u32 s52, s52, {WS_ST}")
    A("s_add_u32 s53, s52, 16384")
    A(f"v_lshlrev_b32 {v(u2)}, 15, {v(u1)}"); A(f"v_lshl_or_b32 {v(u2)}, {v(u0)}, 3, {v(u2)}")
    A("s_lshl_b32 s60, s26, 7"); A(f"s_add_u32 s60, s60, {L_CS3}")
    A(f"v_lshlrev_b32 {v(u3)}, 4, {v(u1)}"); A(f"v_add_u32 {v(u4)}, s60, {v(u3)}"); A(f"v_add_u32 {v(14)}, {L_CS3}, {v(u3)}")
    vm.wait(("w1", 9)); A("s_barrier")
    colsum(range(12, 20), False, 144)
    A("s_mov_b32 exec_lo, 0x00010001"); A("s_mov_b32 exec_hi, 0x00010001")
    A(f"ds_write_b128 {v(u4)}, {v(CSA,4)}"); A(f"ds_write_b128 {v(u4)}, {v(CSB,4)} offset:64")
    A("s_mov_b64 exec, -1")
    lg.q += [("cw",), ("cw",)]
    stamp(A, 12)
    def b3(s_, t): return f"ds_read_b128 {v(BF+(s_%2)*24+4*t,4)}, {v(vB[s_//10])} offset:{(s_%10)*6144+t*1024}"
    def a3(n): return (("a", n), frag_load(v(AW+4*(n % NW3),4), 54 + n % 2, (n//2)*1024, flags="sc1"))
    nl = PF["p3init"]
    A("s_waitcnt lgkmcnt(0)"); A("s_barrier"); lg.drained()
    for t in range(6): lg.issue(("b", 0, t), b3(0, t))
    poll(66, 16)
    stamp(A, 13)
    for n in range(nl): vm.issue(*a3(n))
    side = [(("st",), f"buffer_load_dwordx2 {v(vST+mt*4+cc*2,2)}, {v(u2)}, {s(SWS,4)}, {s(52+cc)} offen offset:{mt*128} sc1") for mt in range(2) for cc in range(2)]
    side += take(Q2, PF["p3L"])
    for s_ in range(20):
        vm.wait(("a", 2*s_+1))
        for t in range(6):
            if t % 2 == 0: lg.wait(("b", s_, t+1))
            mfma(A, v(acc3(t,0),4), v(BF+(s_%2)*24+4*t,4), v(AW+4*((2*s_) % NW3),4), "0" if s_ == 0 else None)
            if t in (0, 2, 4):
                if nl < 40 and nl - NW3 < 2*s_ and nl - 2*s_ <= PF["p3fly"]:
                    vm.issue(*a3(nl)); nl += 1
                elif side and (nl >= 40 or t == 4): vm.issue(*side.pop(0))
            mfma(A, v(acc3(t,1),4), v(BF+(s_%2)*24+4*t,4), v(AW+4*((2*s_+1) % NW3),4), "0" if s_ == 0 else None)
            if s_ < 19: lg.issue(("b", s_+1, t), b3(s_+1, t))
            else:
                e = [0, 1, 2, 4, 5, 6][t]
                lg.issue(("cs",), f"ds_read_b128 {v(CS+4*t,4)}, {v(14)} offset:{e*64}")
    lg.issue(("cs",), f"ds_read_b128 {v(232,4)}, {v(14)} offset:{3*64}"); lg.issue(("cs",), f"ds_read_b128 {v(BF,4)}, {v(14)} offset:{7*64}")
    for x in side: vm.issue(*x)
    vm.wait(("st",))
    stamp(A, 14)
    for mt in range(2):
        b = vST + 4*mt
        A(f"v_pk_add_f32 {v(b,2)}, {v(b,2)}, {v(b+2,2)}")
    for op in ("v_permlane16_swap_b32", "v_permlane32_swap_b32"):
        for mt in range(2):
            b = vST + 4*mt
            A(f"v_mov_b64 {v(b+2,2)}, {v(b,2)}")
        for mt in range(2):
            b = vST + 4*mt
            A(f"{op} {v(b+2)}, {v(b)}"); A(f"{op} {v(b+3)}, {v(b+1)}")
        for mt in range(2):
            b = vST + 4*mt
            A(f"v_pk_add_f32 {v(b,2)}, {v(b,2)}, {v(b+2,2)}")
    ln_stats2(A, [(vST, vST+1), (vST+4, vST+5)], [vST+2, vST+6])
    for mt in range(2):
        b = vST + 4*mt
        A(f"v_mul_f32 {v(b)}, {v(b)}, {v(b+1)}"); A(f"v_mov_b32 {v(b+2)}, {v(b+1)}")
    lg.wait(("cs",))
    for r in (0, 2):
        A(f"v_pk_add_f32 {v(CS+4+r,2)}, {v(CS+4+r,2)}, {v(232+r,2)}"); A(f"v_pk_add_f32 {v(CS+16+r,2)}, {v(CS+16+r,2)}, {v(BF+r,2)}")
    P = BF; BU = BF + 24; U = BF + 28
    side = take(Q2, PF["rE"])
    for t in range(6):
        for h in range(2):
            A(f"v_lshlrev_b32 {v(BU+2*h)}, 16, {v(vB1+2*t+h)}"); A(f"v_and_b32 {v(BU+2*h+1)}, 0xffff0000, {v(vB1+2*t+h)}")
        for mt in range(2):
            b = vST + 4*mt
            for r in (0, 2): A(f"v_pk_fma_f32 {v(U+4*mt+r,2)}, {v(CS+4*t+r,2)}, {v(b,2)}, {v(BU+r,2)} op_sel_hi:[1,0,1]")
        for mt in range(2):
            b = vST + 4*mt
            for r in (0, 2): A(f"v_pk_fma_f32 {v(U+4*mt+r,2)}, {v(acc3(t,mt)+r,2)}, {v(b+2,2)}, {v(U+4*mt+r,2)} op_sel_hi:[1,0,1]")
        for r in range(8): A(f"v_max_f32 {v(U+r)}, 0, {v(U+r)}")
        for x in take(side, 1): vm.issue(*x)
        for r in range(0, 8, 2): A(f"v_pk_mul_f32 {v(U+r,2)}, {v(U+r,2)}, {v(U+r,2)}")
        for h in range(4): A(f"v_cvt_pk_bf16_f32 {v(P+4*t+h)}, {v(U+2*h)}, {v(U+2*h+1)}")
        for h in range(2): A(f"v_permlane16_swap_b32 {v(P+4*t+h)}, {v(P+4*t+2+h)}")
        for x in dual(f"buffer_store_dwordx4 {v(P+4*t,4)}, {v(vRA)}, SRD, {s(sR)} offen offset:{t*512}"): vm.issue(("rst",), x)
    for x in side + take(Q2, PF["rS"]): vm.issue(*x)
    srd(A, SD, 18, 1280); srd(A, SW, 20, 2048*1280)
    vB2 = 20
    A(f"s_mul_i32 s63, {s(SC)}, 160"); A(f"v_lshlrev_b32 {v(u3)}, 3, {v(u1)}")
    for t in range(5): vm.issue(("b2",), f"buffer_load_dwordx2 {v(vB2+2*t,2)}, {v(u3)}, {s(SD,4)}, s63 offen offset:{t*32}")
    k_offsets(192, WS_R, WS_W2)
    L_OUT = 61440
    OA = 30
    A("s_mul_i32 s63, s26, 2816"); A(f"s_add_u32 s63, s63, {L_OUT}")
    A(f"v_mul_u32_u24 {v(9)}, 176, {v(u0)}"); A(f"v_lshl_add_u32 {v(9)}, {v(u1)}, 3, {v(9)}"); A(f"v_add_u32 {v(9)}, s63, {v(9)}")
    for n in range(3):
        A(f"v_add_u32 {v(u2)}, {64*n}, v1")
        A(f"v_mul_u32_u24 {v(u3)}, 6554, {v(u2)}"); A(f"v_lshrrev_b32 {v(u3)}, 16, {v(u3)}")
        A(f"v_lshlrev_b32 {v(u2)}, 4, {v(u2)}")
        A(f"v_lshl_add_u32 {v(u4)}, {v(u3)}, 4, {v(u2)}"); A(f"v_add_u32 {v(OA+n)}, s63, {v(u4)}")
        A(f"v_mul_u32_u24 {v(u3)}, 1120, {v(u3)}"); A(f"v_add_u32 {v(OA+3+n)}, {v(u3)}, {v(u2)}")
    A(f"s_lshl_b32 s58, {s(SJ)}, 6"); A("s_lshl_b32 s59, s26, 4"); A("s_add_u32 s58, s58, s59"); A("s_mul_i32 s58, s58, 1280")
    A(f"s_mul_i32 s59, {s(SC)}, 160"); A("s_add_u32 s58, s58, s59")
    A(f"s_lshl_b32 s66, {s(SI)}, 7"); A(f"s_add_u32 s66, s66, {WS_FR}"); A(f"s_lshl_b32 s97, {s(SG)}, 3"); A("s_add_u32 s97, s97, s66")
    vm.wait(("rst",)); A("s_barrier")
    set_flag2(97, 16)
    stamp(A, 15)
    for x in take(Q2, 60): vm.issue(*x)
    k_gemm("P4", 12, lambda sp, t: a(W2slot[(sp,t)],4), 0, 28, "s84", 16)
    stamp(A, 17)
    red_read(RD)
    P = 200
    for t in range(5):
        lg.wait(("r", t))
        for h in range(2):
            A(f"v_lshlrev_b32 {v(36)}, 16, {v(HRES+2*t+h)}"); A(f"v_and_b32 {v(37)}, 0xffff0000, {v(HRES+2*t+h)}")
            A(f"v_lshlrev_b32 {v(38)}, 16, {v(vB2+2*t+h)}"); A(f"v_and_b32 {v(39)}, 0xffff0000, {v(vB2+2*t+h)}")
            A(f"v_pk_add_f32 {v(acc(0,t)+2*h,2)}, {v(acc(0,t)+2*h,2)}, {v(RD+(t*3)*4+2*h,2)}")
            A(f"v_pk_add_f32 {v(RD+(t*3+1)*4+2*h,2)}, {v(RD+(t*3+1)*4+2*h,2)}, {v(RD+(t*3+2)*4+2*h,2)}")
            A(f"v_pk_add_f32 {v(36,2)}, {v(36,2)}, {v(38,2)}")
            A(f"v_pk_add_f32 {v(acc(0,t)+2*h,2)}, {v(acc(0,t)+2*h,2)}, {v(RD+(t*3+1)*4+2*h,2)}")
            A(f"v_pk_add_f32 {v(acc(0,t)+2*h,2)}, {v(acc(0,t)+2*h,2)}, {v(36,2)}")
            A(f"v_cvt_pk_bf16_f32 {v(P+2*t+h)}, {v(acc(0,t)+2*h)}, {v(acc(0,t)+2*h+1)}")
        A(f"ds_write_b64 {v(9)}, {v(P+2*t,2)} offset:{t*32}")
    A("s_waitcnt lgkmcnt(0)")
    for n in range(3): A(f"ds_read_b128 {v(RD+4*n,4)}, {v(OA+n)}")
    for n in range(3):
        A(f"s_waitcnt lgkmcnt({2-n})")
        if n == 2: A("s_mov_b64 exec, 0xffffffff")
        A(f"buffer_store_dwordx4 {v(RD+4*n,4)}, {v(OA+3+n)}, {s(SW,4)}, s58 offen")
    if STAMPS:
        A("s_mov_b64 exec, -1")
        stamp(A, 18)
        A("s_waitcnt vmcnt(0)")
        stamp(A, 19)
        A("s_cmp_lg_u32 s26, 0"); A("s_cbranch_scc1 L_end")
        A("s_lshl_b32 s100, s2, 8"); A(f"s_add_u32 s100, s100, {WS_TS}")
        A("v_lshlrev_b32 v2, 2, v1")
        A(f"buffer_store_dword v3, v2, {s(SWS,4)}, s100 offen")
    A.label("L_end")
    A("s_endpgm")
    return kd(K, 512, accum=256)

def main(path, stamps=False):
    global STAMPS
    STAMPS = stamps
    A = Asm()
    kds = [gen(A)]
    L = A.lines
    X = os.environ.get("EXP", "")
    i2 = next(i for i, l in enumerate(L) if "P2START" in l)
    head, tail = L[:i2], L[i2:]
    if "nomfma" in X: tail = [l for l in tail if "v_mfma" not in l]
    if "noaload" in X: tail = [l for l in tail if not ("buffer_load_dwordx4 v" in l and "sc1" in l)]
    if "nowrite" in X: tail = [l for l in tail if not ("ds_write_b128" in l)]
    if "now2" in X: tail = [l for l in tail if not ("buffer_load_dwordx4 a" in l)]; head = [l for l in head if not ("buffer_load_dwordx4 a" in l)]
    if "nosc1" in X: tail = [l.replace(" sc1", "") if ("buffer_load_dwordx4 v" in l) else l for l in tail]
    if "p1nomfma" in X: head = [l for l in head if "v_mfma" not in l]
    if "p1nods" in X: head = [l for l in head if "ds_read_b64_tr" not in l]
    if "nopackst" in X: head = [l for l in head if not ("buffer_store_dwordx4" in l and ("s88" in l or "s91" in l))]
    if "noprefill" in X: head = [l for l in head if not ("buffer_store" in l and "v[240:" in l)]
    lines, n = hazard.fix(head + tail)
    open(path, "w").write(file_text(["; @launch grid=(256,1,1) block=(256,1,1) lds=163840"], "\n".join(lines) + "\n", kds))
    print("nops inserted:", n, "lines:", len(lines))
if __name__ == "__main__":
    main(sys.argv[1] if len(sys.argv) > 1 else "v6.s")
STAMP_NAMES = {0:"start",1:"dma issued",2:"loop start",3:"loop end",4:"kv stored",5:"Q epi done",7:"gathered",8:"o flag",9:"o polled",10:"P2 gemm",11:"h flag",12:"colsum done",13:"h polled",14:"P3 gemm",15:"r flag",16:"r polled",17:"P4 gemm",18:"out issued",19:"out done"}
```

```python
import re

TRANS = ("v_exp_f32","v_log_f32","v_rcp_f32","v_rsq_f32","v_sqrt_f32","v_sin_f32","v_cos_f32","v_rcp_iflag_f32","v_exp_f16","v_rcp_f16")
RMW = ("v_fmac","v_dot2c","v_mac","v_pk_fmac","v_dot4c","v_dot8c")

def split_ops(s):
    ops=[]; depth=0; cur=""
    for ch in s:
        if ch in "[(": depth+=1
        if ch in "])": depth-=1
        if ch=="," and depth==0:
            ops.append(cur.strip()); cur=""
        else: cur+=ch
    if cur.strip(): ops.append(cur.strip())
    return ops

REG_RE = re.compile(r"^(?:-|\|)?(?:abs\()?([vas])(?:(\d+)|\[(\d+):(\d+)\])")
def regs(op):
    op = op.strip()
    tok = op.split()[0] if op else ""
    if tok in ("vcc","vcc_lo","vcc_hi"): return {("s","vcc")}
    if tok in ("exec","exec_lo","exec_hi"): return {("s","exec")}
    if tok == "m0": return {("s","m0")}
    m = REG_RE.match(tok)
    if not m: return set()
    k = m.group(1)
    if m.group(2) is not None: lo=hi=int(m.group(2))
    else: lo,hi=int(m.group(3)),int(m.group(4))
    return {(k,i) for i in range(lo,hi+1)}

class Ins:
    __slots__=("text","mn","ops","cls","w","r","srcA","srcB","srcC","passes","data","addr","isdpp","ws","target","uncond","lds_dma","wide_store","sreads_const")
    def __init__(self,text):
        self.text=text
        t=text.split(";")[0].strip()
        parts=t.split(None,1)
        self.mn=parts[0]
        self.ops=split_ops(parts[1]) if len(parts)>1 else []
        mn=self.mn; ops=self.ops
        self.w=set(); self.r=set(); self.srcA=set(); self.srcB=set(); self.srcC=set(); self.passes=0
        self.data=set(); self.addr=set(); self.isdpp=("_dpp" in mn) or (" row_" in t) or ("quad_perm" in t); self.ws=1
        self.target=None; self.uncond=False; self.lds_dma=False; self.wide_store=False
        R=lambda i: regs(ops[i]) if i<len(ops) else set()
        if mn.startswith("v_mfma"):
            self.cls="mfma"; self.w=R(0); self.srcA=R(1); self.srcB=R(2); self.srcC=R(3); self.r=self.srcA|self.srcB|self.srcC
            self.passes = 8 if "32x32" in mn else 4
        elif mn.startswith("v_"):
            self.cls="trans" if mn.replace("_e32","").replace("_e64","") in TRANS else "valu"
            if mn.startswith("v_permlane") and "swap" in mn:
                self.w=R(0)|R(1); self.r=R(0)|R(1)
            elif mn.startswith(("v_add_co","v_sub_co","v_subrev_co","v_addc_co","v_subb_co","v_div_scale","v_mad_u64","v_mad_i64")):
                self.w=R(0)|R(1)
                for i in range(2,len(ops)): self.r|=R(i)
            elif mn=="v_nop": pass
            else:
                self.w=R(0)
                for i in range(1,len(ops)): self.r|=R(i)
                if mn.startswith(RMW): self.r|=R(0)
                if mn.startswith("v_cmpx"): self.w|={("s","exec")}
                if mn.startswith("v_writelane"): self.r|=R(0)
                if self.isdpp: self.r|=R(0)
        elif mn.startswith("buffer_") :
            self.cls="vmem"
            if mn in ("buffer_inv","buffer_wbl2"): pass
            elif re.search(r"\blds\b",t):
                self.lds_dma=True; self.addr=R(0); self.r=R(0)|R(1)|R(2)|{("s","m0")}
            elif mn.startswith("buffer_load"):
                self.w=R(0); self.addr=R(1); self.r=R(1)|R(2)|R(3)
            else:
                self.data=R(0); self.addr=R(1); self.r=R(0)|R(1)|R(2)|R(3)
                if "atomic" in mn and " sc0" in t: self.w=R(0)
                if mn.endswith(("x3","x4")): self.wide_store=True
        elif mn.startswith(("global_","flat_","scratch_")):
            self.cls="vmem"
            if "load_lds" in mn:
                self.lds_dma=True; self.r=R(0)|R(1)|{("s","m0")}
            elif "_load" in mn:
                self.w=R(0); self.r=R(1)|R(2)
            elif "atomic" in mn:
                if " sc0" in t: self.w=R(0); self.r=R(1)|R(2)|R(3); self.data=R(2)
                else: self.r=R(0)|R(1)|R(2); self.data=R(1)
            else:
                self.r=R(0)|R(1)|R(2); self.data=R(1)
                if mn.endswith(("x3","x4")): self.wide_store=True
        elif mn.startswith("ds_"):
            self.cls="ds"
            if mn.startswith(("ds_read","ds_bpermute","ds_permute","ds_swizzle")) or "_rtn" in mn:
                self.w=R(0)
                for i in range(1,len(ops)): self.r|=R(i)
            else:
                for i in range(len(ops)): self.r|=R(i)
        elif mn.startswith("s_"):
            self.cls="salu"
            if mn=="s_nop": self.ws=int(ops[0],0)+1
            elif mn.startswith("s_cbranch") : self.target=ops[0]
            elif mn=="s_branch": self.target=ops[0]; self.uncond=True
            elif mn=="s_endpgm": self.uncond=True
            elif mn.startswith(("s_cmp","s_waitcnt","s_barrier","s_sleep","s_setprio","s_bitcmp")):
                for i in range(len(ops)): self.r|=R(i)
            else:
                self.w=R(0)
                for i in range(1,len(ops)): self.r|=R(i)
                if "saveexec" in mn: self.w|={("s","exec")}
        else:
            raise ValueError("unknown instr: "+text)

def isvalu(i): return i.cls in ("valu","trans")
def vregs(S): return {x for x in S if x[0] in "va"}
def sregs(S): return {x for x in S if x[0]=="s"}

def need(p,c):
    n=0
    if isvalu(p):
        pw=vregs(p.w); ps=sregs(p.w)
        if c.cls=="mfma" and pw & c.r: n=max(n,2)
        if c.cls=="mfma" and ("s","exec") in ps: n=max(n,4)
        if isvalu(c):
            if p.cls=="trans" and c.cls!="trans" and pw & c.r: n=max(n,1)
            if p.cls=="trans" and c.cls=="trans" and pw & c.r: n=max(n,1)
            if c.mn.startswith("v_permlane") and pw & c.r: n=max(n,2)
            if c.isdpp and pw & c.r: n=max(n,2)
            if c.mn.startswith(("v_readlane","v_readfirstlane")) and pw & c.r: n=max(n,1)
            if ps & sregs(c.r):
                n=max(n,2)
                if c.mn.startswith(("v_readlane","v_writelane","v_div_fmas")): n=max(n,4)
            if ("s","exec") in ps and (c.isdpp): n=max(n,5)
            if ("s","exec") in ps and c.mn.startswith(("v_readlane","v_readfirstlane","v_writelane","v_permlane")): n=max(n,4)
            if ("sdwa" in p.mn or "op_sel:" in p.text) and not p.mn.startswith("v_pk_") and pw & (c.r|c.w): n=max(n,1)
        if c.cls in ("vmem",) and ps & sregs(c.r): n=max(n,5)
        if c.cls=="salu" and ps & sregs(c.r): n=max(n,1)
    if p.mn.startswith("v_dot") and (isvalu(c) or c.cls in ("mfma","vmem","ds")):
        pw=vregs(p.w)
        if c.mn==p.mn:
            srcs=set()
            for o in c.ops[1:3]: srcs|=regs(o)
            if pw & srcs: n=max(n,3)
        elif pw & (c.r|c.w): n=max(n,3)
    if p.cls=="mfma":
        big = p.passes==8
        if c.cls=="mfma":
            if p.w & (c.srcA|c.srcB): n=max(n,12 if big else 8)
            if p.w & c.srcC:
                if not (p.w==c.srcC and p.passes==c.passes): n=max(n,10 if big else 6)
            elif p.w & c.w: n=max(n,10 if big else 6)
        elif isvalu(c):
            if p.w & (c.r|c.w): n=max(n,12 if big else 8)
            if p.srcC & c.w: n=max(n,7 if big else 3)
        elif c.cls in ("vmem","ds"):
            if p.w & (c.r|c.w): n=max(n,12 if big else 8)
    if p.cls=="salu" and ("s","m0") in p.w and c.lds_dma: n=max(n,1)
    if p.cls=="vmem" and p.wide_store and (p.data & c.w):
        n=max(n,2 if isvalu(c) else 1)
    return n

MAXW=12
class Node:
    __slots__=("kind","obj","pad")
    def __init__(self,kind,obj): self.kind=kind; self.obj=obj; self.pad=0
def fix(lines):
    items=[]
    for l in lines:
        s=l.strip()
        if not s or s.startswith(";") or s.startswith("."): items.append(Node("x",l)); continue
        if re.match(r"^[\w.$]+:$",s): items.append(Node("l",s[:-1])); continue
        items.append(Node("i",Ins(s)))
    labels={n.obj:i for i,n in enumerate(items) if n.kind=="l"}
    jumps={}
    for i,n in enumerate(items):
        if n.kind=="i" and n.obj.target is not None and n.obj.target in labels:
            jumps.setdefault(labels[n.obj.target],[]).append(i)
    preds={}
    for i,n in enumerate(items):
        if n.kind!="i": continue
        P=[]; t=i-1
        while t>=0:
            m=items[t]
            if m.kind=="l": P+=jumps.get(t,[])
            elif m.kind=="x":
                if m.obj.strip().startswith(".p2align 8"): break
            else:
                if not m.obj.uncond: P.append(t)
                break
            t-=1
        preds[i]=P
    inserted=0
    changed=True
    while changed:
        changed=False
        for i,n in enumerate(items):
            if n.kind!="i" or n.obj.mn=="s_nop": continue
            o=n.obj; worst=0
            stack=[(p,n.pad) for p in preds[i]]; seen=set()
            while stack:
                j,d=stack.pop()
                if d>=MAXW or (j,d) in seen: continue
                seen.add((j,d))
                oo=items[j].obj
                k=need(oo,o)
                if k>d: worst=max(worst,k-d)
                d2=d+oo.ws+items[j].pad
                for p in preds[j]: stack.append((p,d2))
            if worst>0:
                n.pad+=worst; inserted+=1; changed=True
    out=[]
    for n in items:
        if n.kind=="i":
            if n.pad: out.append(f"    s_nop {n.pad-1}")
            out.append("    "+n.obj.text)
        elif n.kind=="l": out.append(n.obj+":")
        else: out.append(n.obj)
    return out, inserted
```

```python
import sys, os
from collections import deque
sys.path.insert(0, "dev")
from asmgen import *
import hazard

WS_O  = 0
WS_H  = WS_O + 2621440
WS_R  = WS_H + 2621440
WS_WO = WS_R + 6291456
WS_W2 = WS_WO + 819200
WS_KV = WS_W2 + 1966080
KV_STRIDE = 3584
WS_ST = WS_KV + 256*KV_STRIDE
WS_FP = WS_ST + 131072
WS_FKV = WS_FP + 2048
WS_FO = WS_FKV + 2048
WS_FH = WS_FO + 2048
WS_FR = WS_FH + 2048
WS_FL = WS_FR + 2048
WS_FW = WS_FL + 2048
WS_CP = WS_FW + 2048
WS_WQ = WS_CP + 131072
WS_TS = WS_WQ + 16*153600
WS_END = WS_TS + 256*256
LOG2E = 0x3fb8aa3b; EPS6 = 0x358637bd; EPS5 = 0x3727c5ac; INV640 = 0x3acccccd; ONES = 0x3f803f80
SPIN = 40000
STAMPS = False
OPT = dict(slow=int(os.environ.get("SLOW", "0")))
PF = dict(gB=12, w1t=1, x0=6, x1=4, x1b=6, x2=8, opc=5, fwc=8, smx=8, binit=12, bq=7, ls=14, fpchk=18, kvE=12, kvEv=2, kvf=6, kvc=17,
          qE=0, qEv=5, oB=8, oE=4, oT=0, oS=8, oF=0, p2G=5, p2B=8, p2E=0, hW=0, hA=6, hS=0, p3f=6, p3L=7, rB=10, rEn=0, rS=0, rF=0,
          kinit=10, kfly=10, p3init=10, p3fly=10)
for k in list(PF):
    if os.environ.get("PF_"+k): PF[k] = int(os.environ["PF_"+k])

def stamp(A, n):
    A.comment(f"@S{n}")
    if not STAMPS: return
    A("s_memrealtime s[100:101]"); A("s_memtime s[98:99]"); A("s_waitcnt lgkmcnt(0)")
    A(f"v_writelane_b32 v3, s100, {n}"); A(f"v_writelane_b32 v3, s98, {n+32}")

class Cnt:
    def __init__(self, A, name, cap): self.A = A; self.q = []; self.name = name; self.cap = cap; self.seen = set(); self.cnt = 0
    def issue(self, tag, txt):
        for l in (txt if isinstance(txt, list) else [txt]): self.A(l)
        self.q.append(tag); self.seen.add(tag); self.cnt += 1
        assert self.name != "vmcnt" or len(self.q) <= 63
    def pending(self, tag): return tag in self.q
    def wait(self, tag):
        assert tag in self.seen, tag
        if tag not in self.q: return
        idx = len(self.q) - 1 - self.q[::-1].index(tag)
        n = len(self.q) - 1 - idx
        self.A(f"s_waitcnt {self.name}({min(n, self.cap)})")
        self.q = self.q[idx+1:] if n <= self.cap else self.q[len(self.q)-self.cap:]
    def drained(self): self.q = []
    def mark(self): return self.cnt
    def wait_mark(self, m):
        n = self.cnt - m
        self.A(f"s_waitcnt {self.name}({n})")
        if len(self.q) > n: self.q = self.q[len(self.q)-n:] if n else []

class Emit:
    def __init__(self): self.l = []
    def __call__(self, t): self.l.append(t)

TRC = int(os.environ.get('TRC', '8')); HEAVY = int(os.environ.get('HEAVY', '1')); MAXV = int(os.environ.get('MAXV', '2'))
import re
def unpk(l):
    m = re.match(r"v_mov_b64 v\[(\d+):\d+\], (.*)$", l)
    if m:
        d = int(m.group(1)); mm = re.match(r"v\[(\d+):", m.group(2))
        return [f"v_mov_b32 v{d+h}, " + (f"v{int(mm.group(1))+h}" if mm else m.group(2)) for h in range(2)]
    m = re.match(r"v_pk_(add|mul|fma)_f32 (.*?)( op_sel_hi:\[[\d,]+\])?$", l)
    if not m: return [l]
    ops = [o.strip() for o in m.group(2).split(",")]
    hi = [int(c) for c in re.findall(r"\d", m.group(3))] if m.group(3) else [1, 1, 1]
    def el(o, h): k, b = o[0], int(re.match(r".\[(\d+)", o).group(1)); return f"{k}{b+h}"
    out = []
    for h in range(2):
        srcs = [el(o, h if (h == 0 or hi[i]) else 0) for i, o in enumerate(ops[1:])]
        if m.group(1) != "fma" and srcs[1][0] == "s": srcs = srcs[::-1]
        out.append(f"v_{m.group(1)}_f32 {el(ops[0], h)}, " + ", ".join(srcs))
    return out
class Gaps:
    def __init__(self, A, vm, lg): self.A = A; self.vm = vm; self.lg = lg; self.q = [deque(), deque(), deque()]
    def put(self, pr, x): self.q[pr].append(x)
    def valu(self, pr, lines):
        for l in lines:
            for x in unpk(l): self.q[pr].append(("i", x))
    def vmem(self, pr, op):
        tag, txt = op
        txt = txt if isinstance(txt, list) else [txt]
        k = next(i for i, l in enumerate(txt) if l.startswith("buffer_"))
        for l in txt[:k]: self.q[pr].append(("i", l))
        self.q[pr].append(("vm", tag, txt[k]))
        for l in txt[k+1:]: self.q[pr].append(("i", l))
    def ds(self, pr, tag, txt): self.q[pr].append(("ds", tag, txt))
    def cost(self, x):
        if x[0] == "vm": return 2
        if x[0] == "i" and x[1].startswith(("v_pk", "v_exp", "v_rcp", "v_sqrt", "v_perm", "v_mov_b64")): return HEAVY
        if x[0] == "ds" and "write_b128" in x[2]: return 2
        if x[0] == "blk": return len(x[1])
        if x[0] in ("lw", "vw"): return 1 if (self.lg if x[0] == "lw" else self.vm).pending(x[1]) else 0
        return 1
    def ready(self, x):
        if x[0] == "vw": return x[1] in self.vm.seen and (not self.vm.pending(x[1]) or len(self.vm.q) - 1 - self.vm.q.index(x[1]) >= x[2] or self.force)
        if x[0] == "lw": return not self.lg.pending(x[1]) or len(self.lg.q) - 1 - self.lg.q.index(x[1]) >= x[2] or self.force
        return True
    force = False
    def run(self, x):
        if x[0] == "i": self.A(x[1])
        elif x[0] == "vm": self.vm.issue(x[1], x[2])
        elif x[0] == "ds": self.lg.issue(x[1], x[2])
        elif x[0] == "lw": self.lg.wait(x[1])
        elif x[0] == "vw": self.vm.wait(x[1])
        elif x[0] == "blk":
            for y in x[1]: self.run(y)
    def fill(self, budget=2):
        full = budget; nv = 0; ld = 16
        for q in self.q:
            while q and budget > 0 and self.ready(q[0]):
                c = self.cost(q[0])
                if c > budget and budget < full: break
                if q[0][0] == "ds":
                    lc = 16 if "b128" in q[0][2] else TRC
                    if lc > ld: break
                    ld -= lc
                if q[0][0] == "i" and q[0][1].startswith("v_"):
                    if nv >= MAXV: break
                    nv += 1
                self.run(q.popleft()); budget -= c
    def mfma(self, d, x, y, c=None, budget=2):
        self.A(f"v_mfma_f32_16x16x32_bf16 {d}, {x}, {y}, {d if c is None else c}")
        self.fill(budget)
    def flush(self, pr=None):
        self.force = True
        for i, q in enumerate(self.q):
            if pr is None or i == pr:
                while q: self.run(q.popleft())
        self.force = False

def merge(A, vm, stream, side, every=None):
    n = len(stream); k = len(side)
    step = every if every else max(1, n // (k + 1))
    j = 0
    for i, t in enumerate(stream):
        A(t)
        if (i + 1) % step == 0 and j < k:
            vm.issue(*side[j]); j += 1
    while j < k:
        vm.issue(*side[j]); j += 1

def mfma(A, d, x, y, c=None):
    A(f"v_mfma_f32_16x16x32_bf16 {d}, {x}, {y}, {d if c is None else c}")

def kperm(A, dst, p, t1, t2):
    A(f"v_and_b32 {v(t1)}, 12, {v(p)}"); A(f"v_lshlrev_b32 {v(t1)}, 1, {v(t1)}")
    A(f"v_lshrrev_b32 {v(t2)}, 4, {v(p)}"); A(f"v_lshlrev_b32 {v(t2)}, 2, {v(t2)}")
    A(f"v_and_b32 {v(dst)}, 3, {v(p)}")
    A(f"v_or3_b32 {v(dst)}, {v(dst)}, {v(t1)}, {v(t2)}")

def ln_stats2(E, pairs, tmps):
    def each(f):
        for k, (a_, b_) in enumerate(pairs): f(a_, b_, tmps[k])
    def rnd(r): return [f"v_cvt_pk_bf16_f32 {v(r)}, {v(r)}, {v(r)}", f"v_and_b32 {v(r)}, 0xffff0000, {v(r)}"]
    each(lambda a_, b_, t: E(f"v_mul_f32 {v(a_)}, s93, {v(a_)}"))
    each(lambda a_, b_, t: E(f"v_mul_f32 {v(t)}, {v(a_)}, {v(a_)}"))
    each(lambda a_, b_, t: E(f"v_fma_f32 {v(b_)}, {v(b_)}, s93, -{v(t)}"))
    each(lambda a_, b_, t: E(f"v_max_f32 {v(b_)}, 0, {v(b_)}"))
    each(lambda a_, b_, t: E(rnd(b_)[0])); each(lambda a_, b_, t: E(rnd(a_)[0]))
    each(lambda a_, b_, t: E(rnd(b_)[1])); each(lambda a_, b_, t: E(rnd(a_)[1]))
    each(lambda a_, b_, t: E(f"v_add_f32 {v(b_)}, 0x{EPS5:x}, {v(b_)}"))
    each(lambda a_, b_, t: E(f"v_xor_b32 {v(a_)}, 0x80000000, {v(a_)}"))
    each(lambda a_, b_, t: E(rnd(b_)[0])); each(lambda a_, b_, t: E(rnd(b_)[1]))
    each(lambda a_, b_, t: E(f"v_sqrt_f32 {v(b_)}, {v(b_)}"))
    each(lambda a_, b_, t: E(rnd(b_)[0])); each(lambda a_, b_, t: E(rnd(b_)[1]))
    each(lambda a_, b_, t: E(f"v_rcp_f32 {v(b_)}, {v(b_)}"))

def take(Q, n):
    out = Q[:n]; del Q[:n]; return out

def gen(A):
    K = NAME + "_kernel"
    kernel_begin(A, K)
    SI, SG, SJ, SC = 30, 31, 28, 29
    SX, SW, SWS, SD, SP = 32, 36, 40, 44, 48
    NON = 94
    vL16 = 2
    vm = Cnt(A, "vmcnt", 63); lg = Cnt(A, "lgkmcnt", 15); G = Gaps(A, vm, lg)
    sMODE = 84
    def dual(txt):
        k = "O" if f"{s(sO)} offen" in txt else ("R" if f"{s(sR)} offen" in txt else "H")
        return [txt.replace("SRD", s(SWS,4)) + (" sc1" if k in os.environ.get("WT", "") else "")]
    vNF = 242
    def set_flag(off_sgpr, both=False):
        lab = A.newlabel("nf"); slow = A.newlabel("sl")
        A("s_cmp_lg_u32 s26, 0"); A(f"s_cbranch_scc1 {lab}")
        A("s_mov_b64 exec, 1")
        x = f"buffer_store_dwordx2 {v(vNF,2)}, {v(vNF+2)}, {s(SWS,4)}, {s(off_sgpr)} offen"
        if both:
            A(f"s_cmp_lg_u32 {s(sMODE)}, 1"); A(f"s_cbranch_scc1 {slow}")
            A(x); A("s_mov_b64 exec, -1"); A(f"s_branch {lab}")
            A.label(slow)
            A("buffer_wbl2 sc1"); A("s_waitcnt vmcnt(0)")
        A(x + " sc1")
        A("s_mov_b64 exec, -1")
        A.label(lab)
    def poll(off_sgpr, tmp):
        lab = A.newlabel("pl"); done = A.newlabel("pd")
        A("s_mov_b32 s96, 0")
        A.label(lab)
        A(f"buffer_load_dwordx2 {v(tmp,2)}, {v(vSA)}, {s(SWS,4)}, {s(off_sgpr)} offen sc1")
        A("s_waitcnt vmcnt(0)")
        A(f"v_cmp_ne_u64 vcc, {s(NON,2)}, {v(tmp,2)}")
        A("s_add_u32 s96, s96, 1")
        A(f"s_cbranch_vccz {done}")
        A(f"s_cmp_lt_u32 s96, {SPIN}"); A(f"s_cbranch_scc1 {lab}")
        A.label(done)
        vm.drained()
    def run_loads(tag, dst, sbase, n, flags="sc1"):
        ops = []
        for k in range(n):
            t = [f"buffer_load_dwordx4 {dst(k)}, {v(vL16)}, {s(SWS,4)}, {s(sbase)} offen offset:{(k%4)*1024} {flags}"]
            if k % 4 == 3 and k + 1 < n: t.append(f"s_add_u32 {s(sbase)}, {s(sbase)}, 4096")
            ops.append((tag(k), t))
        return ops

    MISC = 155648
    L_KVN = MISC; L_KVD = MISC + 6144; L_RSTD = MISC + 6400; L_CS = L_RSTD + 1024
    L_PACK = 126976; L_XR = 12288; NXR = 7; L_Q = 102400; L_XT = 139264; L_RED2 = 77824; L_CS3 = L_RSTD; L_KR = 69632; L_CP = 153600
    t0, t1, t2, t3, t4, t5 = range(24, 30)
    vXa, vXb, vU, vUr = 4, 5, 6, 7
    vXr = [8, 9]; vBa = [10, 11, 12]; vQ7 = 13; vUo = 14; vCSa = 15
    vSw, vSr, vC0, vC1, vC2 = 16, 17, 30, 31, 32
    vONE = 20
    vBF = 36; vAK = 76; vAQ = 116; vAS = 148; vASS = 214
    XF = lambda s_, mt: a((2*s_+mt)*4, 4)
    BFr = lambda b, t: vBF + (b*5+t)*4
    AK = lambda mt, t: vAK + (mt*5+t)*4
    AQ = lambda mt, t: vAQ + (mt*3+t)*4
    OPA = 222; g0, g1, g2, pr, fl, xa = 226, 227, 228, 229, 230, 233
    vOA, vHA, vRA, vSA = 236, 237, 238, 239
    sO, sH, sR, sST, sKV = 4, 5, 6, 7, 8
    RS = 156; NM = 164; RL2 = 172; CSK = 180; rl = 190; nl = 194; rl2 = 198; CSQ = 202
    A("s_cmp_ge_u32 s2, 256"); A("s_cbranch_scc1 L_end")
    if STAMPS: A("v_mov_b32 v3, 0")
    stamp(A, 0)
    A("s_load_dwordx16 s[4:19], s[0:1], 0")
    A("s_load_dwordx4 s[20:23], s[0:1], 64")
    A("s_load_dwordx2 s[24:25], s[0:1], 80")
    A(f"s_memrealtime {s(NON,2)}")
    A("v_and_b32 v1, 63, v0"); A("v_lshrrev_b32 v2, 6, v0"); A("v_readfirstlane_b32 s26, v2")
    A(f"v_lshlrev_b32 {v(vL16)}, 4, v1")
    A("s_and_b32 s27, s2, 7"); A("s_lshr_b32 s52, s2, 3")
    A(f"s_lshl_b32 {s(SI)}, s27, 1"); A("s_and_b32 s53, s52, 1"); A(f"s_add_u32 {s(SI)}, {s(SI)}, s53"); A(f"s_lshr_b32 {s(SG)}, s52, 1")
    A(f"s_lshl_b32 {s(SJ)}, {s(SI)}, 1"); A(f"s_and_b32 s53, {s(SG)}, 1"); A(f"s_add_u32 {s(SJ)}, {s(SJ)}, s53"); A(f"s_lshr_b32 {s(SC)}, {s(SG)}, 1")
    A(f"v_lshrrev_b32 {v(t0)}, 4, v1")
    A(f"v_bfe_u32 {v(t1)}, v1, 1, 3"); A(f"v_lshlrev_b32 {v(t2)}, 1, {v(t0)}"); A(f"v_xor_b32 {v(t1)}, {v(t1)}, {v(t2)}")
    A(f"v_and_b32 {v(t2)}, 1, v1"); A(f"v_lshl_or_b32 {v(t1)}, {v(t1)}, 1, {v(t2)}"); A(f"v_min_u32 {v(t1)}, 14, {v(t1)}")
    A(f"v_mov_b32 {v(t2)}, 1280"); A(f"v_mov_b32 {v(t3)}, {2560-80}")
    A(f"v_cmp_le_u32 vcc, 5, {v(t1)}"); A(f"v_cndmask_b32 {v(t2)}, {v(t2)}, {v(t3)}, vcc")
    A(f"v_mov_b32 {v(t3)}, -160")
    A(f"v_cmp_le_u32 vcc, 10, {v(t1)}"); A(f"v_cndmask_b32 {v(t2)}, {v(t2)}, {v(t3)}, vcc")
    A(f"v_lshl_add_u32 {v(t1)}, {v(t1)}, 4, {v(t2)}")
    A(f"s_mul_i32 s53, {s(SG)}, 80")
    A(f"v_mul_u32_u24 {v(t0)}, 3840, {v(t0)}"); A(f"v_add3_u32 {v(vU)}, {v(t0)}, {v(t1)}, s53")
    A(f"s_mul_i32 s56, {s(SI)}, 10"); A("s_add_u32 s56, s56, s26"); A(f"s_mul_i32 s56, s56, {4*3840}")
    A(f"s_add_u32 s57, s56, {16*3840}"); A(f"s_add_u32 s58, s56, {32*3840}")
    A("s_cmp_ge_u32 s26, 2"); A("s_cselect_b32 s58, 0x7fffffff, s58")
    A("s_lshl_b32 s83, s26, 10")
    A(f"v_lshlrev_b32 {v(34)}, 7, v1")
    A(f"s_lshl_b32 s52, {s(SI)}, 4"); A(f"s_add_u32 s52, s52, {s(SG)}"); A("s_lshl_b32 s52, s52, 2"); A("s_add_u32 s52, s52, s26"); A("s_mul_i32 s52, s52, 2560")
    A(f"v_lshrrev_b32 {v(t0)}, 3, v1"); A(f"v_and_b32 {v(t1)}, 7, v1"); A(f"v_lshrrev_b32 {v(t2)}, 1, {v(t0)}")
    A(f"v_xor_b32 {v(t3)}, {v(t1)}, {v(t2)}"); A(f"v_xor_b32 {v(t4)}, 4, {v(t3)}")
    A(f"s_lshl_b32 s54, {s(SI)}, 7"); A("s_lshl_b32 s53, s26, 5"); A("s_add_u32 s54, s54, s53")
    A(f"v_add_u32 {v(t0)}, s54, {v(t0)}"); A(f"v_mul_u32_u24 {v(t0)}, 1280, {v(t0)}")
    A(f"v_lshl_add_u32 {v(vXa)}, {v(t3)}, 4, {v(t0)}"); A(f"v_lshl_add_u32 {v(vXb)}, {v(t4)}, 4, {v(t0)}")
    A(f"v_add_u32 {v(vXb)}, {8*1280}, {v(vXb)}")
    A(f"s_mul_i32 s59, s26, {NXR*4096}"); A(f"s_add_u32 s59, s59, {L_XR}")
    def x_ops(c):
        return [(("x", c), [f"s_add_u32 m0, s59, {(c%NXR)*4096+mt*2048+h*1024}", f"s_movk_i32 s63, {c*128+mt*20480}" if h == 0 else "s_nop 0",
                            f"buffer_load_dwordx4 {v(vXb if h else vXa)}, {s(SX,4)}, s63 offen lds"]) for mt in range(2) for h in range(2)]
    A("s_waitcnt lgkmcnt(0)")
    srd(A, SW, 6, 640*3840)
    for n in range(3): vm.issue(("u",), [f"s_add_u32 m0, s83, {n*4096}", "s_nop 0", f"buffer_load_dwordx4 {v(vU)}, {s(SW,4)}, {s(56+n)} offen lds"])
    srd(A, SX, 4, 2048*1280)
    A("s_mov_b64 exec, 0xfffff")
    vm.issue(("tch",), f"buffer_load_dword {v(35)}, {v(34)}, {s(SX,4)}, s52 offen")
    A("s_mov_b64 exec, -1")
    if PF["w1t"]:
        srd(A, SP, 12, 640*3072)
        if PF["w1t"] == 1:
            A("s_lshl_b32 s53, s2, 2"); A("s_add_u32 s53, s53, s26"); A("s_mul_i32 s53, s53, 1920"); A("s_mov_b64 exec, 0x7fff")
            vm.issue(("tch",), f"buffer_load_dword {v(35)}, {v(34)}, {s(SP,4)}, s53 offen")
        else:
            A("s_lshr_b32 s53, s2, 3"); A("s_lshl_b32 s53, s53, 2"); A("s_add_u32 s53, s53, s26"); A("s_mul_i32 s53, s53, 15360"); A("s_mov_b64 exec, 0xfffffffffffffff" if False else "s_mov_b64 exec, -1")
            vm.issue(("tch",), f"buffer_load_dword {v(35)}, {v(34)}, {s(SP,4)}, s53 offen")
            A("s_add_u32 s53, s53, 7168")
            vm.issue(("tch",), f"buffer_load_dword {v(35)}, {v(34)}, {s(SP,4)}, s53 offen")
        A("s_mov_b64 exec, -1")
    stamp(A, 1)
    srd(A, SD, 22, 256)
    A("s_xor_b32 s53, s2, 2"); A("s_or_b32 s53, s53, s26"); A("s_cmp_lg_u32 s53, 0"); A("s_cbranch_scc1 N_skip")
    A(f"v_mov_b32 {v(t0)}, {s(NON)}"); A(f"v_mov_b32 {v(t1)}, {s(NON+1)}"); A(f"v_mov_b32 {v(t2)}, 0")
    A("s_mov_b64 exec, 1")
    A(f"buffer_store_dwordx2 {v(t0,2)}, {v(t2)}, {s(SD,4)}, 0 offen sc1")
    A("s_mov_b64 exec, -1")
    A.label("N_skip")
    srd(A, SWS, 24, WS_END)
    PAD = vBF + 8
    for j in range(4):
        A(f"v_lshrrev_b32 {v(t0)}, 3, v1"); A(f"v_add_u32 {v(t0)}, {8*j}, {v(t0)}")
        kperm(A, t1, t0, t2, t3)
        A(f"v_bfe_u32 {v(t2)}, v1, 1, 2"); A(f"v_bfe_u32 {v(t3)}, {v(t0)}, 1, 2"); A(f"v_xor_b32 {v(t2)}, {v(t2)}, {v(t3)}")
        A(f"v_and_b32 {v(t3)}, 1, v1"); A(f"v_lshl_or_b32 {v(t2)}, {v(t2)}, 1, {v(t3)}")
        A(f"v_mul_u32_u24 {v(t1)}, 1280, {v(t1)}"); A(f"v_lshl_add_u32 {v(PAD+j)}, {v(t2)}, 4, {v(t1)}")
    A("s_lshl_b32 s80, s2, 1"); A("s_add_u32 s80, s80, s26")
    A("s_cmp_lt_u32 s2, 240"); A("s_cselect_b32 s90, 2, 0")
    A("s_and_b32 s53, s2, 1"); A("s_add_u32 s53, s53, 2"); A("s_cmp_eq_u32 s53, s26"); A("s_cselect_b32 s91, 1, 0")
    A("s_cmp_lt_u32 s2, 200"); A("s_cselect_b32 s91, s91, 0")
    A("s_cmp_lt_u32 s26, 2"); A("s_cselect_b32 s90, s90, s91"); A("s_cselect_b32 s80, s80, s2")
    A(f"s_cselect_b64 {s(SP,2)}, s[16:17], s[8:9]"); A("s_cselect_b32 s86, 12, 5"); A(f"s_mov_b32 s85, {WS_WO}"); A(f"s_cselect_b32 s85, {WS_W2}, s85")
    A(f"s_mov_b32 {s(SP+2)}, {640*1280}"); A(f"s_cselect_b32 {s(SP+2)}, {1536*1280}, {s(SP+2)}")
    A(f"s_and_b32 {s(SP+1)}, {s(SP+1)}, 0xffff"); A(f"s_mov_b32 {s(SP+3)}, 0x00020000")
    A("s_mul_i32 s78, s80, 6554"); A("s_lshr_b32 s78, s78, 16"); A("s_mul_i32 s79, s78, 10"); A("s_sub_u32 s79, s80, s79")
    A("s_mul_i32 s87, s78, 40960"); A("s_lshl_b32 s88, s79, 7"); A("s_add_u32 s87, s87, s88")
    A("s_lshl_b32 s81, s26, 12"); A(f"s_add_u32 s81, s81, {L_PACK}")
    A("s_cmp_eq_u32 s90, 0"); A("s_cselect_b32 s87, 0x7fffffff, s87")
    op_txt = [[f"s_add_u32 m0, s81, {j*1024}", "s_nop 0", f"buffer_load_dwordx4 {v(PAD+j)}, {s(SP,4)}, s87 offen lds"] for j in range(4)]
    A("s_cmp_lg_u32 s90, 1"); A("s_cbranch_scc1 E_no")
    for x in op_txt:
        for y in x: A(y)
    A("s_mov_b32 s87, 0x7fffffff")
    A.label("E_no")
    op_loads = [(("op",), x) for x in op_txt]
    XQ = []
    for c in range(NXR): XQ += x_ops(c)
    for x in take(XQ, PF["x0"]): vm.issue(*x)
    stamp(A, 26)
    sDST = [16, 17, 89, 91]
    A("s_mul_i32 s84, s86, 20"); A("s_mul_i32 s88, s78, 5")
    for j in range(4):
        A("s_lshl_b32 s60, s79, 2"); A(f"s_add_u32 s60, s60, {j}"); A("s_mul_i32 s61, s60, 52"); A("s_lshr_b32 s61, s61, 8")
        A("s_mul_i32 s62, s61, 5"); A("s_sub_u32 s60, s60, s62"); A("s_mul_i32 s61, s61, s84"); A("s_add_u32 s60, s60, s61"); A("s_add_u32 s60, s60, s88")
        A("s_lshl_b32 s60, s60, 10"); A(f"s_add_u32 {s(sDST[j])}, s60, s85")
    A("s_cmp_eq_u32 s90, 0")
    for j in range(4): A(f"s_cselect_b32 {s(sDST[j])}, 0x7fffffff, {s(sDST[j])}")
    A(f"v_lshrrev_b32 {v(t0)}, 4, v1"); A("s_and_b32 s60, s26, 1"); A("s_lshl_b32 s60, s60, 2"); A(f"v_add_u32 {v(t0)}, s60, {v(t0)}")
    A(f"v_bfe_u32 {v(t1)}, v1, 2, 2"); A(f"v_lshlrev_b32 {v(t2)}, 1, {v(t1)}"); A(f"v_xor_b32 {v(t2)}, {v(t2)}, {v(t0)}")
    A(f"v_lshlrev_b32 {v(t1)}, 8, {v(t1)}"); A(f"v_lshl_or_b32 {v(t1)}, {v(t2)}, 5, {v(t1)}")
    A(f"v_and_b32 {v(t2)}, 3, v1"); A(f"v_lshl_or_b32 {v(t1)}, {v(t2)}, 3, {v(t1)}")
    A("s_lshr_b32 s60, s26, 1"); A("s_lshl_b32 s61, s60, 11"); A(f"v_add_u32 {v(vUr)}, s61, {v(t1)}")
    A(f"v_and_b32 {v(t1)}, 15, v1")
    A(f"v_lshlrev_b32 {v(t2)}, 2, v0"); A(f"v_add_u32 {v(vCSa)}, {L_RSTD}, {v(t2)}"); A(f"v_add_u32 {v(33)}, {L_RSTD}, {v(vL16)}")
    A(f"v_cmp_le_u32 s[70:71], 5, {v(t0)}"); A(f"v_cmp_eq_u32 s[72:73], 7, {v(t0)}"); A(f"v_cmp_le_u32 s[74:75], 8, {v(t1)}")
    A(f"v_add_u32 {v(t2)}, -5, {v(t0)}"); A(f"v_cndmask_b32 {v(t2)}, {v(t0)}, {v(t2)}, s[70:71]")
    A(f"v_lshlrev_b32 {v(t2)}, 10, {v(t2)}"); A(f"v_lshl_or_b32 {v(vUo)}, {v(t1)}, 4, {v(t2)}")
    A("s_and_b64 s[74:75], s[74:75], s[72:73]"); A("s_not_b64 s[74:75], s[74:75]")
    A(f"s_mul_i32 s61, {s(SI)}, 5"); A("s_add_u32 s61, s61, s60")
    A(f"s_mul_i32 s62, {s(SG)}, 153600"); A(f"s_add_u32 s82, s62, {WS_WQ}")
    for r in range(4): A(f"v_mov_b32 {v(vONE+r)}, 0x{ONES:x}")
    UA = 48; UF = 52
    for r in range(3):
        A(f"s_add_u32 s62, s61, {2*r}")
        A("s_lshr_b32 s63, s62, 2"); A("s_and_b32 s62, s62, 3"); A("s_lshl_b32 s62, s62, 8")
        A("s_mul_i32 s64, s63, 5120"); A("s_add_u32 s64, s64, s62")
        A("s_lshr_b32 s65, s63, 1"); A("s_mul_i32 s65, s65, 5120"); A("s_add_u32 s65, s65, s62"); A("s_add_u32 s65, s65, 102400")
        A("s_and_b32 s63, s63, 1"); A("s_lshl_b32 s62, s63, 7"); A("s_add_u32 s62, s62, s65"); A("s_add_u32 s62, s62, 2048")
        A("s_lshl_b32 s63, s63, 11"); A("s_add_u32 s65, s65, s63")
        A(f"v_mov_b32 {v(t0)}, s64"); A(f"v_mov_b32 {v(t1)}, s65"); A(f"v_mov_b32 {v(t2)}, s62")
        A(f"v_cndmask_b32 {v(t0)}, {v(t0)}, {v(t1)}, s[70:71]"); A(f"v_cndmask_b32 {v(t0)}, {v(t0)}, {v(t2)}, s[72:73]")
        A(f"v_add_u32 {v(UA+r)}, {v(t0)}, {v(vUo)}")
    A("s_cmp_ge_u32 s26, 2"); A("s_cselect_b32 s56, 0x7fffffff, s82")
    A(f"s_lshl_b32 s62, {s(SG)}, 4"); A(f"s_add_u32 s62, s62, {s(SI)}"); A("s_lshl_b32 s55, s62, 9"); A(f"s_add_u32 s55, s55, {WS_CP}")
    A("s_lshl_b32 s97, s62, 3"); A(f"s_add_u32 s97, s97, {WS_FW}")
    A(f"v_mov_b32 {v(vNF+2)}, 0")
    stamp(A, 27)
    vm.wait(("u",)); A("s_barrier")
    stamp(A, 2)
    for r in range(3):
        for jj in range(2): lg.issue(("uf", r), f"ds_read_b64_tr_b16 {v(UF+4*r+2*jj,2)}, {v(vUr)} offset:{r*4096+jj*1024}")
    vm.issue(("non",), f"buffer_load_dwordx2 {v(vNF,2)}, {v(vNF+2)}, {s(SD,4)}, 0 offen sc1")
    A("s_mov_b64 exec, s[74:75]")
    for r in range(3):
        lg.wait(("uf", r))
        vm.issue(("ust",), f"buffer_store_dwordx4 {v(UF+4*r,4)}, {v(UA+r)}, {s(SWS,4)}, {'s56' if r == 2 else 's82'} offen sc1")
    A("s_mov_b64 exec, -1")
    for r in range(4): A(f"v_dot2_f32_bf16 {v(68+r)}, {v(UF+r)}, {v(vONE)}, 0")
    for r in range(4, 12): A(f"v_dot2c_f32_bf16 {v(68+r%4)}, {v(UF+r)}, {v(vONE)}")
    for x in take(XQ, PF["x1"]): vm.issue(*x)
    A(f"v_pk_add_f32 {v(68,2)}, {v(68,2)}, {v(70,2)}"); A(f"v_add_f32 {v(68)}, {v(68)}, {v(69)}")
    A(f"ds_write_b32 {v(vCSa)}, {v(68)}")
    A("s_waitcnt lgkmcnt(0)"); A("s_barrier")
    A("s_cmp_lg_u32 s26, 1"); A("s_cbranch_scc1 CS_skip")
    A("s_mov_b64 exec, 0xffffffff")
    A(f"ds_read_b128 {v(UF,4)}, {v(33)}"); A(f"ds_read_b128 {v(UF+4,4)}, {v(33)} offset:512"); A("s_waitcnt lgkmcnt(0)")
    for r in (0, 2): A(f"v_pk_add_f32 {v(UF+r,2)}, {v(UF+r,2)}, {v(UF+4+r,2)}")
    A(f"buffer_store_dwordx4 {v(UF,4)}, {v(vL16)}, {s(SWS,4)}, s55 offen sc1")
    A("s_mov_b64 exec, -1")
    A.label("CS_skip")
    mk = vm.mark()
    l0, l1, l2, l3, l4 = 68, 69, 70, 71, 72
    E = Emit()
    E(f"v_and_b32 {v(l0)}, 15, v1"); E(f"v_lshrrev_b32 {v(l1)}, 4, v1"); E(f"v_bfe_u32 {v(l2)}, v1, 1, 3")
    E(f"v_xor_b32 {v(l2)}, {v(l1)}, {v(l2)}"); E(f"v_lshl_add_u32 {v(l2)}, {v(l0)}, 3, {v(l2)}"); E(f"v_lshlrev_b32 {v(l2)}, 4, {v(l2)}")
    E(f"v_add_u32 {v(vXr[0])}, s59, {v(l2)}"); E(f"v_xor_b32 {v(vXr[1])}, 64, {v(vXr[0])}"); E(f"v_lshlrev_b32 {v(vSA)}, 3, {v(l0)}")
    E(f"v_lshrrev_b32 {v(l0)}, 2, v1"); E(f"v_bfe_u32 {v(l1)}, v1, 3, 2")
    E(f"v_lshlrev_b32 {v(l0)}, 7, {v(l0)}"); E(f"v_lshl_or_b32 {v(l0)}, {v(l1)}, 5, {v(l0)}")
    E(f"v_and_b32 {v(l1)}, 3, v1"); E(f"v_lshl_or_b32 {v(l0)}, {v(l1)}, 3, {v(l0)}")
    for t in range(4): E(f"v_xor_b32 {v(OPA+t)}, {t*32}, {v(l0)}"); E(f"v_add_u32 {v(OPA+t)}, s81, {v(OPA+t)}")
    E(f"v_mov_b64 {v(l2,2)}, 0"); E(f"v_mov_b64 {v(l4,2)}, 0")
    E(f"v_lshlrev_b32 {v(l0)}, 4, v0"); E(f"v_min_u32 {v(l1)}, {6384-4096}, {v(l0)}")
    E(f"v_add_u32 {v(l0)}, {L_KVN}, {v(l0)}"); E(f"v_add_u32 {v(l1)}, {L_KVN+4096}, {v(l1)}")
    E(f"ds_write_b128 {v(l0)}, {v(l2,4)}"); E(f"ds_write_b128 {v(l1)}, {v(l2,4)}")
    E(f"v_mov_b32 {v(vBa[0])}, {v(vL16)}"); E(f"v_add_u32 {v(vBa[1])}, 51200, {v(vL16)}"); E(f"v_add_u32 {v(vBa[2])}, {L_Q}, {v(vL16)}")
    E(f"s_lshl_b32 s66, {s(SG)}, 7"); E(f"s_add_u32 s66, s66, {WS_FW}")
    E(f"s_lshl_b32 s67, {s(SG)}, 2"); E("s_add_u32 s67, s67, s26"); E("s_lshl_b32 s67, s67, 11"); E(f"s_add_u32 s67, s67, {WS_CP}")
    E("s_mul_i32 s69, s26, 5120"); E("s_add_u32 s82, s82, s69")
    E(f"s_lshl_b32 s9, {s(SI)}, 4"); E(f"s_add_u32 s9, s9, {s(SG)}"); E("s_lshl_b32 s9, s9, 3"); E(f"s_add_u32 s9, s9, {WS_FP}")
    E("s_getreg_b32 s92, hwreg(HW_REG_XCC_ID, 0, 4)")
    merge(A, vm, E.l, take(XQ, PF["x1b"]))
    stamp(A, 25)
    vm.wait(("non",))
    A("s_mov_b32 s96, 0")
    A.label("N_l")
    A(f"v_readfirstlane_b32 {s(NON)}, {v(vNF)}"); A(f"v_readfirstlane_b32 {s(NON+1)}, {v(vNF+1)}")
    A(f"s_or_b32 s62, {s(NON)}, {s(NON+1)}"); A("s_cmp_lg_u32 s62, 0"); A("s_cbranch_scc1 N_d")
    A(f"buffer_load_dwordx2 {v(vNF,2)}, {v(vNF+2)}, {s(SD,4)}, 0 offen sc1"); A("s_waitcnt vmcnt(0)")
    A("s_add_u32 s96, s96, 1"); A(f"s_cmp_lt_u32 s96, {SPIN}"); A("s_cbranch_scc1 N_l")
    A.label("N_d")
    vm.wait_mark(mk)
    A("s_barrier")
    set_flag(97)
    stamp(A, 20)
    A("s_cmp_lg_u32 s90, 1"); A("s_cbranch_scc1 E_nob")
    for t in range(4):
        for jj in range(2): A(f"ds_read_b64_tr_b16 {v(vAK+4*t+2*jj,2)}, {v(OPA+t)} offset:{jj*2048}")
    for t in range(4):
        A(f"s_waitcnt lgkmcnt({6-2*t})")
        A(f"buffer_store_dwordx4 {v(vAK+4*t,4)}, {v(vL16)}, {s(SWS,4)}, {s(sDST[t])} offen sc1")
        A(f"s_mov_b32 {s(sDST[t])}, 0x7fffffff")
    A.label("E_nob")
    for x in take(XQ, PF["x2"]): vm.issue(*x)
    A(f"s_lshl_b32 s62, {s(NON+1)}, 4"); A("s_or_b32 s92, s92, s62")
    A(f"v_mov_b32 {v(t0)}, {s(NON)}"); A(f"v_mov_b32 {v(t1)}, s92")
    E = Emit()
    E(f"v_and_b32 {v(l0)}, 15, v1"); E(f"v_lshrrev_b32 {v(l1)}, 4, v1"); E("s_lshl_b32 s64, s26, 7")
    E(f"v_lshl_add_u32 {v(vSw)}, {v(l0)}, 2, s64"); E(f"v_add_u32 {v(vSw)}, {L_RSTD}, {v(vSw)}")
    E(f"v_lshl_add_u32 {v(vSr)}, {v(l1)}, 4, s64"); E(f"v_add_u32 {v(vSr)}, {L_RSTD}, {v(vSr)}")
    E(f"v_and_b32 {v(vC0)}, 0x1f0, {v(vL16)}"); E("s_lshl_b32 s64, s26, 9"); E(f"s_add_u32 s64, s64, {L_CP}"); E(f"v_add_u32 {v(vC0)}, s64, {v(vC0)}")
    E(f"v_lshlrev_b32 {v(vC1)}, 2, {v(l0)}"); E(f"v_add_u32 {v(vC1)}, {L_CP}, {v(vC1)}")
    E(f"v_lshlrev_b32 {v(vC2)}, 4, {v(l1)}"); E(f"v_add_u32 {v(vC2)}, {L_CP+320}, {v(vC2)}")
    E(f"v_and_b32 {v(l2)}, 3, v1")
    E(f"v_cmp_eq_u32 s[70:71], 1, {v(l2)}"); E(f"v_cmp_eq_u32 s[72:73], 2, {v(l2)}"); E(f"v_cmp_eq_u32 s[74:75], 3, {v(l2)}")
    E(f"v_bfe_u32 {v(l2)}, v1, 2, 2"); E(f"v_cmp_eq_u32 s[60:61], {v(l2)}, {v(l1)}")
    E(f"s_mov_b32 s93, 0x{INV640:x}")
    E(f"s_mov_b32 s78, 0x{LOG2E:x}"); E(f"s_mov_b32 s79, 0x{EPS6:x}"); E("s_mov_b32 s77, s79"); E("s_mov_b32 s76, s79")
    E(f"v_lshlrev_b32 {v(fl+2)}, 3, v0")
    E(f"s_lshl_b32 s52, {s(SI)}, 7"); E(f"s_add_u32 s52, s52, {WS_FP}"); E(f"s_mov_b32 s53, {WS_FP}")
    E(f"v_and_b32 {v(vQ7)}, 0x37f, {v(vL16)}"); E(f"v_add_u32 {v(vQ7)}, {L_Q+4096}, {v(vQ7)}")
    E(f"s_mul_i32 s65, {s(SG)}, {16*KV_STRIDE}"); E(f"s_add_u32 s65, s65, {WS_KV}")
    E(f"v_lshlrev_b32 {v(g1)}, 4, v0"); E(f"v_add_u32 {v(g1)}, s65, {v(g1)}")
    E(f"v_cmp_gt_u32 vcc, 210, v0"); E("s_mov_b64 s[10:11], vcc")
    E(f"s_mul_i32 {s(sKV)}, {s(SI)}, {KV_STRIDE}")
    E(f"v_bfe_u32 {v(l1)}, v1, 4, 1"); E(f"v_lshrrev_b32 {v(l2)}, 5, v1")
    E(f"v_lshlrev_b32 {v(l2)}, 8, {v(l2)}"); E(f"v_lshl_or_b32 {v(l2)}, {v(l0)}, 4, {v(l2)}")
    E(f"v_mul_u32_u24 {v(vOA)}, {80*256}, {v(l1)}"); E(f"v_add_u32 {v(vOA)}, {v(vOA)}, {v(l2)}")
    E(f"v_mul_u32_u24 {v(vRA)}, {192*256}, {v(l1)}"); E(f"v_add_u32 {v(vRA)}, {v(vRA)}, {v(l2)}")
    E(f"v_lshl_add_u32 {v(vHA)}, {v(l1)}, 9, {v(l2)}")
    E(f"s_lshl_b32 s64, {s(SI)}, 3"); E("s_lshl_b32 s65, s26, 1"); E("s_add_u32 s64, s64, s65")
    E(f"s_mul_i32 {s(sO)}, s64, 80"); E(f"s_mul_i32 s65, {s(SG)}, 5"); E(f"s_add_u32 {s(sO)}, {s(sO)}, s65"); E(f"s_lshl_b32 {s(sO)}, {s(sO)}, 8"); E(f"s_add_u32 {s(sO)}, {s(sO)}, {WS_O}")
    E(f"s_mul_i32 {s(sR)}, s64, 192"); E(f"s_mul_i32 s65, {s(SG)}, 12"); E(f"s_add_u32 {s(sR)}, {s(sR)}, s65"); E(f"s_lshl_b32 {s(sR)}, {s(sR)}, 8"); E(f"s_add_u32 {s(sR)}, {s(sR)}, {WS_R}")
    E(f"s_lshl_b32 s64, {s(SJ)}, 2"); E("s_add_u32 s64, s64, s26")
    E(f"s_mul_i32 {s(sH)}, s64, 80"); E(f"s_mul_i32 s65, {s(SC)}, 10"); E(f"s_add_u32 {s(sH)}, {s(sH)}, s65"); E(f"s_lshl_b32 {s(sH)}, {s(sH)}, 8"); E(f"s_add_u32 {s(sH)}, {s(sH)}, {WS_H}")
    E(f"s_lshl_b32 s65, {s(SC)}, 7"); E("s_add_u32 s64, s64, s65"); E(f"s_lshl_b32 {s(sST)}, s64, 7"); E(f"s_add_u32 {s(sST)}, {s(sST)}, {WS_ST}")
    E(f"v_mul_u32_u24 {v(l0)}, 13108, v0"); E(f"v_lshrrev_b32 {v(l0)}, 16, {v(l0)}")
    E(f"v_mul_u32_u24 {v(l1)}, 5, {v(l0)}"); E(f"v_sub_u32 {v(l1)}, v0, {v(l1)}")
    E(f"v_cmp_le_u32 vcc, 21, {v(l0)}"); E(f"v_cndmask_b32 {v(l2)}, 0, 1, vcc")
    E(f"v_mul_u32_u24 {v(l3)}, 21, {v(l2)}"); E(f"v_sub_u32 {v(l0)}, {v(l0)}, {v(l3)}")
    E(f"v_mul_u32_u24 {v(l3)}, 5, {v(l2)}"); E(f"v_add_u32 {v(l1)}, {v(l1)}, {v(l3)}")
    E(f"v_mul_u32_u24 {v(l3)}, 20, {v(l2)}"); E(f"v_add_u32 {v(l3)}, {v(l3)}, {v(l0)}")
    E(f"v_add_u32 {v(l4)}, 40, {v(l3)}"); E(f"v_cmp_eq_u32 vcc, 20, {v(l0)}"); E(f"v_cndmask_b32 {v(l4)}, {v(l4)}, 32, vcc")
    E(f"v_lshlrev_b32 {v(l3)}, 7, {v(l3)}"); E(f"v_add_u32 {v(l3)}, {L_KVN}, {v(l3)}")
    E(f"v_lshlrev_b32 {v(l2)}, 7, {v(l2)}"); E(f"v_add_u32 {v(l2)}, {L_KVD}, {v(l2)}")
    E(f"v_cndmask_b32 {v(l3)}, {v(l3)}, {v(l2)}, vcc")
    E(f"v_lshrrev_b32 {v(l0)}, 2, {v(l1)}"); E(f"v_and_b32 {v(l1)}, 3, {v(l1)}")
    E(f"v_lshrrev_b32 {v(l2)}, 1, {v(l0)}"); E(f"v_lshl_add_u32 {v(l3)}, {v(l2)}, 6, {v(l3)}")
    E(f"v_lshl_add_u32 {v(l3)}, {v(l1)}, 4, {v(l3)}")
    E(f"v_and_b32 {v(l2)}, 1, {v(l0)}"); E(f"v_lshl_add_u32 {v(g2)}, {v(l2)}, 3, {v(l3)}")
    E(f"v_lshrrev_b32 {v(l2)}, 4, {v(l4)}"); E(f"v_add_u32 {v(l2)}, -2, {v(l2)}")
    E(f"v_mul_u32_u24 {v(l3)}, 5, {v(l0)}"); E(f"v_lshrrev_b32 {v(l3)}, 1, {v(l3)}")
    E(f"v_add_u32 {v(l2)}, {v(l2)}, {v(l3)}"); E(f"v_lshlrev_b32 {v(l2)}, 10, {v(l2)}")
    E(f"v_and_b32 {v(l4)}, 15, {v(l4)}"); E(f"v_lshl_add_u32 {v(l4)}, {v(l1)}, 4, {v(l4)}")
    E(f"v_lshl_add_u32 {v(g0)}, {v(l4)}, 4, {v(l2)}"); E(f"v_add_u32 {v(g0)}, {L_KR}, {v(g0)}")
    G.valu(2, E.l)
    def stat_m(s_):
        for mt in range(2):
            G.mfma(v(vAS+4*mt,4), v(vONE,4), XF(s_,mt), "0" if s_ == 0 else None)
            G.mfma(v(vASS+4*mt,4), XF(s_,mt), XF(s_,mt), "0" if s_ == 0 else None)
    for x in take(XQ, 99): G.vmem(1, x)
    sm = 0
    for c in range(10):
        if ("x", c) not in vm.seen or any(y[0] == "vm" and y[1] == ("x", c) for y in G.q[1]): G.flush(1)
        vm.wait(("x", c))
        for sp in range(2):
            for mt in range(2): lg.issue(("xf", c), f"ds_read_b128 {XF(2*c+sp,mt)}, {v(vXr[sp])} offset:{(c%NXR)*4096+mt*2048}")
        if c >= 1:
            lg.wait(("xf", c-1))
            if c - 1 + NXR < 10:
                for x in x_ops(c-1+NXR): G.vmem(1, x)
            if c == PF["opc"]:
                for x in op_loads: G.vmem(1, x)
            if c == PF["fwc"]: G.vmem(1, (("fw",), f"buffer_load_dwordx2 {v(t4,2)}, {v(vSA)}, {s(SWS,4)}, s66 offen sc1"))
            if c - 1 < PF["smx"]: stat_m(sm); stat_m(sm+1); sm += 2
    G.flush(1)
    stamp(A, 21)
    A("s_waitcnt lgkmcnt(0)"); lg.drained()
    A("s_barrier")
    vm.wait(("fw",))
    A("s_mov_b32 s96, 0"); A("s_branch FW_c")
    A.label("FW_l")
    A(f"buffer_load_dwordx2 {v(t4,2)}, {v(vSA)}, {s(SWS,4)}, s66 offen sc1")
    A("s_waitcnt vmcnt(0)")
    A.label("FW_c")
    A(f"v_cmp_ne_u64 s[62:63], {s(NON,2)}, {v(t4,2)}")
    A("s_add_u32 s96, s96, 1")
    A("s_cmp_eq_u64 s[62:63], 0"); A("s_cbranch_scc1 FW_d")
    A(f"s_cmp_lt_u32 s96, {SPIN}"); A("s_cbranch_scc1 FW_l")
    A.label("FW_d")
    stamp(A, 22)
    def b_round(r, track=True):
        ops = []
        for j in range(5):
            pre = []
            if j == 0: pre = [f"s_add_u32 m0, s69, {r*20480}"] + ([f"s_add_u32 s82, s82, {20480-4096}"] if r else ["s_nop 0"])
            if j == 4: pre = [f"s_add_u32 m0, s69, {r*20480+4096}", "s_add_u32 s82, s82, 4096"]
            ops.append((("B", r), pre + [f"buffer_load_dwordx4 {v(vL16)}, {s(SWS,4)}, s82 offen offset:{(j%4)*1024} sc1 lds"]))
        return ops
    CP = 116
    cp_loads = run_loads(lambda k: ("cp",), lambda k: v(CP+4*k,4), 67, 2)
    QB = [x for r in range(5) for x in b_round(r)] + cp_loads
    QQ = [x for r in range(5, 7) for x in b_round(r)]
    for x in take(QB, PF["binit"]): vm.issue(*x)
    A("s_cmp_lg_u32 s26, 0"); A("s_cbranch_scc1 FP_skip")
    A("s_mov_b64 exec, 1")
    A(f"buffer_store_dwordx2 {v(t0,2)}, {v(vNF+2)}, {s(SWS,4)}, s9 offen sc1")
    A("s_mov_b64 exec, -1")
    A.label("FP_skip")
    while sm < 20: stat_m(sm); sm += 1
    G.flush()
    vm.wait(("B", 0))
    for t in range(4):
        for jj in range(2): lg.issue(("of",), f"ds_read_b64_tr_b16 {a(160+4*t+2*jj,2)}, {v(OPA+t)} offset:{jj*2048}")
    A("s_barrier")
    stamp(A, 23)
    for k in range(3):
        for mt in range(2):
            q_ = vASS + 4*mt
            G.put(2, ("i", f"v_cndmask_b32 {v(q_)}, {v(q_)}, {v(q_+1+k)}, s[{70+2*k}:{71+2*k}]"))
    E = Emit(); ln_stats2(E, [(vAS, vASS), (vAS+4, vASS+4)], [t4, t5]); G.valu(2, E.l)
    blk = [("i", "s_mov_b64 exec, s[60:61]")]
    for mt in range(2):
        blk += [("ds", ("sw",), f"ds_write_b32 {v(vSw)}, {v(vASS+4*mt)} offset:{mt*64}"), ("ds", ("sw",), f"ds_write_b32 {v(vSw)}, {v(vAS+4*mt)} offset:{512+mt*64}")]
    G.put(2, ("blk", blk + [("i", "s_mov_b64 exec, -1")]))
    G.put(2, ("lw", ("sw",), 3))
    for mt in range(2):
        G.ds(2, ("sr",), f"ds_read_b128 {v(NM+4*mt,4)}, {v(vSr)} offset:{512+mt*64}"); G.ds(2, ("sr",), f"ds_read_b128 {v(RS+4*mt,4)}, {v(vSr)} offset:{mt*64}")
        G.ds(2, ("sr",), f"ds_read_b32 {v(rl+2*mt)}, {v(vSw)} offset:{mt*64}"); G.ds(2, ("sr",), f"ds_read_b32 {v(nl+2*mt)}, {v(vSw)} offset:{512+mt*64}")
    vW1 = 214; vW1b = 192
    E = Emit()
    G.put(2, ("lw", ("sr",), 3))
    for r in range(0, 8, 2): E(f"v_pk_mul_f32 {v(RL2+r,2)}, {v(RS+r,2)}, s[78:79] op_sel_hi:[1,0]")
    for mt in range(2): E(f"v_mul_f32 {v(rl2+2*mt)}, s78, {v(rl+2*mt)}")
    G.valu(2, E.l)
    G.put(2, ("vw", ("cp",), 4))
    E = Emit()
    for r in (0, 2): E(f"v_pk_add_f32 {v(CP+r,2)}, {v(CP+r,2)}, {v(CP+4+r,2)}")
    for r in (0, 2): E(f"v_mov_b64 {v(CP+4+r,2)}, {v(CP+r,2)}")
    for r in range(4): E(f"v_permlane32_swap_b32 {v(CP+4+r)}, {v(CP+r)}")
    for r in (0, 2): E(f"v_pk_add_f32 {v(CP+r,2)}, {v(CP+r,2)}, {v(CP+4+r,2)}")
    G.valu(2, E.l)
    G.ds(2, ("csw",), f"ds_write_b128 {v(vC0)}, {v(CP,4)}")
    G2b = []
    for w in range(4):
        for t in range(5): G2b.append(("ds", ("csr",), f"ds_read_b32 {v(CSK+2*t if w == 0 else CP+5*(w-1)+t)}, {v(vC1)} offset:{w*512+t*64}"))
    G2b.append(("lw", ("csr",), 2))
    for t in range(5):
        G2b += [("i", f"v_add_f32 {v(CSK+2*t)}, {v(CSK+2*t)}, {v(CP+t)}"), ("i", f"v_add_f32 {v(CP+5+t)}, {v(CP+5+t)}, {v(CP+10+t)}")]
    for t in range(5): G2b.append(("i", f"v_add_f32 {v(CSK+2*t)}, {v(CSK+2*t)}, {v(CP+5+t)}"))
    G2q = []
    for w in range(4):
        for t in range(3): G2q.append(("ds", ("csq",), f"ds_read_b128 {v(CSQ+4*t if w == 0 else 80+12*(w-1)+4*t,4)}, {v(vC2)} offset:{w*512+t*64}"))
    E = Emit()
    E(f"s_lshl_b32 s56, {s(SC)}, 2"); E("s_add_u32 s56, s56, s26"); E("s_mul_i32 s57, s56, 61440"); E(f"s_add_u32 s57, s57, {WS_W2}")
    E("s_mul_i32 s56, s56, 25600"); E(f"s_add_u32 s56, s56, {WS_WO}")
    E(f"s_mul_i32 s80, {s(SG)}, 192"); E("s_mul_i32 s81, s26, 98304"); E("s_add_u32 s80, s80, s81"); E("s_mul_i32 s81, s26, 6144")
    E("s_lshl_b32 s64, s26, 13"); E(f"s_add_u32 s64, s64, {L_KR}"); E(f"v_add_u32 {v(33)}, s64, {v(vL16)}")
    E(f"v_and_b32 {v(34)}, 15, v1"); E(f"v_cmp_gt_u32 s[58:59], 8, {v(34)}")
    srd(E, SW, 12, 640*3072)
    for j in range(3):
        E(f"v_add_u32 {v(t2)}, {64*j}, v1"); E(f"v_mul_u32_u24 {v(t3)}, 5462, {v(t2)}"); E(f"v_lshrrev_b32 {v(t3)}, 16, {v(t3)}")
        E(f"v_mul_u32_u24 {v(t4)}, 12, {v(t3)}"); E(f"v_sub_u32 {v(t2)}, {v(t2)}, {v(t4)}")
        E(f"v_bfe_u32 {v(t4)}, {v(t3)}, 2, 1"); E(f"v_lshlrev_b32 {v(t4)}, 1, {v(t4)}"); E(f"v_xor_b32 {v(t2)}, {v(t2)}, {v(t4)}")
        E(f"v_and_b32 {v(t4)}, 12, {v(t3)}"); E(f"v_add_u32 {v(t3)}, {v(t3)}, {v(t4)}")
        E(f"v_mul_u32_u24 {v(t3)}, 3072, {v(t3)}"); E(f"v_lshl_add_u32 {v(vW1+j)}, {v(t2)}, 4, {v(t3)}"); E(f"v_add_u32 {v(vW1+3+j)}, 12288, {v(vW1+j)}")
    G.valu(2, E.l)
    late_st = [(("lst",), f"buffer_store_dwordx4 {a(160+4*t,4)}, {v(vL16)}, {s(SWS,4)}, {s(sDST[t])} offen sc1") for t in range(4)]
    def kv_rd(s_, t): return f"ds_read_b128 {v(BFr(s_%2,t),4)}, {v(vBa[s_//10])} offset:{(s_%10)*5120+t*1024}"
    for t in range(5): lg.issue(("b", 0, t), kv_rd(0, t))
    for s_ in range(20):
        if s_ % 4 == 3 and s_ < 19:
            assert ("B", s_//4+1) in vm.seen and not any(y[0] == "vm" and y[1] == ("B", s_//4+1) for y in G.q[1])
            if s_ == 15:
                while any(y[0] == "ds" and y[1] == ("csw",) for y in G.q[2]): G.force = True; G.run(G.q[2].popleft()); G.force = False
                lg.wait(("csw",))
            vm.wait(("B", s_//4+1)); A("s_barrier")
            if s_ == 15:
                for y in reversed(G2b): G.q[2].appendleft(y)
        if s_ < 19:
            for t in range(5): G.ds(0, ("b", s_+1, t), kv_rd(s_+1, t))
        for x in take(QB, 3): G.vmem(1, x)
        if not QB and s_ >= PF["bq"]:
            for x in take(QQ, 2): G.vmem(1, x)
            if not QQ and s_ == PF["ls"] - 1:
                blk = [("i", "s_cmp_ge_u32 s26, 2"), ("i", "s_cbranch_scc1 B7_skip")]
                for x in b_round(7): blk += [("i", y) for y in x[1]]
                G.put(1, ("blk", blk + [("i", "B7_skip:")]))
        if s_ >= PF["ls"]:
            for x in take(late_st, 1): G.vmem(1, x)
        if s_ == PF["fpchk"]:
            G.vmem(1, (("fp",), f"buffer_load_dwordx2 {v(fl,2)}, {v(fl+2)}, {s(SWS,4)}, s53 offen sc1"))
            G.vmem(1, (("fp",), f"buffer_load_dwordx2 {v(t0,2)}, {v(vSA)}, {s(SWS,4)}, s52 offen sc1"))
        for t in range(5):
            if t in (0, 3): lg.wait(("b", s_, 2 if t == 0 else 4))
            G.mfma(v(AK(0,t),4), XF(s_,0), v(BFr(s_%2,t),4), "0" if s_ == 0 else None)
            G.mfma(v(AK(1,t),4), XF(s_,1), v(BFr(s_%2,t),4), "0" if s_ == 0 else None, budget=1 if t in (2, 4) else 2)
    assert not QB and not QQ and not late_st
    G.flush()
    stamp(A, 3)
    PK = 36; PV = 48; KVP = 76; TM = 60
    def phi2(E, c, rs, r2, tmp, bc):
        sel2 = " op_sel_hi:[1,0]" if bc else ""; sel3 = " op_sel_hi:[1,0,1]" if bc else ""
        E(f"v_pk_mul_f32 {v(tmp,2)}, {v(c,2)}, {v(r2,2)}{sel2}")
        E(f"v_pk_fma_f32 {v(c,2)}, {v(c,2)}, {v(rs,2)}, s[76:77]{sel3}")
        E(f"v_exp_f32 {v(tmp)}, {v(tmp)} clamp"); E(f"v_exp_f32 {v(tmp+1)}, {v(tmp+1)} clamp")
        E(f"v_max_f32 {v(c)}, s79, {v(c)}"); E(f"v_max_f32 {v(c+1)}, s79, {v(c+1)}")
        E(f"v_pk_add_f32 {v(c,2)}, {v(c,2)}, {v(tmp,2)}")
    def w1_load(r, j):
        pre = [f"s_add_u32 m0, s81, {W1L(r)+j*1024}"]
        pre.append(f"s_add_u32 s80, s80, {4*98304}" if (j == 0 and r) else "s_nop 0")
        return (("w1", r), pre + [f"buffer_load_dwordx4 {v((vW1 if r < 3 else vW1b)+j)}, {s(SW,4)}, s80 offen lds"])
    W1L = lambda r: r*24576
    w1_loads = [w1_load(r, j) for r in range(5) for j in range(6)]
    E = Emit()
    for t in (2, 3, 4, 0, 1):
        for mt in range(2):
            for r in (0, 2): E(f"v_pk_fma_f32 {v(AK(mt,t)+r,2)}, {v(NM+4*mt+r,2)}, {v(CSK+2*t,2)}, {v(AK(mt,t)+r,2)} op_sel_hi:[1,0,1]")
        if t >= 2:
            for mt in range(2):
                for r in (0, 2): E(f"v_pk_mul_f32 {v(TM+4*mt+r,2)}, {v(AK(mt,t)+r,2)}, {v(RS+4*mt+r,2)}")
            for mt in range(2):
                for h in range(2): E(f"v_cvt_pk_bf16_f32 {v(PV+4*(t-2)+2*mt+h)}, {v(TM+4*mt+2*h)}, {v(TM+4*mt+2*h+1)}")
        if t <= 2:
            for mt in range(2):
                for r in (0, 2): phi2(E, AK(mt,t)+r, RS+4*mt+r, RL2+4*mt+r, TM+8+4*mt+r, False)
            for mt in range(2):
                for h in range(2): E(f"v_cvt_pk_bf16_f32 {v(PK+4*t+2*mt+h)}, {v(AK(mt,t)+2*h)}, {v(AK(mt,t)+2*h+1)}")
        if t == 2:
            for r in range(4): E(f"v_cndmask_b32 {v(PV+r)}, {v(PV+r)}, {v(vONE)}, s[58:59]")
    mkq = vm.mark()
    merge(A, vm, E.l, take(w1_loads, PF["kvE"]), every=PF["kvEv"])
    prods = [(2,2),(2,3),(2,4),(0,2),(0,3),(1,2),(1,3),(1,4)]
    pidx = {(0,2):0,(0,3):1,(1,2):2,(1,3):3,(1,4):4,(2,2):5,(2,3):6,(2,4):7}
    for (ta, tb) in prods: mfma(A, v(KVP+4*pidx[(ta,tb)],4), v(PK+4*ta,4), v(PV+4*(tb-2),4), "0")
    fpc = [f"v_lshrrev_b32 {v(t2)}, 4, {v(fl+1)}", f"v_lshrrev_b32 {v(t3)}, 4, {v(t1)}",
           f"v_xor_b32 {v(t2)}, {s(NON+1)}, {v(t2)}", f"v_xor_b32 {v(t3)}, {s(NON+1)}, {v(t3)}",
           f"v_xor_b32 {v(t4)}, {s(NON)}, {v(fl)}", f"v_xor_b32 {v(t5)}, {s(NON)}, {v(t0)}",
           f"v_or3_b32 {v(t2)}, {v(t2)}, {v(t3)}, {v(t4)}", f"v_or_b32 {v(t2)}, {v(t2)}, {v(t5)}"]
    vm.wait_mark(mkq)
    A("s_mov_b32 s96, 0")
    for (ta, tb) in prods: A(f"ds_write_b128 {v(33)}, {v(KVP+4*pidx[(ta,tb)],4)} offset:{pidx[(ta,tb)]*1024}")
    A.label("FP_l")
    for x in fpc: A(x)
    A(f"v_cmp_ne_u32 vcc, 0, {v(t2)}")
    A("s_add_u32 s96, s96, 1")
    A("s_cbranch_vccz FP_d")
    A(f"buffer_load_dwordx2 {v(fl,2)}, {v(fl+2)}, {s(SWS,4)}, s53 offen sc1")
    A(f"buffer_load_dwordx2 {v(t0,2)}, {v(vSA)}, {s(SWS,4)}, s52 offen sc1"); A("s_waitcnt vmcnt(0)")
    A(f"s_cmp_lt_u32 s96, {SPIN}"); A("s_cbranch_scc1 FP_l")
    A.label("FP_d")
    A(f"v_cmp_ne_u32 vcc, s92, {v(t1)}")
    A("s_lshl_b32 s97, s2, 3"); A(f"s_add_u32 s97, s97, {WS_FL}")
    A("s_waitcnt lgkmcnt(0)"); A("s_barrier")
    for w in range(4): A(f"ds_read_b128 {v(KVP+4*w,4)}, {v(g0)} offset:{w*8192}")
    def q_rd(s_, t):
        if t < 2: return f"ds_read_b128 {v(BFr(s_%2,t),4)}, {v(vBa[2])} offset:{(s_//2)*5120+((s_%2)*2+t)*1024}"
        return f"ds_read_b128 {v(BFr(s_%2,t),4)}, {v(vQ7)} offset:{(s_//2)*5120+(s_%2)*128}"
    lg.drained()
    for t in range(3): lg.issue(("q", 0, t), q_rd(0, t))
    A("s_cmp_eq_u64 vcc, 0")
    if OPT["slow"]: A("s_cmp_eq_u32 s26, 99")
    A(f"s_cselect_b32 {s(sMODE)}, 1, 0")
    A("s_waitcnt lgkmcnt(3)")
    for r in (0, 2):
        A(f"v_pk_add_f32 {v(KVP+r,2)}, {v(KVP+r,2)}, {v(KVP+4+r,2)}"); A(f"v_pk_add_f32 {v(KVP+8+r,2)}, {v(KVP+8+r,2)}, {v(KVP+12+r,2)}")
    for r in (0, 2): A(f"v_pk_add_f32 {v(KVP+r,2)}, {v(KVP+r,2)}, {v(KVP+8+r,2)}")
    A("s_mov_b64 exec, s[10:11]")
    vm.issue(("kvst",), f"buffer_store_dwordx4 {v(KVP,4)}, {v(g1)}, {s(SWS,4)}, {s(sKV)} offen sc1")
    A("s_mov_b64 exec, -1")
    set_flag(97)
    stamp(A, 4)
    WOF = lambda k: 160 + 4*k if k < 24 else 0
    wo_loads = run_loads(lambda k: ("wo",), lambda k: a(WOF(k),4), 56, 25)
    w2_loads = run_loads(lambda k: ("w2", k), lambda k: a(4+4*k,4), 57, 60)
    E = Emit()
    A(f"s_lshl_b32 s66, {s(SG)}, 7"); A(f"s_add_u32 s66, s66, {WS_FKV}"); A(f"s_lshl_b32 s97, {s(SI)}, 3"); A("s_add_u32 s97, s97, s66")
    A(f"s_mov_b32 s53, {WS_FL}")
    E(f"s_lshl_b32 s62, {s(SJ)}, 6"); E("s_mul_i32 s62, s62, 1280"); E(f"s_mul_i32 s64, {s(SC)}, 160"); E("s_add_u32 s58, s62, s64")
    for n in range(3):
        E(f"v_add_u32 {v(t2)}, {256*n}, v0")
        E(f"v_mul_u32_u24 {v(t3)}, 6554, {v(t2)}"); E(f"v_lshrrev_b32 {v(t3)}, 16, {v(t3)}")
        E(f"v_mul_u32_u24 {v(xa+n)}, 1120, {v(t3)}"); E(f"v_lshl_add_u32 {v(xa+n)}, {v(t2)}, 4, {v(xa+n)}")
    G.valu(2, E.l)
    G.put(2, ("blk", [("i", "s_cmp_ge_u32 s26, 2"), ("i", "s_cselect_b32 s59, 0x7fffffff, s58")]))
    E = Emit()
    E(f"s_add_u32 s60, s83, {L_XT}")
    vKN, vKD = 16, 17
    E(f"v_and_b32 {v(t2)}, 15, v1"); E(f"v_lshrrev_b32 {v(t3)}, 4, v1"); E(f"v_lshlrev_b32 {v(t3)}, 4, {v(t3)}")
    E(f"v_lshl_add_u32 {v(vKN)}, {v(t2)}, 7, {v(t3)}"); E(f"v_add_u32 {v(vKN)}, {L_KVN}, {v(vKN)}")
    E(f"v_add_u32 {v(vKD)}, {L_KVD}, {v(t3)}")
    E(f"v_cmp_le_u32 vcc, 4, {v(t2)}"); E(f"v_add_u32 {v(vKD+2)}, 128, {v(vKD)}")
    E(f"v_cndmask_b32 {v(vKD+1)}, {v(vKD)}, {v(vKD+2)}, vcc")
    G.valu(2, E.l)
    xt_loads = [(("xt",), [f"s_add_u32 m0, s60, {n*4096}", "s_nop 0", f"buffer_load_dwordx4 {v(xa+n)}, {s(SX,4)}, {'s59' if n == 2 else 's58'} offen lds"]) for n in range(3)]
    QW = take(wo_loads, 24)
    Q1 = take(w1_loads, 18 - PF["kvE"])
    for y in G2q: G.put(2, y)
    G.put(2, ("lw", ("csq",), 2))
    E = Emit()
    for r in range(0, 12, 2):
        E(f"v_pk_add_f32 {v(CSQ+r,2)}, {v(CSQ+r,2)}, {v(80+r,2)}"); E(f"v_pk_add_f32 {v(92+r,2)}, {v(92+r,2)}, {v(104+r,2)}")
    for r in range(0, 12, 2): E(f"v_pk_add_f32 {v(CSQ+r,2)}, {v(CSQ+r,2)}, {v(92+r,2)}")
    G.valu(2, E.l)
    for s_ in range(20):
        if s_ == PF["kvf"]:
            vm.wait(("kvst",)); A("s_barrier"); set_flag(97)
        if s_ < 19:
            for t in range(3): G.ds(0, ("q", s_+1, t), q_rd(s_+1, t))
        if s_ < PF["kvc"]:
            for x in take(QW, 2 if s_ % 2 == 0 else 1): G.vmem(1, x)
            if s_ >= PF["kvf"] and s_ % 2 == 1:
                for x in take(Q1, 1 if QW else 2): G.vmem(1, x)
        if s_ == PF["kvc"]:
            G.vmem(1, (("fk",), f"buffer_load_dwordx2 {v(t4,2)}, {v(vSA)}, {s(SWS,4)}, s66 offen sc1"))
            G.vmem(1, (("fk",), f"buffer_load_dwordx2 {v(fl,2)}, {v(fl+2)}, {s(SWS,4)}, s53 offen sc1"))
        lg.wait(("q", s_, 2))
        for t in range(3):
            G.mfma(v(AQ(0,t),4), v(BFr(s_%2,t),4), XF(s_,0), "0" if s_ == 0 else None)
            G.mfma(v(AQ(1,t),4), v(BFr(s_%2,t),4), XF(s_,1), "0" if s_ == 0 else None, budget=1 if t == 2 else 2)
    G.flush()
    stamp(A, 6)
    Q1 = QW + wo_loads + Q1
    PQ = 36
    E = Emit()
    for mt in range(2):
        for t in range(3):
            for r in (0, 2): E(f"v_pk_fma_f32 {v(AQ(mt,t)+r,2)}, {v(CSQ+4*t+r,2)}, {v(nl+2*mt,2)}, {v(AQ(mt,t)+r,2)} op_sel_hi:[1,0,1]")
            for r in (0, 2): phi2(E, AQ(mt,t)+r, rl+2*mt, rl2+2*mt, TM+8+r, True)
            for h in range(2): E(f"v_cvt_pk_bf16_f32 {v(PQ+8*mt+2*t+h)}, {v(AQ(mt,t)+2*h)}, {v(AQ(mt,t)+2*h+1)}")
        E(f"v_mov_b64 {v(PQ+8*mt+6,2)}, 0")
    GAr = lambda i: 76 + 4*i if i < 10 else 156 + 4*(i-10)
    vm.wait(("fk",))
    A("s_mov_b32 s96, 0")
    A.label("KV_l")
    A(f"v_cmp_ne_u64 vcc, {s(NON,2)}, {v(t4,2)}"); A(f"v_cmp_ne_u64 s[62:63], {s(NON,2)}, {v(fl,2)}")
    A("s_add_u32 s96, s96, 1"); A("s_or_b64 vcc, vcc, s[62:63]")
    A("s_cbranch_vccz KV_done")
    A(f"buffer_load_dwordx2 {v(t4,2)}, {v(vSA)}, {s(SWS,4)}, s66 offen sc1")
    A(f"buffer_load_dwordx2 {v(fl,2)}, {v(fl+2)}, {s(SWS,4)}, s53 offen sc1"); A("s_waitcnt vmcnt(0)")
    A(f"s_cmp_lt_u32 s96, {SPIN}"); A("s_cbranch_scc1 KV_l")
    A.label("KV_done")
    stamp(A, 28)
    gl = []
    for i in range(16):
        hi, lo = (i*KV_STRIDE) & ~4095, (i*KV_STRIDE) & 4095
        gl.append((("g", i), [f"s_mov_b32 s64, {hi}", f"buffer_load_dwordx4 {v(GAr(i),4)}, {v(g1)}, {s(SWS,4)}, s64 offen offset:{lo} sc1"]))
    A("s_mov_b64 exec, s[10:11]")
    for x in take(gl, PF["gB"]): vm.issue(*x)
    A("s_mov_b64 exec, -1")
    gl = [(t, ["s_mov_b64 exec, s[10:11]"] + x + ["s_mov_b64 exec, -1"]) for t, x in gl]
    merge(A, vm, E.l, gl + take(Q1, PF["qE"]), every=PF["qEv"])
    stamp(A, 5)
    for i in range(0, 16, 2):
        vm.wait(("g", i+1))
        b, c = GAr(i), GAr(i+1)
        for r in (0, 2): A(f"v_pk_add_f32 {v(b+r,2)}, {v(b+r,2)}, {v(c+r,2)}")
        if i:
            for r in (0, 2): A(f"v_pk_add_f32 {v(GAr(0)+r,2)}, {v(GAr(0)+r,2)}, {v(b+r,2)}")
    GS = GAr(0)
    A(f"v_cvt_pk_bf16_f32 {v(GS)}, {v(GS)}, {v(GS+1)}"); A(f"v_cvt_pk_bf16_f32 {v(GS+1)}, {v(GS+2)}, {v(GS+3)}")
    A("s_mov_b64 exec, s[10:11]")
    A(f"ds_write_b64 {v(g2)}, {v(GS,2)}")
    A("s_mov_b64 exec, -1")
    AN = 100; AD = 124; ON = 156; OD = 76; OP = 56
    A("s_waitcnt lgkmcnt(0)"); A("s_barrier")
    Q1 = xt_loads + Q1 + w2_loads
    stamp(A, 7)
    for te in range(3):
        for st in range(2):
            lg.issue(("d", te), f"ds_read_b128 {v(AD+8*te+4*st,4)}, {v(vKD+te)} offset:{st*64}")
            lg.issue(("n", te), f"ds_read_b128 {v(AN+8*te+4*st,4)}, {v(vKN)} offset:{te*2048+st*64}")
    for x in take(Q1, PF["oB"]): vm.issue(*x)
    for x in take(Q1, PF["oE"]): G.vmem(1, x)
    def o_tail(te):
        L = []
        for r in range(0, 8, 2): L.append(f"v_pk_add_f32 {v(OD+8*te+r,2)}, {v(OD+8*te+r,2)}, s[76:77]")
        for r in range(8): L.append(f"v_rcp_f32 {v(OD+8*te+r)}, {v(OD+8*te+r)}")
        return L
    for te in range(3):
        lg.wait(("n", te))
        for (acc_, aop) in ((OD, AD), (ON, AN)):
            for mt in range(2): G.mfma(v(acc_+8*te+4*mt,4), v(aop+8*te,4), v(PQ+8*mt,4), "0")
            for mt in range(2): G.mfma(v(acc_+8*te+4*mt,4), v(aop+8*te+4,4), v(PQ+8*mt+4,4))
    G.flush()
    for te in range(3):
        for x in take(Q1, PF["oT"]): vm.issue(*x)
        for x in o_tail(te): A(x)
        for r in range(0, 8, 2): A(f"v_pk_mul_f32 {v(ON+8*te+r,2)}, {v(ON+8*te+r,2)}, {v(OD+8*te+r,2)}")
        for h in range(4): A(f"v_cvt_pk_bf16_f32 {v(OP+4*te+h)}, {v(ON+8*te+2*h)}, {v(ON+8*te+2*h+1)}")
        for h in range(2): A(f"v_permlane16_swap_b32 {v(OP+4*te+h)}, {v(OP+4*te+2+h)}")
        if te == 2: A("s_mov_b64 exec, 0xffffffff")
        for x in dual(f"buffer_store_dwordx4 {v(OP+4*te,4)}, {v(vOA)}, SRD, {s(sO)} offen offset:{te*512}"): vm.issue(("ost",), x)
    A("s_mov_b64 exec, -1")
    ACC = 40; AF = 120; HRES = 246
    acc = lambda m, t: ACC + (m*5+t)*4
    vRw, vRr = 10, 11
    u0, u1, u2, u3, u4 = 4, 5, 6, 7, 8
    def k_setup(E, KO, WSA, lred):
        E(f"s_mul_i32 s61, s26, {KO//4}"); E(f"s_lshl_b32 s62, {s(SJ)}, 2")
        for m in range(4):
            E(f"s_add_u32 s60, s26, {m}"); E("s_and_b32 s60, s60, 3")
            E(f"s_mul_i32 s64, s60, 15360"); E(f"s_add_u32 s64, s64, {lred+max(m-1,0)*5120}"); E(f"v_add_u32 {v(vRw+2+m if m else vRr)}, s64, {v(vL16)}")
            E("s_add_u32 s60, s60, s62"); E(f"s_mul_i32 s60, s60, {KO}"); E("s_add_u32 s60, s60, s61"); E("s_lshl_b32 s60, s60, 8")
            E(f"s_add_u32 {s(52+m)}, s60, {WSA}")
    def k_gemm(KS, bfrag, nwin, st0, cinit, side, lateb=()):
        seq = [(m, sp) for m in (1, 2, 3, 0) for sp in range(KS)]
        al = []
        for m in (1, 2, 3, 0):
            n0 = len(al)
            al += run_loads(lambda k: ("a", n0+k), lambda k: v(AF+4*((n0+k) % nwin),4), 52+m, KS)
        poll(66, 18)
        stamp(A, st0)
        nl = PF["kinit"]; pend = []
        lateb = list(lateb)
        for x in al[:nl-len(lateb)//2]: vm.issue(*x)
        if lateb:
            nl -= len(lateb)//2
            for x in lateb: vm.issue(*x)
        for n, (m, sp) in enumerate(seq):
            if n < KS:
                for t in range(5):
                    if vm.pending(("w2", sp*5+t)): vm.wait(("w2", sp*5+t))
            while nl < len(seq) and nl - nwin < n and nl - n <= PF["kfly"]:
                G.vmem(1, al[nl]); nl += 1
            if nl >= len(seq) and side: G.vmem(1, side.pop(0))
            if any(y[0] == "vm" and y[1] == ("a", n) for y in G.q[1]): G.flush(1)
            vm.wait(("a", n))
            if m == 0 and sp == 0: G.flush(2)
            for t in range(5):
                if pend and ((t == 2 and (KS < 6 or sp % 2 == 1)) ): G.ds(0, ("rw",), pend.pop(0))
                G.mfma(v(acc(m,t),4), bfrag(sp*5+t), v(AF+4*(n % nwin),4), (cinit(t) if m == 0 else "0") if sp == 0 else None, budget=1 if t == 4 else 2)
            if sp == KS-1 and m != 0:
                assert not pend
                pend = [f"ds_write_b128 {v(vRw+2+m)}, {v(acc(m,t),4)} offset:{t*1024}" for t in range(5)]
        G.flush()
    def red_read(RD):
        A("s_waitcnt lgkmcnt(0)"); A("s_barrier"); lg.drained()
        for t in range(5):
            for sl in range(3): lg.issue(("r", t), f"ds_read_b128 {v(RD+(t*3+sl)*4,4)}, {v(vRr)} offset:{sl*5120+t*1024}")
    def red_sum(RD, t, dst):
        for h in range(2):
            A(f"v_pk_add_f32 {v(acc(0,t)+2*h,2)}, {v(acc(0,t)+2*h,2)}, {v(RD+(t*3)*4+2*h,2)}")
            A(f"v_pk_add_f32 {v(RD+(t*3+1)*4+2*h,2)}, {v(RD+(t*3+1)*4+2*h,2)}, {v(RD+(t*3+2)*4+2*h,2)}")
        for h in range(2): A(f"v_pk_add_f32 {v(acc(0,t)+2*h,2)}, {v(acc(0,t)+2*h,2)}, {v(RD+(t*3+1)*4+2*h,2)}")
        for h in range(2): A(f"v_cvt_pk_bf16_f32 {v(dst+h)}, {v(acc(0,t)+2*h)}, {v(acc(0,t)+2*h+1)}")
    CSA, CSB = 212, 216; vCa, vCb = 220, 221; vONE3 = 20; XC = 224
    XCr = lambda t: 224 + 4*t if t < 3 else 200 + 4*(t-3)
    E = Emit()
    E(f"s_lshl_b32 s66, {s(SI)}, 7"); E(f"s_add_u32 s66, s66, {WS_FO}"); E(f"s_lshl_b32 s97, {s(SG)}, 3"); E("s_add_u32 s97, s97, s66")
    k_setup(E, 80, WS_O, L_RED2)
    for r in range(0, 6, 2): E(f"v_mov_b64 {v(vW1b+r,2)}, {v(vW1+r,2)}")
    E(f"v_and_b32 {v(u0)}, 15, v1"); E(f"v_lshrrev_b32 {v(u1)}, 4, v1")
    E("s_mul_i32 s62, s26, 2560"); E(f"s_add_u32 s62, s62, {L_XT}")
    E(f"v_mul_u32_u24 {v(9)}, 160, {v(u0)}"); E(f"v_lshl_add_u32 {v(9)}, {v(u1)}, 3, {v(9)}"); E(f"v_add_u32 {v(9)}, s62, {v(9)}")
    merge(A, vm, E.l, take(Q1, PF["oS"]), every=3)
    vm.wait(("ost",)); A("s_barrier")
    set_flag(97, True)
    stamp(A, 8)
    for t in range(5): lg.issue(("x",), f"ds_read_b64 {v(24+2*t,2)}, {v(9)} offset:{t*32}")
    for x in take(Q1, PF["oF"]): vm.issue(*x)
    vB = [12, 16, 17, 9]
    A(f"v_lshrrev_b32 {v(u2)}, 2, v1"); A(f"v_mul_u32_u24 {v(u2)}, 192, {v(u2)}"); A(f"v_and_b32 {v(u3)}, 3, v1"); A(f"v_lshl_add_u32 {v(u2)}, {v(u3)}, 3, {v(u2)}")
    A(f"v_and_b32 {v(u3)}, 1, {v(u1)}")
    A("s_mul_i32 s62, s26, 5"); A("s_add_u32 s62, s62, 1"); A("s_mul_i32 s62, s62, 43"); A("s_lshr_b32 s62, s62, 7")
    A(f"v_xor_b32 {v(vCa)}, s62, {v(u3)}"); A(f"v_lshl_add_u32 {v(vCa)}, {v(vCa)}, 5, {v(u2)}")
    A("s_lshr_b32 s62, s26, 1"); A("s_mul_i32 s62, s62, 3"); A("s_add_u32 s62, s62, 1"); A("s_and_b32 s63, s26, 1"); A("s_mul_i32 s63, s63, 6144")
    A(f"v_xor_b32 {v(vCb)}, s62, {v(u3)}"); A(f"v_lshl_add_u32 {v(vCb)}, {v(vCb)}, 5, {v(u2)}"); A(f"v_add_u32 {v(vCb)}, s63, {v(vCb)}")
    A(f"v_add_u32 {v(vCa+2)}, 61440, {v(vCa)}"); A(f"v_add_u32 {v(vCb+2)}, 61440, {v(vCb)}")
    A(f"v_lshlrev_b32 {v(u3)}, 5, {v(u3)}"); A(f"v_add_u32 {v(vB[0])}, {v(u2)}, {v(u3)}"); A(f"v_sub_u32 {v(vB[1])}, {v(u2)}, {v(u3)}")
    lg.wait(("x",))
    for t in range(5):
        for h in range(2):
            A(f"v_lshlrev_b32 {v(XCr(t)+2*h)}, 16, {v(24+2*t+h)}"); A(f"v_and_b32 {v(XCr(t)+2*h+1)}, 0xffff0000, {v(24+2*t+h)}")
    A(f"v_add_u32 {v(vB[2])}, 61440, {v(vB[0])}"); A(f"v_add_u32 {v(vB[3])}, 61440, {v(vB[1])}")
    assert all(x[0][0] in ("w2", "tch") for x in Q1), "loads needed by P2 must be issued before its poll"
    early_w2 = 60 - len(Q1) + PF["p2G"]
    assert early_w2 <= 39
    k_gemm(5, lambda k: a(WOF(k),4), 18, 9, lambda t: v(XCr(t),4), take(Q1, PF["p2G"]))
    stamp(A, 10)
    RD = AF
    red_read(RD)
    for x in take(Q1, PF["p2B"]): vm.issue(*x)
    P = 24; vS, vQ = 36, 37
    A(f"v_mov_b64 {v(vS,2)}, 0"); A(f"v_mov_b64 {v(P+10,2)}, 0")
    A(f"s_lshl_b32 s66, {s(SI)}, 7"); A(f"s_add_u32 s66, s66, {WS_FH}"); A(f"s_lshl_b32 s97, {s(SG)}, 3"); A("s_add_u32 s97, s97, s66")
    for t in range(5):
        lg.wait(("r", t))
        red_sum(RD, t, HRES+2*t)
        if t == 1:
            lg.wait(("r", 4)); A("s_barrier")
        if t >= 1:
            for x in take(w1_loads, PF["p2E"]): vm.issue(*x)
        if t in (1, 3, 4):
            pr_ = t//2
            A(f"v_mov_b64 {v(P+4*pr_,2)}, {v(HRES+4*pr_,2)}")
            if t < 4: A(f"v_mov_b64 {v(P+4*pr_+2,2)}, {v(HRES+4*pr_+2,2)}")
            for h in range(2): A(f"v_permlane16_swap_b32 {v(P+4*pr_+h)}, {v(P+4*pr_+2+h)}")
            if pr_ == 2: A("s_mov_b32 exec_lo, 0xffff"); A("s_mov_b32 exec_hi, 0xffff")
            for x in dual(f"buffer_store_dwordx4 {v(P+4*pr_,4)}, {v(vHA)}, SRD, {s(sH)} offen offset:{pr_*1024}"): vm.issue(("hst",), x)
    A("s_mov_b64 exec, -1")
    for r in range(2):
        A(f"v_dot2_f32_bf16 {v(32+r)}, {v(HRES+r)}, {v(vONE3)}, 0"); A(f"v_dot2_f32_bf16 {v(34+r)}, {v(HRES+r)}, {v(HRES+r)}, 0")
    for r in range(2, 10):
        A(f"v_dot2_f32_bf16 {v(32+r%2)}, {v(HRES+r)}, {v(vONE3)}, {v(32+r%2)}"); A(f"v_dot2_f32_bf16 {v(34+r%2)}, {v(HRES+r)}, {v(HRES+r)}, {v(34+r%2)}")
    A(f"v_add_f32 {v(vS)}, {v(32)}, {v(33)}"); A(f"v_add_f32 {v(vQ)}, {v(34)}, {v(35)}")
    for op in ("v_permlane16_swap_b32", "v_permlane32_swap_b32"):
        A(f"v_mov_b64 {v(34,2)}, {v(vS,2)}")
        A(f"{op} {v(34)}, {v(vS)}"); A(f"{op} {v(35)}, {v(vQ)}")
        A(f"v_pk_add_f32 {v(vS,2)}, {v(vS,2)}, {v(34,2)}")
    A("s_mov_b64 exec, 0xffff")
    for x in dual(f"buffer_store_dwordx2 {v(vS,2)}, {v(vSA)}, SRD, {s(sST)} offen"): vm.issue(("hst",), x)
    A("s_mov_b64 exec, -1")
    def cs_frs(steps):
        fr = []
        for s_ in steps:
            fr.append((CSA, vCa + 2*(s_ >= 10), (s_ % 10)*6144))
            if s_ % 2 == 0: fr.append((CSB, vCb + 2*(s_ >= 10), (s_ % 10)*6144))
        return fr
    for x in take(w1_loads, PF["hW"]) + take(Q1, PF["hA"]): G.vmem(1, x)
    seen = set(); fr = cs_frs(range(12)); TMP = 48
    def cs_rd(n, TMP, ad, off): return [f"ds_read_b64_tr_b16 {v(TMP+4*n+2*jj,2)}, {v(ad)} offset:{off+jj*3072}" for jj in range(2)]
    for n in range(6):
        for x in cs_rd(n, TMP, *fr[n][1:]): lg.issue(("c", n), x)
    for n, (d, ad, off) in enumerate(fr):
        if n + 6 < len(fr):
            for x in cs_rd(n+6, TMP, *fr[n+6][1:]): lg.issue(("c", n+6), x)
        lg.wait(("c", n))
        G.mfma(v(d,4), v(TMP+4*n,4), v(vONE3,4), None if d in seen else "0", budget=3); seen.add(d)
    G.flush()
    vm.wait(("hst",)); A("s_barrier")
    set_flag(97, True)
    stamp(A, 11)
    ACC3 = 48; BF = 96; AW = 144; NW3 = 12; BU = 200; CS = 144; vST = 24; vB1 = 36
    acc3 = lambda t, mt: ACC3 + (t*2+mt)*4
    srd(A, SD, 14, 3072)
    A(f"s_mul_i32 s59, {s(SG)}, 192"); A(f"v_lshlrev_b32 {v(u3)}, 3, {v(u1)}")
    for t in range(6): vm.issue(("b1",), f"buffer_load_dwordx2 {v(vB1+2*t,2)}, {v(u3)}, {s(SD,4)}, s59 offen offset:{t*32}")
    for x in take(Q1, PF["hS"]): vm.issue(*x)
    A(f"s_lshl_b32 s54, {s(SI)}, 3"); A("s_lshl_b32 s55, s26, 1"); A("s_add_u32 s54, s54, s55"); A("s_mul_i32 s54, s54, 20480"); A(f"s_add_u32 s54, s54, {WS_H}")
    A("s_add_u32 s55, s54, 20480")
    A(f"s_lshl_b32 s52, {s(SI)}, 7"); A("s_lshl_b32 s53, s26, 5"); A("s_add_u32 s52, s52, s53"); A("s_lshl_b32 s52, s52, 3"); A(f"s_add_u32 s52, s52, {WS_ST}")
    A("s_add_u32 s53, s52, 16384")
    A(f"v_lshlrev_b32 {v(u2)}, 15, {v(u1)}"); A(f"v_lshl_or_b32 {v(u2)}, {v(u0)}, 3, {v(u2)}")
    A("s_lshl_b32 s60, s26, 7"); A(f"s_add_u32 s60, s60, {L_CS3}")
    A(f"v_lshlrev_b32 {v(u3)}, 4, {v(u1)}"); A(f"v_add_u32 {v(u4)}, s60, {v(u3)}"); A(f"v_add_u32 {v(14)}, {L_CS3}, {v(u3)}")
    def b3(s_, t): return [f"ds_read_b64_tr_b16 {v(BF+(s_%2)*24+4*t+2*jj,2)}, {v(vB[(t%2)+2*(s_//10)])} offset:{(s_%10)*6144+t*32+jj*3072}" for jj in range(2)]
    a0 = run_loads(lambda k: ("a", 2*k), lambda k: v(AW+4*((2*k) % NW3),4), 54, 20)
    a1 = run_loads(lambda k: ("a", 2*k+1), lambda k: v(AW+4*((2*k+1) % NW3),4), 55, 20)
    al = [x for p in zip(a0, a1) for x in p]
    for t in range(6):
        for x in b3(0, t): lg.issue(("b", 0, t), x)
    poll(66, 18)
    stamp(A, 13)
    nl = PF["p3init"]
    for x in al[:nl]: vm.issue(*x)
    st_loads = [(("st",), f"buffer_load_dwordx2 {v(vST+mt*4+cc*2,2)}, {v(u2)}, {s(SWS,4)}, {s(52+cc)} offen offset:{mt*128} sc1") for mt in range(2) for cc in range(2)]
    side = w1_loads + st_loads + take(Q1, PF["p3L"])
    E = Emit()
    BUr = lambda t: 200 + 4*t if t < 3 else 224 + 4*(t-3)
    for t in range(6):
        for h in range(2):
            E(f"v_lshlrev_b32 {v(BUr(t)+2*h)}, 16, {v(vB1+2*t+h)}"); E(f"v_and_b32 {v(BUr(t)+2*h+1)}, 0xffff0000, {v(vB1+2*t+h)}")
    G.valu(2, E.l)
    G.put(2, ("vw", ("st",), 3))
    E = Emit()
    for mt in range(2): E(f"v_pk_add_f32 {v(vST+4*mt,2)}, {v(vST+4*mt,2)}, {v(vST+4*mt+2,2)}")
    for op in ("v_permlane16_swap_b32", "v_permlane32_swap_b32"):
        for mt in range(2): E(f"v_mov_b64 {v(vST+4*mt+2,2)}, {v(vST+4*mt,2)}")
        for mt in range(2):
            b = vST + 4*mt
            E(f"{op} {v(b+2)}, {v(b)}"); E(f"{op} {v(b+3)}, {v(b+1)}")
        for mt in range(2): E(f"v_pk_add_f32 {v(vST+4*mt,2)}, {v(vST+4*mt,2)}, {v(vST+4*mt+2,2)}")
    ln_stats2(E, [(vST, vST+1), (vST+4, vST+5)], [vST+2, vST+6])
    for mt in range(2):
        b = vST + 4*mt
        E(f"v_mul_f32 {v(b)}, {v(b)}, {v(b+1)}"); E(f"v_mov_b32 {v(b+2)}, {v(b+1)}")
    G.valu(2, E.l)
    fr2 = cs_frs(range(12, 20)); CT = 36
    for s_ in range(20):
        if s_ == 11:
            if any(y[0] == "vm" and y[1] == ("w1", 4) for y in G.q[1]): G.flush(1)
            assert not any(x[0] == ("w1", 4) for x in side)
            while any(y[0] == "i" and re.search(r", v(3[6-9]|4[0-7])$", y[1]) for y in G.q[2]): G.run(G.q[2].popleft())
            vm.wait(("w1", 4)); A("s_barrier")
        if s_ == 18:
            G.flush(2); lg.wait(("cw",)); A("s_barrier")
        if s_ < 19:
            for t in range(6):
                for x in b3(s_+1, t): G.ds(0, ("b", s_+1, t), x)
        while nl < 40 and nl - NW3 < 2*s_ and nl - 2*s_ <= PF["p3fly"]:
            G.vmem(1, al[nl]); nl += 1
        for x in take(side, 2 if s_ < PF["p3f"] else 1): G.vmem(1, x)
        if any(y[0] == "vm" and y[1] in (("a", 2*s_), ("a", 2*s_+1)) for y in G.q[1]): G.flush(1)
        vm.wait(("a", 2*s_+1))
        cs_now = []
        if 12 <= s_ < 16:
            cs_now = fr2[3*(s_-12):3*(s_-12)+3]
            for n, (d, ad, off) in enumerate(cs_now):
                for x in cs_rd(n, CT, ad, off): G.ds(0, ("c2", s_), x)
        if s_ == 19:
            for t in range(6): G.ds(0, ("cs",), f"ds_read_b128 {v(BF+4*t,4)}, {v(14)} offset:{[0,1,2,4,5,6][t]*64}")
            G.ds(0, ("cs",), f"ds_read_b128 {v(CSA,4)}, {v(14)} offset:{3*64}"); G.ds(0, ("cs",), f"ds_read_b128 {v(CSB,4)}, {v(14)} offset:{7*64}")
        for t in range(6):
            if t in (0, 3): lg.wait(("b", s_, t+2))
            G.mfma(v(acc3(t,0),4), v(BF+(s_%2)*24+4*t,4), v(AW+4*((2*s_) % NW3),4), "0" if s_ == 0 else None)
            G.mfma(v(acc3(t,1),4), v(BF+(s_%2)*24+4*t,4), v(AW+4*((2*s_+1) % NW3),4), "0" if s_ == 0 else None, budget=1 if t in (2, 5) else 2)
        if cs_now:
            G.flush(0); lg.wait(("c2", s_))
            for n, (d, ad, off) in enumerate(cs_now): G.mfma(v(d,4), v(CT+4*n,4), v(vONE3,4))
        if s_ == 16:
            G.put(2, ("blk", [("i", "s_mov_b32 exec_lo, 0x00010001"), ("i", "s_mov_b32 exec_hi, 0x00010001"),
                              ("ds", ("cw",), f"ds_write_b128 {v(u4)}, {v(CSA,4)}"), ("ds", ("cw",), f"ds_write_b128 {v(u4)}, {v(CSB,4)} offset:64"),
                              ("i", "s_mov_b64 exec, -1")]))
    for x in side: G.vmem(1, x)
    G.flush()
    stamp(A, 14)
    CS = BF
    lg.wait(("cs",))
    for r in (0, 2):
        A(f"v_pk_add_f32 {v(CS+4+r,2)}, {v(CS+4+r,2)}, {v(CSA+r,2)}"); A(f"v_pk_add_f32 {v(CS+16+r,2)}, {v(CS+16+r,2)}, {v(CSB+r,2)}")
    P = 144; U = 168
    side = []
    for x in take(Q1, PF["rB"]): vm.issue(*x)
    for t in range(6):
        for mt in range(2):
            b = vST + 4*mt
            for r in (0, 2): A(f"v_pk_fma_f32 {v(U+4*mt+r,2)}, {v(CS+4*t+r,2)}, {v(b,2)}, {v(BUr(t)+r,2)} op_sel_hi:[1,0,1]")
        for mt in range(2):
            b = vST + 4*mt
            for r in (0, 2): A(f"v_pk_fma_f32 {v(U+4*mt+r,2)}, {v(acc3(t,mt)+r,2)}, {v(b+2,2)}, {v(U+4*mt+r,2)} op_sel_hi:[1,0,1]")
        for r in range(8): A(f"v_max_f32 {v(U+r)}, 0, {v(U+r)}")
        for x in take(side, PF["rEn"]): vm.issue(*x)
        for r in range(0, 8, 2): A(f"v_pk_mul_f32 {v(U+r,2)}, {v(U+r,2)}, {v(U+r,2)}")
        for h in range(4): A(f"v_cvt_pk_bf16_f32 {v(P+4*t+h)}, {v(U+2*h)}, {v(U+2*h+1)}")
        for h in range(2): A(f"v_permlane16_swap_b32 {v(P+4*t+h)}, {v(P+4*t+2+h)}")
        for x in dual(f"buffer_store_dwordx4 {v(P+4*t,4)}, {v(vRA)}, SRD, {s(sR)} offen offset:{t*512}"): vm.issue(("rst",), x)
    srd(A, SD, 18, 1280); srd(A, SW, 20, 2048*1280)
    vB2 = 20
    A(f"s_mul_i32 s63, {s(SC)}, 160"); A(f"v_lshlrev_b32 {v(u3)}, 3, {v(u1)}")
    for t in range(5): vm.issue(("b2",), f"buffer_load_dwordx2 {v(vB2+2*t,2)}, {v(u3)}, {s(SD,4)}, s63 offen offset:{t*32}")
    L_OUT = 61440; OA = 30
    E = Emit()
    E(f"s_lshl_b32 s66, {s(SI)}, 7"); E(f"s_add_u32 s66, s66, {WS_FR}"); E(f"s_lshl_b32 s97, {s(SG)}, 3"); E("s_add_u32 s97, s97, s66")
    k_setup(E, 192, WS_R, 0)
    merge(A, vm, E.l, side + take(Q1, PF["rS"]))
    vm.wait(("rst",)); A("s_barrier")
    set_flag(97, True)
    stamp(A, 15)
    for x in take(Q1, PF["rF"]): vm.issue(*x)
    assert len(Q1) <= 15, len(Q1)
    A("s_mul_i32 s63, s26, 2816"); A(f"s_add_u32 s63, s63, {L_OUT}")
    A(f"v_mul_u32_u24 {v(9)}, 176, {v(u0)}"); A(f"v_lshl_add_u32 {v(9)}, {v(u1)}, 3, {v(9)}"); A(f"v_add_u32 {v(9)}, s63, {v(9)}")
    for n in range(3):
        A(f"v_add_u32 {v(u2)}, {64*n}, v1")
        A(f"v_mul_u32_u24 {v(u3)}, 6554, {v(u2)}"); A(f"v_lshrrev_b32 {v(u3)}, 16, {v(u3)}")
        A(f"v_lshlrev_b32 {v(u2)}, 4, {v(u2)}")
        A(f"v_lshl_add_u32 {v(u4)}, {v(u3)}, 4, {v(u2)}"); A(f"v_add_u32 {v(OA+n)}, s63, {v(u4)}")
        A(f"v_mul_u32_u24 {v(u3)}, 1120, {v(u3)}"); A(f"v_add_u32 {v(OA+3+n)}, {v(u3)}, {v(u2)}")
    A(f"s_lshl_b32 s58, {s(SJ)}, 6"); A("s_lshl_b32 s59, s26, 4"); A("s_add_u32 s58, s58, s59"); A("s_mul_i32 s58, s58, 1280")
    A(f"s_mul_i32 s59, {s(SC)}, 160"); A("s_add_u32 s58, s58, s59")
    HC = 216
    E = Emit()
    for t in range(5):
        for h in range(2):
            E(f"v_lshlrev_b32 {v(36)}, 16, {v(HRES+2*t+h)}"); E(f"v_and_b32 {v(37)}, 0xffff0000, {v(HRES+2*t+h)}")
            E(f"v_lshlrev_b32 {v(38)}, 16, {v(vB2+2*t+h)}"); E(f"v_and_b32 {v(39)}, 0xffff0000, {v(vB2+2*t+h)}")
            E(f"v_pk_add_f32 {v(HC+4*t+2*h,2)}, {v(36,2)}, {v(38,2)}")
    G.valu(2, E.l)
    k_gemm(12, lambda k: a(4+4*k,4), 24, 16, lambda t: v(HC+4*t,4), [], Q1)
    stamp(A, 17)
    red_read(RD)
    P = 200
    for t in range(5):
        lg.wait(("r", t))
        red_sum(RD, t, P+2*t)
        A(f"ds_write_b64 {v(9)}, {v(P+2*t,2)} offset:{t*32}")
    A("s_waitcnt lgkmcnt(0)")
    for n in range(3): A(f"ds_read_b128 {v(RD+4*n,4)}, {v(OA+n)}")
    for n in range(3):
        A(f"s_waitcnt lgkmcnt({2-n})")
        if n == 2: A("s_mov_b64 exec, 0xffffffff")
        A(f"buffer_store_dwordx4 {v(RD+4*n,4)}, {v(OA+3+n)}, {s(SW,4)}, s58 offen {os.environ.get('OUTF', '')}")
    if STAMPS:
        A("s_mov_b64 exec, -1")
        stamp(A, 18)
        A("s_waitcnt vmcnt(0)")
        stamp(A, 19)
        A("s_cmp_lg_u32 s26, 0"); A("s_cbranch_scc1 L_end")
        A("s_lshl_b32 s100, s2, 8"); A(f"s_add_u32 s100, s100, {WS_TS}")
        A("v_lshlrev_b32 v2, 2, v1")
        A(f"buffer_store_dword v3, v2, {s(SWS,4)}, s100 offen")
    A.label("L_end")
    A("s_endpgm")
    return kd(K, 512, accum=256)

def main(path, stamps=False):
    global STAMPS
    STAMPS = stamps
    A = Asm()
    kds = [gen(A)]
    L = [l.strip() if l.strip().endswith(":") else l for l in A.lines]
    X = os.environ.get("EXP", "").split(",")
    import re
    if "nob" in X: L = [l for l in L if not ("s82 offen" in l and " lds" in l)]
    if "now1" in X: L = [l for l in L if not ("s80 offen lds" in l)]
    if "noag" in X: L = [l for l in L if not ("buffer_load_dwordx4 a[" in l)]
    if "noa" in X: L = [l for l in L if not re.search(r"buffer_load_dwordx4 v\[\d+:\d+\], v2, s\[40:43\], s5[2-5]", l)]
    if "nods" in X: L = [l for l in L if not ("ds_read" in l)]
    SEC = os.environ.get("SEC")
    if SEC:
        a_, b_, pats = SEC.split(":")
        i0 = next(i for i, l in enumerate(L) if l.strip() == f"; @S{a_}") + (6 if STAMPS else 1)
        i1 = next(i for i, l in enumerate(L) if l.strip() == f"; @S{b_}")
        L = L[:i0] + [l for l in L[i0:i1] if not any(re.match(p, l.strip()) for p in pats.split("+"))] + L[i1:]
    lines, n = hazard.fix(L)
    open(path, "w").write(file_text(["; @launch grid=(256,1,1) block=(256,1,1) lds=163840"], "\n".join(lines) + "\n", kds))
    print("nops inserted:", n, "lines:", len(lines))
STAMP_NAMES = {0:"start",1:"dma issued",26:"first loads out",27:"setup done",2:"unit staged",25:"late setup 1",20:"FW set",21:"x staged",22:"FW polled",23:"B0 arrived",
               3:"KV gemm",4:"kv stored",6:"Q gemm",28:"kv flags ok",5:"Q epi done",7:"gathered",8:"o flag",9:"o polled",10:"P2 gemm",11:"h flag",13:"h polled",
               14:"P3 gemm",15:"r flag",16:"r polled",17:"P4 gemm",18:"out issued",19:"out done"}
if __name__ == "__main__":
    main(sys.argv[1] if len(sys.argv) > 1 else "v15.s")
```

```python
import sys, os
from collections import deque
sys.path.insert(0, "dev")
from asmgen import *
import hazard

PADH = int(os.environ.get("PADH", "4")); PADR = int(os.environ.get("PADR", "4")); PADX = int(os.environ.get("PADX", "0")); PADW = int(os.environ.get("PADW", "1"))
HS = 80 + PADH; RQ = 48 + PADR; RS_ = 4*RQ + PADX; W2K = 60 + PADW
WS_O  = 0
WS_H  = WS_O + 2621440
WS_R  = WS_H + 128*HS*256
WS_WO = WS_R + 128*RS_*256
WS_W2 = WS_WO + 819200
WS_KV = WS_W2 + 32*W2K*1024
KV_STRIDE = 3584
WS_ST = WS_KV + 256*KV_STRIDE
WS_FP = WS_ST + 131072
WS_FKV = WS_FP + 2048
WS_FO = WS_FKV + 2048
WS_FH = WS_FO + 2048
WS_FR = WS_FH + 2048
WS_FL = WS_FR + 2048
WS_FW = WS_FL + 2048
WS_CP = WS_FW + 2048
WS_WQ = WS_CP + 131072
WS_TS = WS_WQ + 16*153600
WS_END = WS_TS + 256*256
LOG2E = 0x3fb8aa3b; EPS6 = 0x358637bd; EPS5 = 0x3727c5ac; INV640 = 0x3acccccd; ONES = 0x3f803f80
SPIN = 40000
STAMPS = False
OPT = dict(slow=int(os.environ.get("SLOW", "0")))
PF = dict(reb=1, cw=3, w1b=11, tw1=0, cs1=9, gat=0, w1t=1, x0=6, x1=4, x1b=6, x2=8, opc=5, fwc=8, smx=8, binit=12, bq=7, ls=14, fpchk=18, kvE=12, kvEv=2, kvf=2, kvc=17,
          qE=0, qEv=5, oB=8, oE=4, oT=0, oS=8, oF=0, p2G=5, p2B=8, p2E=0, hW=0, hA=6, hS=0, p3f=6, p3L=7, rB=10, rEn=0, rS=4, rF=4,
          kinit=10, kfly=10, p3init=10, p3fly=10)
for k in list(PF):
    if os.environ.get("PF_"+k): PF[k] = int(os.environ["PF_"+k])

def stamp(A, n):
    A.comment(f"@S{n}")
    if not STAMPS: return
    A("s_memrealtime s[100:101]"); A("s_memtime s[98:99]"); A("s_waitcnt lgkmcnt(0)")
    A(f"v_writelane_b32 v3, s100, {n}"); A(f"v_writelane_b32 v3, s98, {n+32}")

class Cnt:
    def __init__(self, A, name, cap): self.A = A; self.q = []; self.name = name; self.cap = cap; self.seen = set(); self.cnt = 0
    def issue(self, tag, txt):
        for l in (txt if isinstance(txt, list) else [txt]): self.A(l)
        self.q.append(tag); self.seen.add(tag); self.cnt += 1
        assert self.name != "vmcnt" or len(self.q) <= 63
    def pending(self, tag): return tag in self.q
    def wait(self, tag):
        assert tag in self.seen, tag
        if tag not in self.q: return
        idx = len(self.q) - 1 - self.q[::-1].index(tag)
        n = len(self.q) - 1 - idx
        self.A(f"s_waitcnt {self.name}({min(n, self.cap)})")
        self.q = self.q[idx+1:] if n <= self.cap else self.q[len(self.q)-self.cap:]
    def drained(self): self.q = []
    def mark(self): return self.cnt
    def wait_mark(self, m):
        n = self.cnt - m
        self.A(f"s_waitcnt {self.name}({n})")
        if len(self.q) > n: self.q = self.q[len(self.q)-n:] if n else []

class Emit:
    def __init__(self): self.l = []
    def __call__(self, t): self.l.append(t)

TRC = int(os.environ.get('TRC', '8')); HEAVY = int(os.environ.get('HEAVY', '1')); MAXV = int(os.environ.get('MAXV', '2'))
import re
def unpk(l):
    m = re.match(r"v_mov_b64 v\[(\d+):\d+\], (.*)$", l)
    if m:
        d = int(m.group(1)); mm = re.match(r"v\[(\d+):", m.group(2))
        return [f"v_mov_b32 v{d+h}, " + (f"v{int(mm.group(1))+h}" if mm else m.group(2)) for h in range(2)]
    m = re.match(r"v_pk_(add|mul|fma)_f32 (.*?)( op_sel_hi:\[[\d,]+\])?$", l)
    if not m: return [l]
    ops = [o.strip() for o in m.group(2).split(",")]
    hi = [int(c) for c in re.findall(r"\d", m.group(3))] if m.group(3) else [1, 1, 1]
    def el(o, h): k, b = o[0], int(re.match(r".\[(\d+)", o).group(1)); return f"{k}{b+h}"
    out = []
    for h in range(2):
        srcs = [el(o, h if (h == 0 or hi[i]) else 0) for i, o in enumerate(ops[1:])]
        if m.group(1) != "fma" and srcs[1][0] == "s": srcs = srcs[::-1]
        out.append(f"v_{m.group(1)}_f32 {el(ops[0], h)}, " + ", ".join(srcs))
    return out
class Gaps:
    def __init__(self, A, vm, lg): self.A = A; self.vm = vm; self.lg = lg; self.q = [deque(), deque(), deque()]
    def put(self, pr, x): self.q[pr].append(x)
    def valu(self, pr, lines):
        for l in lines:
            for x in unpk(l): self.q[pr].append(("i", x))
    def vmem(self, pr, op):
        tag, txt = op
        txt = txt if isinstance(txt, list) else [txt]
        k = next(i for i, l in enumerate(txt) if l.startswith("buffer_"))
        for l in txt[:k]: self.q[pr].append(("i", l))
        self.q[pr].append(("vm", tag, txt[k]))
        for l in txt[k+1:]: self.q[pr].append(("i", l))
    def ds(self, pr, tag, txt): self.q[pr].append(("ds", tag, txt))
    def cost(self, x):
        if x[0] == "vm": return 2
        if x[0] == "i" and x[1].startswith(("v_pk", "v_exp", "v_rcp", "v_sqrt", "v_perm", "v_mov_b64")): return HEAVY
        if x[0] == "ds" and "write_b128" in x[2]: return 2
        if x[0] == "blk": return len(x[1])
        if x[0] in ("lw", "vw"): return 1 if (self.lg if x[0] == "lw" else self.vm).pending(x[1]) else 0
        return 1
    def ready(self, x):
        if x[0] == "vw": return x[1] in self.vm.seen and (not self.vm.pending(x[1]) or len(self.vm.q) - 1 - self.vm.q.index(x[1]) >= x[2] or self.force)
        if x[0] == "lw": return not self.lg.pending(x[1]) or len(self.lg.q) - 1 - self.lg.q.index(x[1]) >= x[2] or self.force
        return True
    force = False
    def run(self, x):
        if x[0] == "i": self.A(x[1])
        elif x[0] == "vm": self.vm.issue(x[1], x[2])
        elif x[0] == "ds": self.lg.issue(x[1], x[2])
        elif x[0] == "lw": self.lg.wait(x[1])
        elif x[0] == "vw": self.vm.wait(x[1])
        elif x[0] == "blk":
            for y in x[1]: self.run(y)
    def fill(self, budget=2):
        full = budget; nv = 0; ld = 16
        for q in self.q:
            while q and budget > 0 and self.ready(q[0]):
                c = self.cost(q[0])
                if c > budget and budget < full: break
                if q[0][0] == "ds":
                    lc = 16 if "b128" in q[0][2] else TRC
                    if lc > ld: break
                    ld -= lc
                if q[0][0] == "i" and q[0][1].startswith("v_"):
                    if nv >= MAXV: break
                    nv += 1
                self.run(q.popleft()); budget -= c
    def mfma(self, d, x, y, c=None, budget=2):
        self.A(f"v_mfma_f32_16x16x32_bf16 {d}, {x}, {y}, {d if c is None else c}")
        self.fill(budget)
    def flush(self, pr=None):
        self.force = True
        for i, q in enumerate(self.q):
            if pr is None or i == pr:
                while q: self.run(q.popleft())
        self.force = False

def merge(A, vm, stream, side, every=None):
    n = len(stream); k = len(side)
    step = every if every else max(1, n // (k + 1))
    j = 0
    for i, t in enumerate(stream):
        A(t)
        if (i + 1) % step == 0 and j < k:
            vm.issue(*side[j]); j += 1
    while j < k:
        vm.issue(*side[j]); j += 1

def mfma(A, d, x, y, c=None):
    A(f"v_mfma_f32_16x16x32_bf16 {d}, {x}, {y}, {d if c is None else c}")

def kperm(A, dst, p, t1, t2):
    A(f"v_and_b32 {v(t1)}, 12, {v(p)}"); A(f"v_lshlrev_b32 {v(t1)}, 1, {v(t1)}")
    A(f"v_lshrrev_b32 {v(t2)}, 4, {v(p)}"); A(f"v_lshlrev_b32 {v(t2)}, 2, {v(t2)}")
    A(f"v_and_b32 {v(dst)}, 3, {v(p)}")
    A(f"v_or3_b32 {v(dst)}, {v(dst)}, {v(t1)}, {v(t2)}")

def ln_stats2(E, pairs, tmps):
    def each(f):
        for k, (a_, b_) in enumerate(pairs): f(a_, b_, tmps[k])
    def rnd(r): return [f"v_cvt_pk_bf16_f32 {v(r)}, {v(r)}, {v(r)}", f"v_and_b32 {v(r)}, 0xffff0000, {v(r)}"]
    each(lambda a_, b_, t: E(f"v_mul_f32 {v(a_)}, s93, {v(a_)}"))
    each(lambda a_, b_, t: E(f"v_mul_f32 {v(t)}, {v(a_)}, {v(a_)}"))
    each(lambda a_, b_, t: E(f"v_fma_f32 {v(b_)}, {v(b_)}, s93, -{v(t)}"))
    each(lambda a_, b_, t: E(f"v_max_f32 {v(b_)}, 0, {v(b_)}"))
    each(lambda a_, b_, t: E(rnd(b_)[0])); each(lambda a_, b_, t: E(rnd(a_)[0]))
    each(lambda a_, b_, t: E(rnd(b_)[1])); each(lambda a_, b_, t: E(rnd(a_)[1]))
    each(lambda a_, b_, t: E(f"v_add_f32 {v(b_)}, 0x{EPS5:x}, {v(b_)}"))
    each(lambda a_, b_, t: E(f"v_xor_b32 {v(a_)}, 0x80000000, {v(a_)}"))
    each(lambda a_, b_, t: E(rnd(b_)[0])); each(lambda a_, b_, t: E(rnd(b_)[1]))
    each(lambda a_, b_, t: E(f"v_sqrt_f32 {v(b_)}, {v(b_)}"))
    each(lambda a_, b_, t: E(rnd(b_)[0])); each(lambda a_, b_, t: E(rnd(b_)[1]))
    each(lambda a_, b_, t: E(f"v_rcp_f32 {v(b_)}, {v(b_)}"))

def take(Q, n):
    out = Q[:n]; del Q[:n]; return out

def gen(A):
    K = NAME + "_kernel"
    kernel_begin(A, K)
    SI, SG, SJ, SC = 30, 31, 28, 29
    SX, SW, SWS, SD, SP = 32, 36, 40, 44, 48
    NON = 94
    vL16 = 2
    vm = Cnt(A, "vmcnt", 63); lg = Cnt(A, "lgkmcnt", 15); G = Gaps(A, vm, lg)
    sMODE = 84
    def dual(txt):
        k = "O" if f"{s(sO)} offen" in txt else ("R" if f"{s(sR)} offen" in txt else "H")
        return [txt.replace("SRD", s(SWS,4)) + (" sc1" if k in os.environ.get("WT", "OHR") else "")]
    vNF = 242
    def set_flag(off_sgpr, both=False):
        lab = A.newlabel("nf"); slow = A.newlabel("sl")
        A("s_cmp_lg_u32 s26, 0"); A(f"s_cbranch_scc1 {lab}")
        A("s_mov_b64 exec, 1")
        x = f"buffer_store_dwordx2 {v(vNF,2)}, {v(vNF+2)}, {s(SWS,4)}, {s(off_sgpr)} offen"
        if both:
            A(f"s_cmp_lg_u32 {s(sMODE)}, 1"); A(f"s_cbranch_scc1 {slow}")
            A(x); A("s_mov_b64 exec, -1"); A(f"s_branch {lab}")
            A.label(slow)
            A("buffer_wbl2 sc1"); A("s_waitcnt vmcnt(0)")
        A(x + " sc1")
        A("s_mov_b64 exec, -1")
        A.label(lab)
    def poll(off_sgpr, tmp):
        lab = A.newlabel("pl"); done = A.newlabel("pd")
        A("s_mov_b32 s96, 0")
        A.label(lab)
        A(f"buffer_load_dwordx2 {v(tmp,2)}, {v(vSA)}, {s(SWS,4)}, {s(off_sgpr)} offen sc1")
        A("s_waitcnt vmcnt(0)")
        A(f"v_cmp_ne_u64 vcc, {s(NON,2)}, {v(tmp,2)}")
        A("s_add_u32 s96, s96, 1")
        A(f"s_cbranch_vccz {done}")
        A(f"s_cmp_lt_u32 s96, {SPIN}"); A(f"s_cbranch_scc1 {lab}")
        A.label(done)
        vm.drained()
    def run_loads(tag, dst, sbase, n, flags="sc1"):
        ops = []
        for k in range(n):
            t = [f"buffer_load_dwordx4 {dst(k)}, {v(vL16)}, {s(SWS,4)}, {s(sbase)} offen offset:{(k%4)*1024} {flags}"]
            if k % 4 == 3 and k + 1 < n: t.append(f"s_add_u32 {s(sbase)}, {s(sbase)}, 4096")
            ops.append((tag(k), t))
        return ops

    MISC = 155648
    L_KVN = MISC; L_KVD = MISC + 6144; L_RSTD = MISC + 6400; L_CS = L_RSTD + 1024
    L_PACK = 126976; L_XR = 12288; NXR = 7; L_Q = 102400; L_XT = 139264; L_RED2 = 77824; L_CS3 = L_RSTD; L_KR = 69632; L_CP = 153600
    t0, t1, t2, t3, t4, t5 = range(24, 30)
    vXa, vXb, vU, vUr = 4, 5, 6, 7
    vXr = [8, 9]; vBa = [10, 11, 12]; vQ7 = 13; vUo = 14; vCSa = 15
    vSw, vSr, vC0, vC1, vC2 = 16, 17, 30, 31, 32
    vONE = 20
    vBF = 36; vAK = 76; vAQ = 116; vAS = 148; vASS = 214
    XF = lambda s_, mt: a((2*s_+mt)*4, 4)
    BFr = lambda b, t: vBF + (b*5+t)*4
    AK = lambda mt, t: vAK + (mt*5+t)*4
    AQ = lambda mt, t: vAQ + (mt*3+t)*4
    OPA = 222; g0, g1, g2, pr, fl, xa = 226, 227, 228, 229, 230, 233
    vOA, vHA, vRA, vSA = 236, 237, 238, 239
    sO, sH, sR, sST, sKV = 4, 5, 6, 7, 8
    RS = 156; NM = 164; RL2 = 172; CSK = 180; rl = 190; nl = 194; rl2 = 198; CSQ = 202
    A("s_cmp_ge_u32 s2, 256"); A("s_cbranch_scc1 L_end")
    if STAMPS: A("v_mov_b32 v3, 0")
    stamp(A, 0)
    A("s_load_dwordx16 s[4:19], s[0:1], 0")
    A("s_load_dwordx4 s[20:23], s[0:1], 64")
    A("s_load_dwordx2 s[24:25], s[0:1], 80")
    A(f"s_memrealtime {s(NON,2)}")
    A("v_and_b32 v1, 63, v0"); A("v_lshrrev_b32 v2, 6, v0"); A("v_readfirstlane_b32 s26, v2")
    A(f"v_lshlrev_b32 {v(vL16)}, 4, v1")
    A("s_and_b32 s27, s2, 7"); A("s_lshr_b32 s52, s2, 3")
    A(f"s_lshl_b32 {s(SI)}, s27, 1"); A("s_and_b32 s53, s52, 1"); A(f"s_add_u32 {s(SI)}, {s(SI)}, s53"); A(f"s_lshr_b32 {s(SG)}, s52, 1")
    A(f"s_lshl_b32 {s(SJ)}, {s(SI)}, 1"); A(f"s_and_b32 s53, {s(SG)}, 1"); A(f"s_add_u32 {s(SJ)}, {s(SJ)}, s53"); A(f"s_lshr_b32 {s(SC)}, {s(SG)}, 1")
    A(f"v_lshrrev_b32 {v(t0)}, 4, v1")
    A(f"v_bfe_u32 {v(t1)}, v1, 1, 3"); A(f"v_lshlrev_b32 {v(t2)}, 1, {v(t0)}"); A(f"v_xor_b32 {v(t1)}, {v(t1)}, {v(t2)}")
    A(f"v_and_b32 {v(t2)}, 1, v1"); A(f"v_lshl_or_b32 {v(t1)}, {v(t1)}, 1, {v(t2)}"); A(f"v_min_u32 {v(t1)}, 14, {v(t1)}")
    A(f"v_mov_b32 {v(t2)}, 1280"); A(f"v_mov_b32 {v(t3)}, {2560-80}")
    A(f"v_cmp_le_u32 vcc, 5, {v(t1)}"); A(f"v_cndmask_b32 {v(t2)}, {v(t2)}, {v(t3)}, vcc")
    A(f"v_mov_b32 {v(t3)}, -160")
    A(f"v_cmp_le_u32 vcc, 10, {v(t1)}"); A(f"v_cndmask_b32 {v(t2)}, {v(t2)}, {v(t3)}, vcc")
    A(f"v_lshl_add_u32 {v(t1)}, {v(t1)}, 4, {v(t2)}")
    A(f"s_mul_i32 s53, {s(SG)}, 80")
    A(f"v_mul_u32_u24 {v(t0)}, 3840, {v(t0)}"); A(f"v_add3_u32 {v(vU)}, {v(t0)}, {v(t1)}, s53")
    if PF["reb"]:
        A(f"s_mul_i32 s68, {s(SI)}, 6"); A("s_sub_u32 s68, s68, 12"); A(f"s_mul_i32 s55, {s(SI)}, 5")
        A(f"s_cmp_ge_u32 {s(SI)}, 12"); A("s_cselect_b32 s68, s55, s68"); A("s_cselect_b32 s55, 5, 6")
        A(f"s_cmp_lt_u32 {s(SI)}, 2"); A("s_cselect_b32 s55, 0, s55"); A("s_cselect_b32 s68, 0, s68")
    else:
        A(f"s_mul_i32 s68, {s(SI)}, 5"); A("s_mov_b32 s55, 5")
    A("s_lshl_b32 s56, s68, 1"); A("s_add_u32 s56, s56, s26"); A(f"s_mul_i32 s56, s56, {4*3840}")
    A(f"s_add_u32 s57, s56, {16*3840}"); A(f"s_add_u32 s58, s56, {32*3840}")
    A("s_lshr_b32 s54, s26, 1"); A("s_add_u32 s54, s54, 4"); A("s_cmp_ge_u32 s54, s55"); A("s_cselect_b32 s58, 0x7fffffff, s58"); A("s_cselect_b32 s69, 1, 0")
    A("s_cmp_eq_u32 s55, 0"); A("s_cselect_b32 s56, 0x7fffffff, s56"); A("s_cselect_b32 s57, 0x7fffffff, s57"); A("s_cselect_b32 s67, 1, 0")
    A("s_lshl_b32 s83, s26, 10")
    A(f"v_lshlrev_b32 {v(34)}, 7, v1")
    A(f"s_lshl_b32 s52, {s(SI)}, 4"); A(f"s_add_u32 s52, s52, {s(SG)}"); A("s_lshl_b32 s52, s52, 2"); A("s_add_u32 s52, s52, s26"); A("s_mul_i32 s52, s52, 2560")
    A(f"v_lshrrev_b32 {v(t0)}, 3, v1"); A(f"v_and_b32 {v(t1)}, 7, v1"); A(f"v_lshrrev_b32 {v(t2)}, 1, {v(t0)}")
    A(f"v_xor_b32 {v(t3)}, {v(t1)}, {v(t2)}"); A(f"v_xor_b32 {v(t4)}, 4, {v(t3)}")
    A(f"s_lshl_b32 s54, {s(SI)}, 7"); A("s_lshl_b32 s53, s26, 5"); A("s_add_u32 s54, s54, s53")
    A(f"v_add_u32 {v(t0)}, s54, {v(t0)}"); A(f"v_mul_u32_u24 {v(t0)}, 1280, {v(t0)}")
    A(f"v_lshl_add_u32 {v(vXa)}, {v(t3)}, 4, {v(t0)}"); A(f"v_lshl_add_u32 {v(vXb)}, {v(t4)}, 4, {v(t0)}")
    A(f"v_add_u32 {v(vXb)}, {8*1280}, {v(vXb)}")
    A(f"s_mul_i32 s59, s26, {NXR*4096}"); A(f"s_add_u32 s59, s59, {L_XR}")
    def x_ops(c):
        return [(("x", c), [f"s_add_u32 m0, s59, {(c%NXR)*4096+mt*2048+h*1024}", f"s_movk_i32 s63, {c*128+mt*20480}" if h == 0 else "s_nop 0",
                            f"buffer_load_dwordx4 {v(vXb if h else vXa)}, {s(SX,4)}, s63 offen lds"]) for mt in range(2) for h in range(2)]
    A("s_waitcnt lgkmcnt(0)")
    srd(A, SW, 6, 640*3840)
    for n in range(3): vm.issue(("u",), [f"s_add_u32 m0, s83, {n*4096}", "s_nop 0", f"buffer_load_dwordx4 {v(vU)}, {s(SW,4)}, {s(56+n)} offen lds"])
    srd(A, SX, 4, 2048*1280)
    A("s_mov_b64 exec, 0xfffff")
    vm.issue(("tch",), f"buffer_load_dword {v(35)}, {v(34)}, {s(SX,4)}, s52 offen")
    A("s_mov_b64 exec, -1")
    if PF["w1t"]:
        srd(A, SP, 12, 640*3072)
        if PF["w1t"] == 1:
            A("s_lshl_b32 s53, s2, 2"); A("s_add_u32 s53, s53, s26"); A("s_mul_i32 s53, s53, 1920"); A("s_mov_b64 exec, 0x7fff")
            vm.issue(("tch",), f"buffer_load_dword {v(35)}, {v(34)}, {s(SP,4)}, s53 offen")
        else:
            A("s_lshr_b32 s53, s2, 3"); A("s_lshl_b32 s53, s53, 2"); A("s_add_u32 s53, s53, s26"); A("s_mul_i32 s53, s53, 15360"); A("s_mov_b64 exec, 0xfffffffffffffff" if False else "s_mov_b64 exec, -1")
            vm.issue(("tch",), f"buffer_load_dword {v(35)}, {v(34)}, {s(SP,4)}, s53 offen")
            A("s_add_u32 s53, s53, 7168")
            vm.issue(("tch",), f"buffer_load_dword {v(35)}, {v(34)}, {s(SP,4)}, s53 offen")
        A("s_mov_b64 exec, -1")
    if PF["cw"]:
        lab = "CW_skip"
        A("s_lshr_b32 s53, s2, 3"); A(f"s_cmp_lg_u32 s53, {PF['cw']}"); A(f"s_cbranch_scc1 {lab}")
        A("s_getpc_b64 s[60:61]"); A.label("CW_pc"); A("s_lshl_b32 s53, s26, 13"); A(f"v_add_u32 {v(33)}, s53, {v(34)}"); A(f"v_min_u32 {v(33)}, L_end-CW_pc, {v(33)}")
        A(f"global_load_dword {v(35)}, {v(33)}, s[60:61]")
        A.label(lab)
    stamp(A, 1)
    srd(A, SD, 22, 256)
    A("s_xor_b32 s53, s2, 2"); A("s_or_b32 s53, s53, s26"); A("s_cmp_lg_u32 s53, 0"); A("s_cbranch_scc1 N_skip")
    A(f"v_mov_b32 {v(t0)}, {s(NON)}"); A(f"v_mov_b32 {v(t1)}, {s(NON+1)}"); A(f"v_mov_b32 {v(t2)}, 0")
    A("s_mov_b64 exec, 1")
    A(f"buffer_store_dwordx2 {v(t0,2)}, {v(t2)}, {s(SD,4)}, 0 offen sc1")
    A("s_mov_b64 exec, -1")
    A.label("N_skip")
    srd(A, SWS, 24, WS_END)
    PAD = vBF + 8
    for j in range(4):
        A(f"v_lshrrev_b32 {v(t0)}, 3, v1"); A(f"v_add_u32 {v(t0)}, {8*j}, {v(t0)}")
        kperm(A, t1, t0, t2, t3)
        A(f"v_bfe_u32 {v(t2)}, v1, 1, 2"); A(f"v_bfe_u32 {v(t3)}, {v(t0)}, 1, 2"); A(f"v_xor_b32 {v(t2)}, {v(t2)}, {v(t3)}")
        A(f"v_and_b32 {v(t3)}, 1, v1"); A(f"v_lshl_or_b32 {v(t2)}, {v(t2)}, 1, {v(t3)}")
        A(f"v_mul_u32_u24 {v(t1)}, 1280, {v(t1)}"); A(f"v_lshl_add_u32 {v(PAD+j)}, {v(t2)}, 4, {v(t1)}")
    A("s_lshl_b32 s80, s2, 1"); A("s_add_u32 s80, s80, s26")
    A("s_cmp_lt_u32 s2, 240"); A("s_cselect_b32 s90, 2, 0")
    A("s_and_b32 s53, s2, 1"); A("s_add_u32 s53, s53, 2"); A("s_cmp_eq_u32 s53, s26"); A("s_cselect_b32 s91, 1, 0")
    A("s_cmp_lt_u32 s2, 200"); A("s_cselect_b32 s91, s91, 0")
    A("s_cmp_lt_u32 s26, 2"); A("s_cselect_b32 s90, s90, s91"); A("s_cselect_b32 s80, s80, s2")
    A(f"s_cselect_b64 {s(SP,2)}, s[16:17], s[8:9]"); A("s_cselect_b32 s86, 12, 5"); A(f"s_mov_b32 s85, {WS_WO}"); A(f"s_cselect_b32 s85, {WS_W2}, s85")
    A(f"s_mov_b32 {s(SP+2)}, {640*1280}"); A(f"s_cselect_b32 {s(SP+2)}, {1536*1280}, {s(SP+2)}")
    A(f"s_and_b32 {s(SP+1)}, {s(SP+1)}, 0xffff"); A(f"s_mov_b32 {s(SP+3)}, 0x00020000")
    A("s_mul_i32 s78, s80, 6554"); A("s_lshr_b32 s78, s78, 16"); A("s_mul_i32 s79, s78, 10"); A("s_sub_u32 s79, s80, s79")
    A("s_mul_i32 s87, s78, 40960"); A("s_lshl_b32 s88, s79, 7"); A("s_add_u32 s87, s87, s88")
    A("s_lshl_b32 s81, s26, 12"); A(f"s_add_u32 s81, s81, {L_PACK}")
    A("s_cmp_eq_u32 s90, 0"); A("s_cselect_b32 s87, 0x7fffffff, s87")
    op_txt = [[f"s_add_u32 m0, s81, {j*1024}", "s_nop 0", f"buffer_load_dwordx4 {v(PAD+j)}, {s(SP,4)}, s87 offen lds"] for j in range(4)]
    A("s_cmp_lg_u32 s90, 1"); A("s_cbranch_scc1 E_no")
    for x in op_txt:
        for y in x: A(y)
    A("s_mov_b32 s87, 0x7fffffff")
    A.label("E_no")
    op_loads = [(("op",), x) for x in op_txt]
    XQ = []
    for c in range(NXR): XQ += x_ops(c)
    for x in take(XQ, PF["x0"]): vm.issue(*x)
    stamp(A, 26)
    sDST = [16, 17, 89, 91]
    A("s_mul_i32 s84, s86, 20"); A("s_mul_i32 s88, s78, 5")
    A("s_mul_i32 s60, s78, 43"); A("s_lshr_b32 s60, s60, 9"); A(f"s_mul_i32 s60, s60, {PADW}")
    A("s_cmp_lt_u32 s26, 2"); A("s_cselect_b32 s60, s60, 0"); A(f"s_cselect_b32 s61, {4*PADW}, 0"); A("s_add_u32 s88, s88, s60"); A("s_add_u32 s84, s84, s61")
    for j in range(4):
        A("s_lshl_b32 s60, s79, 2"); A(f"s_add_u32 s60, s60, {j}"); A("s_mul_i32 s61, s60, 52"); A("s_lshr_b32 s61, s61, 8")
        A("s_mul_i32 s62, s61, 5"); A("s_sub_u32 s60, s60, s62"); A("s_mul_i32 s61, s61, s84"); A("s_add_u32 s60, s60, s61"); A("s_add_u32 s60, s60, s88")
        A("s_lshl_b32 s60, s60, 10"); A(f"s_add_u32 {s(sDST[j])}, s60, s85")
    A("s_cmp_eq_u32 s90, 0")
    for j in range(4): A(f"s_cselect_b32 {s(sDST[j])}, 0x7fffffff, {s(sDST[j])}")
    A(f"v_lshrrev_b32 {v(t0)}, 4, v1"); A("s_and_b32 s60, s26, 1"); A("s_lshl_b32 s60, s60, 2"); A(f"v_add_u32 {v(t0)}, s60, {v(t0)}")
    A(f"v_bfe_u32 {v(t1)}, v1, 2, 2"); A(f"v_lshlrev_b32 {v(t2)}, 1, {v(t1)}"); A(f"v_xor_b32 {v(t2)}, {v(t2)}, {v(t0)}")
    A(f"v_lshlrev_b32 {v(t1)}, 8, {v(t1)}"); A(f"v_lshl_or_b32 {v(t1)}, {v(t2)}, 5, {v(t1)}")
    A(f"v_and_b32 {v(t2)}, 3, v1"); A(f"v_lshl_or_b32 {v(t1)}, {v(t2)}, 3, {v(t1)}")
    A("s_lshr_b32 s60, s26, 1"); A("s_lshl_b32 s61, s60, 11"); A(f"v_add_u32 {v(vUr)}, s61, {v(t1)}")
    A(f"v_and_b32 {v(t1)}, 15, v1")
    A(f"v_lshlrev_b32 {v(t2)}, 2, v0"); A(f"v_add_u32 {v(vCSa)}, {L_RSTD}, {v(t2)}"); A(f"v_add_u32 {v(33)}, {L_RSTD}, {v(vL16)}")
    A(f"v_cmp_le_u32 s[70:71], 5, {v(t0)}"); A(f"v_cmp_eq_u32 s[72:73], 7, {v(t0)}"); A(f"v_cmp_le_u32 s[74:75], 8, {v(t1)}")
    A(f"v_add_u32 {v(t2)}, -5, {v(t0)}"); A(f"v_cndmask_b32 {v(t2)}, {v(t0)}, {v(t2)}, s[70:71]")
    A(f"v_lshlrev_b32 {v(t2)}, 10, {v(t2)}"); A(f"v_lshl_or_b32 {v(vUo)}, {v(t1)}, 4, {v(t2)}")
    A("s_and_b64 s[74:75], s[74:75], s[72:73]"); A("s_not_b64 s[74:75], s[74:75]")
    A("s_add_u32 s61, s68, s60")
    A(f"s_mul_i32 s62, {s(SG)}, 153600"); A(f"s_add_u32 s82, s62, {WS_WQ}")
    for r in range(4): A(f"v_mov_b32 {v(vONE+r)}, 0x{ONES:x}")
    UA = 48; UF = 52
    for r in range(3):
        A(f"s_add_u32 s62, s61, {2*r}")
        A("s_lshr_b32 s63, s62, 2"); A("s_and_b32 s62, s62, 3"); A("s_lshl_b32 s62, s62, 8")
        A("s_mul_i32 s64, s63, 5120"); A("s_add_u32 s64, s64, s62")
        A("s_lshr_b32 s65, s63, 1"); A("s_mul_i32 s65, s65, 5120"); A("s_add_u32 s65, s65, s62"); A("s_add_u32 s65, s65, 102400")
        A("s_and_b32 s63, s63, 1"); A("s_lshl_b32 s62, s63, 7"); A("s_add_u32 s62, s62, s65"); A("s_add_u32 s62, s62, 2048")
        A("s_lshl_b32 s63, s63, 11"); A("s_add_u32 s65, s65, s63")
        A(f"v_mov_b32 {v(t0)}, s64"); A(f"v_mov_b32 {v(t1)}, s65"); A(f"v_mov_b32 {v(t2)}, s62")
        A(f"v_cndmask_b32 {v(t0)}, {v(t0)}, {v(t1)}, s[70:71]"); A(f"v_cndmask_b32 {v(t0)}, {v(t0)}, {v(t2)}, s[72:73]")
        A(f"v_add_u32 {v(UA+r)}, {v(t0)}, {v(vUo)}")
    A("s_cmp_eq_u32 s69, 1"); A("s_cselect_b32 s56, 0x7fffffff, s82"); A("s_cmp_eq_u32 s67, 1"); A("s_cselect_b32 s57, 0x7fffffff, s82")
    A(f"s_lshl_b32 s62, {s(SG)}, 4"); A(f"s_add_u32 s62, s62, {s(SI)}"); A("s_lshl_b32 s55, s62, 9"); A(f"s_add_u32 s55, s55, {WS_CP}")
    A("s_lshl_b32 s97, s62, 3"); A(f"s_add_u32 s97, s97, {WS_FW}")
    A(f"v_mov_b32 {v(vNF+2)}, 0")
    stamp(A, 27)
    vm.wait(("u",)); A("s_barrier")
    stamp(A, 2)
    for r in range(3):
        for jj in range(2): lg.issue(("uf", r), f"ds_read_b64_tr_b16 {v(UF+4*r+2*jj,2)}, {v(vUr)} offset:{r*4096+jj*1024}")
    vm.issue(("non",), f"buffer_load_dwordx2 {v(vNF,2)}, {v(vNF+2)}, {s(SD,4)}, 0 offen sc1")
    A("s_mov_b64 exec, s[74:75]")
    for r in range(3):
        lg.wait(("uf", r))
        vm.issue(("ust",), f"buffer_store_dwordx4 {v(UF+4*r,4)}, {v(UA+r)}, {s(SWS,4)}, {'s56' if r == 2 else 's57'} offen sc1")
    A("s_mov_b64 exec, -1")
    for r in range(4): A(f"v_dot2_f32_bf16 {v(68+r)}, {v(UF+r)}, {v(vONE)}, 0")
    for r in range(4, 12): A(f"v_dot2c_f32_bf16 {v(68+r%4)}, {v(UF+r)}, {v(vONE)}")
    for x in take(XQ, PF["x1"]): vm.issue(*x)
    A(f"v_pk_add_f32 {v(68,2)}, {v(68,2)}, {v(70,2)}"); A(f"v_add_f32 {v(68)}, {v(68)}, {v(69)}")
    A(f"ds_write_b32 {v(vCSa)}, {v(68)}")
    A("s_waitcnt lgkmcnt(0)"); A("s_barrier")
    A("s_cmp_lg_u32 s26, 1"); A("s_cbranch_scc1 CS_skip")
    A("s_mov_b64 exec, 0xffffffff")
    A(f"ds_read_b128 {v(UF,4)}, {v(33)}"); A(f"ds_read_b128 {v(UF+4,4)}, {v(33)} offset:512"); A("s_waitcnt lgkmcnt(0)")
    for r in (0, 2): A(f"v_pk_add_f32 {v(UF+r,2)}, {v(UF+r,2)}, {v(UF+4+r,2)}")
    A(f"buffer_store_dwordx4 {v(UF,4)}, {v(vL16)}, {s(SWS,4)}, s55 offen sc1")
    A("s_mov_b64 exec, -1")
    A.label("CS_skip")
    mk = vm.mark()
    l0, l1, l2, l3, l4 = 68, 69, 70, 71, 72
    E = Emit()
    E(f"v_and_b32 {v(l0)}, 15, v1"); E(f"v_lshrrev_b32 {v(l1)}, 4, v1"); E(f"v_bfe_u32 {v(l2)}, v1, 1, 3")
    E(f"v_xor_b32 {v(l2)}, {v(l1)}, {v(l2)}"); E(f"v_lshl_add_u32 {v(l2)}, {v(l0)}, 3, {v(l2)}"); E(f"v_lshlrev_b32 {v(l2)}, 4, {v(l2)}")
    E(f"v_add_u32 {v(vXr[0])}, s59, {v(l2)}"); E(f"v_xor_b32 {v(vXr[1])}, 64, {v(vXr[0])}"); E(f"v_lshlrev_b32 {v(vSA)}, 3, {v(l0)}")
    E(f"v_lshrrev_b32 {v(l0)}, 2, v1"); E(f"v_bfe_u32 {v(l1)}, v1, 3, 2")
    E(f"v_lshlrev_b32 {v(l0)}, 7, {v(l0)}"); E(f"v_lshl_or_b32 {v(l0)}, {v(l1)}, 5, {v(l0)}")
    E(f"v_and_b32 {v(l1)}, 3, v1"); E(f"v_lshl_or_b32 {v(l0)}, {v(l1)}, 3, {v(l0)}")
    for t in range(4): E(f"v_xor_b32 {v(OPA+t)}, {t*32}, {v(l0)}"); E(f"v_add_u32 {v(OPA+t)}, s81, {v(OPA+t)}")
    E(f"v_mov_b64 {v(l2,2)}, 0"); E(f"v_mov_b64 {v(l4,2)}, 0")
    E(f"v_lshlrev_b32 {v(l0)}, 4, v0"); E(f"v_min_u32 {v(l1)}, {6384-4096}, {v(l0)}")
    E(f"v_add_u32 {v(l0)}, {L_KVN}, {v(l0)}"); E(f"v_add_u32 {v(l1)}, {L_KVN+4096}, {v(l1)}")
    E(f"ds_write_b128 {v(l0)}, {v(l2,4)}"); E(f"ds_write_b128 {v(l1)}, {v(l2,4)}")
    E(f"v_mov_b32 {v(vBa[0])}, {v(vL16)}"); E(f"v_add_u32 {v(vBa[1])}, 51200, {v(vL16)}"); E(f"v_add_u32 {v(vBa[2])}, {L_Q}, {v(vL16)}")
    E(f"s_lshl_b32 s66, {s(SG)}, 7"); E(f"s_add_u32 s66, s66, {WS_FW}")
    E(f"s_lshl_b32 s67, {s(SG)}, 2"); E("s_add_u32 s67, s67, s26"); E("s_lshl_b32 s67, s67, 11"); E(f"s_add_u32 s67, s67, {WS_CP}")
    E("s_mul_i32 s69, s26, 5120"); E("s_add_u32 s82, s82, s69")
    E(f"s_lshl_b32 s9, {s(SI)}, 4"); E(f"s_add_u32 s9, s9, {s(SG)}"); E("s_lshl_b32 s9, s9, 3"); E(f"s_add_u32 s9, s9, {WS_FP}")
    E("s_getreg_b32 s92, hwreg(HW_REG_XCC_ID, 0, 4)")
    E(f"s_mul_i32 s65, {s(SG)}, {16*KV_STRIDE}"); E(f"s_add_u32 s65, s65, {WS_KV}")
    E(f"v_lshlrev_b32 {v(g1)}, 4, v0"); E(f"v_add_u32 {v(g1)}, s65, {v(g1)}")
    E(f"v_cmp_gt_u32 vcc, 210, v0"); E("s_mov_b64 s[10:11], vcc")
    E(f"s_mul_i32 {s(sKV)}, {s(SI)}, {KV_STRIDE}")
    E(f"v_mov_b64 {v(64,2)}, -1"); E(f"v_mov_b64 {v(66,2)}, -1")
    merge(A, vm, E.l, take(XQ, PF["x1b"]))
    stamp(A, 25)
    vm.wait(("non",))
    A("s_mov_b32 s96, 0")
    A.label("N_l")
    A(f"v_readfirstlane_b32 {s(NON)}, {v(vNF)}"); A(f"v_readfirstlane_b32 {s(NON+1)}, {v(vNF+1)}")
    A(f"s_or_b32 s62, {s(NON)}, {s(NON+1)}"); A("s_cmp_lg_u32 s62, 0"); A("s_cbranch_scc1 N_d")
    A(f"buffer_load_dwordx2 {v(vNF,2)}, {v(vNF+2)}, {s(SD,4)}, 0 offen sc1"); A("s_waitcnt vmcnt(0)")
    A("s_add_u32 s96, s96, 1"); A(f"s_cmp_lt_u32 s96, {SPIN}"); A("s_cbranch_scc1 N_l")
    A.label("N_d")
    vm.wait_mark(mk)
    A("s_barrier")
    set_flag(97)
    stamp(A, 20)
    A("s_mov_b64 exec, s[10:11]")
    vm.issue(("pre",), f"buffer_store_dwordx4 {v(64,4)}, {v(g1)}, {s(SWS,4)}, {s(sKV)} offen sc1")
    A("s_mov_b64 exec, -1")
    A("s_cmp_lg_u32 s90, 1"); A("s_cbranch_scc1 E_nob")
    for t in range(4):
        for jj in range(2): A(f"ds_read_b64_tr_b16 {v(vAK+4*t+2*jj,2)}, {v(OPA+t)} offset:{jj*2048}")
    for t in range(4):
        A(f"s_waitcnt lgkmcnt({6-2*t})")
        A(f"buffer_store_dwordx4 {v(vAK+4*t,4)}, {v(vL16)}, {s(SWS,4)}, {s(sDST[t])} offen sc1")
        A(f"s_mov_b32 {s(sDST[t])}, 0x7fffffff")
    A.label("E_nob")
    for x in take(XQ, PF["x2"]): vm.issue(*x)
    A(f"s_lshl_b32 s62, {s(NON+1)}, 4"); A("s_or_b32 s92, s92, s62")
    A(f"v_mov_b32 {v(t0)}, {s(NON)}"); A(f"v_mov_b32 {v(t1)}, s92")
    E = Emit()
    E(f"v_and_b32 {v(l0)}, 15, v1"); E(f"v_lshrrev_b32 {v(l1)}, 4, v1"); E("s_lshl_b32 s64, s26, 7")
    E(f"v_lshl_add_u32 {v(vSw)}, {v(l0)}, 2, s64"); E(f"v_add_u32 {v(vSw)}, {L_RSTD}, {v(vSw)}")
    E(f"v_lshl_add_u32 {v(vSr)}, {v(l1)}, 4, s64"); E(f"v_add_u32 {v(vSr)}, {L_RSTD}, {v(vSr)}")
    E(f"v_and_b32 {v(vC0)}, 0x1f0, {v(vL16)}"); E("s_lshl_b32 s64, s26, 9"); E(f"s_add_u32 s64, s64, {L_CP}"); E(f"v_add_u32 {v(vC0)}, s64, {v(vC0)}")
    E(f"v_lshlrev_b32 {v(vC1)}, 2, {v(l0)}"); E(f"v_add_u32 {v(vC1)}, {L_CP}, {v(vC1)}")
    E(f"v_lshlrev_b32 {v(vC2)}, 4, {v(l1)}"); E(f"v_add_u32 {v(vC2)}, {L_CP+320}, {v(vC2)}")
    E(f"v_and_b32 {v(l2)}, 3, v1")
    E(f"v_cmp_eq_u32 s[70:71], 1, {v(l2)}"); E(f"v_cmp_eq_u32 s[72:73], 2, {v(l2)}"); E(f"v_cmp_eq_u32 s[74:75], 3, {v(l2)}")
    E(f"v_bfe_u32 {v(l2)}, v1, 2, 2"); E(f"v_cmp_eq_u32 s[60:61], {v(l2)}, {v(l1)}")
    E(f"s_mov_b32 s93, 0x{INV640:x}")
    E(f"s_mov_b32 s78, 0x{LOG2E:x}"); E(f"s_mov_b32 s79, 0x{EPS6:x}"); E("s_mov_b32 s77, s79"); E("s_mov_b32 s76, s79")
    E(f"v_lshlrev_b32 {v(fl+2)}, 3, v0")
    E(f"s_lshl_b32 s52, {s(SI)}, 7"); E(f"s_add_u32 s52, s52, {WS_FP}"); E(f"s_mov_b32 s53, {WS_FP}")
    E(f"v_and_b32 {v(vQ7)}, 0x37f, {v(vL16)}"); E(f"v_add_u32 {v(vQ7)}, {L_Q+4096}, {v(vQ7)}")
    E(f"v_bfe_u32 {v(l1)}, v1, 4, 1"); E(f"v_lshrrev_b32 {v(l2)}, 5, v1")
    E(f"v_lshlrev_b32 {v(l2)}, 8, {v(l2)}"); E(f"v_lshl_or_b32 {v(l2)}, {v(l0)}, 4, {v(l2)}")
    E(f"v_mul_u32_u24 {v(vOA)}, {80*256}, {v(l1)}"); E(f"v_add_u32 {v(vOA)}, {v(vOA)}, {v(l2)}")
    E(f"v_mul_u32_u24 {v(vRA)}, {RS_*256}, {v(l1)}"); E(f"v_add_u32 {v(vRA)}, {v(vRA)}, {v(l2)}")
    E(f"v_lshl_add_u32 {v(vHA)}, {v(l1)}, 9, {v(l2)}")
    E(f"s_lshl_b32 s64, {s(SI)}, 3"); E("s_lshl_b32 s65, s26, 1"); E("s_add_u32 s64, s64, s65")
    E(f"s_mul_i32 {s(sO)}, s64, 80"); E(f"s_mul_i32 s65, {s(SG)}, 5"); E(f"s_add_u32 {s(sO)}, {s(sO)}, s65"); E(f"s_lshl_b32 {s(sO)}, {s(sO)}, 8"); E(f"s_add_u32 {s(sO)}, {s(sO)}, {WS_O}")
    E(f"s_mul_i32 {s(sR)}, s64, {RS_}"); E(f"s_mul_i32 s65, {s(SG)}, 12"); E(f"s_add_u32 {s(sR)}, {s(sR)}, s65"); E(f"s_lshr_b32 s65, {s(SG)}, 2"); E(f"s_mul_i32 s65, s65, {PADR}"); E(f"s_add_u32 {s(sR)}, {s(sR)}, s65"); E(f"s_lshl_b32 {s(sR)}, {s(sR)}, 8"); E(f"s_add_u32 {s(sR)}, {s(sR)}, {WS_R}")
    E(f"s_lshl_b32 s64, {s(SJ)}, 2"); E("s_add_u32 s64, s64, s26")
    E(f"s_mul_i32 {s(sH)}, s64, {HS}"); E(f"s_mul_i32 s65, {s(SC)}, 10"); E(f"s_add_u32 {s(sH)}, {s(sH)}, s65"); E(f"s_lshl_b32 {s(sH)}, {s(sH)}, 8"); E(f"s_add_u32 {s(sH)}, {s(sH)}, {WS_H}")
    E(f"s_lshl_b32 s65, {s(SC)}, 7"); E("s_add_u32 s64, s64, s65"); E(f"s_lshl_b32 {s(sST)}, s64, 7"); E(f"s_add_u32 {s(sST)}, {s(sST)}, {WS_ST}")
    E(f"v_mul_u32_u24 {v(l0)}, 13108, v0"); E(f"v_lshrrev_b32 {v(l0)}, 16, {v(l0)}")
    E(f"v_mul_u32_u24 {v(l1)}, 5, {v(l0)}"); E(f"v_sub_u32 {v(l1)}, v0, {v(l1)}")
    E(f"v_cmp_le_u32 vcc, 21, {v(l0)}"); E(f"v_cndmask_b32 {v(l2)}, 0, 1, vcc")
    E(f"v_mul_u32_u24 {v(l3)}, 21, {v(l2)}"); E(f"v_sub_u32 {v(l0)}, {v(l0)}, {v(l3)}")
    E(f"v_mul_u32_u24 {v(l3)}, 5, {v(l2)}"); E(f"v_add_u32 {v(l1)}, {v(l1)}, {v(l3)}")
    E(f"v_mul_u32_u24 {v(l3)}, 20, {v(l2)}"); E(f"v_add_u32 {v(l3)}, {v(l3)}, {v(l0)}")
    E(f"v_add_u32 {v(l4)}, 40, {v(l3)}"); E(f"v_cmp_eq_u32 vcc, 20, {v(l0)}"); E(f"v_cndmask_b32 {v(l4)}, {v(l4)}, 32, vcc")
    E(f"v_lshlrev_b32 {v(l3)}, 7, {v(l3)}"); E(f"v_add_u32 {v(l3)}, {L_KVN}, {v(l3)}")
    E(f"v_lshlrev_b32 {v(l2)}, 7, {v(l2)}"); E(f"v_add_u32 {v(l2)}, {L_KVD}, {v(l2)}")
    E(f"v_cndmask_b32 {v(l3)}, {v(l3)}, {v(l2)}, vcc")
    E(f"v_lshrrev_b32 {v(l0)}, 2, {v(l1)}"); E(f"v_and_b32 {v(l1)}, 3, {v(l1)}")
    E(f"v_lshrrev_b32 {v(l2)}, 1, {v(l0)}"); E(f"v_lshl_add_u32 {v(l3)}, {v(l2)}, 6, {v(l3)}")
    E(f"v_lshl_add_u32 {v(l3)}, {v(l1)}, 4, {v(l3)}")
    E(f"v_and_b32 {v(l2)}, 1, {v(l0)}"); E(f"v_lshl_add_u32 {v(g2)}, {v(l2)}, 3, {v(l3)}")
    E(f"v_lshrrev_b32 {v(l2)}, 4, {v(l4)}"); E(f"v_add_u32 {v(l2)}, -2, {v(l2)}")
    E(f"v_mul_u32_u24 {v(l3)}, 5, {v(l0)}"); E(f"v_lshrrev_b32 {v(l3)}, 1, {v(l3)}")
    E(f"v_add_u32 {v(l2)}, {v(l2)}, {v(l3)}"); E(f"v_lshlrev_b32 {v(l2)}, 10, {v(l2)}")
    E(f"v_and_b32 {v(l4)}, 15, {v(l4)}"); E(f"v_lshl_add_u32 {v(l4)}, {v(l1)}, 4, {v(l4)}")
    E(f"v_lshl_add_u32 {v(g0)}, {v(l4)}, 4, {v(l2)}"); E(f"v_add_u32 {v(g0)}, {L_KR}, {v(g0)}")
    G.valu(2, E.l)
    def stat_m(s_):
        for mt in range(2):
            G.mfma(v(vAS+4*mt,4), v(vONE,4), XF(s_,mt), "0" if s_ == 0 else None)
            G.mfma(v(vASS+4*mt,4), XF(s_,mt), XF(s_,mt), "0" if s_ == 0 else None)
    for x in take(XQ, 99): G.vmem(1, x)
    sm = 0
    for c in range(10):
        if ("x", c) not in vm.seen or any(y[0] == "vm" and y[1] == ("x", c) for y in G.q[1]): G.flush(1)
        vm.wait(("x", c))
        for sp in range(2):
            for mt in range(2): lg.issue(("xf", c), f"ds_read_b128 {XF(2*c+sp,mt)}, {v(vXr[sp])} offset:{(c%NXR)*4096+mt*2048}")
        if c >= 1:
            lg.wait(("xf", c-1))
            if c - 1 + NXR < 10:
                for x in x_ops(c-1+NXR): G.vmem(1, x)
            if c == PF["opc"]:
                for x in op_loads: G.vmem(1, x)
            if c == PF["fwc"]: G.vmem(1, (("fw",), f"buffer_load_dwordx2 {v(t4,2)}, {v(vSA)}, {s(SWS,4)}, s66 offen sc1"))
            if c - 1 < PF["smx"]: stat_m(sm); stat_m(sm+1); sm += 2
    G.flush(1)
    stamp(A, 21)
    A("s_waitcnt lgkmcnt(0)"); lg.drained()
    A("s_barrier")
    vm.wait(("fw",))
    A("s_mov_b32 s96, 0"); A("s_branch FW_c")
    A.label("FW_l")
    A(f"buffer_load_dwordx2 {v(t4,2)}, {v(vSA)}, {s(SWS,4)}, s66 offen sc1")
    A("s_waitcnt vmcnt(0)")
    A.label("FW_c")
    A(f"v_cmp_ne_u64 s[62:63], {s(NON,2)}, {v(t4,2)}")
    if PF["reb"]: A("s_andn2_b32 s62, s62, 3"); A("s_bfe_u32 s62, s62, 0x100000"); A("s_mov_b32 s63, 0")
    A("s_add_u32 s96, s96, 1")
    A("s_cmp_eq_u64 s[62:63], 0"); A("s_cbranch_scc1 FW_d")
    A(f"s_cmp_lt_u32 s96, {SPIN}"); A("s_cbranch_scc1 FW_l")
    A.label("FW_d")
    stamp(A, 22)
    def b_round(r, track=True):
        ops = []
        for j in range(5):
            pre = []
            if j == 0: pre = [f"s_add_u32 m0, s69, {r*20480}"] + ([f"s_add_u32 s82, s82, {20480-4096}"] if r else ["s_nop 0"])
            if j == 4: pre = [f"s_add_u32 m0, s69, {r*20480+4096}", "s_add_u32 s82, s82, 4096"]
            ops.append((("B", r), pre + [f"buffer_load_dwordx4 {v(vL16)}, {s(SWS,4)}, s82 offen offset:{(j%4)*1024} sc1 lds"]))
        return ops
    CP = 116
    cp_loads = run_loads(lambda k: ("cp",), lambda k: v(CP+4*k,4), 67, 2)
    if PF["reb"]:
        A("s_cmp_eq_u32 s26, 0"); A("s_cselect_b32 s68, 0x7fffffff, s67")
        cp_loads[0] = (cp_loads[0][0], [cp_loads[0][1][0].replace("s67", "s68")])
    QB = [x for r in range(5) for x in b_round(r)] + cp_loads
    QQ = [x for r in range(5, 7) for x in b_round(r)]
    for x in take(QB, PF["binit"]): vm.issue(*x)
    A("s_cmp_lg_u32 s26, 0"); A("s_cbranch_scc1 FP_skip")
    A("s_mov_b64 exec, 1")
    A(f"buffer_store_dwordx2 {v(t0,2)}, {v(vNF+2)}, {s(SWS,4)}, s9 offen sc1")
    A("s_mov_b64 exec, -1")
    A.label("FP_skip")
    while sm < 20: stat_m(sm); sm += 1
    G.flush()
    vm.wait(("B", 0))
    for t in range(4):
        for jj in range(2): lg.issue(("of",), f"ds_read_b64_tr_b16 {a(160+4*t+2*jj,2)}, {v(OPA+t)} offset:{jj*2048}")
    A("s_barrier")
    stamp(A, 23)
    for k in range(3):
        for mt in range(2):
            q_ = vASS + 4*mt
            G.put(2, ("i", f"v_cndmask_b32 {v(q_)}, {v(q_)}, {v(q_+1+k)}, s[{70+2*k}:{71+2*k}]"))
    E = Emit(); ln_stats2(E, [(vAS, vASS), (vAS+4, vASS+4)], [t4, t5]); G.valu(2, E.l)
    blk = [("i", "s_mov_b64 exec, s[60:61]")]
    for mt in range(2):
        blk += [("ds", ("sw",), f"ds_write_b32 {v(vSw)}, {v(vASS+4*mt)} offset:{mt*64}"), ("ds", ("sw",), f"ds_write_b32 {v(vSw)}, {v(vAS+4*mt)} offset:{512+mt*64}")]
    G.put(2, ("blk", blk + [("i", "s_mov_b64 exec, -1")]))
    G.put(2, ("lw", ("sw",), 3))
    for mt in range(2):
        G.ds(2, ("sr",), f"ds_read_b128 {v(NM+4*mt,4)}, {v(vSr)} offset:{512+mt*64}"); G.ds(2, ("sr",), f"ds_read_b128 {v(RS+4*mt,4)}, {v(vSr)} offset:{mt*64}")
        G.ds(2, ("sr",), f"ds_read_b32 {v(rl+2*mt)}, {v(vSw)} offset:{mt*64}"); G.ds(2, ("sr",), f"ds_read_b32 {v(nl+2*mt)}, {v(vSw)} offset:{512+mt*64}")
    vW1 = 214; vW1b = 192
    E = Emit()
    G.put(2, ("lw", ("sr",), 3))
    for r in range(0, 8, 2): E(f"v_pk_mul_f32 {v(RL2+r,2)}, {v(RS+r,2)}, s[78:79] op_sel_hi:[1,0]")
    for mt in range(2): E(f"v_mul_f32 {v(rl2+2*mt)}, s78, {v(rl+2*mt)}")
    G.valu(2, E.l)
    G.put(2, ("vw", ("cp",), 4))
    E = Emit()
    for r in (0, 2): E(f"v_pk_add_f32 {v(CP+r,2)}, {v(CP+r,2)}, {v(CP+4+r,2)}")
    for r in (0, 2): E(f"v_mov_b64 {v(CP+4+r,2)}, {v(CP+r,2)}")
    for r in range(4): E(f"v_permlane32_swap_b32 {v(CP+4+r)}, {v(CP+r)}")
    for r in (0, 2): E(f"v_pk_add_f32 {v(CP+r,2)}, {v(CP+r,2)}, {v(CP+4+r,2)}")
    G.valu(2, E.l)
    G.ds(2, ("csw",), f"ds_write_b128 {v(vC0)}, {v(CP,4)}")
    G2b = []
    for w in range(4):
        for t in range(5): G2b.append(("ds", ("csr",), f"ds_read_b32 {v(CSK+2*t if w == 0 else CP+5*(w-1)+t)}, {v(vC1)} offset:{w*512+t*64}"))
    G2b.append(("lw", ("csr",), 2))
    for t in range(5):
        G2b += [("i", f"v_add_f32 {v(CSK+2*t)}, {v(CSK+2*t)}, {v(CP+t)}"), ("i", f"v_add_f32 {v(CP+5+t)}, {v(CP+5+t)}, {v(CP+10+t)}")]
    for t in range(5): G2b.append(("i", f"v_add_f32 {v(CSK+2*t)}, {v(CSK+2*t)}, {v(CP+5+t)}"))
    G2q = []
    for w in range(4):
        for t in range(3): G2q.append(("ds", ("csq",), f"ds_read_b128 {v(CSQ+4*t if w == 0 else 80+12*(w-1)+4*t,4)}, {v(vC2)} offset:{w*512+t*64}"))
    E = Emit()
    E(f"s_lshl_b32 s56, {s(SC)}, 2"); E("s_add_u32 s56, s56, s26"); E(f"s_mul_i32 s57, s56, {W2K*1024}"); E(f"s_add_u32 s57, s57, {WS_W2}")
    E("s_mul_i32 s56, s56, 25600"); E(f"s_add_u32 s56, s56, {WS_WO}")
    E(f"s_mul_i32 s80, {s(SG)}, 192"); E("s_mul_i32 s81, s26, 98304"); E("s_add_u32 s80, s80, s81"); E("s_mul_i32 s81, s26, 6144")
    E("s_lshl_b32 s64, s26, 13"); E(f"s_add_u32 s64, s64, {L_KR}"); E(f"v_add_u32 {v(33)}, s64, {v(vL16)}")
    E(f"v_and_b32 {v(34)}, 15, v1"); E(f"v_cmp_gt_u32 s[58:59], 8, {v(34)}")
    srd(E, SW, 12, 640*3072)
    for j in range(3):
        E(f"v_add_u32 {v(t2)}, {64*j}, v1"); E(f"v_mul_u32_u24 {v(t3)}, 5462, {v(t2)}"); E(f"v_lshrrev_b32 {v(t3)}, 16, {v(t3)}")
        E(f"v_mul_u32_u24 {v(t4)}, 12, {v(t3)}"); E(f"v_sub_u32 {v(t2)}, {v(t2)}, {v(t4)}")
        E(f"v_bfe_u32 {v(t4)}, {v(t3)}, 2, 1"); E(f"v_lshlrev_b32 {v(t4)}, 1, {v(t4)}"); E(f"v_xor_b32 {v(t2)}, {v(t2)}, {v(t4)}")
        E(f"v_and_b32 {v(t4)}, 12, {v(t3)}"); E(f"v_add_u32 {v(t3)}, {v(t3)}, {v(t4)}")
        E(f"v_mul_u32_u24 {v(t3)}, 3072, {v(t3)}"); E(f"v_lshl_add_u32 {v(vW1+j)}, {v(t2)}, 4, {v(t3)}"); E(f"v_add_u32 {v(vW1+3+j)}, 12288, {v(vW1+j)}")
    G.valu(2, E.l)
    late_st = [(("lst",), f"buffer_store_dwordx4 {a(160+4*t,4)}, {v(vL16)}, {s(SWS,4)}, {s(sDST[t])} offen sc1") for t in range(4)]
    def kv_rd(s_, t): return f"ds_read_b128 {v(BFr(s_%2,t),4)}, {v(vBa[s_//10])} offset:{(s_%10)*5120+t*1024}"
    for t in range(5): lg.issue(("b", 0, t), kv_rd(0, t))
    for s_ in range(20):
        if s_ % 4 == 3 and s_ < 19:
            assert ("B", s_//4+1) in vm.seen and not any(y[0] == "vm" and y[1] == ("B", s_//4+1) for y in G.q[1])
            if s_ == 15:
                while any(y[0] == "ds" and y[1] == ("csw",) for y in G.q[2]): G.force = True; G.run(G.q[2].popleft()); G.force = False
                lg.wait(("csw",))
            vm.wait(("B", s_//4+1)); A("s_barrier")
            if s_ == 15:
                for y in reversed(G2b): G.q[2].appendleft(y)
        if s_ < 19:
            for t in range(5): G.ds(0, ("b", s_+1, t), kv_rd(s_+1, t))
        for x in take(QB, 3): G.vmem(1, x)
        if not QB and s_ >= PF["bq"]:
            for x in take(QQ, 2): G.vmem(1, x)
            if not QQ and s_ == PF["ls"] - 1:
                blk = [("i", "s_cmp_ge_u32 s26, 2"), ("i", "s_cbranch_scc1 B7_skip")]
                for x in b_round(7): blk += [("i", y) for y in x[1]]
                G.put(1, ("blk", blk + [("i", "B7_skip:")]))
        if s_ >= PF["ls"]:
            for x in take(late_st, 1): G.vmem(1, x)
        if s_ == PF["fpchk"]:
            G.vmem(1, (("fp",), f"buffer_load_dwordx2 {v(fl,2)}, {v(fl+2)}, {s(SWS,4)}, s53 offen sc1"))
            G.vmem(1, (("fp",), f"buffer_load_dwordx2 {v(t0,2)}, {v(vSA)}, {s(SWS,4)}, s52 offen sc1"))
        for t in range(5):
            if t in (0, 3): lg.wait(("b", s_, 2 if t == 0 else 4))
            G.mfma(v(AK(0,t),4), XF(s_,0), v(BFr(s_%2,t),4), "0" if s_ == 0 else None)
            G.mfma(v(AK(1,t),4), XF(s_,1), v(BFr(s_%2,t),4), "0" if s_ == 0 else None, budget=1 if t in (2, 4) else 2)
    assert not QB and not QQ and not late_st
    G.flush()
    stamp(A, 3)
    PK = 36; PV = 48; KVP = 76; TM = 60
    def phi2(E, c, rs, r2, tmp, bc):
        sel2 = " op_sel_hi:[1,0]" if bc else ""; sel3 = " op_sel_hi:[1,0,1]" if bc else ""
        E(f"v_pk_mul_f32 {v(tmp,2)}, {v(c,2)}, {v(r2,2)}{sel2}")
        E(f"v_pk_fma_f32 {v(c,2)}, {v(c,2)}, {v(rs,2)}, s[76:77]{sel3}")
        E(f"v_exp_f32 {v(tmp)}, {v(tmp)} clamp"); E(f"v_exp_f32 {v(tmp+1)}, {v(tmp+1)} clamp")
        E(f"v_max_f32 {v(c)}, s79, {v(c)}"); E(f"v_max_f32 {v(c+1)}, s79, {v(c+1)}")
        E(f"v_pk_add_f32 {v(c,2)}, {v(c,2)}, {v(tmp,2)}")
    def w1_load(r, j):
        pre = [f"s_add_u32 m0, s81, {W1L(r)+j*1024}"]
        pre.append(f"s_add_u32 s80, s80, {4*98304}" if (j == 0 and r) else "s_nop 0")
        return (("w1", r), pre + [f"buffer_load_dwordx4 {v((vW1 if r < 3 else vW1b)+j)}, {s(SW,4)}, s80 offen lds"])
    W1L = lambda r: r*24576
    w1_loads = [w1_load(r, j) for r in range(5) for j in range(6)]
    E = Emit()
    for t in (2, 3, 4, 0, 1):
        for mt in range(2):
            for r in (0, 2): E(f"v_pk_fma_f32 {v(AK(mt,t)+r,2)}, {v(NM+4*mt+r,2)}, {v(CSK+2*t,2)}, {v(AK(mt,t)+r,2)} op_sel_hi:[1,0,1]")
        if t >= 2:
            for mt in range(2):
                for r in (0, 2): E(f"v_pk_mul_f32 {v(TM+4*mt+r,2)}, {v(AK(mt,t)+r,2)}, {v(RS+4*mt+r,2)}")
            for mt in range(2):
                for h in range(2): E(f"v_cvt_pk_bf16_f32 {v(PV+4*(t-2)+2*mt+h)}, {v(TM+4*mt+2*h)}, {v(TM+4*mt+2*h+1)}")
        if t <= 2:
            for mt in range(2):
                for r in (0, 2): phi2(E, AK(mt,t)+r, RS+4*mt+r, RL2+4*mt+r, TM+8+4*mt+r, False)
            for mt in range(2):
                for h in range(2): E(f"v_cvt_pk_bf16_f32 {v(PK+4*t+2*mt+h)}, {v(AK(mt,t)+2*h)}, {v(AK(mt,t)+2*h+1)}")
        if t == 2:
            for r in range(4): E(f"v_cndmask_b32 {v(PV+r)}, {v(PV+r)}, {v(vONE)}, s[58:59]")
    mkq = vm.mark()
    merge(A, vm, E.l, take(w1_loads, PF["kvE"]), every=PF["kvEv"])
    prods = [(2,2),(2,3),(2,4),(0,2),(0,3),(1,2),(1,3),(1,4)]
    pidx = {(0,2):0,(0,3):1,(1,2):2,(1,3):3,(1,4):4,(2,2):5,(2,3):6,(2,4):7}
    for (ta, tb) in prods: mfma(A, v(KVP+4*pidx[(ta,tb)],4), v(PK+4*ta,4), v(PV+4*(tb-2),4), "0")
    fpc = [f"v_lshrrev_b32 {v(t2)}, 4, {v(fl+1)}", f"v_lshrrev_b32 {v(t3)}, 4, {v(t1)}",
           f"v_xor_b32 {v(t2)}, {s(NON+1)}, {v(t2)}", f"v_xor_b32 {v(t3)}, {s(NON+1)}, {v(t3)}",
           f"v_xor_b32 {v(t4)}, {s(NON)}, {v(fl)}", f"v_xor_b32 {v(t5)}, {s(NON)}, {v(t0)}",
           f"v_or3_b32 {v(t2)}, {v(t2)}, {v(t3)}, {v(t4)}", f"v_or_b32 {v(t2)}, {v(t2)}, {v(t5)}"]
    vm.wait_mark(mkq)
    A("s_mov_b32 s96, 0")
    for (ta, tb) in prods: A(f"ds_write_b128 {v(33)}, {v(KVP+4*pidx[(ta,tb)],4)} offset:{pidx[(ta,tb)]*1024}")
    A.label("FP_l")
    for x in fpc: A(x)
    A(f"v_cmp_ne_u32 vcc, 0, {v(t2)}")
    A("s_add_u32 s96, s96, 1")
    A("s_cbranch_vccz FP_d")
    A(f"buffer_load_dwordx2 {v(fl,2)}, {v(fl+2)}, {s(SWS,4)}, s53 offen sc1")
    A(f"buffer_load_dwordx2 {v(t0,2)}, {v(vSA)}, {s(SWS,4)}, s52 offen sc1"); A("s_waitcnt vmcnt(0)")
    A(f"s_cmp_lt_u32 s96, {SPIN}"); A("s_cbranch_scc1 FP_l")
    A.label("FP_d")
    A(f"v_cmp_ne_u32 vcc, s92, {v(t1)}")
    A("s_lshl_b32 s97, s2, 3"); A(f"s_add_u32 s97, s97, {WS_FL}")
    A("s_waitcnt lgkmcnt(0)"); A("s_barrier")
    for w in range(4): A(f"ds_read_b128 {v(KVP+4*w,4)}, {v(g0)} offset:{w*8192}")
    def q_rd(s_, t):
        if t < 2: return f"ds_read_b128 {v(BFr(s_%2,t),4)}, {v(vBa[2])} offset:{(s_//2)*5120+((s_%2)*2+t)*1024}"
        return f"ds_read_b128 {v(BFr(s_%2,t),4)}, {v(vQ7)} offset:{(s_//2)*5120+(s_%2)*128}"
    lg.drained()
    for t in range(3): lg.issue(("q", 0, t), q_rd(0, t))
    A("s_cmp_eq_u64 vcc, 0")
    if OPT["slow"]: A("s_cmp_eq_u32 s26, 99")
    A(f"s_cselect_b32 {s(sMODE)}, 1, 0")
    A("s_mov_b32 s61, -2")
    A("s_waitcnt lgkmcnt(3)")
    for r in (0, 2):
        A(f"v_pk_add_f32 {v(KVP+r,2)}, {v(KVP+r,2)}, {v(KVP+4+r,2)}"); A(f"v_pk_add_f32 {v(KVP+8+r,2)}, {v(KVP+8+r,2)}, {v(KVP+12+r,2)}")
    for r in (0, 2): A(f"v_pk_add_f32 {v(KVP+r,2)}, {v(KVP+r,2)}, {v(KVP+8+r,2)}")
    for r in range(4): A(f"v_min_u32 {v(KVP+r)}, s61, {v(KVP+r)}")
    A("s_mov_b64 exec, s[10:11]")
    vm.issue(("kvst",), f"buffer_store_dwordx4 {v(KVP,4)}, {v(g1)}, {s(SWS,4)}, {s(sKV)} offen sc1")
    A("s_mov_b64 exec, -1")
    set_flag(97)
    stamp(A, 4)
    WOF = lambda k: 160 + 4*k if k < 24 else 0
    wo_loads = run_loads(lambda k: ("wo",), lambda k: a(WOF(k),4), 56, 25)
    w2_loads = run_loads(lambda k: ("w2", k), lambda k: a(4+4*k,4), 57, 60)
    E = Emit()
    A(f"s_mov_b32 s53, {WS_FL}")
    E(f"s_lshl_b32 s62, {s(SJ)}, 6"); E("s_mul_i32 s62, s62, 1280"); E(f"s_mul_i32 s64, {s(SC)}, 160"); E("s_add_u32 s58, s62, s64")
    for n in range(3):
        E(f"v_add_u32 {v(t2)}, {256*n}, v0")
        E(f"v_mul_u32_u24 {v(t3)}, 6554, {v(t2)}"); E(f"v_lshrrev_b32 {v(t3)}, 16, {v(t3)}")
        E(f"v_mul_u32_u24 {v(xa+n)}, 1120, {v(t3)}"); E(f"v_lshl_add_u32 {v(xa+n)}, {v(t2)}, 4, {v(xa+n)}")
    G.valu(2, E.l)
    G.put(2, ("blk", [("i", "s_cmp_ge_u32 s26, 2"), ("i", "s_cselect_b32 s59, 0x7fffffff, s58")]))
    E = Emit()
    E(f"s_add_u32 s60, s83, {L_XT}")
    vKN, vKD = 16, 17
    E(f"v_and_b32 {v(t2)}, 15, v1"); E(f"v_lshrrev_b32 {v(t3)}, 4, v1"); E(f"v_lshlrev_b32 {v(t3)}, 4, {v(t3)}")
    E(f"v_lshl_add_u32 {v(vKN)}, {v(t2)}, 7, {v(t3)}"); E(f"v_add_u32 {v(vKN)}, {L_KVN}, {v(vKN)}")
    E(f"v_add_u32 {v(vKD)}, {L_KVD}, {v(t3)}")
    E(f"v_cmp_le_u32 vcc, 4, {v(t2)}"); E(f"v_add_u32 {v(vKD+2)}, 128, {v(vKD)}")
    E(f"v_cndmask_b32 {v(vKD+1)}, {v(vKD)}, {v(vKD+2)}, vcc")
    G.valu(2, E.l)
    xt_loads = [(("xt",), [f"s_add_u32 m0, s60, {n*4096}", "s_nop 0", f"buffer_load_dwordx4 {v(xa+n)}, {s(SX,4)}, {'s59' if n == 2 else 's58'} offen lds"]) for n in range(3)]
    QW = take(wo_loads, 24)
    Q1 = take(w1_loads, 18 - PF["kvE"])
    for y in G2q: G.put(2, y)
    G.put(2, ("lw", ("csq",), 2))
    E = Emit()
    for r in range(0, 12, 2):
        E(f"v_pk_add_f32 {v(CSQ+r,2)}, {v(CSQ+r,2)}, {v(80+r,2)}"); E(f"v_pk_add_f32 {v(92+r,2)}, {v(92+r,2)}, {v(104+r,2)}")
    for r in range(0, 12, 2): E(f"v_pk_add_f32 {v(CSQ+r,2)}, {v(CSQ+r,2)}, {v(92+r,2)}")
    G.valu(2, E.l)
    for s_ in range(20):
        if s_ == PF["kvf"]:
            A("s_barrier")
        if s_ < 19:
            for t in range(3): G.ds(0, ("q", s_+1, t), q_rd(s_+1, t))
        if s_ < PF["kvc"]:
            for x in take(QW, 2 if s_ % 2 == 0 else 1): G.vmem(1, x)
            if s_ >= PF["kvf"] and s_ % 2 == 1:
                for x in take(Q1, 1 if QW else 2): G.vmem(1, x)
        lg.wait(("q", s_, 2))
        for t in range(3):
            G.mfma(v(AQ(0,t),4), v(BFr(s_%2,t),4), XF(s_,0), "0" if s_ == 0 else None)
            G.mfma(v(AQ(1,t),4), v(BFr(s_%2,t),4), XF(s_,1), "0" if s_ == 0 else None, budget=1 if t == 2 else 2)
    G.flush()
    stamp(A, 6)
    Q1 = QW + wo_loads + Q1
    PQ = 36
    E = Emit()
    for mt in range(2):
        for t in range(3):
            for r in (0, 2): E(f"v_pk_fma_f32 {v(AQ(mt,t)+r,2)}, {v(CSQ+4*t+r,2)}, {v(nl+2*mt,2)}, {v(AQ(mt,t)+r,2)} op_sel_hi:[1,0,1]")
            for r in (0, 2): phi2(E, AQ(mt,t)+r, rl+2*mt, rl2+2*mt, TM+8+r, True)
            for h in range(2): E(f"v_cvt_pk_bf16_f32 {v(PQ+8*mt+2*t+h)}, {v(AQ(mt,t)+2*h)}, {v(AQ(mt,t)+2*h+1)}")
        E(f"v_mov_b64 {v(PQ+8*mt+6,2)}, 0")
    GAr = lambda i: 76 + 4*i if i < 10 else 156 + 4*(i-10)
    GS = 140; GM = 144
    def g_loads():
        A(f"buffer_load_dwordx2 {v(fl,2)}, {v(fl+2)}, {s(SWS,4)}, s53 offen sc1")
        A("s_mov_b64 exec, s[10:11]")
        for i in range(16):
            hi, lo = (i*KV_STRIDE) & ~4095, (i*KV_STRIDE) & 4095
            A(f"s_mov_b32 s64, {hi}")
            A(f"buffer_load_dwordx4 {v(GAr(i),4)}, {v(g1)}, {s(SWS,4)}, s64 offen offset:{lo} sc1")
        A("s_mov_b64 exec, -1")
    ng = PF["gat"]
    for x in E.l[:ng]: A(x)
    g_loads()
    for x in E.l[ng:]: A(x)
    stamp(A, 5)
    A("s_mov_b32 s96, 0")
    A("s_branch KV_chk")
    A.label("KV_poll")
    g_loads()
    A.label("KV_chk")
    A("s_mov_b64 exec, s[10:11]")
    for i in range(0, 16, 2):
        A(f"s_waitcnt vmcnt({14-i})")
        b, c = GAr(i), GAr(i+1)
        if i == 0:
            for r in (0, 2): A(f"v_pk_add_f32 {v(GS+r,2)}, {v(b+r,2)}, {v(c+r,2)}")
            A(f"v_max3_u32 {v(GM)}, {v(b)}, {v(b+1)}, {v(b+2)}")
            A(f"v_max3_u32 {v(GM+1)}, {v(b+3)}, {v(c)}, {v(c+1)}")
            A(f"v_max3_u32 {v(GM)}, {v(GM)}, {v(c+2)}, {v(c+3)}")
        else:
            for r in (0, 2): A(f"v_pk_add_f32 {v(GS+r,2)}, {v(GS+r,2)}, {v(b+r,2)}")
            A(f"v_max3_u32 {v(GM)}, {v(GM)}, {v(b)}, {v(b+1)}"); A(f"v_max3_u32 {v(GM+1)}, {v(GM+1)}, {v(b+2)}, {v(b+3)}")
            for r in (0, 2): A(f"v_pk_add_f32 {v(GS+r,2)}, {v(GS+r,2)}, {v(c+r,2)}")
            A(f"v_max3_u32 {v(GM)}, {v(GM)}, {v(c)}, {v(c+1)}"); A(f"v_max3_u32 {v(GM+1)}, {v(GM+1)}, {v(c+2)}, {v(c+3)}")
    A(f"v_max_u32 {v(GM)}, {v(GM)}, {v(GM+1)}")
    A(f"v_cmp_eq_u32 s[62:63], -1, {v(GM)}")
    A("s_mov_b64 exec, -1")
    A(f"v_cmp_ne_u64 vcc, {s(NON,2)}, {v(fl,2)}")
    A("s_add_u32 s96, s96, 1"); A("s_or_b64 vcc, vcc, s[62:63]")
    A("s_cbranch_vccz KV_done")
    A(f"s_cmp_lt_u32 s96, {SPIN}"); A("s_cbranch_scc1 KV_poll")
    A.label("KV_done")
    vm.drained()
    A(f"v_cvt_pk_bf16_f32 {v(GS)}, {v(GS)}, {v(GS+1)}"); A(f"v_cvt_pk_bf16_f32 {v(GS+1)}, {v(GS+2)}, {v(GS+3)}")
    A("s_mov_b64 exec, s[10:11]")
    A(f"ds_write_b64 {v(g2)}, {v(GS,2)}")
    A("s_mov_b64 exec, -1")
    AN = 100; AD = 124; ON = 156; OD = 76; OP = 56
    A("s_waitcnt lgkmcnt(0)"); A("s_barrier")
    Q1 = xt_loads + Q1 + w2_loads
    stamp(A, 7)
    for te in range(3):
        for st in range(2):
            lg.issue(("d", te), f"ds_read_b128 {v(AD+8*te+4*st,4)}, {v(vKD+te)} offset:{st*64}")
            lg.issue(("n", te), f"ds_read_b128 {v(AN+8*te+4*st,4)}, {v(vKN)} offset:{te*2048+st*64}")
    for x in take(Q1, PF["oB"]): vm.issue(*x)
    for x in take(Q1, PF["oE"]): G.vmem(1, x)
    def o_tail(te):
        L = []
        for r in range(0, 8, 2): L.append(f"v_pk_add_f32 {v(OD+8*te+r,2)}, {v(OD+8*te+r,2)}, s[76:77]")
        for r in range(8): L.append(f"v_rcp_f32 {v(OD+8*te+r)}, {v(OD+8*te+r)}")
        return L
    for te in range(3):
        lg.wait(("n", te))
        for (acc_, aop) in ((OD, AD), (ON, AN)):
            for mt in range(2): G.mfma(v(acc_+8*te+4*mt,4), v(aop+8*te,4), v(PQ+8*mt,4), "0")
            for mt in range(2): G.mfma(v(acc_+8*te+4*mt,4), v(aop+8*te+4,4), v(PQ+8*mt+4,4))
    G.flush()
    for te in range(3):
        for x in take(Q1, PF["oT"]): vm.issue(*x)
        for x in o_tail(te): A(x)
        for r in range(0, 8, 2): A(f"v_pk_mul_f32 {v(ON+8*te+r,2)}, {v(ON+8*te+r,2)}, {v(OD+8*te+r,2)}")
        for h in range(4): A(f"v_cvt_pk_bf16_f32 {v(OP+4*te+h)}, {v(ON+8*te+2*h)}, {v(ON+8*te+2*h+1)}")
        for h in range(2): A(f"v_permlane16_swap_b32 {v(OP+4*te+h)}, {v(OP+4*te+2+h)}")
        if te == 2: A("s_mov_b64 exec, 0xffffffff")
        for x in dual(f"buffer_store_dwordx4 {v(OP+4*te,4)}, {v(vOA)}, SRD, {s(sO)} offen offset:{te*512}"): vm.issue(("ost",), x)
    A("s_mov_b64 exec, -1")
    ACC = 40; AF = 120; HRES = 246
    acc = lambda m, t: ACC + (m*5+t)*4
    vRw, vRr = 10, 11
    u0, u1, u2, u3, u4 = 4, 5, 6, 7, 8
    def k_setup(E, KO, WSA, lred, KQ):
        E(f"s_mul_i32 s61, s26, {KQ}"); E(f"s_lshl_b32 s62, {s(SJ)}, 2")
        for m in range(4):
            E(f"s_add_u32 s60, s26, {m}"); E("s_and_b32 s60, s60, 3")
            E(f"s_mul_i32 s64, s60, 15360"); E(f"s_add_u32 s64, s64, {lred+max(m-1,0)*5120}"); E(f"v_add_u32 {v(vRw+2+m if m else vRr)}, s64, {v(vL16)}")
            E("s_add_u32 s60, s60, s62"); E(f"s_mul_i32 s60, s60, {KO}"); E("s_add_u32 s60, s60, s61"); E("s_lshl_b32 s60, s60, 8")
            E(f"s_add_u32 {s(52+m)}, s60, {WSA}")
    def k_gemm(KS, bfrag, nwin, st0, cinit, side, lateb=(), shadow=None):
        seq = [(m, sp) for m in (1, 2, 3, 0) for sp in range(KS)]
        al = []
        for m in (1, 2, 3, 0):
            n0 = len(al)
            al += run_loads(lambda k: ("a", n0+k), lambda k: v(AF+4*((n0+k) % nwin),4), 52+m, KS)
        poll(66, 18)
        stamp(A, st0)
        nl = PF["kinit"]; pend = []
        lateb = list(lateb)
        for x in al[:nl-len(lateb)//2]: vm.issue(*x)
        if lateb:
            nl -= len(lateb)//2
            for x in lateb: vm.issue(*x)
        if shadow: shadow()
        for n, (m, sp) in enumerate(seq):
            if n < KS:
                for t in range(5):
                    if vm.pending(("w2", sp*5+t)): vm.wait(("w2", sp*5+t))
            while nl < len(seq) and nl - nwin < n and nl - n <= PF["kfly"]:
                G.vmem(1, al[nl]); nl += 1
            if nl >= len(seq) and side: G.vmem(1, side.pop(0))
            if any(y[0] == "vm" and y[1] == ("a", n) for y in G.q[1]): G.flush(1)
            vm.wait(("a", n))
            if STAMPS and os.environ.get("KST") == "4" and KS == 12 and sp % 6 == 0:
                A("s_memtime s[98:99]"); A("s_waitcnt lgkmcnt(0)"); A(f"v_writelane_b32 v3, s98, {52 + n//6}")
            if m == 0 and sp == 0: G.flush(2)
            for t in range(5):
                if pend and ((t == 2 and (KS < 6 or sp % 2 == 1)) ): G.ds(0, ("rw",), pend.pop(0))
                G.mfma(v(acc(m,t),4), bfrag(sp*5+t), v(AF+4*(n % nwin),4), (cinit(t) if m == 0 else "0") if sp == 0 else None, budget=1 if t == 4 else 2)
            if sp == KS-1 and m != 0:
                assert not pend
                pend = [f"ds_write_b128 {v(vRw+2+m)}, {v(acc(m,t),4)} offset:{t*1024}" for t in range(5)]
        G.flush()
    def red_read(RD):
        A("s_waitcnt lgkmcnt(0)"); A("s_barrier"); lg.drained()
        for t in range(5):
            for sl in range(3): lg.issue(("r", t), f"ds_read_b128 {v(RD+(t*3+sl)*4,4)}, {v(vRr)} offset:{sl*5120+t*1024}")
    def red_sum(RD, t, dst):
        for h in range(2):
            A(f"v_pk_add_f32 {v(acc(0,t)+2*h,2)}, {v(acc(0,t)+2*h,2)}, {v(RD+(t*3)*4+2*h,2)}")
            A(f"v_pk_add_f32 {v(RD+(t*3+1)*4+2*h,2)}, {v(RD+(t*3+1)*4+2*h,2)}, {v(RD+(t*3+2)*4+2*h,2)}")
        for h in range(2): A(f"v_pk_add_f32 {v(acc(0,t)+2*h,2)}, {v(acc(0,t)+2*h,2)}, {v(RD+(t*3+1)*4+2*h,2)}")
        for h in range(2): A(f"v_cvt_pk_bf16_f32 {v(dst+h)}, {v(acc(0,t)+2*h)}, {v(acc(0,t)+2*h+1)}")
    CSA, CSB = 212, 216; vCa, vCb = 220, 221; vONE3 = 20; XC = 224
    XCr = lambda t: 224 + 4*t if t < 3 else 200 + 4*(t-3)
    E = Emit()
    E(f"s_lshl_b32 s66, {s(SI)}, 7"); E(f"s_add_u32 s66, s66, {WS_FO}"); E(f"s_lshl_b32 s97, {s(SG)}, 3"); E("s_add_u32 s97, s97, s66")
    k_setup(E, 80, WS_O, L_RED2, 20)
    for r in range(0, 6, 2): E(f"v_mov_b64 {v(vW1b+r,2)}, {v(vW1+r,2)}")
    E(f"v_and_b32 {v(u0)}, 15, v1"); E(f"v_lshrrev_b32 {v(u1)}, 4, v1")
    E("s_mul_i32 s62, s26, 2560"); E(f"s_add_u32 s62, s62, {L_XT}")
    E(f"v_mul_u32_u24 {v(9)}, 160, {v(u0)}"); E(f"v_lshl_add_u32 {v(9)}, {v(u1)}, 3, {v(9)}"); E(f"v_add_u32 {v(9)}, s62, {v(9)}")
    merge(A, vm, E.l, take(Q1, PF["oS"]), every=3)
    vm.wait(("ost",)); A("s_barrier")
    set_flag(97, True)
    stamp(A, 8)
    for x in take(Q1, PF["oF"]): vm.issue(*x)
    vB = [12, 16, 17, 9]
    def p2_shadow():
        for t in range(5): lg.issue(("x",), f"ds_read_b64 {v(24+2*t,2)}, {v(9)} offset:{t*32}")
        A(f"v_lshrrev_b32 {v(u2)}, 2, v1"); A(f"v_mul_u32_u24 {v(u2)}, 192, {v(u2)}"); A(f"v_and_b32 {v(u3)}, 3, v1"); A(f"v_lshl_add_u32 {v(u2)}, {v(u3)}, 3, {v(u2)}")
        A(f"v_and_b32 {v(u3)}, 1, {v(u1)}")
        A("s_mul_i32 s62, s26, 5"); A("s_add_u32 s62, s62, 1"); A("s_mul_i32 s62, s62, 43"); A("s_lshr_b32 s62, s62, 7")
        A(f"v_xor_b32 {v(vCa)}, s62, {v(u3)}"); A(f"v_lshl_add_u32 {v(vCa)}, {v(vCa)}, 5, {v(u2)}")
        A("s_lshr_b32 s62, s26, 1"); A("s_mul_i32 s62, s62, 3"); A("s_add_u32 s62, s62, 1"); A("s_and_b32 s63, s26, 1"); A("s_mul_i32 s63, s63, 6144")
        A(f"v_xor_b32 {v(vCb)}, s62, {v(u3)}"); A(f"v_lshl_add_u32 {v(vCb)}, {v(vCb)}, 5, {v(u2)}"); A(f"v_add_u32 {v(vCb)}, s63, {v(vCb)}")
        A(f"v_add_u32 {v(vCa+2)}, 61440, {v(vCa)}"); A(f"v_add_u32 {v(vCb+2)}, 61440, {v(vCb)}")
        A(f"v_lshlrev_b32 {v(u3)}, 5, {v(u3)}"); A(f"v_add_u32 {v(vB[0])}, {v(u2)}, {v(u3)}"); A(f"v_sub_u32 {v(vB[1])}, {v(u2)}, {v(u3)}")
        lg.wait(("x",))
        for t in range(5):
            for h in range(2):
                A(f"v_lshlrev_b32 {v(XCr(t)+2*h)}, 16, {v(24+2*t+h)}"); A(f"v_and_b32 {v(XCr(t)+2*h+1)}, 0xffff0000, {v(24+2*t+h)}")
        A(f"v_add_u32 {v(vB[2])}, 61440, {v(vB[0])}"); A(f"v_add_u32 {v(vB[3])}, 61440, {v(vB[1])}")
    assert all(x[0][0] in ("w2", "tch") for x in Q1), "loads needed by P2 must be issued before its poll"
    tw = []
    if PF["tw1"]:
        tw = [(("tch",), ["s_lshr_b32 s64, s2, 3", "s_lshl_b32 s64, s64, 2", "s_add_u32 s64, s64, s26", "s_mul_i32 s64, s64, 6144", f"s_add_u32 s64, s64, {384*3072}",
                          f"v_min_u32 {v(240)}, 47, v1", f"v_lshlrev_b32 {v(240)}, 7, {v(240)}", f"buffer_load_dword {v(241)}, {v(240)}, {s(SW,4)}, s64 offen"])]
    early_w2 = 60 - len(Q1) + PF["p2G"]
    assert early_w2 <= 39
    k_gemm(5, lambda k: a(WOF(k),4), 18, 9, lambda t: v(XCr(t),4), tw + take(Q1, PF["p2G"]), shadow=p2_shadow)
    stamp(A, 10)
    RD = AF
    red_read(RD)
    for x in take(Q1, PF["p2B"]): vm.issue(*x)
    P = 24; vS, vQ = 36, 37
    A(f"v_mov_b64 {v(vS,2)}, 0"); A(f"v_mov_b64 {v(P+10,2)}, 0")
    A(f"s_lshl_b32 s66, {s(SI)}, 7"); A(f"s_add_u32 s66, s66, {WS_FH}"); A(f"s_lshl_b32 s97, {s(SG)}, 3"); A("s_add_u32 s97, s97, s66")
    for t in range(5):
        lg.wait(("r", t))
        red_sum(RD, t, HRES+2*t)
        if t == 1:
            lg.wait(("r", 4)); A("s_barrier")
        if t >= 1:
            for x in take(w1_loads, PF["p2E"]): vm.issue(*x)
        if t in (1, 3, 4):
            pr_ = t//2
            A(f"v_mov_b64 {v(P+4*pr_,2)}, {v(HRES+4*pr_,2)}")
            if t < 4: A(f"v_mov_b64 {v(P+4*pr_+2,2)}, {v(HRES+4*pr_+2,2)}")
            for h in range(2): A(f"v_permlane16_swap_b32 {v(P+4*pr_+h)}, {v(P+4*pr_+2+h)}")
            if pr_ == 2: A("s_mov_b32 exec_lo, 0xffff"); A("s_mov_b32 exec_hi, 0xffff")
            for x in dual(f"buffer_store_dwordx4 {v(P+4*pr_,4)}, {v(vHA)}, SRD, {s(sH)} offen offset:{pr_*1024}"): vm.issue(("hst",), x)
    A("s_mov_b64 exec, -1")
    for r in range(2):
        A(f"v_dot2_f32_bf16 {v(32+r)}, {v(HRES+r)}, {v(vONE3)}, 0"); A(f"v_dot2_f32_bf16 {v(34+r)}, {v(HRES+r)}, {v(HRES+r)}, 0")
    for r in range(2, 10):
        A(f"v_dot2_f32_bf16 {v(32+r%2)}, {v(HRES+r)}, {v(vONE3)}, {v(32+r%2)}"); A(f"v_dot2_f32_bf16 {v(34+r%2)}, {v(HRES+r)}, {v(HRES+r)}, {v(34+r%2)}")
    A(f"v_add_f32 {v(vS)}, {v(32)}, {v(33)}"); A(f"v_add_f32 {v(vQ)}, {v(34)}, {v(35)}")
    for op in ("v_permlane16_swap_b32", "v_permlane32_swap_b32"):
        A(f"v_mov_b64 {v(34,2)}, {v(vS,2)}")
        A(f"{op} {v(34)}, {v(vS)}"); A(f"{op} {v(35)}, {v(vQ)}")
        A(f"v_pk_add_f32 {v(vS,2)}, {v(vS,2)}, {v(34,2)}")
    A("s_mov_b64 exec, 0xffff")
    for x in dual(f"buffer_store_dwordx2 {v(vS,2)}, {v(vSA)}, SRD, {s(sST)} offen"): vm.issue(("hst",), x)
    A("s_mov_b64 exec, -1")
    vB1 = 120
    srd(A, SD, 14, 3072)
    A(f"s_mul_i32 s59, {s(SG)}, 192"); A(f"v_lshlrev_b32 {v(u3)}, 3, {v(u1)}")
    for t in range(6): vm.issue(("b1",), f"buffer_load_dwordx2 {v(vB1+2*t,2)}, {v(u3)}, {s(SD,4)}, s59 offen offset:{t*32}")
    def cs_frs(steps):
        fr = []
        for s_ in steps:
            fr.append((CSA, vCa + 2*(s_ >= 10), (s_ % 10)*6144))
            if s_ % 2 == 0: fr.append((CSB, vCb + 2*(s_ >= 10), (s_ % 10)*6144))
        return fr
    for x in take(w1_loads, PF["hW"]) + take(Q1, PF["hA"]): vm.issue(*x)
    A(f"s_lshl_b32 s54, {s(SI)}, 3"); A("s_lshl_b32 s55, s26, 1"); A("s_add_u32 s54, s54, s55"); A(f"s_mul_i32 s54, s54, {HS*256}"); A(f"s_add_u32 s54, s54, {WS_H}")
    A(f"s_add_u32 s55, s54, {HS*256}")
    A(f"s_lshl_b32 s52, {s(SI)}, 7"); A("s_lshl_b32 s53, s26, 5"); A("s_add_u32 s52, s52, s53"); A("s_lshl_b32 s52, s52, 3"); A(f"s_add_u32 s52, s52, {WS_ST}")
    A("s_add_u32 s53, s52, 16384")
    A(f"v_lshlrev_b32 {v(u2)}, 15, {v(u1)}"); A(f"v_lshl_or_b32 {v(u2)}, {v(u0)}, 3, {v(u2)}")
    A("s_lshl_b32 s60, s26, 7"); A(f"s_add_u32 s60, s60, {L_CS3}")
    A(f"v_lshlrev_b32 {v(u3)}, 4, {v(u1)}"); A(f"v_add_u32 {v(u4)}, s60, {v(u3)}"); A(f"v_add_u32 {v(14)}, {L_CS3}, {v(u3)}")
    seen = set(); fr = cs_frs(range(12)); TMP = 48
    def cs_rd(n, TMP, ad, off): return [f"ds_read_b64_tr_b16 {v(TMP+4*(n%12)+2*jj,2)}, {v(ad)} offset:{off+jj*3072}" for jj in range(2)]
    def cs_run(n0, n1):
        for n in range(n0, min(n0+6, n1)):
            for x in cs_rd(n, TMP, *fr[n][1:]): lg.issue(("c", n), x)
        for n in range(n0, n1):
            d = fr[n][0]
            if n + 6 < n1:
                for x in cs_rd(n+6, TMP, *fr[n+6][1:]): lg.issue(("c", n+6), x)
            lg.wait(("c", n))
            mfma(A, v(d,4), v(TMP+4*(n%12),4), v(vONE3,4), None if d in seen else "0"); seen.add(d)
    cs_run(0, PF["cs1"])
    vm.wait(("hst",)); A("s_barrier")
    set_flag(97, True)
    stamp(A, 11)
    ACC3 = 48; BF = 96; AW = 144; NW3 = 12; BU = 200; CS = 144; vST = 24
    acc3 = lambda t, mt: ACC3 + (t*2+mt)*4
    for x in take(Q1, PF["hS"]): vm.issue(*x)
    BUr = lambda t: 200 + 4*t if t < 3 else 224 + 4*(t-3)
    def b3(s_, t): return [f"ds_read_b64_tr_b16 {v(BF+(s_%2)*24+4*t+2*jj,2)}, {v(vB[(t%2)+2*(s_//10)])} offset:{(s_%10)*6144+t*32+jj*3072}" for jj in range(2)]
    a0 = run_loads(lambda k: ("a", 2*k), lambda k: v(AW+4*((2*k) % NW3),4), 54, 20)
    a1 = run_loads(lambda k: ("a", 2*k+1), lambda k: v(AW+4*((2*k+1) % NW3),4), 55, 20)
    al = [x for p in zip(a0, a1) for x in p]
    poll(66, 18)
    stamp(A, 13)
    nl = PF["p3init"]
    for x in al[:nl]: vm.issue(*x)
    cs_run(PF["cs1"], 18)
    for t in range(6):
        for h in range(2):
            A(f"v_lshlrev_b32 {v(BUr(t)+2*h)}, 16, {v(vB1+2*t+h)}"); A(f"v_and_b32 {v(BUr(t)+2*h+1)}, 0xffff0000, {v(vB1+2*t+h)}")
    for t in range(6):
        for x in b3(0, t): lg.issue(("b", 0, t), x)
    st_loads = [(("st", 2*mt+cc), f"buffer_load_dwordx2 {v(vST+mt*4+cc*2,2)}, {v(u2)}, {s(SWS,4)}, {s(52+cc)} offen offset:{mt*128} sc1") for mt in range(2) for cc in range(2)]
    side = st_loads + w1_loads + take(Q1, PF["p3L"])
    G.put(2, ("vw", ("st", 3), 3))
    E = Emit()
    for mt in range(2): E(f"v_pk_add_f32 {v(vST+4*mt,2)}, {v(vST+4*mt,2)}, {v(vST+4*mt+2,2)}")
    for op in ("v_permlane16_swap_b32", "v_permlane32_swap_b32"):
        for mt in range(2): E(f"v_mov_b64 {v(vST+4*mt+2,2)}, {v(vST+4*mt,2)}")
        for mt in range(2):
            b = vST + 4*mt
            E(f"{op} {v(b+2)}, {v(b)}"); E(f"{op} {v(b+3)}, {v(b+1)}")
        for mt in range(2): E(f"v_pk_add_f32 {v(vST+4*mt,2)}, {v(vST+4*mt,2)}, {v(vST+4*mt+2,2)}")
    ln_stats2(E, [(vST, vST+1), (vST+4, vST+5)], [vST+2, vST+6])
    for mt in range(2):
        b = vST + 4*mt
        E(f"v_mul_f32 {v(b)}, {v(b)}, {v(b+1)}"); E(f"v_mov_b32 {v(b+2)}, {v(b+1)}")
    G.valu(2, E.l)
    fr2 = cs_frs(range(12, 20)); CQ = [36, 40, 44, 32]
    wb = PF["w1b"]; c0 = wb + 1
    assert c0 + 7 <= 19
    for s_ in range(20):
        if s_ == wb:
            if any(y[0] == "vm" and y[1] == ("w1", 4) for y in G.q[1]): G.flush(1)
            assert not any(x[0] == ("w1", 4) for x in side)
            vm.wait(("w1", 4)); A("s_barrier")
        if s_ == c0 + 7:
            if any(y[0] == "blk" for y in G.q[2]): G.flush(2)
            lg.wait(("cw",)); A("s_barrier")
        if s_ < 19:
            for t in range(6):
                for x in b3(s_+1, t): G.ds(0, ("b", s_+1, t), x)
        k = s_ - wb
        if 0 <= k < 6:
            for n in range(2):
                d, ad, off = fr2[2*k+n]
                for jj in range(2): G.ds(0, ("c2", k), f"ds_read_b64_tr_b16 {v(CQ[2*(k%2)+n]+2*jj,2)}, {v(ad)} offset:{off+jj*3072}")
        while nl < 40 and nl - NW3 < 2*s_ and nl - 2*s_ <= PF["p3fly"]:
            G.vmem(1, al[nl]); nl += 1
        for x in take(side, 2 if s_ < PF["p3f"] else 1): G.vmem(1, x)
        if any(y[0] == "vm" and y[1] in (("a", 2*s_), ("a", 2*s_+1)) for y in G.q[1]): G.flush(1)
        vm.wait(("a", 2*s_+1))
        if STAMPS and os.environ.get("KST") == "3" and s_ % 3 == 0 and s_ < 24:
            A("s_memtime s[98:99]"); A("s_waitcnt lgkmcnt(0)"); A(f"v_writelane_b32 v3, s98, {52 + s_//3}"); lg.drained()
        if s_ == 19:
            for t in range(6): G.ds(0, ("cs",), f"ds_read_b128 {v(BF+4*t,4)}, {v(14)} offset:{[0,1,2,4,5,6][t]*64}")
            G.ds(0, ("cs",), f"ds_read_b128 {v(CSA,4)}, {v(14)} offset:{3*64}"); G.ds(0, ("cs",), f"ds_read_b128 {v(CSB,4)}, {v(14)} offset:{7*64}")
        for t in range(6):
            if t in (0, 3):
                while ("b", s_, t+2) not in lg.seen or any(y[0] == "ds" and y[1] == ("b", s_, t+2) for y in G.q[0]): G.run(G.q[0].popleft())
                lg.wait(("b", s_, t+2))
            if t == 3 and 1 <= k < 7:
                while any(y[0] == "ds" and y[1] == ("c2", k-1) for y in G.q[0]): G.run(G.q[0].popleft())
                lg.wait(("c2", k-1))
                for n in range(2): G.mfma(v(fr2[2*(k-1)+n][0],4), v(CQ[2*((k-1)%2)+n],4), v(vONE3,4))
            G.mfma(v(acc3(t,0),4), v(BF+(s_%2)*24+4*t,4), v(AW+4*((2*s_) % NW3),4), "0" if s_ == 0 else None)
            G.mfma(v(acc3(t,1),4), v(BF+(s_%2)*24+4*t,4), v(AW+4*((2*s_+1) % NW3),4), "0" if s_ == 0 else None, budget=1 if t in (2, 5) else 2)
        if k == 6:
            G.q[2].appendleft(("blk", [("i", "s_mov_b32 exec_lo, 0x00010001"), ("i", "s_mov_b32 exec_hi, 0x00010001"),
                              ("ds", ("cw",), f"ds_write_b128 {v(u4)}, {v(CSA,4)}"), ("ds", ("cw",), f"ds_write_b128 {v(u4)}, {v(CSB,4)} offset:64"),
                              ("i", "s_mov_b64 exec, -1")]))
    for x in side: G.vmem(1, x)
    G.flush()
    stamp(A, 14)
    CS = BF
    lg.wait(("cs",))
    for r in (0, 2):
        A(f"v_pk_add_f32 {v(CS+4+r,2)}, {v(CS+4+r,2)}, {v(CSA+r,2)}"); A(f"v_pk_add_f32 {v(CS+16+r,2)}, {v(CS+16+r,2)}, {v(CSB+r,2)}")
    P = 144; U = 168
    side = []
    for x in take(Q1, PF["rB"]): vm.issue(*x)
    for t in range(6):
        for mt in range(2):
            b = vST + 4*mt
            for r in (0, 2): A(f"v_pk_fma_f32 {v(U+4*mt+r,2)}, {v(CS+4*t+r,2)}, {v(b,2)}, {v(BUr(t)+r,2)} op_sel_hi:[1,0,1]")
        for mt in range(2):
            b = vST + 4*mt
            for r in (0, 2): A(f"v_pk_fma_f32 {v(U+4*mt+r,2)}, {v(acc3(t,mt)+r,2)}, {v(b+2,2)}, {v(U+4*mt+r,2)} op_sel_hi:[1,0,1]")
        for r in range(8): A(f"v_max_f32 {v(U+r)}, 0, {v(U+r)}")
        for x in take(side, PF["rEn"]): vm.issue(*x)
        for r in range(0, 8, 2): A(f"v_pk_mul_f32 {v(U+r,2)}, {v(U+r,2)}, {v(U+r,2)}")
        for h in range(4): A(f"v_cvt_pk_bf16_f32 {v(P+4*t+h)}, {v(U+2*h)}, {v(U+2*h+1)}")
        for h in range(2): A(f"v_permlane16_swap_b32 {v(P+4*t+h)}, {v(P+4*t+2+h)}")
        for x in dual(f"buffer_store_dwordx4 {v(P+4*t,4)}, {v(vRA)}, SRD, {s(sR)} offen offset:{t*512}"): vm.issue(("rst",), x)
    srd(A, SD, 18, 1280); srd(A, SW, 20, 2048*1280)
    vB2 = 20
    A(f"s_mul_i32 s63, {s(SC)}, 160"); A(f"v_lshlrev_b32 {v(u3)}, 3, {v(u1)}")
    for t in range(5): vm.issue(("b2",), f"buffer_load_dwordx2 {v(vB2+2*t,2)}, {v(u3)}, {s(SD,4)}, s63 offen offset:{t*32}")
    L_OUT = 61440; OA = 30
    E = Emit()
    E(f"s_lshl_b32 s66, {s(SI)}, 7"); E(f"s_add_u32 s66, s66, {WS_FR}"); E(f"s_lshl_b32 s97, {s(SG)}, 3"); E("s_add_u32 s97, s97, s66")
    k_setup(E, RS_, WS_R, 0, RQ)
    merge(A, vm, E.l, side + take(Q1, PF["rS"]))
    vm.wait(("rst",)); A("s_barrier")
    set_flag(97, True)
    stamp(A, 15)
    for x in take(Q1, PF["rF"]): vm.issue(*x)
    assert len(Q1) <= 15, len(Q1)
    HC = 216
    def p4_shadow():
        A("s_mul_i32 s63, s26, 2816"); A(f"s_add_u32 s63, s63, {L_OUT}")
        A(f"v_mul_u32_u24 {v(9)}, 176, {v(u0)}"); A(f"v_lshl_add_u32 {v(9)}, {v(u1)}, 3, {v(9)}"); A(f"v_add_u32 {v(9)}, s63, {v(9)}")
        for n in range(3):
            A(f"v_add_u32 {v(u2)}, {64*n}, v1")
            A(f"v_mul_u32_u24 {v(u3)}, 6554, {v(u2)}"); A(f"v_lshrrev_b32 {v(u3)}, 16, {v(u3)}")
            A(f"v_lshlrev_b32 {v(u2)}, 4, {v(u2)}")
            A(f"v_lshl_add_u32 {v(u4)}, {v(u3)}, 4, {v(u2)}"); A(f"v_add_u32 {v(OA+n)}, s63, {v(u4)}")
            A(f"v_mul_u32_u24 {v(u3)}, 1120, {v(u3)}"); A(f"v_add_u32 {v(OA+3+n)}, {v(u3)}, {v(u2)}")
        A(f"s_lshl_b32 s58, {s(SJ)}, 6"); A("s_lshl_b32 s59, s26, 4"); A("s_add_u32 s58, s58, s59"); A("s_mul_i32 s58, s58, 1280")
        A(f"s_mul_i32 s59, {s(SC)}, 160"); A("s_add_u32 s58, s58, s59")
        E = Emit()
        for t in range(5):
            for h in range(2):
                E(f"v_lshlrev_b32 {v(36)}, 16, {v(HRES+2*t+h)}"); E(f"v_and_b32 {v(37)}, 0xffff0000, {v(HRES+2*t+h)}")
                E(f"v_lshlrev_b32 {v(38)}, 16, {v(vB2+2*t+h)}"); E(f"v_and_b32 {v(39)}, 0xffff0000, {v(vB2+2*t+h)}")
                E(f"v_pk_add_f32 {v(HC+4*t+2*h,2)}, {v(36,2)}, {v(38,2)}")
        for x in E.l: A(x)
    k_gemm(12, lambda k: a(4+4*k,4), 24, 16, lambda t: v(HC+4*t,4), [], Q1, shadow=p4_shadow)
    stamp(A, 17)
    red_read(RD)
    P = 200
    for t in range(5):
        lg.wait(("r", t))
        red_sum(RD, t, P+2*t)
        A(f"ds_write_b64 {v(9)}, {v(P+2*t,2)} offset:{t*32}")
    A("s_waitcnt lgkmcnt(0)")
    for n in range(3): A(f"ds_read_b128 {v(RD+4*n,4)}, {v(OA+n)}")
    for n in range(3):
        A(f"s_waitcnt lgkmcnt({2-n})")
        if n == 2: A("s_mov_b64 exec, 0xffffffff")
        A(f"buffer_store_dwordx4 {v(RD+4*n,4)}, {v(OA+3+n)}, {s(SW,4)}, s58 offen {os.environ.get('OUTF', '')}")
    if STAMPS:
        A("s_mov_b64 exec, -1")
        stamp(A, 18)
        A("s_waitcnt vmcnt(0)")
        stamp(A, 19)
        A("s_cmp_lg_u32 s26, 0"); A("s_cbranch_scc1 L_end")
        A("s_lshl_b32 s100, s2, 8"); A(f"s_add_u32 s100, s100, {WS_TS}")
        A("v_lshlrev_b32 v2, 2, v1")
        A(f"buffer_store_dword v3, v2, {s(SWS,4)}, s100 offen")
    A.label("L_end")
    A("s_endpgm")
    return kd(K, 512, accum=256)

def main(path, stamps=False):
    global STAMPS
    STAMPS = stamps
    A = Asm()
    kds = [gen(A)]
    L = [l.strip() if l.strip().endswith(":") else l for l in A.lines]
    X = os.environ.get("EXP", "").split(",")
    import re
    if "nob" in X: L = [l for l in L if not ("s82 offen" in l and " lds" in l)]
    if "now1" in X: L = [l for l in L if not ("s80 offen lds" in l)]
    if "noag" in X: L = [l for l in L if not ("buffer_load_dwordx4 a[" in l)]
    if "noa" in X: L = [l for l in L if not re.search(r"buffer_load_dwordx4 v\[\d+:\d+\], v2, s\[40:43\], s5[2-5]", l)]
    if "nods" in X: L = [l for l in L if not ("ds_read" in l)]
    SEC = os.environ.get("SEC")
    if SEC:
        a_, b_, pats = SEC.split(":")
        i0 = next(i for i, l in enumerate(L) if l.strip() == f"; @S{a_}") + (6 if STAMPS else 1)
        i1 = next(i for i, l in enumerate(L) if l.strip() == f"; @S{b_}")
        L = L[:i0] + [l for l in L[i0:i1] if not any(re.match(p, l.strip()) for p in pats.split("+"))] + L[i1:]
    lines, n = hazard.fix(L)
    open(path, "w").write(file_text(["; @launch grid=(256,1,1) block=(256,1,1) lds=163840"], "\n".join(lines) + "\n", kds))
    print("nops inserted:", n, "lines:", len(lines))
STAMP_NAMES = {0:"start",1:"dma issued",26:"first loads out",27:"setup done",2:"unit staged",25:"late setup 1",20:"FW set",21:"x staged",22:"FW polled",23:"B0 arrived",
               3:"KV gemm",4:"kv stored",6:"Q gemm",28:"kv flags ok",5:"Q epi done",7:"gathered",8:"o flag",9:"o polled",10:"P2 gemm",11:"h flag",13:"h polled",
               14:"P3 gemm",15:"r flag",16:"r polled",17:"P4 gemm",18:"out issued",19:"out done"}
if __name__ == "__main__":
    main(sys.argv[1] if len(sys.argv) > 1 else "v24.s")
SPACE = dict(kvE=[0,3,6,8,10,12], kvEv=[1,2,4,8], oB=[2,4,6,8,10], oE=[0,2,4,6], oS=[2,4,6,8,10], oF=[0,2,4,6], p2G=[0,2,4,6,8], p2B=[0,2,4,6,8,10], p2E=[0,1,2,3],
             hW=[0,3,6,9,12], hA=[0,2,4,6,8], hS=[0,2,4,6], p3f=[0,4,6,8,10], p3L=[4,6,8,10,12,14,16], rB=[4,6,8,10,12], rEn=[0], rS=[0,2,4,6,8], rF=[0,2,4,6,8],
             w1b=[6,8,9,10,11], cs1=[0,6,9,12,18], kinit=[6,8,10,12], kfly=[8,10,12], p3init=[6,8,10,12], p3fly=[8,10,11], binit=[8,10,12,14], bq=[5,6,7,8], ls=[13,14,15,16],
             x0=[2,4,6,8], x1=[0,2,4,6], x1b=[2,4,6,8], x2=[4,6,8,10], smx=[4,6,8,9], gat=[0,20,40,60,90], tw1=[0,1], kvf=[1,2,3,4], kvc=[14,16,17,18,20], opc=[4,5,6,7], fwc=[7,8,9], w1t=[0,1])
```

```python
import sys, os
from collections import deque
sys.path.insert(0, "dev")
from asmgen import *
import hazard

PADH = int(os.environ.get("PADH", "4")); PADR = int(os.environ.get("PADR", "4")); PADX = int(os.environ.get("PADX", "0")); PADW = int(os.environ.get("PADW", "1"))
HS = 80 + PADH; RQ = 48 + PADR; RS_ = 4*RQ + PADX; W2K = 60 + PADW
WS_O  = 0
WS_H  = WS_O + 2621440
WS_R  = WS_H + 128*HS*256
WS_WO = WS_R + 128*RS_*256
WS_W2 = WS_WO + 819200
WS_KV = WS_W2 + 32*W2K*1024
KV_STRIDE = 3584
WS_ST = WS_KV + 256*KV_STRIDE
WS_FP = WS_ST + 131072
WS_FKV = WS_FP + 2048
WS_FO = WS_FKV + 2048
WS_FH = WS_FO + 2048
WS_FR = WS_FH + 2048
WS_FL = WS_FR + 2048
WS_FW = WS_FL + 2048
WS_CP = WS_FW + 2048
WS_WQ = WS_CP + 131072
WS_TS = WS_WQ + 16*153600
WS_END = WS_TS + 256*256
LOG2E = 0x3fb8aa3b; EPS6 = 0x358637bd; EPS5 = 0x3727c5ac; INV640 = 0x3acccccd; ONES = 0x3f803f80
SPIN = 40000
STAMPS = False
OPT = dict(slow=int(os.environ.get("SLOW", "0")))
PF = dict(reb=0, cw=1, w1b=11, tw1=0, cs1=9, gat=0, w1t=1, x0=6, x1=4, x1b=6, x2=8, opc=5, fwc=8, smx=8, binit=12, bq=7, ls=14, fpchk=18, kvE=12, kvEv=2, kvf=2, kvc=17,
          qE=0, qEv=5, oB=8, oE=4, oT=0, oS=8, oF=0, p2G=5, p2B=8, p2E=0, hW=0, hA=6, hS=0, p3f=6, p3L=7, rB=10, rEn=0, rS=4, rF=4,
          kinit=10, kfly=10, p3init=10, p3fly=10)
for k in list(PF):
    if os.environ.get("PF_"+k): PF[k] = int(os.environ["PF_"+k])

def stamp(A, n):
    A.comment(f"@S{n}")
    if not STAMPS: return
    A("s_memrealtime s[100:101]"); A("s_memtime s[98:99]"); A("s_waitcnt lgkmcnt(0)")
    A(f"v_writelane_b32 v3, s100, {n}"); A(f"v_writelane_b32 v3, s98, {n+32}")

class Cnt:
    def __init__(self, A, name, cap): self.A = A; self.q = []; self.name = name; self.cap = cap; self.seen = set(); self.cnt = 0
    def issue(self, tag, txt):
        for l in (txt if isinstance(txt, list) else [txt]): self.A(l)
        self.q.append(tag); self.seen.add(tag); self.cnt += 1
        assert self.name != "vmcnt" or len(self.q) <= 63
    def pending(self, tag): return tag in self.q
    def wait(self, tag):
        assert tag in self.seen, tag
        if tag not in self.q: return
        idx = len(self.q) - 1 - self.q[::-1].index(tag)
        n = len(self.q) - 1 - idx
        self.A(f"s_waitcnt {self.name}({min(n, self.cap)})")
        self.q = self.q[idx+1:] if n <= self.cap else self.q[len(self.q)-self.cap:]
    def drained(self): self.q = []
    def mark(self): return self.cnt
    def wait_mark(self, m):
        n = self.cnt - m
        self.A(f"s_waitcnt {self.name}({n})")
        if len(self.q) > n: self.q = self.q[len(self.q)-n:] if n else []

class Emit:
    def __init__(self): self.l = []
    def __call__(self, t): self.l.append(t)

TRC = int(os.environ.get('TRC', '8')); HEAVY = int(os.environ.get('HEAVY', '1')); MAXV = int(os.environ.get('MAXV', '2'))
import re
def unpk(l):
    m = re.match(r"v_mov_b64 v\[(\d+):\d+\], (.*)$", l)
    if m:
        d = int(m.group(1)); mm = re.match(r"v\[(\d+):", m.group(2))
        return [f"v_mov_b32 v{d+h}, " + (f"v{int(mm.group(1))+h}" if mm else m.group(2)) for h in range(2)]
    m = re.match(r"v_pk_(add|mul|fma)_f32 (.*?)( op_sel_hi:\[[\d,]+\])?$", l)
    if not m: return [l]
    ops = [o.strip() for o in m.group(2).split(",")]
    hi = [int(c) for c in re.findall(r"\d", m.group(3))] if m.group(3) else [1, 1, 1]
    def el(o, h): k, b = o[0], int(re.match(r".\[(\d+)", o).group(1)); return f"{k}{b+h}"
    out = []
    for h in range(2):
        srcs = [el(o, h if (h == 0 or hi[i]) else 0) for i, o in enumerate(ops[1:])]
        if m.group(1) != "fma" and srcs[1][0] == "s": srcs = srcs[::-1]
        out.append(f"v_{m.group(1)}_f32 {el(ops[0], h)}, " + ", ".join(srcs))
    return out
class Gaps:
    def __init__(self, A, vm, lg): self.A = A; self.vm = vm; self.lg = lg; self.q = [deque(), deque(), deque()]
    def put(self, pr, x): self.q[pr].append(x)
    def valu(self, pr, lines):
        for l in lines:
            for x in unpk(l): self.q[pr].append(("i", x))
    def vmem(self, pr, op):
        tag, txt = op
        txt = txt if isinstance(txt, list) else [txt]
        k = next(i for i, l in enumerate(txt) if l.startswith("buffer_"))
        for l in txt[:k]: self.q[pr].append(("i", l))
        self.q[pr].append(("vm", tag, txt[k]))
        for l in txt[k+1:]: self.q[pr].append(("i", l))
    def ds(self, pr, tag, txt): self.q[pr].append(("ds", tag, txt))
    def cost(self, x):
        if x[0] == "vm": return 2
        if x[0] == "i" and x[1].startswith(("v_pk", "v_exp", "v_rcp", "v_sqrt", "v_perm", "v_mov_b64")): return HEAVY
        if x[0] == "ds" and "write_b128" in x[2]: return 2
        if x[0] == "blk": return len(x[1])
        if x[0] in ("lw", "vw"): return 1 if (self.lg if x[0] == "lw" else self.vm).pending(x[1]) else 0
        return 1
    def ready(self, x):
        if x[0] == "vw": return x[1] in self.vm.seen and (not self.vm.pending(x[1]) or len(self.vm.q) - 1 - self.vm.q.index(x[1]) >= x[2] or self.force)
        if x[0] == "lw": return not self.lg.pending(x[1]) or len(self.lg.q) - 1 - self.lg.q.index(x[1]) >= x[2] or self.force
        return True
    force = False
    def run(self, x):
        if x[0] == "i": self.A(x[1])
        elif x[0] == "vm": self.vm.issue(x[1], x[2])
        elif x[0] == "ds": self.lg.issue(x[1], x[2])
        elif x[0] == "lw": self.lg.wait(x[1])
        elif x[0] == "vw": self.vm.wait(x[1])
        elif x[0] == "blk":
            for y in x[1]: self.run(y)
    def fill(self, budget=2):
        full = budget; nv = 0; ld = 16
        for q in self.q:
            while q and budget > 0 and self.ready(q[0]):
                c = self.cost(q[0])
                if c > budget and budget < full: break
                if q[0][0] == "ds":
                    lc = 16 if "b128" in q[0][2] else TRC
                    if lc > ld: break
                    ld -= lc
                if q[0][0] == "i" and q[0][1].startswith("v_"):
                    if nv >= MAXV: break
                    nv += 1
                self.run(q.popleft()); budget -= c
    def mfma(self, d, x, y, c=None, budget=2):
        self.A(f"v_mfma_f32_16x16x32_bf16 {d}, {x}, {y}, {d if c is None else c}")
        self.fill(budget)
    def flush(self, pr=None):
        self.force = True
        for i, q in enumerate(self.q):
            if pr is None or i == pr:
                while q: self.run(q.popleft())
        self.force = False

def merge(A, vm, stream, side, every=None):
    n = len(stream); k = len(side)
    step = every if every else max(1, n // (k + 1))
    j = 0
    for i, t in enumerate(stream):
        A(t)
        if (i + 1) % step == 0 and j < k:
            vm.issue(*side[j]); j += 1
    while j < k:
        vm.issue(*side[j]); j += 1

def mfma(A, d, x, y, c=None):
    A(f"v_mfma_f32_16x16x32_bf16 {d}, {x}, {y}, {d if c is None else c}")

def kperm(A, dst, p, t1, t2):
    A(f"v_and_b32 {v(t1)}, 12, {v(p)}"); A(f"v_lshlrev_b32 {v(t1)}, 1, {v(t1)}")
    A(f"v_lshrrev_b32 {v(t2)}, 4, {v(p)}"); A(f"v_lshlrev_b32 {v(t2)}, 2, {v(t2)}")
    A(f"v_and_b32 {v(dst)}, 3, {v(p)}")
    A(f"v_or3_b32 {v(dst)}, {v(dst)}, {v(t1)}, {v(t2)}")

def ln_stats2(E, pairs, tmps):
    def each(f):
        for k, (a_, b_) in enumerate(pairs): f(a_, b_, tmps[k])
    def rnd(r): return [f"v_cvt_pk_bf16_f32 {v(r)}, {v(r)}, {v(r)}", f"v_and_b32 {v(r)}, 0xffff0000, {v(r)}"]
    each(lambda a_, b_, t: E(f"v_mul_f32 {v(a_)}, s93, {v(a_)}"))
    each(lambda a_, b_, t: E(f"v_mul_f32 {v(t)}, {v(a_)}, {v(a_)}"))
    each(lambda a_, b_, t: E(f"v_fma_f32 {v(b_)}, {v(b_)}, s93, -{v(t)}"))
    each(lambda a_, b_, t: E(f"v_max_f32 {v(b_)}, 0, {v(b_)}"))
    each(lambda a_, b_, t: E(rnd(b_)[0])); each(lambda a_, b_, t: E(rnd(a_)[0]))
    each(lambda a_, b_, t: E(rnd(b_)[1])); each(lambda a_, b_, t: E(rnd(a_)[1]))
    each(lambda a_, b_, t: E(f"v_add_f32 {v(b_)}, 0x{EPS5:x}, {v(b_)}"))
    each(lambda a_, b_, t: E(f"v_xor_b32 {v(a_)}, 0x80000000, {v(a_)}"))
    each(lambda a_, b_, t: E(rnd(b_)[0])); each(lambda a_, b_, t: E(rnd(b_)[1]))
    each(lambda a_, b_, t: E(f"v_sqrt_f32 {v(b_)}, {v(b_)}"))
    each(lambda a_, b_, t: E(rnd(b_)[0])); each(lambda a_, b_, t: E(rnd(b_)[1]))
    each(lambda a_, b_, t: E(f"v_rcp_f32 {v(b_)}, {v(b_)}"))

def take(Q, n):
    out = Q[:n]; del Q[:n]; return out

def gen(A):
    K = NAME + "_kernel"
    kernel_begin(A, K)
    SI, SG, SJ, SC = 30, 31, 28, 29
    SX, SW, SWS, SD, SP = 32, 36, 40, 44, 48
    NON = 94
    vL16 = 2
    vm = Cnt(A, "vmcnt", 63); lg = Cnt(A, "lgkmcnt", 15); G = Gaps(A, vm, lg)
    sMODE = 84
    def dual(txt):
        k = "O" if f"{s(sO)} offen" in txt else ("R" if f"{s(sR)} offen" in txt else "H")
        return [txt.replace("SRD", s(SWS,4)) + (" sc1" if k in os.environ.get("WT", "OHR") else "")]
    vNF = 242
    def set_flag(off_sgpr, both=False):
        lab = A.newlabel("nf"); slow = A.newlabel("sl")
        A("s_cmp_lg_u32 s26, 0"); A(f"s_cbranch_scc1 {lab}")
        A("s_mov_b64 exec, 1")
        x = f"buffer_store_dwordx2 {v(vNF,2)}, {v(vNF+2)}, {s(SWS,4)}, {s(off_sgpr)} offen"
        if both:
            A(f"s_cmp_lg_u32 {s(sMODE)}, 1"); A(f"s_cbranch_scc1 {slow}")
            A(x); A("s_mov_b64 exec, -1"); A(f"s_branch {lab}")
            A.label(slow)
            A("buffer_wbl2 sc1"); A("s_waitcnt vmcnt(0)")
        A(x + " sc1")
        A("s_mov_b64 exec, -1")
        A.label(lab)
    def poll(off_sgpr, tmp):
        lab = A.newlabel("pl"); done = A.newlabel("pd")
        A("s_mov_b32 s96, 0")
        A.label(lab)
        A(f"buffer_load_dwordx2 {v(tmp,2)}, {v(vSA)}, {s(SWS,4)}, {s(off_sgpr)} offen sc1")
        A("s_waitcnt vmcnt(0)")
        A(f"v_cmp_ne_u64 vcc, {s(NON,2)}, {v(tmp,2)}")
        A("s_add_u32 s96, s96, 1")
        A(f"s_cbranch_vccz {done}")
        A(f"s_cmp_lt_u32 s96, {SPIN}"); A(f"s_cbranch_scc1 {lab}")
        A.label(done)
        vm.drained()
    def run_loads(tag, dst, sbase, n, flags="sc1"):
        ops = []
        for k in range(n):
            t = [f"buffer_load_dwordx4 {dst(k)}, {v(vL16)}, {s(SWS,4)}, {s(sbase)} offen offset:{(k%4)*1024} {flags}"]
            if k % 4 == 3 and k + 1 < n: t.append(f"s_add_u32 {s(sbase)}, {s(sbase)}, 4096")
            ops.append((tag(k), t))
        return ops

    MISC = 155648
    L_KVN = MISC; L_KVD = MISC + 6144; L_RSTD = MISC + 6400; L_CS = L_RSTD + 1024
    L_PACK = 126976; L_XR = 12288; NXR = 7; L_Q = 102400; L_XT = 139264; L_RED2 = 77824; L_CS3 = L_RSTD; L_KR = 69632; L_CP = 153600
    t0, t1, t2, t3, t4, t5 = range(24, 30)
    vXa, vXb, vU, vUr = 4, 5, 6, 7
    vXr = [8, 9]; vBa = [10, 11, 12]; vQ7 = 13; vUo = 14; vCSa = 15
    vSw, vSr, vC0, vC1, vC2 = 16, 17, 30, 31, 32
    vONE = 20
    vBF = 36; vAK = 76; vAQ = 116; vAS = 148; vASS = 214
    XF = lambda s_, mt: a((2*s_+mt)*4, 4)
    BFr = lambda b, t: vBF + (b*5+t)*4
    AK = lambda mt, t: vAK + (mt*5+t)*4
    AQ = lambda mt, t: vAQ + (mt*3+t)*4
    OPA = 222; g0, g1, g2, pr, fl, xa = 226, 227, 228, 229, 230, 233
    vOA, vHA, vRA, vSA = 236, 237, 238, 239
    sO, sH, sR, sST, sKV = 4, 5, 6, 7, 8
    RS = 156; NM = 164; RL2 = 172; CSK = 180; rl = 190; nl = 194; rl2 = 198; CSQ = 202
    A("s_cmp_ge_u32 s2, 256"); A("s_cbranch_scc1 L_end")
    if STAMPS: A("v_mov_b32 v3, 0")
    stamp(A, 0)
    A("s_load_dwordx4 s[4:7], s[0:1], 0")
    if PF["cw"]:
        A(f"s_cmp_ge_u32 s2, {8*PF['cw']}"); A("s_cbranch_scc1 CW_skip")
        A("s_getpc_b64 s[60:61]"); A.label("CW_pc"); A(f"v_lshlrev_b32 {v(33)}, 7, v0"); A(f"v_min_u32 {v(33)}, L_end-CW_pc, {v(33)}")
        A(f"global_load_dword {v(35)}, {v(33)}, s[60:61]")
        A.label("CW_skip")
    A("v_lshrrev_b32 v2, 6, v0"); A("v_and_b32 v1, 63, v0"); A("v_readfirstlane_b32 s26, v2")
    A("s_and_b32 s27, s2, 7"); A(f"s_bfe_u32 s53, s2, 0x10003"); A(f"s_lshl1_add_u32 {s(SI)}, s27, s53"); A(f"s_lshr_b32 {s(SG)}, s2, 4")
    A(f"v_lshrrev_b32 {v(t0)}, 4, v1")
    A(f"v_lshlrev_b32 {v(t2)}, 2, {v(t0)}"); A(f"v_and_b32 {v(t1)}, 15, v1"); A(f"v_xor_b32 {v(t1)}, {v(t1)}, {v(t2)}"); A(f"v_min_u32 {v(t1)}, 14, {v(t1)}")
    A(f"v_mul_u32_u24 {v(t2)}, 52, {v(t1)}"); A(f"v_lshrrev_b32 {v(t2)}, 8, {v(t2)}")
    A(f"v_add_u32 {v(t3)}, 1, {v(t2)}"); A(f"v_cmp_eq_u32 vcc, 2, {v(t2)}"); A(f"v_cndmask_b32 {v(t3)}, {v(t3)}, 0, vcc")
    A(f"v_mul_u32_u24 {v(t3)}, 80, {v(t3)}"); A(f"v_mul_u32_u24 {v(t2)}, 5, {v(t2)}"); A(f"v_sub_u32 {v(t1)}, {v(t1)}, {v(t2)}")
    A(f"v_mul_u32_u24 {v(t0)}, 240, {v(t0)}"); A(f"v_add3_u32 {v(t1)}, {v(t1)}, {v(t3)}, {v(t0)}"); A(f"v_lshlrev_b32 {v(vU)}, 4, {v(t1)}")
    A(f"s_mul_i32 s56, {s(SI)}, 10"); A("s_add_u32 s56, s56, s26"); A(f"s_mul_i32 s56, s56, {4*3840}"); A(f"s_mul_i32 s53, {s(SG)}, 80"); A("s_add_u32 s56, s56, s53")
    A(f"s_add_u32 s57, s56, {16*3840}"); A(f"s_add_u32 s58, s56, {32*3840}")
    A("s_cmp_ge_u32 s26, 2"); A("s_cselect_b32 s58, 0x7fffffff, s58")
    A("s_lshl_b32 s83, s26, 10")
    A(f"s_mov_b32 {s(SW+2)}, {640*3840}"); A(f"s_mov_b32 {s(SW+3)}, 0x00020000"); A("s_mov_b32 m0, s83")
    A("s_waitcnt lgkmcnt(0)")
    A(f"s_mov_b32 {s(SW)}, s6"); A(f"s_and_b32 {s(SW+1)}, s7, 0xffff")
    for n in range(3): vm.issue(("u",), ([f"s_add_u32 m0, s83, {n*4096}", "s_nop 0"] if n else []) + [f"buffer_load_dwordx4 {v(vU)}, {s(SW,4)}, {s(56+n)} offen lds"])
    A("s_load_dwordx8 s[8:15], s[0:1], 16")
    A("s_load_dwordx8 s[16:23], s[0:1], 48")
    A("s_load_dwordx2 s[24:25], s[0:1], 80")
    A(f"s_memrealtime {s(NON,2)}")
    A(f"v_lshlrev_b32 {v(vL16)}, 4, v1")
    A(f"s_and_b32 s53, {s(SG)}, 1"); A(f"s_lshl1_add_u32 {s(SJ)}, {s(SI)}, s53"); A(f"s_lshr_b32 {s(SC)}, {s(SG)}, 1")
    A(f"s_mul_i32 s68, {s(SI)}, 5"); A("s_cmp_ge_u32 s26, 2"); A("s_cselect_b32 s69, 1, 0"); A("s_mov_b32 s67, 0")
    A(f"v_lshlrev_b32 {v(34)}, 7, v1")
    A(f"s_lshl_b32 s52, {s(SI)}, 4"); A(f"s_add_u32 s52, s52, {s(SG)}"); A("s_lshl_b32 s52, s52, 2"); A("s_add_u32 s52, s52, s26"); A("s_mul_i32 s52, s52, 2560")
    def x_ops(c):
        return [(("x", c), [f"s_add_u32 m0, s59, {(c%NXR)*4096+mt*2048+h*1024}", f"s_movk_i32 s63, {c*128+mt*20480}" if h == 0 else "s_nop 0",
                            f"buffer_load_dwordx4 {v(vXb if h else vXa)}, {s(SX,4)}, s63 offen lds"]) for mt in range(2) for h in range(2)]
    srd(A, SX, 4, 2048*1280)
    A("s_mov_b64 exec, 0xfffff")
    vm.issue(("tch",), f"buffer_load_dword {v(35)}, {v(34)}, {s(SX,4)}, s52 offen")
    A("s_mov_b64 exec, -1")
    A(f"v_lshrrev_b32 {v(t0)}, 3, v1"); A(f"v_and_b32 {v(t1)}, 7, v1"); A(f"v_lshrrev_b32 {v(t2)}, 1, {v(t0)}")
    A(f"v_xor_b32 {v(t3)}, {v(t1)}, {v(t2)}"); A(f"v_xor_b32 {v(t4)}, 4, {v(t3)}")
    A(f"s_lshl_b32 s54, {s(SI)}, 7"); A("s_lshl_b32 s53, s26, 5"); A("s_add_u32 s54, s54, s53")
    A(f"v_add_u32 {v(t0)}, s54, {v(t0)}"); A(f"v_mul_u32_u24 {v(t0)}, 1280, {v(t0)}")
    A(f"v_lshl_add_u32 {v(vXa)}, {v(t3)}, 4, {v(t0)}"); A(f"v_lshl_add_u32 {v(vXb)}, {v(t4)}, 4, {v(t0)}")
    A(f"v_add_u32 {v(vXb)}, {8*1280}, {v(vXb)}")
    A(f"s_mul_i32 s59, s26, {NXR*4096}"); A(f"s_add_u32 s59, s59, {L_XR}")
    A("s_waitcnt lgkmcnt(0)")
    if PF["w1t"]:
        srd(A, SP, 12, 640*3072)
        if PF["w1t"] == 1:
            A("s_lshl_b32 s53, s2, 2"); A("s_add_u32 s53, s53, s26"); A("s_mul_i32 s53, s53, 1920"); A("s_mov_b64 exec, 0x7fff")
            vm.issue(("tch",), f"buffer_load_dword {v(35)}, {v(34)}, {s(SP,4)}, s53 offen")
        else:
            A("s_lshr_b32 s53, s2, 3"); A("s_lshl_b32 s53, s53, 2"); A("s_add_u32 s53, s53, s26"); A("s_mul_i32 s53, s53, 15360"); A("s_mov_b64 exec, 0xfffffffffffffff" if False else "s_mov_b64 exec, -1")
            vm.issue(("tch",), f"buffer_load_dword {v(35)}, {v(34)}, {s(SP,4)}, s53 offen")
            A("s_add_u32 s53, s53, 7168")
            vm.issue(("tch",), f"buffer_load_dword {v(35)}, {v(34)}, {s(SP,4)}, s53 offen")
        A("s_mov_b64 exec, -1")
    stamp(A, 1)
    srd(A, SD, 22, 256)
    A("s_xor_b32 s53, s2, 2"); A("s_or_b32 s53, s53, s26"); A("s_cmp_lg_u32 s53, 0"); A("s_cbranch_scc1 N_skip")
    A(f"v_mov_b32 {v(t0)}, {s(NON)}"); A(f"v_mov_b32 {v(t1)}, {s(NON+1)}"); A(f"v_mov_b32 {v(t2)}, 0")
    A("s_mov_b64 exec, 1")
    A(f"buffer_store_dwordx2 {v(t0,2)}, {v(t2)}, {s(SD,4)}, 0 offen sc1")
    A("s_mov_b64 exec, -1")
    A.label("N_skip")
    srd(A, SWS, 24, WS_END)
    PAD = vBF + 8
    for j in range(4):
        A(f"v_lshrrev_b32 {v(t0)}, 3, v1"); A(f"v_add_u32 {v(t0)}, {8*j}, {v(t0)}")
        kperm(A, t1, t0, t2, t3)
        A(f"v_bfe_u32 {v(t2)}, v1, 1, 2"); A(f"v_bfe_u32 {v(t3)}, {v(t0)}, 1, 2"); A(f"v_xor_b32 {v(t2)}, {v(t2)}, {v(t3)}")
        A(f"v_and_b32 {v(t3)}, 1, v1"); A(f"v_lshl_or_b32 {v(t2)}, {v(t2)}, 1, {v(t3)}")
        A(f"v_mul_u32_u24 {v(t1)}, 1280, {v(t1)}"); A(f"v_lshl_add_u32 {v(PAD+j)}, {v(t2)}, 4, {v(t1)}")
    A("s_lshl_b32 s80, s2, 1"); A("s_add_u32 s80, s80, s26")
    A("s_cmp_lt_u32 s2, 240"); A("s_cselect_b32 s90, 2, 0")
    A("s_and_b32 s53, s2, 1"); A("s_add_u32 s53, s53, 2"); A("s_cmp_eq_u32 s53, s26"); A("s_cselect_b32 s91, 1, 0")
    A("s_cmp_lt_u32 s2, 200"); A("s_cselect_b32 s91, s91, 0")
    A("s_cmp_lt_u32 s26, 2"); A("s_cselect_b32 s90, s90, s91"); A("s_cselect_b32 s80, s80, s2")
    A(f"s_cselect_b64 {s(SP,2)}, s[16:17], s[8:9]"); A("s_cselect_b32 s86, 12, 5"); A(f"s_mov_b32 s85, {WS_WO}"); A(f"s_cselect_b32 s85, {WS_W2}, s85")
    A(f"s_mov_b32 {s(SP+2)}, {640*1280}"); A(f"s_cselect_b32 {s(SP+2)}, {1536*1280}, {s(SP+2)}")
    A(f"s_and_b32 {s(SP+1)}, {s(SP+1)}, 0xffff"); A(f"s_mov_b32 {s(SP+3)}, 0x00020000")
    A("s_mul_i32 s78, s80, 6554"); A("s_lshr_b32 s78, s78, 16"); A("s_mul_i32 s79, s78, 10"); A("s_sub_u32 s79, s80, s79")
    A("s_mul_i32 s87, s78, 40960"); A("s_lshl_b32 s88, s79, 7"); A("s_add_u32 s87, s87, s88")
    A("s_lshl_b32 s81, s26, 12"); A(f"s_add_u32 s81, s81, {L_PACK}")
    A("s_cmp_eq_u32 s90, 0"); A("s_cselect_b32 s87, 0x7fffffff, s87")
    op_txt = [[f"s_add_u32 m0, s81, {j*1024}", "s_nop 0", f"buffer_load_dwordx4 {v(PAD+j)}, {s(SP,4)}, s87 offen lds"] for j in range(4)]
    A("s_cmp_lg_u32 s90, 1"); A("s_cbranch_scc1 E_no")
    for x in op_txt:
        for y in x: A(y)
    A("s_mov_b32 s87, 0x7fffffff")
    A.label("E_no")
    op_loads = [(("op",), x) for x in op_txt]
    XQ = []
    for c in range(NXR): XQ += x_ops(c)
    for x in take(XQ, PF["x0"]): vm.issue(*x)
    stamp(A, 26)
    sDST = [16, 17, 89, 91]
    A("s_mul_i32 s84, s86, 20"); A("s_mul_i32 s88, s78, 5")
    A("s_mul_i32 s60, s78, 43"); A("s_lshr_b32 s60, s60, 9"); A(f"s_mul_i32 s60, s60, {PADW}")
    A("s_cmp_lt_u32 s26, 2"); A("s_cselect_b32 s60, s60, 0"); A(f"s_cselect_b32 s61, {4*PADW}, 0"); A("s_add_u32 s88, s88, s60"); A("s_add_u32 s84, s84, s61")
    for j in range(4):
        A("s_lshl_b32 s60, s79, 2"); A(f"s_add_u32 s60, s60, {j}"); A("s_mul_i32 s61, s60, 52"); A("s_lshr_b32 s61, s61, 8")
        A("s_mul_i32 s62, s61, 5"); A("s_sub_u32 s60, s60, s62"); A("s_mul_i32 s61, s61, s84"); A("s_add_u32 s60, s60, s61"); A("s_add_u32 s60, s60, s88")
        A("s_lshl_b32 s60, s60, 10"); A(f"s_add_u32 {s(sDST[j])}, s60, s85")
    A("s_cmp_eq_u32 s90, 0")
    for j in range(4): A(f"s_cselect_b32 {s(sDST[j])}, 0x7fffffff, {s(sDST[j])}")
    A(f"v_lshrrev_b32 {v(t0)}, 4, v1"); A("s_and_b32 s60, s26, 1"); A("s_lshl_b32 s60, s60, 2"); A(f"v_add_u32 {v(t0)}, s60, {v(t0)}")
    A(f"v_bfe_u32 {v(t1)}, v1, 2, 2"); A(f"v_lshlrev_b32 {v(t2)}, 1, {v(t1)}"); A(f"v_xor_b32 {v(t2)}, {v(t2)}, {v(t0)}")
    A(f"v_lshlrev_b32 {v(t1)}, 8, {v(t1)}"); A(f"v_lshl_or_b32 {v(t1)}, {v(t2)}, 5, {v(t1)}")
    A(f"v_and_b32 {v(t2)}, 3, v1"); A(f"v_lshl_or_b32 {v(t1)}, {v(t2)}, 3, {v(t1)}")
    A("s_lshr_b32 s60, s26, 1"); A("s_lshl_b32 s61, s60, 11"); A(f"v_add_u32 {v(vUr)}, s61, {v(t1)}")
    A(f"v_and_b32 {v(t1)}, 15, v1")
    A(f"v_lshlrev_b32 {v(t2)}, 2, v0"); A(f"v_add_u32 {v(vCSa)}, {L_RSTD}, {v(t2)}"); A(f"v_add_u32 {v(33)}, {L_RSTD}, {v(vL16)}")
    A(f"v_cmp_le_u32 s[70:71], 5, {v(t0)}"); A(f"v_cmp_eq_u32 s[72:73], 7, {v(t0)}"); A(f"v_cmp_le_u32 s[74:75], 8, {v(t1)}")
    A(f"v_add_u32 {v(t2)}, -5, {v(t0)}"); A(f"v_cndmask_b32 {v(t2)}, {v(t0)}, {v(t2)}, s[70:71]")
    A(f"v_lshlrev_b32 {v(t2)}, 10, {v(t2)}"); A(f"v_lshl_or_b32 {v(vUo)}, {v(t1)}, 4, {v(t2)}")
    A("s_and_b64 s[74:75], s[74:75], s[72:73]"); A("s_not_b64 s[74:75], s[74:75]")
    A("s_add_u32 s61, s68, s60")
    A(f"s_mul_i32 s62, {s(SG)}, 153600"); A(f"s_add_u32 s82, s62, {WS_WQ}")
    for r in range(4): A(f"v_mov_b32 {v(vONE+r)}, 0x{ONES:x}")
    UA = 48; UF = 52
    for r in range(3):
        A(f"s_add_u32 s62, s61, {2*r}")
        A("s_lshr_b32 s63, s62, 2"); A("s_and_b32 s62, s62, 3"); A("s_lshl_b32 s62, s62, 8")
        A("s_mul_i32 s64, s63, 5120"); A("s_add_u32 s64, s64, s62")
        A("s_lshr_b32 s65, s63, 1"); A("s_mul_i32 s65, s65, 5120"); A("s_add_u32 s65, s65, s62"); A("s_add_u32 s65, s65, 102400")
        A("s_and_b32 s63, s63, 1"); A("s_lshl_b32 s62, s63, 7"); A("s_add_u32 s62, s62, s65"); A("s_add_u32 s62, s62, 2048")
        A("s_lshl_b32 s63, s63, 11"); A("s_add_u32 s65, s65, s63")
        A(f"v_mov_b32 {v(t0)}, s64"); A(f"v_mov_b32 {v(t1)}, s65"); A(f"v_mov_b32 {v(t2)}, s62")
        A(f"v_cndmask_b32 {v(t0)}, {v(t0)}, {v(t1)}, s[70:71]"); A(f"v_cndmask_b32 {v(t0)}, {v(t0)}, {v(t2)}, s[72:73]")
        A(f"v_add_u32 {v(UA+r)}, {v(t0)}, {v(vUo)}")
    A("s_cmp_eq_u32 s69, 1"); A("s_cselect_b32 s56, 0x7fffffff, s82"); A("s_cmp_eq_u32 s67, 1"); A("s_cselect_b32 s57, 0x7fffffff, s82")
    A(f"s_lshl_b32 s62, {s(SG)}, 4"); A(f"s_add_u32 s62, s62, {s(SI)}"); A("s_lshl_b32 s55, s62, 9"); A(f"s_add_u32 s55, s55, {WS_CP}")
    A("s_lshl_b32 s97, s62, 3"); A(f"s_add_u32 s97, s97, {WS_FW}")
    A(f"v_mov_b32 {v(vNF+2)}, 0")
    stamp(A, 27)
    vm.wait(("u",)); A("s_barrier")
    stamp(A, 2)
    for r in range(3):
        for jj in range(2): lg.issue(("uf", r), f"ds_read_b64_tr_b16 {v(UF+4*r+2*jj,2)}, {v(vUr)} offset:{r*4096+jj*1024}")
    vm.issue(("non",), f"buffer_load_dwordx2 {v(vNF,2)}, {v(vNF+2)}, {s(SD,4)}, 0 offen sc1")
    A("s_mov_b64 exec, s[74:75]")
    for r in range(3):
        lg.wait(("uf", r))
        vm.issue(("ust",), f"buffer_store_dwordx4 {v(UF+4*r,4)}, {v(UA+r)}, {s(SWS,4)}, {'s56' if r == 2 else 's57'} offen sc1")
    A("s_mov_b64 exec, -1")
    for r in range(4): A(f"v_dot2_f32_bf16 {v(68+r)}, {v(UF+r)}, {v(vONE)}, 0")
    for r in range(4, 12): A(f"v_dot2c_f32_bf16 {v(68+r%4)}, {v(UF+r)}, {v(vONE)}")
    for x in take(XQ, PF["x1"]): vm.issue(*x)
    A(f"v_pk_add_f32 {v(68,2)}, {v(68,2)}, {v(70,2)}"); A(f"v_add_f32 {v(68)}, {v(68)}, {v(69)}")
    A(f"ds_write_b32 {v(vCSa)}, {v(68)}")
    A("s_waitcnt lgkmcnt(0)"); A("s_barrier")
    A("s_cmp_lg_u32 s26, 1"); A("s_cbranch_scc1 CS_skip")
    A("s_mov_b64 exec, 0xffffffff")
    A(f"ds_read_b128 {v(UF,4)}, {v(33)}"); A(f"ds_read_b128 {v(UF+4,4)}, {v(33)} offset:512"); A("s_waitcnt lgkmcnt(0)")
    for r in (0, 2): A(f"v_pk_add_f32 {v(UF+r,2)}, {v(UF+r,2)}, {v(UF+4+r,2)}")
    A(f"buffer_store_dwordx4 {v(UF,4)}, {v(vL16)}, {s(SWS,4)}, s55 offen sc1")
    A("s_mov_b64 exec, -1")
    A.label("CS_skip")
    mk = vm.mark()
    l0, l1, l2, l3, l4 = 68, 69, 70, 71, 72
    E = Emit()
    E(f"v_and_b32 {v(l0)}, 15, v1"); E(f"v_lshrrev_b32 {v(l1)}, 4, v1"); E(f"v_bfe_u32 {v(l2)}, v1, 1, 3")
    E(f"v_xor_b32 {v(l2)}, {v(l1)}, {v(l2)}"); E(f"v_lshl_add_u32 {v(l2)}, {v(l0)}, 3, {v(l2)}"); E(f"v_lshlrev_b32 {v(l2)}, 4, {v(l2)}")
    E(f"v_add_u32 {v(vXr[0])}, s59, {v(l2)}"); E(f"v_xor_b32 {v(vXr[1])}, 64, {v(vXr[0])}"); E(f"v_lshlrev_b32 {v(vSA)}, 3, {v(l0)}")
    E(f"v_lshrrev_b32 {v(l0)}, 2, v1"); E(f"v_bfe_u32 {v(l1)}, v1, 3, 2")
    E(f"v_lshlrev_b32 {v(l0)}, 7, {v(l0)}"); E(f"v_lshl_or_b32 {v(l0)}, {v(l1)}, 5, {v(l0)}")
    E(f"v_and_b32 {v(l1)}, 3, v1"); E(f"v_lshl_or_b32 {v(l0)}, {v(l1)}, 3, {v(l0)}")
    for t in range(4): E(f"v_xor_b32 {v(OPA+t)}, {t*32}, {v(l0)}"); E(f"v_add_u32 {v(OPA+t)}, s81, {v(OPA+t)}")
    E(f"v_mov_b64 {v(l2,2)}, 0"); E(f"v_mov_b64 {v(l4,2)}, 0")
    E(f"v_lshlrev_b32 {v(l0)}, 4, v0"); E(f"v_min_u32 {v(l1)}, {6384-4096}, {v(l0)}")
    E(f"v_add_u32 {v(l0)}, {L_KVN}, {v(l0)}"); E(f"v_add_u32 {v(l1)}, {L_KVN+4096}, {v(l1)}")
    E(f"ds_write_b128 {v(l0)}, {v(l2,4)}"); E(f"ds_write_b128 {v(l1)}, {v(l2,4)}")
    E(f"v_mov_b32 {v(vBa[0])}, {v(vL16)}"); E(f"v_add_u32 {v(vBa[1])}, 51200, {v(vL16)}"); E(f"v_add_u32 {v(vBa[2])}, {L_Q}, {v(vL16)}")
    E(f"s_lshl_b32 s66, {s(SG)}, 7"); E(f"s_add_u32 s66, s66, {WS_FW}")
    E(f"s_lshl_b32 s67, {s(SG)}, 2"); E("s_add_u32 s67, s67, s26"); E("s_lshl_b32 s67, s67, 11"); E(f"s_add_u32 s67, s67, {WS_CP}")
    E("s_mul_i32 s69, s26, 5120"); E("s_add_u32 s82, s82, s69")
    E(f"s_lshl_b32 s9, {s(SI)}, 4"); E(f"s_add_u32 s9, s9, {s(SG)}"); E("s_lshl_b32 s9, s9, 3"); E(f"s_add_u32 s9, s9, {WS_FP}")
    E("s_getreg_b32 s92, hwreg(HW_REG_XCC_ID, 0, 4)")
    E(f"s_mul_i32 s65, {s(SG)}, {16*KV_STRIDE}"); E(f"s_add_u32 s65, s65, {WS_KV}")
    E(f"v_lshlrev_b32 {v(g1)}, 4, v0"); E(f"v_add_u32 {v(g1)}, s65, {v(g1)}")
    E(f"v_cmp_gt_u32 vcc, 210, v0"); E("s_mov_b64 s[10:11], vcc")
    E(f"s_mul_i32 {s(sKV)}, {s(SI)}, {KV_STRIDE}")
    E(f"v_mov_b64 {v(64,2)}, -1"); E(f"v_mov_b64 {v(66,2)}, -1")
    merge(A, vm, E.l, take(XQ, PF["x1b"]))
    stamp(A, 25)
    vm.wait(("non",))
    A("s_mov_b32 s96, 0")
    A.label("N_l")
    A(f"v_readfirstlane_b32 {s(NON)}, {v(vNF)}"); A(f"v_readfirstlane_b32 {s(NON+1)}, {v(vNF+1)}")
    A(f"s_or_b32 s62, {s(NON)}, {s(NON+1)}"); A("s_cmp_lg_u32 s62, 0"); A("s_cbranch_scc1 N_d")
    A(f"buffer_load_dwordx2 {v(vNF,2)}, {v(vNF+2)}, {s(SD,4)}, 0 offen sc1"); A("s_waitcnt vmcnt(0)")
    A("s_add_u32 s96, s96, 1"); A(f"s_cmp_lt_u32 s96, {SPIN}"); A("s_cbranch_scc1 N_l")
    A.label("N_d")
    vm.wait_mark(mk)
    A("s_barrier")
    set_flag(97)
    stamp(A, 20)
    A("s_mov_b64 exec, s[10:11]")
    vm.issue(("pre",), f"buffer_store_dwordx4 {v(64,4)}, {v(g1)}, {s(SWS,4)}, {s(sKV)} offen sc1")
    A("s_mov_b64 exec, -1")
    A("s_cmp_lg_u32 s90, 1"); A("s_cbranch_scc1 E_nob")
    for t in range(4):
        for jj in range(2): A(f"ds_read_b64_tr_b16 {v(vAK+4*t+2*jj,2)}, {v(OPA+t)} offset:{jj*2048}")
    for t in range(4):
        A(f"s_waitcnt lgkmcnt({6-2*t})")
        A(f"buffer_store_dwordx4 {v(vAK+4*t,4)}, {v(vL16)}, {s(SWS,4)}, {s(sDST[t])} offen sc1")
        A(f"s_mov_b32 {s(sDST[t])}, 0x7fffffff")
    A.label("E_nob")
    for x in take(XQ, PF["x2"]): vm.issue(*x)
    A(f"s_lshl_b32 s62, {s(NON+1)}, 4"); A("s_or_b32 s92, s92, s62")
    A(f"v_mov_b32 {v(t0)}, {s(NON)}"); A(f"v_mov_b32 {v(t1)}, s92")
    E = Emit()
    E(f"v_and_b32 {v(l0)}, 15, v1"); E(f"v_lshrrev_b32 {v(l1)}, 4, v1"); E("s_lshl_b32 s64, s26, 7")
    E(f"v_lshl_add_u32 {v(vSw)}, {v(l0)}, 2, s64"); E(f"v_add_u32 {v(vSw)}, {L_RSTD}, {v(vSw)}")
    E(f"v_lshl_add_u32 {v(vSr)}, {v(l1)}, 4, s64"); E(f"v_add_u32 {v(vSr)}, {L_RSTD}, {v(vSr)}")
    E(f"v_and_b32 {v(vC0)}, 0x1f0, {v(vL16)}"); E("s_lshl_b32 s64, s26, 9"); E(f"s_add_u32 s64, s64, {L_CP}"); E(f"v_add_u32 {v(vC0)}, s64, {v(vC0)}")
    E(f"v_lshlrev_b32 {v(vC1)}, 2, {v(l0)}"); E(f"v_add_u32 {v(vC1)}, {L_CP}, {v(vC1)}")
    E(f"v_lshlrev_b32 {v(vC2)}, 4, {v(l1)}"); E(f"v_add_u32 {v(vC2)}, {L_CP+320}, {v(vC2)}")
    E(f"v_and_b32 {v(l2)}, 3, v1")
    E(f"v_cmp_eq_u32 s[70:71], 1, {v(l2)}"); E(f"v_cmp_eq_u32 s[72:73], 2, {v(l2)}"); E(f"v_cmp_eq_u32 s[74:75], 3, {v(l2)}")
    E(f"v_bfe_u32 {v(l2)}, v1, 2, 2"); E(f"v_cmp_eq_u32 s[60:61], {v(l2)}, {v(l1)}")
    E(f"s_mov_b32 s93, 0x{INV640:x}")
    E(f"s_mov_b32 s78, 0x{LOG2E:x}"); E(f"s_mov_b32 s79, 0x{EPS6:x}"); E("s_mov_b32 s77, s79"); E("s_mov_b32 s76, s79")
    E(f"v_lshlrev_b32 {v(fl+2)}, 3, v0")
    E(f"s_lshl_b32 s52, {s(SI)}, 7"); E(f"s_add_u32 s52, s52, {WS_FP}"); E(f"s_mov_b32 s53, {WS_FP}")
    E(f"v_and_b32 {v(vQ7)}, 0x37f, {v(vL16)}"); E(f"v_add_u32 {v(vQ7)}, {L_Q+4096}, {v(vQ7)}")
    E(f"v_bfe_u32 {v(l1)}, v1, 4, 1"); E(f"v_lshrrev_b32 {v(l2)}, 5, v1")
    E(f"v_lshlrev_b32 {v(l2)}, 8, {v(l2)}"); E(f"v_lshl_or_b32 {v(l2)}, {v(l0)}, 4, {v(l2)}")
    E(f"v_mul_u32_u24 {v(vOA)}, {80*256}, {v(l1)}"); E(f"v_add_u32 {v(vOA)}, {v(vOA)}, {v(l2)}")
    E(f"v_mul_u32_u24 {v(vRA)}, {RS_*256}, {v(l1)}"); E(f"v_add_u32 {v(vRA)}, {v(vRA)}, {v(l2)}")
    E(f"v_lshl_add_u32 {v(vHA)}, {v(l1)}, 9, {v(l2)}")
    E(f"s_lshl_b32 s64, {s(SI)}, 3"); E("s_lshl_b32 s65, s26, 1"); E("s_add_u32 s64, s64, s65")
    E(f"s_mul_i32 {s(sO)}, s64, 80"); E(f"s_mul_i32 s65, {s(SG)}, 5"); E(f"s_add_u32 {s(sO)}, {s(sO)}, s65"); E(f"s_lshl_b32 {s(sO)}, {s(sO)}, 8"); E(f"s_add_u32 {s(sO)}, {s(sO)}, {WS_O}")
    E(f"s_mul_i32 {s(sR)}, s64, {RS_}"); E(f"s_mul_i32 s65, {s(SG)}, 12"); E(f"s_add_u32 {s(sR)}, {s(sR)}, s65"); E(f"s_lshr_b32 s65, {s(SG)}, 2"); E(f"s_mul_i32 s65, s65, {PADR}"); E(f"s_add_u32 {s(sR)}, {s(sR)}, s65"); E(f"s_lshl_b32 {s(sR)}, {s(sR)}, 8"); E(f"s_add_u32 {s(sR)}, {s(sR)}, {WS_R}")
    E(f"s_lshl_b32 s64, {s(SJ)}, 2"); E("s_add_u32 s64, s64, s26")
    E(f"s_mul_i32 {s(sH)}, s64, {HS}"); E(f"s_mul_i32 s65, {s(SC)}, 10"); E(f"s_add_u32 {s(sH)}, {s(sH)}, s65"); E(f"s_lshl_b32 {s(sH)}, {s(sH)}, 8"); E(f"s_add_u32 {s(sH)}, {s(sH)}, {WS_H}")
    E(f"s_lshl_b32 s65, {s(SC)}, 7"); E("s_add_u32 s64, s64, s65"); E(f"s_lshl_b32 {s(sST)}, s64, 7"); E(f"s_add_u32 {s(sST)}, {s(sST)}, {WS_ST}")
    E(f"v_mul_u32_u24 {v(l0)}, 13108, v0"); E(f"v_lshrrev_b32 {v(l0)}, 16, {v(l0)}")
    E(f"v_mul_u32_u24 {v(l1)}, 5, {v(l0)}"); E(f"v_sub_u32 {v(l1)}, v0, {v(l1)}")
    E(f"v_cmp_le_u32 vcc, 21, {v(l0)}"); E(f"v_cndmask_b32 {v(l2)}, 0, 1, vcc")
    E(f"v_mul_u32_u24 {v(l3)}, 21, {v(l2)}"); E(f"v_sub_u32 {v(l0)}, {v(l0)}, {v(l3)}")
    E(f"v_mul_u32_u24 {v(l3)}, 5, {v(l2)}"); E(f"v_add_u32 {v(l1)}, {v(l1)}, {v(l3)}")
    E(f"v_mul_u32_u24 {v(l3)}, 20, {v(l2)}"); E(f"v_add_u32 {v(l3)}, {v(l3)}, {v(l0)}")
    E(f"v_add_u32 {v(l4)}, 40, {v(l3)}"); E(f"v_cmp_eq_u32 vcc, 20, {v(l0)}"); E(f"v_cndmask_b32 {v(l4)}, {v(l4)}, 32, vcc")
    E(f"v_lshlrev_b32 {v(l3)}, 7, {v(l3)}"); E(f"v_add_u32 {v(l3)}, {L_KVN}, {v(l3)}")
    E(f"v_lshlrev_b32 {v(l2)}, 7, {v(l2)}"); E(f"v_add_u32 {v(l2)}, {L_KVD}, {v(l2)}")
    E(f"v_cndmask_b32 {v(l3)}, {v(l3)}, {v(l2)}, vcc")
    E(f"v_lshrrev_b32 {v(l0)}, 2, {v(l1)}"); E(f"v_and_b32 {v(l1)}, 3, {v(l1)}")
    E(f"v_lshrrev_b32 {v(l2)}, 1, {v(l0)}"); E(f"v_lshl_add_u32 {v(l3)}, {v(l2)}, 6, {v(l3)}")
    E(f"v_lshl_add_u32 {v(l3)}, {v(l1)}, 4, {v(l3)}")
    E(f"v_and_b32 {v(l2)}, 1, {v(l0)}"); E(f"v_lshl_add_u32 {v(g2)}, {v(l2)}, 3, {v(l3)}")
    E(f"v_lshrrev_b32 {v(l2)}, 4, {v(l4)}"); E(f"v_add_u32 {v(l2)}, -2, {v(l2)}")
    E(f"v_mul_u32_u24 {v(l3)}, 5, {v(l0)}"); E(f"v_lshrrev_b32 {v(l3)}, 1, {v(l3)}")
    E(f"v_add_u32 {v(l2)}, {v(l2)}, {v(l3)}"); E(f"v_lshlrev_b32 {v(l2)}, 10, {v(l2)}")
    E(f"v_and_b32 {v(l4)}, 15, {v(l4)}"); E(f"v_lshl_add_u32 {v(l4)}, {v(l1)}, 4, {v(l4)}")
    E(f"v_lshl_add_u32 {v(g0)}, {v(l4)}, 4, {v(l2)}"); E(f"v_add_u32 {v(g0)}, {L_KR}, {v(g0)}")
    G.valu(2, E.l)
    def stat_m(s_):
        for mt in range(2):
            G.mfma(v(vAS+4*mt,4), v(vONE,4), XF(s_,mt), "0" if s_ == 0 else None)
            G.mfma(v(vASS+4*mt,4), XF(s_,mt), XF(s_,mt), "0" if s_ == 0 else None)
    for x in take(XQ, 99): G.vmem(1, x)
    sm = 0
    for c in range(10):
        if ("x", c) not in vm.seen or any(y[0] == "vm" and y[1] == ("x", c) for y in G.q[1]): G.flush(1)
        vm.wait(("x", c))
        for sp in range(2):
            for mt in range(2): lg.issue(("xf", c), f"ds_read_b128 {XF(2*c+sp,mt)}, {v(vXr[sp])} offset:{(c%NXR)*4096+mt*2048}")
        if c >= 1:
            lg.wait(("xf", c-1))
            if c - 1 + NXR < 10:
                for x in x_ops(c-1+NXR): G.vmem(1, x)
            if c == PF["opc"]:
                for x in op_loads: G.vmem(1, x)
            if c == PF["fwc"]: G.vmem(1, (("fw",), f"buffer_load_dwordx2 {v(t4,2)}, {v(vSA)}, {s(SWS,4)}, s66 offen sc1"))
            if c - 1 < PF["smx"]: stat_m(sm); stat_m(sm+1); sm += 2
    G.flush(1)
    stamp(A, 21)
    A("s_waitcnt lgkmcnt(0)"); lg.drained()
    A("s_barrier")
    vm.wait(("fw",))
    A("s_mov_b32 s96, 0"); A("s_branch FW_c")
    A.label("FW_l")
    A(f"buffer_load_dwordx2 {v(t4,2)}, {v(vSA)}, {s(SWS,4)}, s66 offen sc1")
    A("s_waitcnt vmcnt(0)")
    A.label("FW_c")
    A(f"v_cmp_ne_u64 s[62:63], {s(NON,2)}, {v(t4,2)}")
    A("s_add_u32 s96, s96, 1")
    A("s_cmp_eq_u64 s[62:63], 0"); A("s_cbranch_scc1 FW_d")
    A(f"s_cmp_lt_u32 s96, {SPIN}"); A("s_cbranch_scc1 FW_l")
    A.label("FW_d")
    stamp(A, 22)
    def b_round(r, track=True):
        ops = []
        for j in range(5):
            pre = []
            if j == 0: pre = [f"s_add_u32 m0, s69, {r*20480}"] + ([f"s_add_u32 s82, s82, {20480-4096}"] if r else ["s_nop 0"])
            if j == 4: pre = [f"s_add_u32 m0, s69, {r*20480+4096}", "s_add_u32 s82, s82, 4096"]
            ops.append((("B", r), pre + [f"buffer_load_dwordx4 {v(vL16)}, {s(SWS,4)}, s82 offen offset:{(j%4)*1024} sc1 lds"]))
        return ops
    CP = 116
    cp_loads = run_loads(lambda k: ("cp",), lambda k: v(CP+4*k,4), 67, 2)
    QB = [x for r in range(5) for x in b_round(r)] + cp_loads
    QQ = [x for r in range(5, 7) for x in b_round(r)]
    for x in take(QB, PF["binit"]): vm.issue(*x)
    A("s_cmp_lg_u32 s26, 0"); A("s_cbranch_scc1 FP_skip")
    A("s_mov_b64 exec, 1")
    A(f"buffer_store_dwordx2 {v(t0,2)}, {v(vNF+2)}, {s(SWS,4)}, s9 offen sc1")
    A("s_mov_b64 exec, -1")
    A.label("FP_skip")
    while sm < 20: stat_m(sm); sm += 1
    G.flush()
    vm.wait(("B", 0))
    for t in range(4):
        for jj in range(2): lg.issue(("of",), f"ds_read_b64_tr_b16 {a(160+4*t+2*jj,2)}, {v(OPA+t)} offset:{jj*2048}")
    A("s_barrier")
    stamp(A, 23)
    for k in range(3):
        for mt in range(2):
            q_ = vASS + 4*mt
            G.put(2, ("i", f"v_cndmask_b32 {v(q_)}, {v(q_)}, {v(q_+1+k)}, s[{70+2*k}:{71+2*k}]"))
    E = Emit(); ln_stats2(E, [(vAS, vASS), (vAS+4, vASS+4)], [t4, t5]); G.valu(2, E.l)
    blk = [("i", "s_mov_b64 exec, s[60:61]")]
    for mt in range(2):
        blk += [("ds", ("sw",), f"ds_write_b32 {v(vSw)}, {v(vASS+4*mt)} offset:{mt*64}"), ("ds", ("sw",), f"ds_write_b32 {v(vSw)}, {v(vAS+4*mt)} offset:{512+mt*64}")]
    G.put(2, ("blk", blk + [("i", "s_mov_b64 exec, -1")]))
    G.put(2, ("lw", ("sw",), 3))
    for mt in range(2):
        G.ds(2, ("sr",), f"ds_read_b128 {v(NM+4*mt,4)}, {v(vSr)} offset:{512+mt*64}"); G.ds(2, ("sr",), f"ds_read_b128 {v(RS+4*mt,4)}, {v(vSr)} offset:{mt*64}")
        G.ds(2, ("sr",), f"ds_read_b32 {v(rl+2*mt)}, {v(vSw)} offset:{mt*64}"); G.ds(2, ("sr",), f"ds_read_b32 {v(nl+2*mt)}, {v(vSw)} offset:{512+mt*64}")
    vW1 = 214; vW1b = 192
    E = Emit()
    G.put(2, ("lw", ("sr",), 3))
    for r in range(0, 8, 2): E(f"v_pk_mul_f32 {v(RL2+r,2)}, {v(RS+r,2)}, s[78:79] op_sel_hi:[1,0]")
    for mt in range(2): E(f"v_mul_f32 {v(rl2+2*mt)}, s78, {v(rl+2*mt)}")
    G.valu(2, E.l)
    G.put(2, ("vw", ("cp",), 4))
    E = Emit()
    for r in (0, 2): E(f"v_pk_add_f32 {v(CP+r,2)}, {v(CP+r,2)}, {v(CP+4+r,2)}")
    for r in (0, 2): E(f"v_mov_b64 {v(CP+4+r,2)}, {v(CP+r,2)}")
    for r in range(4): E(f"v_permlane32_swap_b32 {v(CP+4+r)}, {v(CP+r)}")
    for r in (0, 2): E(f"v_pk_add_f32 {v(CP+r,2)}, {v(CP+r,2)}, {v(CP+4+r,2)}")
    G.valu(2, E.l)
    G.ds(2, ("csw",), f"ds_write_b128 {v(vC0)}, {v(CP,4)}")
    G2b = []
    for w in range(4):
        for t in range(5): G2b.append(("ds", ("csr",), f"ds_read_b32 {v(CSK+2*t if w == 0 else CP+5*(w-1)+t)}, {v(vC1)} offset:{w*512+t*64}"))
    G2b.append(("lw", ("csr",), 2))
    for t in range(5):
        G2b += [("i", f"v_add_f32 {v(CSK+2*t)}, {v(CSK+2*t)}, {v(CP+t)}"), ("i", f"v_add_f32 {v(CP+5+t)}, {v(CP+5+t)}, {v(CP+10+t)}")]
    for t in range(5): G2b.append(("i", f"v_add_f32 {v(CSK+2*t)}, {v(CSK+2*t)}, {v(CP+5+t)}"))
    G2q = []
    for w in range(4):
        for t in range(3): G2q.append(("ds", ("csq",), f"ds_read_b128 {v(CSQ+4*t if w == 0 else 80+12*(w-1)+4*t,4)}, {v(vC2)} offset:{w*512+t*64}"))
    E = Emit()
    E(f"s_lshl_b32 s56, {s(SC)}, 2"); E("s_add_u32 s56, s56, s26"); E(f"s_mul_i32 s57, s56, {W2K*1024}"); E(f"s_add_u32 s57, s57, {WS_W2}")
    E("s_mul_i32 s56, s56, 25600"); E(f"s_add_u32 s56, s56, {WS_WO}")
    E(f"s_mul_i32 s80, {s(SG)}, 192"); E("s_mul_i32 s81, s26, 98304"); E("s_add_u32 s80, s80, s81"); E("s_mul_i32 s81, s26, 6144")
    E("s_lshl_b32 s64, s26, 13"); E(f"s_add_u32 s64, s64, {L_KR}"); E(f"v_add_u32 {v(33)}, s64, {v(vL16)}")
    E(f"v_and_b32 {v(34)}, 15, v1"); E(f"v_cmp_gt_u32 s[58:59], 8, {v(34)}")
    srd(E, SW, 12, 640*3072)
    for j in range(3):
        E(f"v_add_u32 {v(t2)}, {64*j}, v1"); E(f"v_mul_u32_u24 {v(t3)}, 5462, {v(t2)}"); E(f"v_lshrrev_b32 {v(t3)}, 16, {v(t3)}")
        E(f"v_mul_u32_u24 {v(t4)}, 12, {v(t3)}"); E(f"v_sub_u32 {v(t2)}, {v(t2)}, {v(t4)}")
        E(f"v_bfe_u32 {v(t4)}, {v(t3)}, 2, 1"); E(f"v_lshlrev_b32 {v(t4)}, 1, {v(t4)}"); E(f"v_xor_b32 {v(t2)}, {v(t2)}, {v(t4)}")
        E(f"v_and_b32 {v(t4)}, 12, {v(t3)}"); E(f"v_add_u32 {v(t3)}, {v(t3)}, {v(t4)}")
        E(f"v_mul_u32_u24 {v(t3)}, 3072, {v(t3)}"); E(f"v_lshl_add_u32 {v(vW1+j)}, {v(t2)}, 4, {v(t3)}"); E(f"v_add_u32 {v(vW1+3+j)}, 12288, {v(vW1+j)}")
    G.valu(2, E.l)
    late_st = [(("lst",), f"buffer_store_dwordx4 {a(160+4*t,4)}, {v(vL16)}, {s(SWS,4)}, {s(sDST[t])} offen sc1") for t in range(4)]
    def kv_rd(s_, t): return f"ds_read_b128 {v(BFr(s_%2,t),4)}, {v(vBa[s_//10])} offset:{(s_%10)*5120+t*1024}"
    for t in range(5): lg.issue(("b", 0, t), kv_rd(0, t))
    for s_ in range(20):
        if s_ % 4 == 3 and s_ < 19:
            assert ("B", s_//4+1) in vm.seen and not any(y[0] == "vm" and y[1] == ("B", s_//4+1) for y in G.q[1])
            if s_ == 15:
                while any(y[0] == "ds" and y[1] == ("csw",) for y in G.q[2]): G.force = True; G.run(G.q[2].popleft()); G.force = False
                lg.wait(("csw",))
            vm.wait(("B", s_//4+1)); A("s_barrier")
            if s_ == 15:
                for y in reversed(G2b): G.q[2].appendleft(y)
        if s_ < 19:
            for t in range(5): G.ds(0, ("b", s_+1, t), kv_rd(s_+1, t))
        for x in take(QB, 3): G.vmem(1, x)
        if not QB and s_ >= PF["bq"]:
            for x in take(QQ, 2): G.vmem(1, x)
            if not QQ and s_ == PF["ls"] - 1:
                blk = [("i", "s_cmp_ge_u32 s26, 2"), ("i", "s_cbranch_scc1 B7_skip")]
                for x in b_round(7): blk += [("i", y) for y in x[1]]
                G.put(1, ("blk", blk + [("i", "B7_skip:")]))
        if s_ >= PF["ls"]:
            for x in take(late_st, 1): G.vmem(1, x)
        if s_ == PF["fpchk"]:
            G.vmem(1, (("fp",), f"buffer_load_dwordx2 {v(fl,2)}, {v(fl+2)}, {s(SWS,4)}, s53 offen sc1"))
            G.vmem(1, (("fp",), f"buffer_load_dwordx2 {v(t0,2)}, {v(vSA)}, {s(SWS,4)}, s52 offen sc1"))
        for t in range(5):
            if t in (0, 3): lg.wait(("b", s_, 2 if t == 0 else 4))
            G.mfma(v(AK(0,t),4), XF(s_,0), v(BFr(s_%2,t),4), "0" if s_ == 0 else None)
            G.mfma(v(AK(1,t),4), XF(s_,1), v(BFr(s_%2,t),4), "0" if s_ == 0 else None, budget=1 if t in (2, 4) else 2)
    assert not QB and not QQ and not late_st
    G.flush()
    stamp(A, 3)
    PK = 36; PV = 48; KVP = 76; TM = 60
    def phi2(E, c, rs, r2, tmp, bc):
        sel2 = " op_sel_hi:[1,0]" if bc else ""; sel3 = " op_sel_hi:[1,0,1]" if bc else ""
        E(f"v_pk_mul_f32 {v(tmp,2)}, {v(c,2)}, {v(r2,2)}{sel2}")
        E(f"v_pk_fma_f32 {v(c,2)}, {v(c,2)}, {v(rs,2)}, s[76:77]{sel3}")
        E(f"v_exp_f32 {v(tmp)}, {v(tmp)} clamp"); E(f"v_exp_f32 {v(tmp+1)}, {v(tmp+1)} clamp")
        E(f"v_max_f32 {v(c)}, s79, {v(c)}"); E(f"v_max_f32 {v(c+1)}, s79, {v(c+1)}")
        E(f"v_pk_add_f32 {v(c,2)}, {v(c,2)}, {v(tmp,2)}")
    def w1_load(r, j):
        pre = [f"s_add_u32 m0, s81, {W1L(r)+j*1024}"]
        pre.append(f"s_add_u32 s80, s80, {4*98304}" if (j == 0 and r) else "s_nop 0")
        return (("w1", r), pre + [f"buffer_load_dwordx4 {v((vW1 if r < 3 else vW1b)+j)}, {s(SW,4)}, s80 offen lds"])
    W1L = lambda r: r*24576
    w1_loads = [w1_load(r, j) for r in range(5) for j in range(6)]
    E = Emit()
    for t in (2, 3, 4, 0, 1):
        for mt in range(2):
            for r in (0, 2): E(f"v_pk_fma_f32 {v(AK(mt,t)+r,2)}, {v(NM+4*mt+r,2)}, {v(CSK+2*t,2)}, {v(AK(mt,t)+r,2)} op_sel_hi:[1,0,1]")
        if t >= 2:
            for mt in range(2):
                for r in (0, 2): E(f"v_pk_mul_f32 {v(TM+4*mt+r,2)}, {v(AK(mt,t)+r,2)}, {v(RS+4*mt+r,2)}")
            for mt in range(2):
                for h in range(2): E(f"v_cvt_pk_bf16_f32 {v(PV+4*(t-2)+2*mt+h)}, {v(TM+4*mt+2*h)}, {v(TM+4*mt+2*h+1)}")
        if t <= 2:
            for mt in range(2):
                for r in (0, 2): phi2(E, AK(mt,t)+r, RS+4*mt+r, RL2+4*mt+r, TM+8+4*mt+r, False)
            for mt in range(2):
                for h in range(2): E(f"v_cvt_pk_bf16_f32 {v(PK+4*t+2*mt+h)}, {v(AK(mt,t)+2*h)}, {v(AK(mt,t)+2*h+1)}")
        if t == 2:
            for r in range(4): E(f"v_cndmask_b32 {v(PV+r)}, {v(PV+r)}, {v(vONE)}, s[58:59]")
    mkq = vm.mark()
    merge(A, vm, E.l, take(w1_loads, PF["kvE"]), every=PF["kvEv"])
    prods = [(2,2),(2,3),(2,4),(0,2),(0,3),(1,2),(1,3),(1,4)]
    pidx = {(0,2):0,(0,3):1,(1,2):2,(1,3):3,(1,4):4,(2,2):5,(2,3):6,(2,4):7}
    for (ta, tb) in prods: mfma(A, v(KVP+4*pidx[(ta,tb)],4), v(PK+4*ta,4), v(PV+4*(tb-2),4), "0")
    fpc = [f"v_lshrrev_b32 {v(t2)}, 4, {v(fl+1)}", f"v_lshrrev_b32 {v(t3)}, 4, {v(t1)}",
           f"v_xor_b32 {v(t2)}, {s(NON+1)}, {v(t2)}", f"v_xor_b32 {v(t3)}, {s(NON+1)}, {v(t3)}",
           f"v_xor_b32 {v(t4)}, {s(NON)}, {v(fl)}", f"v_xor_b32 {v(t5)}, {s(NON)}, {v(t0)}",
           f"v_or3_b32 {v(t2)}, {v(t2)}, {v(t3)}, {v(t4)}", f"v_or_b32 {v(t2)}, {v(t2)}, {v(t5)}"]
    vm.wait_mark(mkq)
    A("s_mov_b32 s96, 0")
    for (ta, tb) in prods: A(f"ds_write_b128 {v(33)}, {v(KVP+4*pidx[(ta,tb)],4)} offset:{pidx[(ta,tb)]*1024}")
    A.label("FP_l")
    for x in fpc: A(x)
    A(f"v_cmp_ne_u32 vcc, 0, {v(t2)}")
    A("s_add_u32 s96, s96, 1")
    A("s_cbranch_vccz FP_d")
    A(f"buffer_load_dwordx2 {v(fl,2)}, {v(fl+2)}, {s(SWS,4)}, s53 offen sc1")
    A(f"buffer_load_dwordx2 {v(t0,2)}, {v(vSA)}, {s(SWS,4)}, s52 offen sc1"); A("s_waitcnt vmcnt(0)")
    A(f"s_cmp_lt_u32 s96, {SPIN}"); A("s_cbranch_scc1 FP_l")
    A.label("FP_d")
    A(f"v_cmp_ne_u32 vcc, s92, {v(t1)}")
    A("s_lshl_b32 s97, s2, 3"); A(f"s_add_u32 s97, s97, {WS_FL}")
    A("s_waitcnt lgkmcnt(0)"); A("s_barrier")
    for w in range(4): A(f"ds_read_b128 {v(KVP+4*w,4)}, {v(g0)} offset:{w*8192}")
    def q_rd(s_, t):
        if t < 2: return f"ds_read_b128 {v(BFr(s_%2,t),4)}, {v(vBa[2])} offset:{(s_//2)*5120+((s_%2)*2+t)*1024}"
        return f"ds_read_b128 {v(BFr(s_%2,t),4)}, {v(vQ7)} offset:{(s_//2)*5120+(s_%2)*128}"
    lg.drained()
    for t in range(3): lg.issue(("q", 0, t), q_rd(0, t))
    A("s_cmp_eq_u64 vcc, 0")
    if OPT["slow"]: A("s_cmp_eq_u32 s26, 99")
    A(f"s_cselect_b32 {s(sMODE)}, 1, 0")
    A("s_mov_b32 s61, -2")
    A("s_waitcnt lgkmcnt(3)")
    for r in (0, 2):
        A(f"v_pk_add_f32 {v(KVP+r,2)}, {v(KVP+r,2)}, {v(KVP+4+r,2)}"); A(f"v_pk_add_f32 {v(KVP+8+r,2)}, {v(KVP+8+r,2)}, {v(KVP+12+r,2)}")
    for r in (0, 2): A(f"v_pk_add_f32 {v(KVP+r,2)}, {v(KVP+r,2)}, {v(KVP+8+r,2)}")
    for r in range(4): A(f"v_min_u32 {v(KVP+r)}, s61, {v(KVP+r)}")
    A("s_mov_b64 exec, s[10:11]")
    vm.issue(("kvst",), f"buffer_store_dwordx4 {v(KVP,4)}, {v(g1)}, {s(SWS,4)}, {s(sKV)} offen sc1")
    A("s_mov_b64 exec, -1")
    set_flag(97)
    stamp(A, 4)
    WOF = lambda k: 160 + 4*k if k < 24 else 0
    wo_loads = run_loads(lambda k: ("wo",), lambda k: a(WOF(k),4), 56, 25)
    w2_loads = run_loads(lambda k: ("w2", k), lambda k: a(4+4*k,4), 57, 60)
    E = Emit()
    A(f"s_mov_b32 s53, {WS_FL}")
    E(f"s_lshl_b32 s62, {s(SJ)}, 6"); E("s_mul_i32 s62, s62, 1280"); E(f"s_mul_i32 s64, {s(SC)}, 160"); E("s_add_u32 s58, s62, s64")
    for n in range(3):
        E(f"v_add_u32 {v(t2)}, {256*n}, v0")
        E(f"v_mul_u32_u24 {v(t3)}, 6554, {v(t2)}"); E(f"v_lshrrev_b32 {v(t3)}, 16, {v(t3)}")
        E(f"v_mul_u32_u24 {v(xa+n)}, 1120, {v(t3)}"); E(f"v_lshl_add_u32 {v(xa+n)}, {v(t2)}, 4, {v(xa+n)}")
    G.valu(2, E.l)
    G.put(2, ("blk", [("i", "s_cmp_ge_u32 s26, 2"), ("i", "s_cselect_b32 s59, 0x7fffffff, s58")]))
    E = Emit()
    E(f"s_add_u32 s60, s83, {L_XT}")
    vKN, vKD = 16, 17
    E(f"v_and_b32 {v(t2)}, 15, v1"); E(f"v_lshrrev_b32 {v(t3)}, 4, v1"); E(f"v_lshlrev_b32 {v(t3)}, 4, {v(t3)}")
    E(f"v_lshl_add_u32 {v(vKN)}, {v(t2)}, 7, {v(t3)}"); E(f"v_add_u32 {v(vKN)}, {L_KVN}, {v(vKN)}")
    E(f"v_add_u32 {v(vKD)}, {L_KVD}, {v(t3)}")
    E(f"v_cmp_le_u32 vcc, 4, {v(t2)}"); E(f"v_add_u32 {v(vKD+2)}, 128, {v(vKD)}")
    E(f"v_cndmask_b32 {v(vKD+1)}, {v(vKD)}, {v(vKD+2)}, vcc")
    G.valu(2, E.l)
    xt_loads = [(("xt",), [f"s_add_u32 m0, s60, {n*4096}", "s_nop 0", f"buffer_load_dwordx4 {v(xa+n)}, {s(SX,4)}, {'s59' if n == 2 else 's58'} offen lds"]) for n in range(3)]
    QW = take(wo_loads, 24)
    Q1 = take(w1_loads, 18 - PF["kvE"])
    for y in G2q: G.put(2, y)
    G.put(2, ("lw", ("csq",), 2))
    E = Emit()
    for r in range(0, 12, 2):
        E(f"v_pk_add_f32 {v(CSQ+r,2)}, {v(CSQ+r,2)}, {v(80+r,2)}"); E(f"v_pk_add_f32 {v(92+r,2)}, {v(92+r,2)}, {v(104+r,2)}")
    for r in range(0, 12, 2): E(f"v_pk_add_f32 {v(CSQ+r,2)}, {v(CSQ+r,2)}, {v(92+r,2)}")
    G.valu(2, E.l)
    for s_ in range(20):
        if s_ == PF["kvf"]:
            A("s_barrier")
        if s_ < 19:
            for t in range(3): G.ds(0, ("q", s_+1, t), q_rd(s_+1, t))
        if s_ < PF["kvc"]:
            for x in take(QW, 2 if s_ % 2 == 0 else 1): G.vmem(1, x)
            if s_ >= PF["kvf"] and s_ % 2 == 1:
                for x in take(Q1, 1 if QW else 2): G.vmem(1, x)
        lg.wait(("q", s_, 2))
        for t in range(3):
            G.mfma(v(AQ(0,t),4), v(BFr(s_%2,t),4), XF(s_,0), "0" if s_ == 0 else None)
            G.mfma(v(AQ(1,t),4), v(BFr(s_%2,t),4), XF(s_,1), "0" if s_ == 0 else None, budget=1 if t == 2 else 2)
    G.flush()
    stamp(A, 6)
    Q1 = QW + wo_loads + Q1
    PQ = 36
    E = Emit()
    for mt in range(2):
        for t in range(3):
            for r in (0, 2): E(f"v_pk_fma_f32 {v(AQ(mt,t)+r,2)}, {v(CSQ+4*t+r,2)}, {v(nl+2*mt,2)}, {v(AQ(mt,t)+r,2)} op_sel_hi:[1,0,1]")
            for r in (0, 2): phi2(E, AQ(mt,t)+r, rl+2*mt, rl2+2*mt, TM+8+r, True)
            for h in range(2): E(f"v_cvt_pk_bf16_f32 {v(PQ+8*mt+2*t+h)}, {v(AQ(mt,t)+2*h)}, {v(AQ(mt,t)+2*h+1)}")
        E(f"v_mov_b64 {v(PQ+8*mt+6,2)}, 0")
    GAr = lambda i: 76 + 4*i if i < 10 else 156 + 4*(i-10)
    GS = 140; GM = 144
    def g_loads():
        A(f"buffer_load_dwordx2 {v(fl,2)}, {v(fl+2)}, {s(SWS,4)}, s53 offen sc1")
        A("s_mov_b64 exec, s[10:11]")
        for i in range(16):
            hi, lo = (i*KV_STRIDE) & ~4095, (i*KV_STRIDE) & 4095
            A(f"s_mov_b32 s64, {hi}")
            A(f"buffer_load_dwordx4 {v(GAr(i),4)}, {v(g1)}, {s(SWS,4)}, s64 offen offset:{lo} sc1")
        A("s_mov_b64 exec, -1")
    ng = PF["gat"]
    for x in E.l[:ng]: A(x)
    g_loads()
    for x in E.l[ng:]: A(x)
    stamp(A, 5)
    A("s_mov_b32 s96, 0")
    A("s_branch KV_chk")
    A.label("KV_poll")
    g_loads()
    A.label("KV_chk")
    A("s_mov_b64 exec, s[10:11]")
    for i in range(0, 16, 2):
        A(f"s_waitcnt vmcnt({14-i})")
        b, c = GAr(i), GAr(i+1)
        if i == 0:
            for r in (0, 2): A(f"v_pk_add_f32 {v(GS+r,2)}, {v(b+r,2)}, {v(c+r,2)}")
            A(f"v_max3_u32 {v(GM)}, {v(b)}, {v(b+1)}, {v(b+2)}")
            A(f"v_max3_u32 {v(GM+1)}, {v(b+3)}, {v(c)}, {v(c+1)}")
            A(f"v_max3_u32 {v(GM)}, {v(GM)}, {v(c+2)}, {v(c+3)}")
        else:
            for r in (0, 2): A(f"v_pk_add_f32 {v(GS+r,2)}, {v(GS+r,2)}, {v(b+r,2)}")
            A(f"v_max3_u32 {v(GM)}, {v(GM)}, {v(b)}, {v(b+1)}"); A(f"v_max3_u32 {v(GM+1)}, {v(GM+1)}, {v(b+2)}, {v(b+3)}")
            for r in (0, 2): A(f"v_pk_add_f32 {v(GS+r,2)}, {v(GS+r,2)}, {v(c+r,2)}")
            A(f"v_max3_u32 {v(GM)}, {v(GM)}, {v(c)}, {v(c+1)}"); A(f"v_max3_u32 {v(GM+1)}, {v(GM+1)}, {v(c+2)}, {v(c+3)}")
    A(f"v_max_u32 {v(GM)}, {v(GM)}, {v(GM+1)}")
    A(f"v_cmp_eq_u32 s[62:63], -1, {v(GM)}")
    A("s_mov_b64 exec, -1")
    A(f"v_cmp_ne_u64 vcc, {s(NON,2)}, {v(fl,2)}")
    A("s_add_u32 s96, s96, 1"); A("s_or_b64 vcc, vcc, s[62:63]")
    A("s_cbranch_vccz KV_done")
    A(f"s_cmp_lt_u32 s96, {SPIN}"); A("s_cbranch_scc1 KV_poll")
    A.label("KV_done")
    vm.drained()
    A(f"v_cvt_pk_bf16_f32 {v(GS)}, {v(GS)}, {v(GS+1)}"); A(f"v_cvt_pk_bf16_f32 {v(GS+1)}, {v(GS+2)}, {v(GS+3)}")
    A("s_mov_b64 exec, s[10:11]")
    A(f"ds_write_b64 {v(g2)}, {v(GS,2)}")
    A("s_mov_b64 exec, -1")
    AN = 100; AD = 124; ON = 156; OD = 76; OP = 56
    A("s_waitcnt lgkmcnt(0)"); A("s_barrier")
    Q1 = xt_loads + Q1 + w2_loads
    stamp(A, 7)
    for te in range(3):
        for st in range(2):
            lg.issue(("d", te), f"ds_read_b128 {v(AD+8*te+4*st,4)}, {v(vKD+te)} offset:{st*64}")
            lg.issue(("n", te), f"ds_read_b128 {v(AN+8*te+4*st,4)}, {v(vKN)} offset:{te*2048+st*64}")
    for x in take(Q1, PF["oB"]): vm.issue(*x)
    for x in take(Q1, PF["oE"]): G.vmem(1, x)
    def o_tail(te):
        L = []
        for r in range(0, 8, 2): L.append(f"v_pk_add_f32 {v(OD+8*te+r,2)}, {v(OD+8*te+r,2)}, s[76:77]")
        for r in range(8): L.append(f"v_rcp_f32 {v(OD+8*te+r)}, {v(OD+8*te+r)}")
        return L
    for te in range(3):
        lg.wait(("n", te))
        for (acc_, aop) in ((OD, AD), (ON, AN)):
            for mt in range(2): G.mfma(v(acc_+8*te+4*mt,4), v(aop+8*te,4), v(PQ+8*mt,4), "0")
            for mt in range(2): G.mfma(v(acc_+8*te+4*mt,4), v(aop+8*te+4,4), v(PQ+8*mt+4,4))
    G.flush()
    for te in range(3):
        for x in take(Q1, PF["oT"]): vm.issue(*x)
        for x in o_tail(te): A(x)
        for r in range(0, 8, 2): A(f"v_pk_mul_f32 {v(ON+8*te+r,2)}, {v(ON+8*te+r,2)}, {v(OD+8*te+r,2)}")
        for h in range(4): A(f"v_cvt_pk_bf16_f32 {v(OP+4*te+h)}, {v(ON+8*te+2*h)}, {v(ON+8*te+2*h+1)}")
        for h in range(2): A(f"v_permlane16_swap_b32 {v(OP+4*te+h)}, {v(OP+4*te+2+h)}")
        if te == 2: A("s_mov_b64 exec, 0xffffffff")
        for x in dual(f"buffer_store_dwordx4 {v(OP+4*te,4)}, {v(vOA)}, SRD, {s(sO)} offen offset:{te*512}"): vm.issue(("ost",), x)
    A("s_mov_b64 exec, -1")
    ACC = 40; AF = 120; HRES = 246
    acc = lambda m, t: ACC + (m*5+t)*4
    vRw, vRr = 10, 11
    u0, u1, u2, u3, u4 = 4, 5, 6, 7, 8
    def k_setup(E, KO, WSA, lred, KQ):
        E(f"s_mul_i32 s61, s26, {KQ}"); E(f"s_lshl_b32 s62, {s(SJ)}, 2")
        for m in range(4):
            E(f"s_add_u32 s60, s26, {m}"); E("s_and_b32 s60, s60, 3")
            E(f"s_mul_i32 s64, s60, 15360"); E(f"s_add_u32 s64, s64, {lred+max(m-1,0)*5120}"); E(f"v_add_u32 {v(vRw+2+m if m else vRr)}, s64, {v(vL16)}")
            E("s_add_u32 s60, s60, s62"); E(f"s_mul_i32 s60, s60, {KO}"); E("s_add_u32 s60, s60, s61"); E("s_lshl_b32 s60, s60, 8")
            E(f"s_add_u32 {s(52+m)}, s60, {WSA}")
    def k_gemm(KS, bfrag, nwin, st0, cinit, side, lateb=(), shadow=None):
        seq = [(m, sp) for m in (1, 2, 3, 0) for sp in range(KS)]
        al = []
        for m in (1, 2, 3, 0):
            n0 = len(al)
            al += run_loads(lambda k: ("a", n0+k), lambda k: v(AF+4*((n0+k) % nwin),4), 52+m, KS)
        poll(66, 18)
        stamp(A, st0)
        nl = PF["kinit"]; pend = []
        lateb = list(lateb)
        for x in al[:nl-len(lateb)//2]: vm.issue(*x)
        if lateb:
            nl -= len(lateb)//2
            for x in lateb: vm.issue(*x)
        if shadow: shadow()
        for n, (m, sp) in enumerate(seq):
            if n < KS:
                for t in range(5):
                    if vm.pending(("w2", sp*5+t)): vm.wait(("w2", sp*5+t))
            while nl < len(seq) and nl - nwin < n and nl - n <= PF["kfly"]:
                G.vmem(1, al[nl]); nl += 1
            if nl >= len(seq) and side: G.vmem(1, side.pop(0))
            if any(y[0] == "vm" and y[1] == ("a", n) for y in G.q[1]): G.flush(1)
            vm.wait(("a", n))
            if STAMPS and os.environ.get("KST") == "4" and KS == 12 and sp % 6 == 0:
                A("s_memtime s[98:99]"); A("s_waitcnt lgkmcnt(0)"); A(f"v_writelane_b32 v3, s98, {52 + n//6}")
            if m == 0 and sp == 0: G.flush(2)
            for t in range(5):
                if pend and ((t == 2 and (KS < 6 or sp % 2 == 1)) ): G.ds(0, ("rw",), pend.pop(0))
                G.mfma(v(acc(m,t),4), bfrag(sp*5+t), v(AF+4*(n % nwin),4), (cinit(t) if m == 0 else "0") if sp == 0 else None, budget=1 if t == 4 else 2)
            if sp == KS-1 and m != 0:
                assert not pend
                pend = [f"ds_write_b128 {v(vRw+2+m)}, {v(acc(m,t),4)} offset:{t*1024}" for t in range(5)]
        G.flush()
    def red_read(RD):
        A("s_waitcnt lgkmcnt(0)"); A("s_barrier"); lg.drained()
        for t in range(5):
            for sl in range(3): lg.issue(("r", t), f"ds_read_b128 {v(RD+(t*3+sl)*4,4)}, {v(vRr)} offset:{sl*5120+t*1024}")
    def red_sum(RD, t, dst):
        for h in range(2):
            A(f"v_pk_add_f32 {v(acc(0,t)+2*h,2)}, {v(acc(0,t)+2*h,2)}, {v(RD+(t*3)*4+2*h,2)}")
            A(f"v_pk_add_f32 {v(RD+(t*3+1)*4+2*h,2)}, {v(RD+(t*3+1)*4+2*h,2)}, {v(RD+(t*3+2)*4+2*h,2)}")
        for h in range(2): A(f"v_pk_add_f32 {v(acc(0,t)+2*h,2)}, {v(acc(0,t)+2*h,2)}, {v(RD+(t*3+1)*4+2*h,2)}")
        for h in range(2): A(f"v_cvt_pk_bf16_f32 {v(dst+h)}, {v(acc(0,t)+2*h)}, {v(acc(0,t)+2*h+1)}")
    CSA, CSB = 212, 216; vCa, vCb = 220, 221; vONE3 = 20; XC = 224
    XCr = lambda t: 224 + 4*t if t < 3 else 200 + 4*(t-3)
    E = Emit()
    E(f"s_lshl_b32 s66, {s(SI)}, 7"); E(f"s_add_u32 s66, s66, {WS_FO}"); E(f"s_lshl_b32 s97, {s(SG)}, 3"); E("s_add_u32 s97, s97, s66")
    k_setup(E, 80, WS_O, L_RED2, 20)
    for r in range(0, 6, 2): E(f"v_mov_b64 {v(vW1b+r,2)}, {v(vW1+r,2)}")
    E(f"v_and_b32 {v(u0)}, 15, v1"); E(f"v_lshrrev_b32 {v(u1)}, 4, v1")
    E("s_mul_i32 s62, s26, 2560"); E(f"s_add_u32 s62, s62, {L_XT}")
    E(f"v_mul_u32_u24 {v(9)}, 160, {v(u0)}"); E(f"v_lshl_add_u32 {v(9)}, {v(u1)}, 3, {v(9)}"); E(f"v_add_u32 {v(9)}, s62, {v(9)}")
    merge(A, vm, E.l, take(Q1, PF["oS"]), every=3)
    vm.wait(("ost",)); A("s_barrier")
    set_flag(97, True)
    stamp(A, 8)
    for x in take(Q1, PF["oF"]): vm.issue(*x)
    vB = [12, 16, 17, 9]
    def p2_shadow():
        for t in range(5): lg.issue(("x",), f"ds_read_b64 {v(24+2*t,2)}, {v(9)} offset:{t*32}")
        A(f"v_lshrrev_b32 {v(u2)}, 2, v1"); A(f"v_mul_u32_u24 {v(u2)}, 192, {v(u2)}"); A(f"v_and_b32 {v(u3)}, 3, v1"); A(f"v_lshl_add_u32 {v(u2)}, {v(u3)}, 3, {v(u2)}")
        A(f"v_and_b32 {v(u3)}, 1, {v(u1)}")
        A("s_mul_i32 s62, s26, 5"); A("s_add_u32 s62, s62, 1"); A("s_mul_i32 s62, s62, 43"); A("s_lshr_b32 s62, s62, 7")
        A(f"v_xor_b32 {v(vCa)}, s62, {v(u3)}"); A(f"v_lshl_add_u32 {v(vCa)}, {v(vCa)}, 5, {v(u2)}")
        A("s_lshr_b32 s62, s26, 1"); A("s_mul_i32 s62, s62, 3"); A("s_add_u32 s62, s62, 1"); A("s_and_b32 s63, s26, 1"); A("s_mul_i32 s63, s63, 6144")
        A(f"v_xor_b32 {v(vCb)}, s62, {v(u3)}"); A(f"v_lshl_add_u32 {v(vCb)}, {v(vCb)}, 5, {v(u2)}"); A(f"v_add_u32 {v(vCb)}, s63, {v(vCb)}")
        A(f"v_add_u32 {v(vCa+2)}, 61440, {v(vCa)}"); A(f"v_add_u32 {v(vCb+2)}, 61440, {v(vCb)}")
        A(f"v_lshlrev_b32 {v(u3)}, 5, {v(u3)}"); A(f"v_add_u32 {v(vB[0])}, {v(u2)}, {v(u3)}"); A(f"v_sub_u32 {v(vB[1])}, {v(u2)}, {v(u3)}")
        lg.wait(("x",))
        for t in range(5):
            for h in range(2):
                A(f"v_lshlrev_b32 {v(XCr(t)+2*h)}, 16, {v(24+2*t+h)}"); A(f"v_and_b32 {v(XCr(t)+2*h+1)}, 0xffff0000, {v(24+2*t+h)}")
        A(f"v_add_u32 {v(vB[2])}, 61440, {v(vB[0])}"); A(f"v_add_u32 {v(vB[3])}, 61440, {v(vB[1])}")
    assert all(x[0][0] in ("w2", "tch") for x in Q1), "loads needed by P2 must be issued before its poll"
    tw = []
    if PF["tw1"]:
        tw = [(("tch",), ["s_lshr_b32 s64, s2, 3", "s_lshl_b32 s64, s64, 2", "s_add_u32 s64, s64, s26", "s_mul_i32 s64, s64, 6144", f"s_add_u32 s64, s64, {384*3072}",
                          f"v_min_u32 {v(240)}, 47, v1", f"v_lshlrev_b32 {v(240)}, 7, {v(240)}", f"buffer_load_dword {v(241)}, {v(240)}, {s(SW,4)}, s64 offen"])]
    early_w2 = 60 - len(Q1) + PF["p2G"]
    assert early_w2 <= 39
    k_gemm(5, lambda k: a(WOF(k),4), 18, 9, lambda t: v(XCr(t),4), tw + take(Q1, PF["p2G"]), shadow=p2_shadow)
    stamp(A, 10)
    RD = AF
    red_read(RD)
    for x in take(Q1, PF["p2B"]): vm.issue(*x)
    P = 24; vS, vQ = 36, 37
    A(f"v_mov_b64 {v(vS,2)}, 0"); A(f"v_mov_b64 {v(P+10,2)}, 0")
    A(f"s_lshl_b32 s66, {s(SI)}, 7"); A(f"s_add_u32 s66, s66, {WS_FH}"); A(f"s_lshl_b32 s97, {s(SG)}, 3"); A("s_add_u32 s97, s97, s66")
    for t in range(5):
        lg.wait(("r", t))
        red_sum(RD, t, HRES+2*t)
        if t == 1:
            lg.wait(("r", 4)); A("s_barrier")
        if t >= 1:
            for x in take(w1_loads, PF["p2E"]): vm.issue(*x)
        if t in (1, 3, 4):
            pr_ = t//2
            A(f"v_mov_b64 {v(P+4*pr_,2)}, {v(HRES+4*pr_,2)}")
            if t < 4: A(f"v_mov_b64 {v(P+4*pr_+2,2)}, {v(HRES+4*pr_+2,2)}")
            for h in range(2): A(f"v_permlane16_swap_b32 {v(P+4*pr_+h)}, {v(P+4*pr_+2+h)}")
            if pr_ == 2: A("s_mov_b32 exec_lo, 0xffff"); A("s_mov_b32 exec_hi, 0xffff")
            for x in dual(f"buffer_store_dwordx4 {v(P+4*pr_,4)}, {v(vHA)}, SRD, {s(sH)} offen offset:{pr_*1024}"): vm.issue(("hst",), x)
    A("s_mov_b64 exec, -1")
    for r in range(2):
        A(f"v_dot2_f32_bf16 {v(32+r)}, {v(HRES+r)}, {v(vONE3)}, 0"); A(f"v_dot2_f32_bf16 {v(34+r)}, {v(HRES+r)}, {v(HRES+r)}, 0")
    for r in range(2, 10):
        A(f"v_dot2_f32_bf16 {v(32+r%2)}, {v(HRES+r)}, {v(vONE3)}, {v(32+r%2)}"); A(f"v_dot2_f32_bf16 {v(34+r%2)}, {v(HRES+r)}, {v(HRES+r)}, {v(34+r%2)}")
    A(f"v_add_f32 {v(vS)}, {v(32)}, {v(33)}"); A(f"v_add_f32 {v(vQ)}, {v(34)}, {v(35)}")
    for op in ("v_permlane16_swap_b32", "v_permlane32_swap_b32"):
        A(f"v_mov_b64 {v(34,2)}, {v(vS,2)}")
        A(f"{op} {v(34)}, {v(vS)}"); A(f"{op} {v(35)}, {v(vQ)}")
        A(f"v_pk_add_f32 {v(vS,2)}, {v(vS,2)}, {v(34,2)}")
    A("s_mov_b64 exec, 0xffff")
    for x in dual(f"buffer_store_dwordx2 {v(vS,2)}, {v(vSA)}, SRD, {s(sST)} offen"): vm.issue(("hst",), x)
    A("s_mov_b64 exec, -1")
    vB1 = 120
    srd(A, SD, 14, 3072)
    A(f"s_mul_i32 s59, {s(SG)}, 192"); A(f"v_lshlrev_b32 {v(u3)}, 3, {v(u1)}")
    for t in range(6): vm.issue(("b1",), f"buffer_load_dwordx2 {v(vB1+2*t,2)}, {v(u3)}, {s(SD,4)}, s59 offen offset:{t*32}")
    def cs_frs(steps):
        fr = []
        for s_ in steps:
            fr.append((CSA, vCa + 2*(s_ >= 10), (s_ % 10)*6144))
            if s_ % 2 == 0: fr.append((CSB, vCb + 2*(s_ >= 10), (s_ % 10)*6144))
        return fr
    for x in take(w1_loads, PF["hW"]) + take(Q1, PF["hA"]): vm.issue(*x)
    A(f"s_lshl_b32 s54, {s(SI)}, 3"); A("s_lshl_b32 s55, s26, 1"); A("s_add_u32 s54, s54, s55"); A(f"s_mul_i32 s54, s54, {HS*256}"); A(f"s_add_u32 s54, s54, {WS_H}")
    A(f"s_add_u32 s55, s54, {HS*256}")
    A(f"s_lshl_b32 s52, {s(SI)}, 7"); A("s_lshl_b32 s53, s26, 5"); A("s_add_u32 s52, s52, s53"); A("s_lshl_b32 s52, s52, 3"); A(f"s_add_u32 s52, s52, {WS_ST}")
    A("s_add_u32 s53, s52, 16384")
    A(f"v_lshlrev_b32 {v(u2)}, 15, {v(u1)}"); A(f"v_lshl_or_b32 {v(u2)}, {v(u0)}, 3, {v(u2)}")
    A("s_lshl_b32 s60, s26, 7"); A(f"s_add_u32 s60, s60, {L_CS3}")
    A(f"v_lshlrev_b32 {v(u3)}, 4, {v(u1)}"); A(f"v_add_u32 {v(u4)}, s60, {v(u3)}"); A(f"v_add_u32 {v(14)}, {L_CS3}, {v(u3)}")
    seen = set(); fr = cs_frs(range(12)); TMP = 48
    def cs_rd(n, TMP, ad, off): return [f"ds_read_b64_tr_b16 {v(TMP+4*(n%12)+2*jj,2)}, {v(ad)} offset:{off+jj*3072}" for jj in range(2)]
    def cs_run(n0, n1):
        for n in range(n0, min(n0+6, n1)):
            for x in cs_rd(n, TMP, *fr[n][1:]): lg.issue(("c", n), x)
        for n in range(n0, n1):
            d = fr[n][0]
            if n + 6 < n1:
                for x in cs_rd(n+6, TMP, *fr[n+6][1:]): lg.issue(("c", n+6), x)
            lg.wait(("c", n))
            mfma(A, v(d,4), v(TMP+4*(n%12),4), v(vONE3,4), None if d in seen else "0"); seen.add(d)
    cs_run(0, PF["cs1"])
    vm.wait(("hst",)); A("s_barrier")
    set_flag(97, True)
    stamp(A, 11)
    ACC3 = 48; BF = 96; AW = 144; NW3 = 12; BU = 200; CS = 144; vST = 24
    acc3 = lambda t, mt: ACC3 + (t*2+mt)*4
    for x in take(Q1, PF["hS"]): vm.issue(*x)
    BUr = lambda t: 200 + 4*t if t < 3 else 224 + 4*(t-3)
    def b3(s_, t): return [f"ds_read_b64_tr_b16 {v(BF+(s_%2)*24+4*t+2*jj,2)}, {v(vB[(t%2)+2*(s_//10)])} offset:{(s_%10)*6144+t*32+jj*3072}" for jj in range(2)]
    a0 = run_loads(lambda k: ("a", 2*k), lambda k: v(AW+4*((2*k) % NW3),4), 54, 20)
    a1 = run_loads(lambda k: ("a", 2*k+1), lambda k: v(AW+4*((2*k+1) % NW3),4), 55, 20)
    al = [x for p in zip(a0, a1) for x in p]
    poll(66, 18)
    stamp(A, 13)
    nl = PF["p3init"]
    for x in al[:nl]: vm.issue(*x)
    cs_run(PF["cs1"], 18)
    for t in range(6):
        for h in range(2):
            A(f"v_lshlrev_b32 {v(BUr(t)+2*h)}, 16, {v(vB1+2*t+h)}"); A(f"v_and_b32 {v(BUr(t)+2*h+1)}, 0xffff0000, {v(vB1+2*t+h)}")
    for t in range(6):
        for x in b3(0, t): lg.issue(("b", 0, t), x)
    st_loads = [(("st", 2*mt+cc), f"buffer_load_dwordx2 {v(vST+mt*4+cc*2,2)}, {v(u2)}, {s(SWS,4)}, {s(52+cc)} offen offset:{mt*128} sc1") for mt in range(2) for cc in range(2)]
    side = st_loads + w1_loads + take(Q1, PF["p3L"])
    G.put(2, ("vw", ("st", 3), 3))
    E = Emit()
    for mt in range(2): E(f"v_pk_add_f32 {v(vST+4*mt,2)}, {v(vST+4*mt,2)}, {v(vST+4*mt+2,2)}")
    for op in ("v_permlane16_swap_b32", "v_permlane32_swap_b32"):
        for mt in range(2): E(f"v_mov_b64 {v(vST+4*mt+2,2)}, {v(vST+4*mt,2)}")
        for mt in range(2):
            b = vST + 4*mt
            E(f"{op} {v(b+2)}, {v(b)}"); E(f"{op} {v(b+3)}, {v(b+1)}")
        for mt in range(2): E(f"v_pk_add_f32 {v(vST+4*mt,2)}, {v(vST+4*mt,2)}, {v(vST+4*mt+2,2)}")
    ln_stats2(E, [(vST, vST+1), (vST+4, vST+5)], [vST+2, vST+6])
    for mt in range(2):
        b = vST + 4*mt
        E(f"v_mul_f32 {v(b)}, {v(b)}, {v(b+1)}"); E(f"v_mov_b32 {v(b+2)}, {v(b+1)}")
    G.valu(2, E.l)
    fr2 = cs_frs(range(12, 20)); CQ = [36, 40, 44, 32]
    wb = PF["w1b"]; c0 = wb + 1
    assert c0 + 7 <= 19
    for s_ in range(20):
        if s_ == wb:
            if any(y[0] == "vm" and y[1] == ("w1", 4) for y in G.q[1]): G.flush(1)
            assert not any(x[0] == ("w1", 4) for x in side)
            vm.wait(("w1", 4)); A("s_barrier")
        if s_ == c0 + 7:
            if any(y[0] == "blk" for y in G.q[2]): G.flush(2)
            lg.wait(("cw",)); A("s_barrier")
        if s_ < 19:
            for t in range(6):
                for x in b3(s_+1, t): G.ds(0, ("b", s_+1, t), x)
        k = s_ - wb
        if 0 <= k < 6:
            for n in range(2):
                d, ad, off = fr2[2*k+n]
                for jj in range(2): G.ds(0, ("c2", k), f"ds_read_b64_tr_b16 {v(CQ[2*(k%2)+n]+2*jj,2)}, {v(ad)} offset:{off+jj*3072}")
        while nl < 40 and nl - NW3 < 2*s_ and nl - 2*s_ <= PF["p3fly"]:
            G.vmem(1, al[nl]); nl += 1
        for x in take(side, 2 if s_ < PF["p3f"] else 1): G.vmem(1, x)
        if any(y[0] == "vm" and y[1] in (("a", 2*s_), ("a", 2*s_+1)) for y in G.q[1]): G.flush(1)
        vm.wait(("a", 2*s_+1))
        if STAMPS and os.environ.get("KST") == "3" and s_ % 3 == 0 and s_ < 24:
            A("s_memtime s[98:99]"); A("s_waitcnt lgkmcnt(0)"); A(f"v_writelane_b32 v3, s98, {52 + s_//3}"); lg.drained()
        if s_ == 19:
            for t in range(6): G.ds(0, ("cs",), f"ds_read_b128 {v(BF+4*t,4)}, {v(14)} offset:{[0,1,2,4,5,6][t]*64}")
            G.ds(0, ("cs",), f"ds_read_b128 {v(CSA,4)}, {v(14)} offset:{3*64}"); G.ds(0, ("cs",), f"ds_read_b128 {v(CSB,4)}, {v(14)} offset:{7*64}")
        for t in range(6):
            if t in (0, 3):
                while ("b", s_, t+2) not in lg.seen or any(y[0] == "ds" and y[1] == ("b", s_, t+2) for y in G.q[0]): G.run(G.q[0].popleft())
                lg.wait(("b", s_, t+2))
            if t == 3 and 1 <= k < 7:
                while any(y[0] == "ds" and y[1] == ("c2", k-1) for y in G.q[0]): G.run(G.q[0].popleft())
                lg.wait(("c2", k-1))
                for n in range(2): G.mfma(v(fr2[2*(k-1)+n][0],4), v(CQ[2*((k-1)%2)+n],4), v(vONE3,4))
            G.mfma(v(acc3(t,0),4), v(BF+(s_%2)*24+4*t,4), v(AW+4*((2*s_) % NW3),4), "0" if s_ == 0 else None)
            G.mfma(v(acc3(t,1),4), v(BF+(s_%2)*24+4*t,4), v(AW+4*((2*s_+1) % NW3),4), "0" if s_ == 0 else None, budget=1 if t in (2, 5) else 2)
        if k == 6:
            G.q[2].appendleft(("blk", [("i", "s_mov_b32 exec_lo, 0x00010001"), ("i", "s_mov_b32 exec_hi, 0x00010001"),
                              ("ds", ("cw",), f"ds_write_b128 {v(u4)}, {v(CSA,4)}"), ("ds", ("cw",), f"ds_write_b128 {v(u4)}, {v(CSB,4)} offset:64"),
                              ("i", "s_mov_b64 exec, -1")]))
    for x in side: G.vmem(1, x)
    G.flush()
    stamp(A, 14)
    CS = BF
    lg.wait(("cs",))
    for r in (0, 2):
        A(f"v_pk_add_f32 {v(CS+4+r,2)}, {v(CS+4+r,2)}, {v(CSA+r,2)}"); A(f"v_pk_add_f32 {v(CS+16+r,2)}, {v(CS+16+r,2)}, {v(CSB+r,2)}")
    P = 144; U = 168
    side = []
    for x in take(Q1, PF["rB"]): vm.issue(*x)
    for t in range(6):
        for mt in range(2):
            b = vST + 4*mt
            for r in (0, 2): A(f"v_pk_fma_f32 {v(U+4*mt+r,2)}, {v(CS+4*t+r,2)}, {v(b,2)}, {v(BUr(t)+r,2)} op_sel_hi:[1,0,1]")
        for mt in range(2):
            b = vST + 4*mt
            for r in (0, 2): A(f"v_pk_fma_f32 {v(U+4*mt+r,2)}, {v(acc3(t,mt)+r,2)}, {v(b+2,2)}, {v(U+4*mt+r,2)} op_sel_hi:[1,0,1]")
        for r in range(8): A(f"v_max_f32 {v(U+r)}, 0, {v(U+r)}")
        for x in take(side, PF["rEn"]): vm.issue(*x)
        for r in range(0, 8, 2): A(f"v_pk_mul_f32 {v(U+r,2)}, {v(U+r,2)}, {v(U+r,2)}")
        for h in range(4): A(f"v_cvt_pk_bf16_f32 {v(P+4*t+h)}, {v(U+2*h)}, {v(U+2*h+1)}")
        for h in range(2): A(f"v_permlane16_swap_b32 {v(P+4*t+h)}, {v(P+4*t+2+h)}")
        for x in dual(f"buffer_store_dwordx4 {v(P+4*t,4)}, {v(vRA)}, SRD, {s(sR)} offen offset:{t*512}"): vm.issue(("rst",), x)
    srd(A, SD, 18, 1280); srd(A, SW, 20, 2048*1280)
    vB2 = 20
    A(f"s_mul_i32 s63, {s(SC)}, 160"); A(f"v_lshlrev_b32 {v(u3)}, 3, {v(u1)}")
    for t in range(5): vm.issue(("b2",), f"buffer_load_dwordx2 {v(vB2+2*t,2)}, {v(u3)}, {s(SD,4)}, s63 offen offset:{t*32}")
    L_OUT = 61440; OA = 30
    E = Emit()
    E(f"s_lshl_b32 s66, {s(SI)}, 7"); E(f"s_add_u32 s66, s66, {WS_FR}"); E(f"s_lshl_b32 s97, {s(SG)}, 3"); E("s_add_u32 s97, s97, s66")
    k_setup(E, RS_, WS_R, 0, RQ)
    merge(A, vm, E.l, side + take(Q1, PF["rS"]))
    vm.wait(("rst",)); A("s_barrier")
    set_flag(97, True)
    stamp(A, 15)
    for x in take(Q1, PF["rF"]): vm.issue(*x)
    assert len(Q1) <= 15, len(Q1)
    HC = 216
    def p4_shadow():
        A("s_mul_i32 s63, s26, 2816"); A(f"s_add_u32 s63, s63, {L_OUT}")
        A(f"v_mul_u32_u24 {v(9)}, 176, {v(u0)}"); A(f"v_lshl_add_u32 {v(9)}, {v(u1)}, 3, {v(9)}"); A(f"v_add_u32 {v(9)}, s63, {v(9)}")
        for n in range(3):
            A(f"v_add_u32 {v(u2)}, {64*n}, v1")
            A(f"v_mul_u32_u24 {v(u3)}, 6554, {v(u2)}"); A(f"v_lshrrev_b32 {v(u3)}, 16, {v(u3)}")
            A(f"v_lshlrev_b32 {v(u2)}, 4, {v(u2)}")
            A(f"v_lshl_add_u32 {v(u4)}, {v(u3)}, 4, {v(u2)}"); A(f"v_add_u32 {v(OA+n)}, s63, {v(u4)}")
            A(f"v_mul_u32_u24 {v(u3)}, 1120, {v(u3)}"); A(f"v_add_u32 {v(OA+3+n)}, {v(u3)}, {v(u2)}")
        A(f"s_lshl_b32 s58, {s(SJ)}, 6"); A("s_lshl_b32 s59, s26, 4"); A("s_add_u32 s58, s58, s59"); A("s_mul_i32 s58, s58, 1280")
        A(f"s_mul_i32 s59, {s(SC)}, 160"); A("s_add_u32 s58, s58, s59")
        E = Emit()
        for t in range(5):
            for h in range(2):
                E(f"v_lshlrev_b32 {v(36)}, 16, {v(HRES+2*t+h)}"); E(f"v_and_b32 {v(37)}, 0xffff0000, {v(HRES+2*t+h)}")
                E(f"v_lshlrev_b32 {v(38)}, 16, {v(vB2+2*t+h)}"); E(f"v_and_b32 {v(39)}, 0xffff0000, {v(vB2+2*t+h)}")
                E(f"v_pk_add_f32 {v(HC+4*t+2*h,2)}, {v(36,2)}, {v(38,2)}")
        for x in E.l: A(x)
    k_gemm(12, lambda k: a(4+4*k,4), 24, 16, lambda t: v(HC+4*t,4), [], Q1, shadow=p4_shadow)
    stamp(A, 17)
    red_read(RD)
    P = 200
    for t in range(5):
        lg.wait(("r", t))
        red_sum(RD, t, P+2*t)
        A(f"ds_write_b64 {v(9)}, {v(P+2*t,2)} offset:{t*32}")
    A("s_waitcnt lgkmcnt(0)")
    for n in range(3): A(f"ds_read_b128 {v(RD+4*n,4)}, {v(OA+n)}")
    for n in range(3):
        A(f"s_waitcnt lgkmcnt({2-n})")
        if n == 2: A("s_mov_b64 exec, 0xffffffff")
        A(f"buffer_store_dwordx4 {v(RD+4*n,4)}, {v(OA+3+n)}, {s(SW,4)}, s58 offen {os.environ.get('OUTF', '')}")
    if STAMPS:
        A("s_mov_b64 exec, -1")
        stamp(A, 18)
        A("s_waitcnt vmcnt(0)")
        stamp(A, 19)
        A("s_cmp_lg_u32 s26, 0"); A("s_cbranch_scc1 L_end")
        A("s_lshl_b32 s100, s2, 8"); A(f"s_add_u32 s100, s100, {WS_TS}")
        A("v_lshlrev_b32 v2, 2, v1")
        A(f"buffer_store_dword v3, v2, {s(SWS,4)}, s100 offen")
    A.label("L_end")
    A("s_endpgm")
    return kd(K, 512, accum=256)

def main(path, stamps=False):
    global STAMPS
    STAMPS = stamps
    A = Asm()
    kds = [gen(A)]
    L = [l.strip() if l.strip().endswith(":") else l for l in A.lines]
    X = os.environ.get("EXP", "").split(",")
    import re
    if "nob" in X: L = [l for l in L if not ("s82 offen" in l and " lds" in l)]
    if "now1" in X: L = [l for l in L if not ("s80 offen lds" in l)]
    if "noag" in X: L = [l for l in L if not ("buffer_load_dwordx4 a[" in l)]
    if "noa" in X: L = [l for l in L if not re.search(r"buffer_load_dwordx4 v\[\d+:\d+\], v2, s\[40:43\], s5[2-5]", l)]
    if "nods" in X: L = [l for l in L if not ("ds_read" in l)]
    SEC = os.environ.get("SEC")
    if SEC:
        a_, b_, pats = SEC.split(":")
        i0 = next(i for i, l in enumerate(L) if l.strip() == f"; @S{a_}") + (6 if STAMPS else 1)
        i1 = next(i for i, l in enumerate(L) if l.strip() == f"; @S{b_}")
        L = L[:i0] + [l for l in L[i0:i1] if not any(re.match(p, l.strip()) for p in pats.split("+"))] + L[i1:]
    lines, n = hazard.fix(L)
    open(path, "w").write(file_text(["; @launch grid=(256,1,1) block=(256,1,1) lds=163840"], "\n".join(lines) + "\n", kds))
    print("nops inserted:", n, "lines:", len(lines))
STAMP_NAMES = {0:"start",1:"dma issued",26:"first loads out",27:"setup done",2:"unit staged",25:"late setup 1",20:"FW set",21:"x staged",22:"FW polled",23:"B0 arrived",
               3:"KV gemm",4:"kv stored",6:"Q gemm",28:"kv flags ok",5:"Q epi done",7:"gathered",8:"o flag",9:"o polled",10:"P2 gemm",11:"h flag",13:"h polled",
               14:"P3 gemm",15:"r flag",16:"r polled",17:"P4 gemm",18:"out issued",19:"out done"}
if __name__ == "__main__":
    main(sys.argv[1] if len(sys.argv) > 1 else "v29.s")
SPACE = dict(kvE=[0,3,6,8,10,12], kvEv=[1,2,4,8], oB=[2,4,6,8,10], oE=[0,2,4,6], oS=[2,4,6,8,10], oF=[0,2,4,6], p2G=[0,2,4,6,8], p2B=[0,2,4,6,8,10], p2E=[0,1,2,3],
             hW=[0,3,6,9,12], hA=[0,2,4,6,8], hS=[0,2,4,6], p3f=[0,4,6,8,10], p3L=[4,6,8,10,12,14,16], rB=[4,6,8,10,12], rEn=[0], rS=[0,2,4,6,8], rF=[0,2,4,6,8],
             w1b=[6,8,9,10,11], cs1=[0,6,9,12,18], kinit=[6,8,10,12], kfly=[8,10,12], p3init=[6,8,10,12], p3fly=[8,10,11], binit=[8,10,12,14], bq=[5,6,7,8], ls=[13,14,15,16],
             x0=[2,4,6,8], x1=[0,2,4,6], x1b=[2,4,6,8], x2=[4,6,8,10], smx=[4,6,8,9], gat=[0,20,40,60,90], tw1=[0,1], kvf=[1,2,3,4], kvc=[14,16,17,18,20], opc=[4,5,6,7], fwc=[7,8,9], w1t=[0,1])
```

```python
import sys, os
from collections import deque
sys.path.insert(0, "dev")
from asmgen import *
import hazard

PADH = int(os.environ.get("PADH", "4")); PADR = int(os.environ.get("PADR", "4")); PADX = int(os.environ.get("PADX", "0")); PADW = int(os.environ.get("PADW", "1"))
HS = 80 + PADH; RQ = 48 + PADR; RS_ = 4*RQ + PADX; W2K = 60 + PADW
WS_O  = 0
WS_H  = WS_O + 2621440
WS_R  = WS_H + 128*HS*256
WS_WO = WS_R + 128*RS_*256
WS_W2 = WS_WO + 819200
WS_KV = WS_W2 + 32*W2K*1024
KV_STRIDE = 3584
WS_ST = WS_KV + 256*KV_STRIDE
WS_FP = WS_ST + 131072
WS_FKV = WS_FP + 2048
WS_FO = WS_FKV + 2048
WS_FH = WS_FO + 2048
WS_FR = WS_FH + 2048
WS_FL = WS_FR + 2048
WS_FW = WS_FL + 2048
WS_CP = WS_FW + 2048
WS_WQ = WS_CP + 131072
WS_TS = WS_WQ + 16*153600
WS_END = WS_TS + 256*256
LOG2E = 0x3fb8aa3b; EPS6 = 0x358637bd; EPS5 = 0x3727c5ac; INV640 = 0x3acccccd; ONES = 0x3f803f80
SPIN = 40000
STAMPS = False
OPT = dict(slow=int(os.environ.get("SLOW", "0")))
PF = dict(tlb=0, cw=1, w1b=11, tw1=0, cs1=9, gat=0, w1t=1, x0=6, x1=4, x1b=6, x2=8, opc=5, fwc=8, smx=8, binit=12, bq=7, ls=14, fpchk=18, kvE=12, kvEv=2, kvf=2, kvc=17,
          qE=0, qEv=5, oB=8, oE=4, oT=0, oS=8, oF=0, p2G=5, p2B=8, p2E=0, hW=0, hA=6, hS=0, p3f=6, p3L=7, rB=10, rEn=0, rS=4, rF=4,
          kinit=10, kfly=10, p3init=10, p3fly=10)
for k in list(PF):
    if os.environ.get("PF_"+k): PF[k] = int(os.environ["PF_"+k])

def stamp(A, n):
    A.comment(f"@S{n}")
    if not STAMPS: return
    A("s_memrealtime s[100:101]"); A("s_memtime s[98:99]"); A("s_waitcnt lgkmcnt(0)")
    A(f"v_writelane_b32 v3, s100, {n}"); A(f"v_writelane_b32 v3, s98, {n+32}")

class Cnt:
    def __init__(self, A, name, cap): self.A = A; self.q = []; self.name = name; self.cap = cap; self.seen = set(); self.cnt = 0
    def issue(self, tag, txt):
        for l in (txt if isinstance(txt, list) else [txt]): self.A(l)
        self.q.append(tag); self.seen.add(tag); self.cnt += 1
        assert self.name != "vmcnt" or len(self.q) <= 63
    def pending(self, tag): return tag in self.q
    def wait(self, tag):
        assert tag in self.seen, tag
        if tag not in self.q: return
        idx = len(self.q) - 1 - self.q[::-1].index(tag)
        n = len(self.q) - 1 - idx
        self.A(f"s_waitcnt {self.name}({min(n, self.cap)})")
        self.q = self.q[idx+1:] if n <= self.cap else self.q[len(self.q)-self.cap:]
    def drained(self): self.q = []
    def mark(self): return self.cnt
    def wait_mark(self, m):
        n = self.cnt - m
        self.A(f"s_waitcnt {self.name}({n})")
        if len(self.q) > n: self.q = self.q[len(self.q)-n:] if n else []

class Emit:
    def __init__(self): self.l = []
    def __call__(self, t): self.l.append(t)

TRC = int(os.environ.get('TRC', '8')); HEAVY = int(os.environ.get('HEAVY', '1')); MAXV = int(os.environ.get('MAXV', '2'))
import re
def unpk(l):
    m = re.match(r"v_mov_b64 v\[(\d+):\d+\], (.*)$", l)
    if m:
        d = int(m.group(1)); mm = re.match(r"v\[(\d+):", m.group(2))
        return [f"v_mov_b32 v{d+h}, " + (f"v{int(mm.group(1))+h}" if mm else m.group(2)) for h in range(2)]
    m = re.match(r"v_pk_(add|mul|fma)_f32 (.*?)( op_sel_hi:\[[\d,]+\])?$", l)
    if not m: return [l]
    ops = [o.strip() for o in m.group(2).split(",")]
    hi = [int(c) for c in re.findall(r"\d", m.group(3))] if m.group(3) else [1, 1, 1]
    def el(o, h): k, b = o[0], int(re.match(r".\[(\d+)", o).group(1)); return f"{k}{b+h}"
    out = []
    for h in range(2):
        srcs = [el(o, h if (h == 0 or hi[i]) else 0) for i, o in enumerate(ops[1:])]
        if m.group(1) != "fma" and srcs[1][0] == "s": srcs = srcs[::-1]
        out.append(f"v_{m.group(1)}_f32 {el(ops[0], h)}, " + ", ".join(srcs))
    return out
class Gaps:
    def __init__(self, A, vm, lg): self.A = A; self.vm = vm; self.lg = lg; self.q = [deque(), deque(), deque()]
    def put(self, pr, x): self.q[pr].append(x)
    def valu(self, pr, lines):
        for l in lines:
            for x in unpk(l): self.q[pr].append(("i", x))
    def vmem(self, pr, op):
        tag, txt = op
        txt = txt if isinstance(txt, list) else [txt]
        k = next(i for i, l in enumerate(txt) if l.startswith("buffer_"))
        for l in txt[:k]: self.q[pr].append(("i", l))
        self.q[pr].append(("vm", tag, txt[k]))
        for l in txt[k+1:]: self.q[pr].append(("i", l))
    def ds(self, pr, tag, txt): self.q[pr].append(("ds", tag, txt))
    def cost(self, x):
        if x[0] == "vm": return 2
        if x[0] == "i" and x[1].startswith(("v_pk", "v_exp", "v_rcp", "v_sqrt", "v_perm", "v_mov_b64")): return HEAVY
        if x[0] == "ds" and "write_b128" in x[2]: return 2
        if x[0] == "blk": return len(x[1])
        if x[0] in ("lw", "vw"): return 1 if (self.lg if x[0] == "lw" else self.vm).pending(x[1]) else 0
        return 1
    def ready(self, x):
        if x[0] == "vw": return x[1] in self.vm.seen and (not self.vm.pending(x[1]) or len(self.vm.q) - 1 - self.vm.q.index(x[1]) >= x[2] or self.force)
        if x[0] == "lw": return not self.lg.pending(x[1]) or len(self.lg.q) - 1 - self.lg.q.index(x[1]) >= x[2] or self.force
        return True
    force = False
    def run(self, x):
        if x[0] == "i": self.A(x[1])
        elif x[0] == "vm": self.vm.issue(x[1], x[2])
        elif x[0] == "ds": self.lg.issue(x[1], x[2])
        elif x[0] == "lw": self.lg.wait(x[1])
        elif x[0] == "vw": self.vm.wait(x[1])
        elif x[0] == "blk":
            for y in x[1]: self.run(y)
    def fill(self, budget=2):
        full = budget; nv = 0; ld = 16
        for q in self.q:
            while q and budget > 0 and self.ready(q[0]):
                c = self.cost(q[0])
                if c > budget and budget < full: break
                if q[0][0] == "ds":
                    lc = 16 if "b128" in q[0][2] else TRC
                    if lc > ld: break
                    ld -= lc
                if q[0][0] == "i" and q[0][1].startswith("v_"):
                    if nv >= MAXV: break
                    nv += 1
                self.run(q.popleft()); budget -= c
    def mfma(self, d, x, y, c=None, budget=2):
        self.A(f"v_mfma_f32_16x16x32_bf16 {d}, {x}, {y}, {d if c is None else c}")
        self.fill(budget)
    def flush(self, pr=None):
        self.force = True
        for i, q in enumerate(self.q):
            if pr is None or i == pr:
                while q: self.run(q.popleft())
        self.force = False

def merge(A, vm, stream, side, every=None):
    n = len(stream); k = len(side)
    step = every if every else max(1, n // (k + 1))
    j = 0
    for i, t in enumerate(stream):
        A(t)
        if (i + 1) % step == 0 and j < k:
            vm.issue(*side[j]); j += 1
    while j < k:
        vm.issue(*side[j]); j += 1

def mfma(A, d, x, y, c=None):
    A(f"v_mfma_f32_16x16x32_bf16 {d}, {x}, {y}, {d if c is None else c}")

def kperm(A, dst, p, t1, t2):
    A(f"v_and_b32 {v(t1)}, 12, {v(p)}"); A(f"v_lshlrev_b32 {v(t1)}, 1, {v(t1)}")
    A(f"v_lshrrev_b32 {v(t2)}, 4, {v(p)}"); A(f"v_lshlrev_b32 {v(t2)}, 2, {v(t2)}")
    A(f"v_and_b32 {v(dst)}, 3, {v(p)}")
    A(f"v_or3_b32 {v(dst)}, {v(dst)}, {v(t1)}, {v(t2)}")

def ln_stats2(E, pairs, tmps):
    def each(f):
        for k, (a_, b_) in enumerate(pairs): f(a_, b_, tmps[k])
    def rnd(r): return [f"v_cvt_pk_bf16_f32 {v(r)}, {v(r)}, {v(r)}", f"v_and_b32 {v(r)}, 0xffff0000, {v(r)}"]
    each(lambda a_, b_, t: E(f"v_mul_f32 {v(a_)}, s93, {v(a_)}"))
    each(lambda a_, b_, t: E(f"v_mul_f32 {v(t)}, {v(a_)}, {v(a_)}"))
    each(lambda a_, b_, t: E(f"v_fma_f32 {v(b_)}, {v(b_)}, s93, -{v(t)}"))
    each(lambda a_, b_, t: E(f"v_max_f32 {v(b_)}, 0, {v(b_)}"))
    each(lambda a_, b_, t: E(rnd(b_)[0])); each(lambda a_, b_, t: E(rnd(a_)[0]))
    each(lambda a_, b_, t: E(rnd(b_)[1])); each(lambda a_, b_, t: E(rnd(a_)[1]))
    each(lambda a_, b_, t: E(f"v_add_f32 {v(b_)}, 0x{EPS5:x}, {v(b_)}"))
    each(lambda a_, b_, t: E(f"v_xor_b32 {v(a_)}, 0x80000000, {v(a_)}"))
    each(lambda a_, b_, t: E(rnd(b_)[0])); each(lambda a_, b_, t: E(rnd(b_)[1]))
    each(lambda a_, b_, t: E(f"v_sqrt_f32 {v(b_)}, {v(b_)}"))
    each(lambda a_, b_, t: E(rnd(b_)[0])); each(lambda a_, b_, t: E(rnd(b_)[1]))
    each(lambda a_, b_, t: E(f"v_rcp_f32 {v(b_)}, {v(b_)}"))

def take(Q, n):
    out = Q[:n]; del Q[:n]; return out

def gen(A):
    K = NAME + "_kernel"
    kernel_begin(A, K)
    SI, SG, SJ, SC = 30, 31, 28, 29
    SX, SW, SWS, SD, SP = 32, 36, 40, 44, 48
    NON = 94
    vL16 = 2
    vm = Cnt(A, "vmcnt", 63); lg = Cnt(A, "lgkmcnt", 15); G = Gaps(A, vm, lg)
    sMODE = 84
    def dual(txt):
        k = "O" if f"{s(sO)} offen" in txt else ("R" if f"{s(sR)} offen" in txt else "H")
        return [txt.replace("SRD", s(SWS,4)) + (" sc1" if k in os.environ.get("WT", "OHR") else "")]
    vNF = 242
    def set_flag(off_sgpr, both=False):
        lab = A.newlabel("nf"); slow = A.newlabel("sl")
        A("s_cmp_lg_u32 s26, 0"); A(f"s_cbranch_scc1 {lab}")
        A("s_mov_b64 exec, 1")
        x = f"buffer_store_dwordx2 {v(vNF,2)}, {v(vNF+2)}, {s(SWS,4)}, {s(off_sgpr)} offen"
        if both:
            A(f"s_cmp_lg_u32 {s(sMODE)}, 1"); A(f"s_cbranch_scc1 {slow}")
            A(x); A("s_mov_b64 exec, -1"); A(f"s_branch {lab}")
            A.label(slow)
            A("buffer_wbl2 sc1"); A("s_waitcnt vmcnt(0)")
        A(x + " sc1")
        A("s_mov_b64 exec, -1")
        A.label(lab)
    def poll(off_sgpr, tmp):
        lab = A.newlabel("pl"); done = A.newlabel("pd")
        A("s_mov_b32 s96, 0")
        A.label(lab)
        A(f"buffer_load_dwordx2 {v(tmp,2)}, {v(vSA)}, {s(SWS,4)}, {s(off_sgpr)} offen sc1")
        A("s_waitcnt vmcnt(0)")
        A(f"v_cmp_ne_u64 vcc, {s(NON,2)}, {v(tmp,2)}")
        A("s_add_u32 s96, s96, 1")
        A(f"s_cbranch_vccz {done}")
        A(f"s_cmp_lt_u32 s96, {SPIN}"); A(f"s_cbranch_scc1 {lab}")
        A.label(done)
        vm.drained()
    def run_loads(tag, dst, sbase, n, flags="sc1"):
        ops = []
        for k in range(n):
            t = [f"buffer_load_dwordx4 {dst(k)}, {v(vL16)}, {s(SWS,4)}, {s(sbase)} offen offset:{(k%4)*1024} {flags}"]
            if k % 4 == 3 and k + 1 < n: t.append(f"s_add_u32 {s(sbase)}, {s(sbase)}, 4096")
            ops.append((tag(k), t))
        return ops

    MISC = 155648
    L_KVN = MISC; L_KVD = MISC + 6144; L_RSTD = MISC + 6400; L_CS = L_RSTD + 1024
    L_PACK = 126976; L_XR = 12288; NXR = 7; L_Q = 102400; L_XT = 139264; L_RED2 = 77824; L_CS3 = L_RSTD; L_KR = 69632; L_CP = 153600
    t0, t1, t2, t3, t4, t5 = range(24, 30)
    vXa, vXb, vU, vUr = 4, 5, 6, 7
    vXr = [8, 9]; vBa = [10, 11, 12]; vQ7 = 13; vUo = 14; vCSa = 15
    vSw, vSr, vC0, vC1, vC2 = 16, 17, 30, 31, 32
    vONE = 20
    vBF = 36; vAK = 76; vAQ = 116; vAS = 148; vASS = 214
    XF = lambda s_, mt: a((2*s_+mt)*4, 4)
    BFr = lambda b, t: vBF + (b*5+t)*4
    AK = lambda mt, t: vAK + (mt*5+t)*4
    AQ = lambda mt, t: vAQ + (mt*3+t)*4
    OPA = 222; g0, g1, g2, pr, fl, xa = 226, 227, 228, 229, 230, 233
    vOA, vHA, vRA, vSA = 236, 237, 238, 239
    sO, sH, sR, sST, sKV = 4, 5, 6, 7, 8
    RS = 156; NM = 164; RL2 = 172; CSK = 180; rl = 190; nl = 194; rl2 = 198; CSQ = 202
    A("s_cmp_ge_u32 s2, 256"); A("s_cbranch_scc1 L_end")
    if STAMPS: A("v_mov_b32 v3, 0")
    stamp(A, 0)
    A("s_load_dwordx4 s[4:7], s[0:1], 0")
    if PF["cw"]:
        A(f"s_cmp_ge_u32 s2, {8*PF['cw']}"); A("s_cbranch_scc1 CW_skip")
        A("s_getpc_b64 s[60:61]"); A.label("CW_pc"); A(f"v_lshlrev_b32 {v(33)}, 7, v0"); A(f"v_min_u32 {v(33)}, L_end-CW_pc, {v(33)}")
        A(f"global_load_dword {v(35)}, {v(33)}, s[60:61]")
        A.label("CW_skip")
    A("v_lshrrev_b32 v2, 6, v0"); A("v_and_b32 v1, 63, v0"); A("v_readfirstlane_b32 s26, v2")
    A("s_and_b32 s27, s2, 7"); A(f"s_bfe_u32 s53, s2, 0x10003"); A(f"s_lshl1_add_u32 {s(SI)}, s27, s53"); A(f"s_lshr_b32 {s(SG)}, s2, 4")
    A(f"v_lshrrev_b32 {v(t0)}, 4, v1")
    A(f"v_lshlrev_b32 {v(t2)}, 2, {v(t0)}"); A(f"v_and_b32 {v(t1)}, 15, v1"); A(f"v_xor_b32 {v(t1)}, {v(t1)}, {v(t2)}"); A(f"v_min_u32 {v(t1)}, 14, {v(t1)}")
    A(f"v_mul_u32_u24 {v(t2)}, 52, {v(t1)}"); A(f"v_lshrrev_b32 {v(t2)}, 8, {v(t2)}")
    A(f"v_add_u32 {v(t3)}, 1, {v(t2)}"); A(f"v_cmp_eq_u32 vcc, 2, {v(t2)}"); A(f"v_cndmask_b32 {v(t3)}, {v(t3)}, 0, vcc")
    A(f"v_mul_u32_u24 {v(t3)}, 80, {v(t3)}"); A(f"v_mul_u32_u24 {v(t2)}, 5, {v(t2)}"); A(f"v_sub_u32 {v(t1)}, {v(t1)}, {v(t2)}")
    A(f"v_mul_u32_u24 {v(t0)}, 240, {v(t0)}"); A(f"v_add3_u32 {v(t1)}, {v(t1)}, {v(t3)}, {v(t0)}"); A(f"v_lshlrev_b32 {v(vU)}, 4, {v(t1)}")
    A(f"s_mul_i32 s56, {s(SI)}, 10"); A("s_add_u32 s56, s56, s26"); A(f"s_mul_i32 s56, s56, {4*3840}"); A(f"s_mul_i32 s53, {s(SG)}, 80"); A("s_add_u32 s56, s56, s53")
    A(f"s_add_u32 s57, s56, {16*3840}"); A(f"s_add_u32 s58, s56, {32*3840}")
    A("s_cmp_ge_u32 s26, 2"); A("s_cselect_b32 s58, 0x7fffffff, s58")
    A("s_lshl_b32 s83, s26, 10")
    A(f"s_mov_b32 {s(SW+2)}, {640*3840}"); A(f"s_mov_b32 {s(SW+3)}, 0x00020000"); A("s_mov_b32 m0, s83")
    A("s_waitcnt lgkmcnt(0)")
    A(f"s_mov_b32 {s(SW)}, s6"); A(f"s_and_b32 {s(SW+1)}, s7, 0xffff")
    for n in range(3): vm.issue(("u",), ([f"s_add_u32 m0, s83, {n*4096}", "s_nop 0"] if n else []) + [f"buffer_load_dwordx4 {v(vU)}, {s(SW,4)}, {s(56+n)} offen lds"])
    A("s_load_dwordx8 s[8:15], s[0:1], 16")
    A("s_load_dwordx8 s[16:23], s[0:1], 48")
    A("s_load_dwordx2 s[24:25], s[0:1], 80")
    A(f"s_memrealtime {s(NON,2)}")
    A(f"v_lshlrev_b32 {v(vL16)}, 4, v1")
    A(f"s_and_b32 s53, {s(SG)}, 1"); A(f"s_lshl1_add_u32 {s(SJ)}, {s(SI)}, s53"); A(f"s_lshr_b32 {s(SC)}, {s(SG)}, 1")
    A(f"s_mul_i32 s68, {s(SI)}, 5"); A("s_cmp_ge_u32 s26, 2"); A("s_cselect_b32 s69, 1, 0"); A("s_mov_b32 s67, 0")
    A(f"v_lshlrev_b32 {v(34)}, 7, v1")
    A(f"s_lshl_b32 s52, {s(SI)}, 4"); A(f"s_add_u32 s52, s52, {s(SG)}"); A("s_lshl_b32 s52, s52, 2"); A("s_add_u32 s52, s52, s26"); A("s_mul_i32 s52, s52, 2560")
    def x_ops(c):
        return [(("x", c), [f"s_add_u32 m0, s59, {(c%NXR)*4096+mt*2048+h*1024}", f"s_movk_i32 s63, {c*128+mt*20480}" if h == 0 else "s_nop 0",
                            f"buffer_load_dwordx4 {v(vXb if h else vXa)}, {s(SX,4)}, s63 offen lds"]) for mt in range(2) for h in range(2)]
    srd(A, SX, 4, 2048*1280)
    A("s_mov_b64 exec, 0xfffff")
    vm.issue(("tch",), f"buffer_load_dword {v(35)}, {v(34)}, {s(SX,4)}, s52 offen")
    A("s_mov_b64 exec, -1")
    A(f"v_lshrrev_b32 {v(t0)}, 3, v1"); A(f"v_and_b32 {v(t1)}, 7, v1"); A(f"v_lshrrev_b32 {v(t2)}, 1, {v(t0)}")
    A(f"v_xor_b32 {v(t3)}, {v(t1)}, {v(t2)}"); A(f"v_xor_b32 {v(t4)}, 4, {v(t3)}")
    A(f"s_lshl_b32 s54, {s(SI)}, 7"); A("s_lshl_b32 s53, s26, 5"); A("s_add_u32 s54, s54, s53")
    A(f"v_add_u32 {v(t0)}, s54, {v(t0)}"); A(f"v_mul_u32_u24 {v(t0)}, 1280, {v(t0)}")
    A(f"v_lshl_add_u32 {v(vXa)}, {v(t3)}, 4, {v(t0)}"); A(f"v_lshl_add_u32 {v(vXb)}, {v(t4)}, 4, {v(t0)}")
    A(f"v_add_u32 {v(vXb)}, {8*1280}, {v(vXb)}")
    A(f"s_mul_i32 s59, s26, {NXR*4096}"); A(f"s_add_u32 s59, s59, {L_XR}")
    A("s_waitcnt lgkmcnt(0)")
    if PF["w1t"]:
        srd(A, SP, 12, 640*3072)
        if PF["w1t"] == 1:
            A("s_lshl_b32 s53, s2, 2"); A("s_add_u32 s53, s53, s26"); A("s_mul_i32 s53, s53, 1920"); A("s_mov_b64 exec, 0x7fff")
            vm.issue(("tch",), f"buffer_load_dword {v(35)}, {v(34)}, {s(SP,4)}, s53 offen")
        else:
            A("s_lshr_b32 s53, s2, 3"); A("s_lshl_b32 s53, s53, 2"); A("s_add_u32 s53, s53, s26"); A("s_mul_i32 s53, s53, 15360"); A("s_mov_b64 exec, 0xfffffffffffffff" if False else "s_mov_b64 exec, -1")
            vm.issue(("tch",), f"buffer_load_dword {v(35)}, {v(34)}, {s(SP,4)}, s53 offen")
            A("s_add_u32 s53, s53, 7168")
            vm.issue(("tch",), f"buffer_load_dword {v(35)}, {v(34)}, {s(SP,4)}, s53 offen")
        A("s_mov_b64 exec, -1")
    stamp(A, 1)
    srd(A, SD, 22, 256)
    A("s_xor_b32 s53, s2, 2"); A("s_or_b32 s53, s53, s26"); A("s_cmp_lg_u32 s53, 0"); A("s_cbranch_scc1 N_skip")
    A(f"v_mov_b32 {v(t0)}, {s(NON)}"); A(f"v_mov_b32 {v(t1)}, {s(NON+1)}"); A(f"v_mov_b32 {v(t2)}, 0")
    A("s_mov_b64 exec, 1")
    A(f"buffer_store_dwordx2 {v(t0,2)}, {v(t2)}, {s(SD,4)}, 0 offen sc1")
    A("s_mov_b64 exec, -1")
    A.label("N_skip")
    srd(A, SWS, 24, WS_END)
    if PF["tlb"]:
        lab = "TL_skip"
        if PF["tlb"] == 1: A("s_cmp_lg_u32 s26, 3"); A(f"s_cbranch_scc1 {lab}")
        else: A("s_lshr_b32 s53, s2, 3"); A("s_or_b32 s53, s53, s26"); A("s_cmp_lg_u32 s53, 1"); A(f"s_cbranch_scc1 {lab}")
        A(f"v_lshlrev_b32 {v(33)}, 20, v1"); A(f"s_mov_b64 exec, {hex((1 << (WS_END >> 20)) - 1)}")
        A(f"buffer_load_dword {v(35)}, {v(33)}, {s(SWS,4)}, 0 offen")
        srd(A, SP, 20, 2048*1280); A("s_mov_b64 exec, 7")
        A(f"buffer_load_dword {v(35)}, {v(33)}, {s(SP,4)}, 0 offen")
        srd(A, SP, 14, 3072); A("s_mov_b64 exec, 1")
        A(f"buffer_load_dword {v(35)}, {v(33)}, {s(SP,4)}, 0 offen")
        srd(A, SP, 18, 1280)
        A(f"buffer_load_dword {v(35)}, {v(33)}, {s(SP,4)}, 0 offen")
        A("s_mov_b64 exec, -1")
        A.label(lab)
    PAD = vBF + 8
    for j in range(4):
        A(f"v_lshrrev_b32 {v(t0)}, 3, v1"); A(f"v_add_u32 {v(t0)}, {8*j}, {v(t0)}")
        kperm(A, t1, t0, t2, t3)
        A(f"v_bfe_u32 {v(t2)}, v1, 1, 2"); A(f"v_bfe_u32 {v(t3)}, {v(t0)}, 1, 2"); A(f"v_xor_b32 {v(t2)}, {v(t2)}, {v(t3)}")
        A(f"v_and_b32 {v(t3)}, 1, v1"); A(f"v_lshl_or_b32 {v(t2)}, {v(t2)}, 1, {v(t3)}")
        A(f"v_mul_u32_u24 {v(t1)}, 1280, {v(t1)}"); A(f"v_lshl_add_u32 {v(PAD+j)}, {v(t2)}, 4, {v(t1)}")
    A("s_lshl_b32 s80, s2, 1"); A("s_add_u32 s80, s80, s26")
    A("s_cmp_lt_u32 s2, 240"); A("s_cselect_b32 s90, 2, 0")
    A("s_and_b32 s53, s2, 1"); A("s_add_u32 s53, s53, 2"); A("s_cmp_eq_u32 s53, s26"); A("s_cselect_b32 s91, 1, 0")
    A("s_cmp_lt_u32 s2, 200"); A("s_cselect_b32 s91, s91, 0")
    A("s_cmp_lt_u32 s26, 2"); A("s_cselect_b32 s90, s90, s91"); A("s_cselect_b32 s80, s80, s2")
    A(f"s_cselect_b64 {s(SP,2)}, s[16:17], s[8:9]"); A("s_cselect_b32 s86, 12, 5"); A(f"s_mov_b32 s85, {WS_WO}"); A(f"s_cselect_b32 s85, {WS_W2}, s85")
    A(f"s_mov_b32 {s(SP+2)}, {640*1280}"); A(f"s_cselect_b32 {s(SP+2)}, {1536*1280}, {s(SP+2)}")
    A(f"s_and_b32 {s(SP+1)}, {s(SP+1)}, 0xffff"); A(f"s_mov_b32 {s(SP+3)}, 0x00020000")
    A("s_mul_i32 s78, s80, 6554"); A("s_lshr_b32 s78, s78, 16"); A("s_mul_i32 s79, s78, 10"); A("s_sub_u32 s79, s80, s79")
    A("s_mul_i32 s87, s78, 40960"); A("s_lshl_b32 s88, s79, 7"); A("s_add_u32 s87, s87, s88")
    A("s_lshl_b32 s81, s26, 12"); A(f"s_add_u32 s81, s81, {L_PACK}")
    A("s_cmp_eq_u32 s90, 0"); A("s_cselect_b32 s87, 0x7fffffff, s87")
    op_txt = [[f"s_add_u32 m0, s81, {j*1024}", "s_nop 0", f"buffer_load_dwordx4 {v(PAD+j)}, {s(SP,4)}, s87 offen lds"] for j in range(4)]
    A("s_cmp_lg_u32 s90, 1"); A("s_cbranch_scc1 E_no")
    for x in op_txt:
        for y in x: A(y)
    A("s_mov_b32 s87, 0x7fffffff")
    A.label("E_no")
    op_loads = [(("op",), x) for x in op_txt]
    XQ = []
    for c in range(NXR): XQ += x_ops(c)
    for x in take(XQ, PF["x0"]): vm.issue(*x)
    stamp(A, 26)
    sDST = [16, 17, 89, 91]
    A("s_mul_i32 s84, s86, 20"); A("s_mul_i32 s88, s78, 5")
    A("s_mul_i32 s60, s78, 43"); A("s_lshr_b32 s60, s60, 9"); A(f"s_mul_i32 s60, s60, {PADW}")
    A("s_cmp_lt_u32 s26, 2"); A("s_cselect_b32 s60, s60, 0"); A(f"s_cselect_b32 s61, {4*PADW}, 0"); A("s_add_u32 s88, s88, s60"); A("s_add_u32 s84, s84, s61")
    for j in range(4):
        A("s_lshl_b32 s60, s79, 2"); A(f"s_add_u32 s60, s60, {j}"); A("s_mul_i32 s61, s60, 52"); A("s_lshr_b32 s61, s61, 8")
        A("s_mul_i32 s62, s61, 5"); A("s_sub_u32 s60, s60, s62"); A("s_mul_i32 s61, s61, s84"); A("s_add_u32 s60, s60, s61"); A("s_add_u32 s60, s60, s88")
        A("s_lshl_b32 s60, s60, 10"); A(f"s_add_u32 {s(sDST[j])}, s60, s85")
    A("s_cmp_eq_u32 s90, 0")
    for j in range(4): A(f"s_cselect_b32 {s(sDST[j])}, 0x7fffffff, {s(sDST[j])}")
    A(f"v_lshrrev_b32 {v(t0)}, 4, v1"); A("s_and_b32 s60, s26, 1"); A("s_lshl_b32 s60, s60, 2"); A(f"v_add_u32 {v(t0)}, s60, {v(t0)}")
    A(f"v_bfe_u32 {v(t1)}, v1, 2, 2"); A(f"v_lshlrev_b32 {v(t2)}, 1, {v(t1)}"); A(f"v_xor_b32 {v(t2)}, {v(t2)}, {v(t0)}")
    A(f"v_lshlrev_b32 {v(t1)}, 8, {v(t1)}"); A(f"v_lshl_or_b32 {v(t1)}, {v(t2)}, 5, {v(t1)}")
    A(f"v_and_b32 {v(t2)}, 3, v1"); A(f"v_lshl_or_b32 {v(t1)}, {v(t2)}, 3, {v(t1)}")
    A("s_lshr_b32 s60, s26, 1"); A("s_lshl_b32 s61, s60, 11"); A(f"v_add_u32 {v(vUr)}, s61, {v(t1)}")
    A(f"v_and_b32 {v(t1)}, 15, v1")
    A(f"v_lshlrev_b32 {v(t2)}, 2, v0"); A(f"v_add_u32 {v(vCSa)}, {L_RSTD}, {v(t2)}"); A(f"v_add_u32 {v(33)}, {L_RSTD}, {v(vL16)}")
    A(f"v_cmp_le_u32 s[70:71], 5, {v(t0)}"); A(f"v_cmp_eq_u32 s[72:73], 7, {v(t0)}"); A(f"v_cmp_le_u32 s[74:75], 8, {v(t1)}")
    A(f"v_add_u32 {v(t2)}, -5, {v(t0)}"); A(f"v_cndmask_b32 {v(t2)}, {v(t0)}, {v(t2)}, s[70:71]")
    A(f"v_lshlrev_b32 {v(t2)}, 10, {v(t2)}"); A(f"v_lshl_or_b32 {v(vUo)}, {v(t1)}, 4, {v(t2)}")
    A("s_and_b64 s[74:75], s[74:75], s[72:73]"); A("s_not_b64 s[74:75], s[74:75]")
    A("s_add_u32 s61, s68, s60")
    A(f"s_mul_i32 s62, {s(SG)}, 153600"); A(f"s_add_u32 s82, s62, {WS_WQ}")
    for r in range(4): A(f"v_mov_b32 {v(vONE+r)}, 0x{ONES:x}")
    UA = 48; UF = 52
    for r in range(3):
        A(f"s_add_u32 s62, s61, {2*r}")
        A("s_lshr_b32 s63, s62, 2"); A("s_and_b32 s62, s62, 3"); A("s_lshl_b32 s62, s62, 8")
        A("s_mul_i32 s64, s63, 5120"); A("s_add_u32 s64, s64, s62")
        A("s_lshr_b32 s65, s63, 1"); A("s_mul_i32 s65, s65, 5120"); A("s_add_u32 s65, s65, s62"); A("s_add_u32 s65, s65, 102400")
        A("s_and_b32 s63, s63, 1"); A("s_lshl_b32 s62, s63, 7"); A("s_add_u32 s62, s62, s65"); A("s_add_u32 s62, s62, 2048")
        A("s_lshl_b32 s63, s63, 11"); A("s_add_u32 s65, s65, s63")
        A(f"v_mov_b32 {v(t0)}, s64"); A(f"v_mov_b32 {v(t1)}, s65"); A(f"v_mov_b32 {v(t2)}, s62")
        A(f"v_cndmask_b32 {v(t0)}, {v(t0)}, {v(t1)}, s[70:71]"); A(f"v_cndmask_b32 {v(t0)}, {v(t0)}, {v(t2)}, s[72:73]")
        A(f"v_add_u32 {v(UA+r)}, {v(t0)}, {v(vUo)}")
    A("s_cmp_eq_u32 s69, 1"); A("s_cselect_b32 s56, 0x7fffffff, s82"); A("s_cmp_eq_u32 s67, 1"); A("s_cselect_b32 s57, 0x7fffffff, s82")
    A(f"s_lshl_b32 s62, {s(SG)}, 4"); A(f"s_add_u32 s62, s62, {s(SI)}"); A("s_lshl_b32 s55, s62, 9"); A(f"s_add_u32 s55, s55, {WS_CP}")
    A("s_lshl_b32 s97, s62, 3"); A(f"s_add_u32 s97, s97, {WS_FW}")
    A(f"v_mov_b32 {v(vNF+2)}, 0")
    stamp(A, 27)
    vm.wait(("u",)); A("s_barrier")
    stamp(A, 2)
    for r in range(3):
        for jj in range(2): lg.issue(("uf", r), f"ds_read_b64_tr_b16 {v(UF+4*r+2*jj,2)}, {v(vUr)} offset:{r*4096+jj*1024}")
    vm.issue(("non",), f"buffer_load_dwordx2 {v(vNF,2)}, {v(vNF+2)}, {s(SD,4)}, 0 offen sc1")
    A("s_mov_b64 exec, s[74:75]")
    for r in range(3):
        lg.wait(("uf", r))
        vm.issue(("ust",), f"buffer_store_dwordx4 {v(UF+4*r,4)}, {v(UA+r)}, {s(SWS,4)}, {'s56' if r == 2 else 's57'} offen sc1")
    A("s_mov_b64 exec, -1")
    for r in range(4): A(f"v_dot2_f32_bf16 {v(68+r)}, {v(UF+r)}, {v(vONE)}, 0")
    for r in range(4, 12): A(f"v_dot2c_f32_bf16 {v(68+r%4)}, {v(UF+r)}, {v(vONE)}")
    for x in take(XQ, PF["x1"]): vm.issue(*x)
    A(f"v_pk_add_f32 {v(68,2)}, {v(68,2)}, {v(70,2)}"); A(f"v_add_f32 {v(68)}, {v(68)}, {v(69)}")
    A(f"ds_write_b32 {v(vCSa)}, {v(68)}")
    A("s_waitcnt lgkmcnt(0)"); A("s_barrier")
    A("s_cmp_lg_u32 s26, 1"); A("s_cbranch_scc1 CS_skip")
    A("s_mov_b64 exec, 0xffffffff")
    A(f"ds_read_b128 {v(UF,4)}, {v(33)}"); A(f"ds_read_b128 {v(UF+4,4)}, {v(33)} offset:512"); A("s_waitcnt lgkmcnt(0)")
    for r in (0, 2): A(f"v_pk_add_f32 {v(UF+r,2)}, {v(UF+r,2)}, {v(UF+4+r,2)}")
    A(f"buffer_store_dwordx4 {v(UF,4)}, {v(vL16)}, {s(SWS,4)}, s55 offen sc1")
    A("s_mov_b64 exec, -1")
    A.label("CS_skip")
    mk = vm.mark()
    l0, l1, l2, l3, l4 = 68, 69, 70, 71, 72
    E = Emit()
    E(f"v_and_b32 {v(l0)}, 15, v1"); E(f"v_lshrrev_b32 {v(l1)}, 4, v1"); E(f"v_bfe_u32 {v(l2)}, v1, 1, 3")
    E(f"v_xor_b32 {v(l2)}, {v(l1)}, {v(l2)}"); E(f"v_lshl_add_u32 {v(l2)}, {v(l0)}, 3, {v(l2)}"); E(f"v_lshlrev_b32 {v(l2)}, 4, {v(l2)}")
    E(f"v_add_u32 {v(vXr[0])}, s59, {v(l2)}"); E(f"v_xor_b32 {v(vXr[1])}, 64, {v(vXr[0])}"); E(f"v_lshlrev_b32 {v(vSA)}, 3, {v(l0)}")
    E(f"v_lshrrev_b32 {v(l0)}, 2, v1"); E(f"v_bfe_u32 {v(l1)}, v1, 3, 2")
    E(f"v_lshlrev_b32 {v(l0)}, 7, {v(l0)}"); E(f"v_lshl_or_b32 {v(l0)}, {v(l1)}, 5, {v(l0)}")
    E(f"v_and_b32 {v(l1)}, 3, v1"); E(f"v_lshl_or_b32 {v(l0)}, {v(l1)}, 3, {v(l0)}")
    for t in range(4): E(f"v_xor_b32 {v(OPA+t)}, {t*32}, {v(l0)}"); E(f"v_add_u32 {v(OPA+t)}, s81, {v(OPA+t)}")
    E(f"v_mov_b64 {v(l2,2)}, 0"); E(f"v_mov_b64 {v(l4,2)}, 0")
    E(f"v_lshlrev_b32 {v(l0)}, 4, v0"); E(f"v_min_u32 {v(l1)}, {6384-4096}, {v(l0)}")
    E(f"v_add_u32 {v(l0)}, {L_KVN}, {v(l0)}"); E(f"v_add_u32 {v(l1)}, {L_KVN+4096}, {v(l1)}")
    E(f"ds_write_b128 {v(l0)}, {v(l2,4)}"); E(f"ds_write_b128 {v(l1)}, {v(l2,4)}")
    E(f"v_mov_b32 {v(vBa[0])}, {v(vL16)}"); E(f"v_add_u32 {v(vBa[1])}, 51200, {v(vL16)}"); E(f"v_add_u32 {v(vBa[2])}, {L_Q}, {v(vL16)}")
    E(f"s_lshl_b32 s66, {s(SG)}, 7"); E(f"s_add_u32 s66, s66, {WS_FW}")
    E(f"s_lshl_b32 s67, {s(SG)}, 2"); E("s_add_u32 s67, s67, s26"); E("s_lshl_b32 s67, s67, 11"); E(f"s_add_u32 s67, s67, {WS_CP}")
    E("s_mul_i32 s69, s26, 5120"); E("s_add_u32 s82, s82, s69")
    E(f"s_lshl_b32 s9, {s(SI)}, 4"); E(f"s_add_u32 s9, s9, {s(SG)}"); E("s_lshl_b32 s9, s9, 3"); E(f"s_add_u32 s9, s9, {WS_FP}")
    E("s_getreg_b32 s92, hwreg(HW_REG_XCC_ID, 0, 4)")
    E(f"s_mul_i32 s65, {s(SG)}, {16*KV_STRIDE}"); E(f"s_add_u32 s65, s65, {WS_KV}")
    E(f"v_lshlrev_b32 {v(g1)}, 4, v0"); E(f"v_add_u32 {v(g1)}, s65, {v(g1)}")
    E(f"v_cmp_gt_u32 vcc, 210, v0"); E("s_mov_b64 s[10:11], vcc")
    E(f"s_mul_i32 {s(sKV)}, {s(SI)}, {KV_STRIDE}")
    E(f"v_mov_b64 {v(64,2)}, -1"); E(f"v_mov_b64 {v(66,2)}, -1")
    merge(A, vm, E.l, take(XQ, PF["x1b"]))
    stamp(A, 25)
    vm.wait(("non",))
    A("s_mov_b32 s96, 0")
    A.label("N_l")
    A(f"v_readfirstlane_b32 {s(NON)}, {v(vNF)}"); A(f"v_readfirstlane_b32 {s(NON+1)}, {v(vNF+1)}")
    A(f"s_or_b32 s62, {s(NON)}, {s(NON+1)}"); A("s_cmp_lg_u32 s62, 0"); A("s_cbranch_scc1 N_d")
    A(f"buffer_load_dwordx2 {v(vNF,2)}, {v(vNF+2)}, {s(SD,4)}, 0 offen sc1"); A("s_waitcnt vmcnt(0)")
    A("s_add_u32 s96, s96, 1"); A(f"s_cmp_lt_u32 s96, {SPIN}"); A("s_cbranch_scc1 N_l")
    A.label("N_d")
    vm.wait_mark(mk)
    A("s_barrier")
    set_flag(97)
    stamp(A, 20)
    A("s_mov_b64 exec, s[10:11]")
    vm.issue(("pre",), f"buffer_store_dwordx4 {v(64,4)}, {v(g1)}, {s(SWS,4)}, {s(sKV)} offen sc1")
    A("s_mov_b64 exec, -1")
    A("s_cmp_lg_u32 s90, 1"); A("s_cbranch_scc1 E_nob")
    for t in range(4):
        for jj in range(2): A(f"ds_read_b64_tr_b16 {v(vAK+4*t+2*jj,2)}, {v(OPA+t)} offset:{jj*2048}")
    for t in range(4):
        A(f"s_waitcnt lgkmcnt({6-2*t})")
        A(f"buffer_store_dwordx4 {v(vAK+4*t,4)}, {v(vL16)}, {s(SWS,4)}, {s(sDST[t])} offen sc1")
        A(f"s_mov_b32 {s(sDST[t])}, 0x7fffffff")
    A.label("E_nob")
    for x in take(XQ, PF["x2"]): vm.issue(*x)
    A(f"s_lshl_b32 s62, {s(NON+1)}, 4"); A("s_or_b32 s92, s92, s62")
    A(f"v_mov_b32 {v(t0)}, {s(NON)}"); A(f"v_mov_b32 {v(t1)}, s92")
    E = Emit()
    E(f"v_and_b32 {v(l0)}, 15, v1"); E(f"v_lshrrev_b32 {v(l1)}, 4, v1"); E("s_lshl_b32 s64, s26, 7")
    E(f"v_lshl_add_u32 {v(vSw)}, {v(l0)}, 2, s64"); E(f"v_add_u32 {v(vSw)}, {L_RSTD}, {v(vSw)}")
    E(f"v_lshl_add_u32 {v(vSr)}, {v(l1)}, 4, s64"); E(f"v_add_u32 {v(vSr)}, {L_RSTD}, {v(vSr)}")
    E(f"v_and_b32 {v(vC0)}, 0x1f0, {v(vL16)}"); E("s_lshl_b32 s64, s26, 9"); E(f"s_add_u32 s64, s64, {L_CP}"); E(f"v_add_u32 {v(vC0)}, s64, {v(vC0)}")
    E(f"v_lshlrev_b32 {v(vC1)}, 2, {v(l0)}"); E(f"v_add_u32 {v(vC1)}, {L_CP}, {v(vC1)}")
    E(f"v_lshlrev_b32 {v(vC2)}, 4, {v(l1)}"); E(f"v_add_u32 {v(vC2)}, {L_CP+320}, {v(vC2)}")
    E(f"v_and_b32 {v(l2)}, 3, v1")
    E(f"v_cmp_eq_u32 s[70:71], 1, {v(l2)}"); E(f"v_cmp_eq_u32 s[72:73], 2, {v(l2)}"); E(f"v_cmp_eq_u32 s[74:75], 3, {v(l2)}")
    E(f"v_bfe_u32 {v(l2)}, v1, 2, 2"); E(f"v_cmp_eq_u32 s[60:61], {v(l2)}, {v(l1)}")
    E(f"s_mov_b32 s93, 0x{INV640:x}")
    E(f"s_mov_b32 s78, 0x{LOG2E:x}"); E(f"s_mov_b32 s79, 0x{EPS6:x}"); E("s_mov_b32 s77, s79"); E("s_mov_b32 s76, s79")
    E(f"v_lshlrev_b32 {v(fl+2)}, 3, v0")
    E(f"s_lshl_b32 s52, {s(SI)}, 7"); E(f"s_add_u32 s52, s52, {WS_FP}"); E(f"s_mov_b32 s53, {WS_FP}")
    E(f"v_and_b32 {v(vQ7)}, 0x37f, {v(vL16)}"); E(f"v_add_u32 {v(vQ7)}, {L_Q+4096}, {v(vQ7)}")
    E(f"v_bfe_u32 {v(l1)}, v1, 4, 1"); E(f"v_lshrrev_b32 {v(l2)}, 5, v1")
    E(f"v_lshlrev_b32 {v(l2)}, 8, {v(l2)}"); E(f"v_lshl_or_b32 {v(l2)}, {v(l0)}, 4, {v(l2)}")
    E(f"v_mul_u32_u24 {v(vOA)}, {80*256}, {v(l1)}"); E(f"v_add_u32 {v(vOA)}, {v(vOA)}, {v(l2)}")
    E(f"v_mul_u32_u24 {v(vRA)}, {RS_*256}, {v(l1)}"); E(f"v_add_u32 {v(vRA)}, {v(vRA)}, {v(l2)}")
    E(f"v_lshl_add_u32 {v(vHA)}, {v(l1)}, 9, {v(l2)}")
    E(f"s_lshl_b32 s64, {s(SI)}, 3"); E("s_lshl_b32 s65, s26, 1"); E("s_add_u32 s64, s64, s65")
    E(f"s_mul_i32 {s(sO)}, s64, 80"); E(f"s_mul_i32 s65, {s(SG)}, 5"); E(f"s_add_u32 {s(sO)}, {s(sO)}, s65"); E(f"s_lshl_b32 {s(sO)}, {s(sO)}, 8"); E(f"s_add_u32 {s(sO)}, {s(sO)}, {WS_O}")
    E(f"s_mul_i32 {s(sR)}, s64, {RS_}"); E(f"s_mul_i32 s65, {s(SG)}, 12"); E(f"s_add_u32 {s(sR)}, {s(sR)}, s65"); E(f"s_lshr_b32 s65, {s(SG)}, 2"); E(f"s_mul_i32 s65, s65, {PADR}"); E(f"s_add_u32 {s(sR)}, {s(sR)}, s65"); E(f"s_lshl_b32 {s(sR)}, {s(sR)}, 8"); E(f"s_add_u32 {s(sR)}, {s(sR)}, {WS_R}")
    E(f"s_lshl_b32 s64, {s(SJ)}, 2"); E("s_add_u32 s64, s64, s26")
    E(f"s_mul_i32 {s(sH)}, s64, {HS}"); E(f"s_mul_i32 s65, {s(SC)}, 10"); E(f"s_add_u32 {s(sH)}, {s(sH)}, s65"); E(f"s_lshl_b32 {s(sH)}, {s(sH)}, 8"); E(f"s_add_u32 {s(sH)}, {s(sH)}, {WS_H}")
    E(f"s_lshl_b32 s65, {s(SC)}, 7"); E("s_add_u32 s64, s64, s65"); E(f"s_lshl_b32 {s(sST)}, s64, 7"); E(f"s_add_u32 {s(sST)}, {s(sST)}, {WS_ST}")
    E(f"v_mul_u32_u24 {v(l0)}, 13108, v0"); E(f"v_lshrrev_b32 {v(l0)}, 16, {v(l0)}")
    E(f"v_mul_u32_u24 {v(l1)}, 5, {v(l0)}"); E(f"v_sub_u32 {v(l1)}, v0, {v(l1)}")
    E(f"v_cmp_le_u32 vcc, 21, {v(l0)}"); E(f"v_cndmask_b32 {v(l2)}, 0, 1, vcc")
    E(f"v_mul_u32_u24 {v(l3)}, 21, {v(l2)}"); E(f"v_sub_u32 {v(l0)}, {v(l0)}, {v(l3)}")
    E(f"v_mul_u32_u24 {v(l3)}, 5, {v(l2)}"); E(f"v_add_u32 {v(l1)}, {v(l1)}, {v(l3)}")
    E(f"v_mul_u32_u24 {v(l3)}, 20, {v(l2)}"); E(f"v_add_u32 {v(l3)}, {v(l3)}, {v(l0)}")
    E(f"v_add_u32 {v(l4)}, 40, {v(l3)}"); E(f"v_cmp_eq_u32 vcc, 20, {v(l0)}"); E(f"v_cndmask_b32 {v(l4)}, {v(l4)}, 32, vcc")
    E(f"v_lshlrev_b32 {v(l3)}, 7, {v(l3)}"); E(f"v_add_u32 {v(l3)}, {L_KVN}, {v(l3)}")
    E(f"v_lshlrev_b32 {v(l2)}, 7, {v(l2)}"); E(f"v_add_u32 {v(l2)}, {L_KVD}, {v(l2)}")
    E(f"v_cndmask_b32 {v(l3)}, {v(l3)}, {v(l2)}, vcc")
    E(f"v_lshrrev_b32 {v(l0)}, 2, {v(l1)}"); E(f"v_and_b32 {v(l1)}, 3, {v(l1)}")
    E(f"v_lshrrev_b32 {v(l2)}, 1, {v(l0)}"); E(f"v_lshl_add_u32 {v(l3)}, {v(l2)}, 6, {v(l3)}")
    E(f"v_lshl_add_u32 {v(l3)}, {v(l1)}, 4, {v(l3)}")
    E(f"v_and_b32 {v(l2)}, 1, {v(l0)}"); E(f"v_lshl_add_u32 {v(g2)}, {v(l2)}, 3, {v(l3)}")
    E(f"v_lshrrev_b32 {v(l2)}, 4, {v(l4)}"); E(f"v_add_u32 {v(l2)}, -2, {v(l2)}")
    E(f"v_mul_u32_u24 {v(l3)}, 5, {v(l0)}"); E(f"v_lshrrev_b32 {v(l3)}, 1, {v(l3)}")
    E(f"v_add_u32 {v(l2)}, {v(l2)}, {v(l3)}"); E(f"v_lshlrev_b32 {v(l2)}, 10, {v(l2)}")
    E(f"v_and_b32 {v(l4)}, 15, {v(l4)}"); E(f"v_lshl_add_u32 {v(l4)}, {v(l1)}, 4, {v(l4)}")
    E(f"v_lshl_add_u32 {v(g0)}, {v(l4)}, 4, {v(l2)}"); E(f"v_add_u32 {v(g0)}, {L_KR}, {v(g0)}")
    G.valu(2, E.l)
    def stat_m(s_):
        for mt in range(2):
            G.mfma(v(vAS+4*mt,4), v(vONE,4), XF(s_,mt), "0" if s_ == 0 else None)
            G.mfma(v(vASS+4*mt,4), XF(s_,mt), XF(s_,mt), "0" if s_ == 0 else None)
    for x in take(XQ, 99): G.vmem(1, x)
    sm = 0
    for c in range(10):
        if ("x", c) not in vm.seen or any(y[0] == "vm" and y[1] == ("x", c) for y in G.q[1]): G.flush(1)
        vm.wait(("x", c))
        for sp in range(2):
            for mt in range(2): lg.issue(("xf", c), f"ds_read_b128 {XF(2*c+sp,mt)}, {v(vXr[sp])} offset:{(c%NXR)*4096+mt*2048}")
        if c >= 1:
            lg.wait(("xf", c-1))
            if c - 1 + NXR < 10:
                for x in x_ops(c-1+NXR): G.vmem(1, x)
            if c == PF["opc"]:
                for x in op_loads: G.vmem(1, x)
            if c == PF["fwc"]: G.vmem(1, (("fw",), f"buffer_load_dwordx2 {v(t4,2)}, {v(vSA)}, {s(SWS,4)}, s66 offen sc1"))
            if c - 1 < PF["smx"]: stat_m(sm); stat_m(sm+1); sm += 2
    G.flush(1)
    stamp(A, 21)
    A("s_waitcnt lgkmcnt(0)"); lg.drained()
    A("s_barrier")
    vm.wait(("fw",))
    A("s_mov_b32 s96, 0"); A("s_branch FW_c")
    A.label("FW_l")
    A(f"buffer_load_dwordx2 {v(t4,2)}, {v(vSA)}, {s(SWS,4)}, s66 offen sc1")
    A("s_waitcnt vmcnt(0)")
    A.label("FW_c")
    A(f"v_cmp_ne_u64 s[62:63], {s(NON,2)}, {v(t4,2)}")
    A("s_add_u32 s96, s96, 1")
    A("s_cmp_eq_u64 s[62:63], 0"); A("s_cbranch_scc1 FW_d")
    A(f"s_cmp_lt_u32 s96, {SPIN}"); A("s_cbranch_scc1 FW_l")
    A.label("FW_d")
    stamp(A, 22)
    def b_round(r, track=True):
        ops = []
        for j in range(5):
            pre = []
            if j == 0: pre = [f"s_add_u32 m0, s69, {r*20480}"] + ([f"s_add_u32 s82, s82, {20480-4096}"] if r else ["s_nop 0"])
            if j == 4: pre = [f"s_add_u32 m0, s69, {r*20480+4096}", "s_add_u32 s82, s82, 4096"]
            ops.append((("B", r), pre + [f"buffer_load_dwordx4 {v(vL16)}, {s(SWS,4)}, s82 offen offset:{(j%4)*1024} sc1 lds"]))
        return ops
    CP = 116
    cp_loads = run_loads(lambda k: ("cp",), lambda k: v(CP+4*k,4), 67, 2)
    QB = [x for r in range(5) for x in b_round(r)] + cp_loads
    QQ = [x for r in range(5, 7) for x in b_round(r)]
    for x in take(QB, PF["binit"]): vm.issue(*x)
    A("s_cmp_lg_u32 s26, 0"); A("s_cbranch_scc1 FP_skip")
    A("s_mov_b64 exec, 1")
    A(f"buffer_store_dwordx2 {v(t0,2)}, {v(vNF+2)}, {s(SWS,4)}, s9 offen sc1")
    A("s_mov_b64 exec, -1")
    A.label("FP_skip")
    while sm < 20: stat_m(sm); sm += 1
    G.flush()
    vm.wait(("B", 0))
    for t in range(4):
        for jj in range(2): lg.issue(("of",), f"ds_read_b64_tr_b16 {a(160+4*t+2*jj,2)}, {v(OPA+t)} offset:{jj*2048}")
    A("s_barrier")
    stamp(A, 23)
    for k in range(3):
        for mt in range(2):
            q_ = vASS + 4*mt
            G.put(2, ("i", f"v_cndmask_b32 {v(q_)}, {v(q_)}, {v(q_+1+k)}, s[{70+2*k}:{71+2*k}]"))
    E = Emit(); ln_stats2(E, [(vAS, vASS), (vAS+4, vASS+4)], [t4, t5]); G.valu(2, E.l)
    blk = [("i", "s_mov_b64 exec, s[60:61]")]
    for mt in range(2):
        blk += [("ds", ("sw",), f"ds_write_b32 {v(vSw)}, {v(vASS+4*mt)} offset:{mt*64}"), ("ds", ("sw",), f"ds_write_b32 {v(vSw)}, {v(vAS+4*mt)} offset:{512+mt*64}")]
    G.put(2, ("blk", blk + [("i", "s_mov_b64 exec, -1")]))
    G.put(2, ("lw", ("sw",), 3))
    for mt in range(2):
        G.ds(2, ("sr",), f"ds_read_b128 {v(NM+4*mt,4)}, {v(vSr)} offset:{512+mt*64}"); G.ds(2, ("sr",), f"ds_read_b128 {v(RS+4*mt,4)}, {v(vSr)} offset:{mt*64}")
        G.ds(2, ("sr",), f"ds_read_b32 {v(rl+2*mt)}, {v(vSw)} offset:{mt*64}"); G.ds(2, ("sr",), f"ds_read_b32 {v(nl+2*mt)}, {v(vSw)} offset:{512+mt*64}")
    vW1 = 214; vW1b = 192
    E = Emit()
    G.put(2, ("lw", ("sr",), 3))
    for r in range(0, 8, 2): E(f"v_pk_mul_f32 {v(RL2+r,2)}, {v(RS+r,2)}, s[78:79] op_sel_hi:[1,0]")
    for mt in range(2): E(f"v_mul_f32 {v(rl2+2*mt)}, s78, {v(rl+2*mt)}")
    G.valu(2, E.l)
    G.put(2, ("vw", ("cp",), 4))
    E = Emit()
    for r in (0, 2): E(f"v_pk_add_f32 {v(CP+r,2)}, {v(CP+r,2)}, {v(CP+4+r,2)}")
    for r in (0, 2): E(f"v_mov_b64 {v(CP+4+r,2)}, {v(CP+r,2)}")
    for r in range(4): E(f"v_permlane32_swap_b32 {v(CP+4+r)}, {v(CP+r)}")
    for r in (0, 2): E(f"v_pk_add_f32 {v(CP+r,2)}, {v(CP+r,2)}, {v(CP+4+r,2)}")
    G.valu(2, E.l)
    G.ds(2, ("csw",), f"ds_write_b128 {v(vC0)}, {v(CP,4)}")
    G2b = []
    for w in range(4):
        for t in range(5): G2b.append(("ds", ("csr",), f"ds_read_b32 {v(CSK+2*t if w == 0 else CP+5*(w-1)+t)}, {v(vC1)} offset:{w*512+t*64}"))
    G2b.append(("lw", ("csr",), 2))
    for t in range(5):
        G2b += [("i", f"v_add_f32 {v(CSK+2*t)}, {v(CSK+2*t)}, {v(CP+t)}"), ("i", f"v_add_f32 {v(CP+5+t)}, {v(CP+5+t)}, {v(CP+10+t)}")]
    for t in range(5): G2b.append(("i", f"v_add_f32 {v(CSK+2*t)}, {v(CSK+2*t)}, {v(CP+5+t)}"))
    G2q = []
    for w in range(4):
        for t in range(3): G2q.append(("ds", ("csq",), f"ds_read_b128 {v(CSQ+4*t if w == 0 else 80+12*(w-1)+4*t,4)}, {v(vC2)} offset:{w*512+t*64}"))
    E = Emit()
    E(f"s_lshl_b32 s56, {s(SC)}, 2"); E("s_add_u32 s56, s56, s26"); E(f"s_mul_i32 s57, s56, {W2K*1024}"); E(f"s_add_u32 s57, s57, {WS_W2}")
    E("s_mul_i32 s56, s56, 25600"); E(f"s_add_u32 s56, s56, {WS_WO}")
    E(f"s_mul_i32 s80, {s(SG)}, 192"); E("s_mul_i32 s81, s26, 98304"); E("s_add_u32 s80, s80, s81"); E("s_mul_i32 s81, s26, 6144")
    E("s_lshl_b32 s64, s26, 13"); E(f"s_add_u32 s64, s64, {L_KR}"); E(f"v_add_u32 {v(33)}, s64, {v(vL16)}")
    E(f"v_and_b32 {v(34)}, 15, v1"); E(f"v_cmp_gt_u32 s[58:59], 8, {v(34)}")
    srd(E, SW, 12, 640*3072)
    for j in range(3):
        E(f"v_add_u32 {v(t2)}, {64*j}, v1"); E(f"v_mul_u32_u24 {v(t3)}, 5462, {v(t2)}"); E(f"v_lshrrev_b32 {v(t3)}, 16, {v(t3)}")
        E(f"v_mul_u32_u24 {v(t4)}, 12, {v(t3)}"); E(f"v_sub_u32 {v(t2)}, {v(t2)}, {v(t4)}")
        E(f"v_bfe_u32 {v(t4)}, {v(t3)}, 2, 1"); E(f"v_lshlrev_b32 {v(t4)}, 1, {v(t4)}"); E(f"v_xor_b32 {v(t2)}, {v(t2)}, {v(t4)}")
        E(f"v_and_b32 {v(t4)}, 12, {v(t3)}"); E(f"v_add_u32 {v(t3)}, {v(t3)}, {v(t4)}")
        E(f"v_mul_u32_u24 {v(t3)}, 3072, {v(t3)}"); E(f"v_lshl_add_u32 {v(vW1+j)}, {v(t2)}, 4, {v(t3)}"); E(f"v_add_u32 {v(vW1+3+j)}, 12288, {v(vW1+j)}")
    G.valu(2, E.l)
    late_st = [(("lst",), f"buffer_store_dwordx4 {a(160+4*t,4)}, {v(vL16)}, {s(SWS,4)}, {s(sDST[t])} offen sc1") for t in range(4)]
    def kv_rd(s_, t): return f"ds_read_b128 {v(BFr(s_%2,t),4)}, {v(vBa[s_//10])} offset:{(s_%10)*5120+t*1024}"
    for t in range(5): lg.issue(("b", 0, t), kv_rd(0, t))
    for s_ in range(20):
        if s_ % 4 == 3 and s_ < 19:
            assert ("B", s_//4+1) in vm.seen and not any(y[0] == "vm" and y[1] == ("B", s_//4+1) for y in G.q[1])
            if s_ == 15:
                while any(y[0] == "ds" and y[1] == ("csw",) for y in G.q[2]): G.force = True; G.run(G.q[2].popleft()); G.force = False
                lg.wait(("csw",))
            vm.wait(("B", s_//4+1)); A("s_barrier")
            if s_ == 15:
                for y in reversed(G2b): G.q[2].appendleft(y)
        if s_ < 19:
            for t in range(5): G.ds(0, ("b", s_+1, t), kv_rd(s_+1, t))
        for x in take(QB, 3): G.vmem(1, x)
        if not QB and s_ >= PF["bq"]:
            for x in take(QQ, 2): G.vmem(1, x)
            if not QQ and s_ == PF["ls"] - 1:
                blk = [("i", "s_cmp_ge_u32 s26, 2"), ("i", "s_cbranch_scc1 B7_skip")]
                for x in b_round(7): blk += [("i", y) for y in x[1]]
                G.put(1, ("blk", blk + [("i", "B7_skip:")]))
        if s_ >= PF["ls"]:
            for x in take(late_st, 1): G.vmem(1, x)
        if s_ == PF["fpchk"]:
            G.vmem(1, (("fp",), f"buffer_load_dwordx2 {v(fl,2)}, {v(fl+2)}, {s(SWS,4)}, s53 offen sc1"))
            G.vmem(1, (("fp",), f"buffer_load_dwordx2 {v(t0,2)}, {v(vSA)}, {s(SWS,4)}, s52 offen sc1"))
        for t in range(5):
            if t in (0, 3): lg.wait(("b", s_, 2 if t == 0 else 4))
            G.mfma(v(AK(0,t),4), XF(s_,0), v(BFr(s_%2,t),4), "0" if s_ == 0 else None)
            G.mfma(v(AK(1,t),4), XF(s_,1), v(BFr(s_%2,t),4), "0" if s_ == 0 else None, budget=1 if t in (2, 4) else 2)
    assert not QB and not QQ and not late_st
    G.flush()
    stamp(A, 3)
    PK = 36; PV = 48; KVP = 76; TM = 60
    def phi2(E, c, rs, r2, tmp, bc):
        sel2 = " op_sel_hi:[1,0]" if bc else ""; sel3 = " op_sel_hi:[1,0,1]" if bc else ""
        E(f"v_pk_mul_f32 {v(tmp,2)}, {v(c,2)}, {v(r2,2)}{sel2}")
        E(f"v_pk_fma_f32 {v(c,2)}, {v(c,2)}, {v(rs,2)}, s[76:77]{sel3}")
        E(f"v_exp_f32 {v(tmp)}, {v(tmp)} clamp"); E(f"v_exp_f32 {v(tmp+1)}, {v(tmp+1)} clamp")
        E(f"v_max_f32 {v(c)}, s79, {v(c)}"); E(f"v_max_f32 {v(c+1)}, s79, {v(c+1)}")
        E(f"v_pk_add_f32 {v(c,2)}, {v(c,2)}, {v(tmp,2)}")
    def w1_load(r, j):
        pre = [f"s_add_u32 m0, s81, {W1L(r)+j*1024}"]
        pre.append(f"s_add_u32 s80, s80, {4*98304}" if (j == 0 and r) else "s_nop 0")
        return (("w1", r), pre + [f"buffer_load_dwordx4 {v((vW1 if r < 3 else vW1b)+j)}, {s(SW,4)}, s80 offen lds"])
    W1L = lambda r: r*24576
    w1_loads = [w1_load(r, j) for r in range(5) for j in range(6)]
    E = Emit()
    for t in (2, 3, 4, 0, 1):
        for mt in range(2):
            for r in (0, 2): E(f"v_pk_fma_f32 {v(AK(mt,t)+r,2)}, {v(NM+4*mt+r,2)}, {v(CSK+2*t,2)}, {v(AK(mt,t)+r,2)} op_sel_hi:[1,0,1]")
        if t >= 2:
            for mt in range(2):
                for r in (0, 2): E(f"v_pk_mul_f32 {v(TM+4*mt+r,2)}, {v(AK(mt,t)+r,2)}, {v(RS+4*mt+r,2)}")
            for mt in range(2):
                for h in range(2): E(f"v_cvt_pk_bf16_f32 {v(PV+4*(t-2)+2*mt+h)}, {v(TM+4*mt+2*h)}, {v(TM+4*mt+2*h+1)}")
        if t <= 2:
            for mt in range(2):
                for r in (0, 2): phi2(E, AK(mt,t)+r, RS+4*mt+r, RL2+4*mt+r, TM+8+4*mt+r, False)
            for mt in range(2):
                for h in range(2): E(f"v_cvt_pk_bf16_f32 {v(PK+4*t+2*mt+h)}, {v(AK(mt,t)+2*h)}, {v(AK(mt,t)+2*h+1)}")
        if t == 2:
            for r in range(4): E(f"v_cndmask_b32 {v(PV+r)}, {v(PV+r)}, {v(vONE)}, s[58:59]")
    mkq = vm.mark()
    merge(A, vm, E.l, take(w1_loads, PF["kvE"]), every=PF["kvEv"])
    prods = [(2,2),(2,3),(2,4),(0,2),(0,3),(1,2),(1,3),(1,4)]
    pidx = {(0,2):0,(0,3):1,(1,2):2,(1,3):3,(1,4):4,(2,2):5,(2,3):6,(2,4):7}
    for (ta, tb) in prods: mfma(A, v(KVP+4*pidx[(ta,tb)],4), v(PK+4*ta,4), v(PV+4*(tb-2),4), "0")
    fpc = [f"v_lshrrev_b32 {v(t2)}, 4, {v(fl+1)}", f"v_lshrrev_b32 {v(t3)}, 4, {v(t1)}",
           f"v_xor_b32 {v(t2)}, {s(NON+1)}, {v(t2)}", f"v_xor_b32 {v(t3)}, {s(NON+1)}, {v(t3)}",
           f"v_xor_b32 {v(t4)}, {s(NON)}, {v(fl)}", f"v_xor_b32 {v(t5)}, {s(NON)}, {v(t0)}",
           f"v_or3_b32 {v(t2)}, {v(t2)}, {v(t3)}, {v(t4)}", f"v_or_b32 {v(t2)}, {v(t2)}, {v(t5)}"]
    vm.wait_mark(mkq)
    A("s_mov_b32 s96, 0")
    for (ta, tb) in prods: A(f"ds_write_b128 {v(33)}, {v(KVP+4*pidx[(ta,tb)],4)} offset:{pidx[(ta,tb)]*1024}")
    A.label("FP_l")
    for x in fpc: A(x)
    A(f"v_cmp_ne_u32 vcc, 0, {v(t2)}")
    A("s_add_u32 s96, s96, 1")
    A("s_cbranch_vccz FP_d")
    A(f"buffer_load_dwordx2 {v(fl,2)}, {v(fl+2)}, {s(SWS,4)}, s53 offen sc1")
    A(f"buffer_load_dwordx2 {v(t0,2)}, {v(vSA)}, {s(SWS,4)}, s52 offen sc1"); A("s_waitcnt vmcnt(0)")
    A(f"s_cmp_lt_u32 s96, {SPIN}"); A("s_cbranch_scc1 FP_l")
    A.label("FP_d")
    A(f"v_cmp_ne_u32 vcc, s92, {v(t1)}")
    A("s_lshl_b32 s97, s2, 3"); A(f"s_add_u32 s97, s97, {WS_FL}")
    A("s_waitcnt lgkmcnt(0)"); A("s_barrier")
    for w in range(4): A(f"ds_read_b128 {v(KVP+4*w,4)}, {v(g0)} offset:{w*8192}")
    def q_rd(s_, t):
        if t < 2: return f"ds_read_b128 {v(BFr(s_%2,t),4)}, {v(vBa[2])} offset:{(s_//2)*5120+((s_%2)*2+t)*1024}"
        return f"ds_read_b128 {v(BFr(s_%2,t),4)}, {v(vQ7)} offset:{(s_//2)*5120+(s_%2)*128}"
    lg.drained()
    for t in range(3): lg.issue(("q", 0, t), q_rd(0, t))
    A("s_cmp_eq_u64 vcc, 0")
    if OPT["slow"]: A("s_cmp_eq_u32 s26, 99")
    A(f"s_cselect_b32 {s(sMODE)}, 1, 0")
    A("s_mov_b32 s61, -2")
    A("s_waitcnt lgkmcnt(3)")
    for r in (0, 2):
        A(f"v_pk_add_f32 {v(KVP+r,2)}, {v(KVP+r,2)}, {v(KVP+4+r,2)}"); A(f"v_pk_add_f32 {v(KVP+8+r,2)}, {v(KVP+8+r,2)}, {v(KVP+12+r,2)}")
    for r in (0, 2): A(f"v_pk_add_f32 {v(KVP+r,2)}, {v(KVP+r,2)}, {v(KVP+8+r,2)}")
    for r in range(4): A(f"v_min_u32 {v(KVP+r)}, s61, {v(KVP+r)}")
    A("s_mov_b64 exec, s[10:11]")
    vm.issue(("kvst",), f"buffer_store_dwordx4 {v(KVP,4)}, {v(g1)}, {s(SWS,4)}, {s(sKV)} offen sc1")
    A("s_mov_b64 exec, -1")
    set_flag(97)
    stamp(A, 4)
    WOF = lambda k: 160 + 4*k if k < 24 else 0
    wo_loads = run_loads(lambda k: ("wo",), lambda k: a(WOF(k),4), 56, 25)
    w2_loads = run_loads(lambda k: ("w2", k), lambda k: a(4+4*k,4), 57, 60)
    E = Emit()
    A(f"s_mov_b32 s53, {WS_FL}")
    E(f"s_lshl_b32 s62, {s(SJ)}, 6"); E("s_mul_i32 s62, s62, 1280"); E(f"s_mul_i32 s64, {s(SC)}, 160"); E("s_add_u32 s58, s62, s64")
    for n in range(3):
        E(f"v_add_u32 {v(t2)}, {256*n}, v0")
        E(f"v_mul_u32_u24 {v(t3)}, 6554, {v(t2)}"); E(f"v_lshrrev_b32 {v(t3)}, 16, {v(t3)}")
        E(f"v_mul_u32_u24 {v(xa+n)}, 1120, {v(t3)}"); E(f"v_lshl_add_u32 {v(xa+n)}, {v(t2)}, 4, {v(xa+n)}")
    G.valu(2, E.l)
    G.put(2, ("blk", [("i", "s_cmp_ge_u32 s26, 2"), ("i", "s_cselect_b32 s59, 0x7fffffff, s58")]))
    E = Emit()
    E(f"s_add_u32 s60, s83, {L_XT}")
    vKN, vKD = 16, 17
    E(f"v_and_b32 {v(t2)}, 15, v1"); E(f"v_lshrrev_b32 {v(t3)}, 4, v1"); E(f"v_lshlrev_b32 {v(t3)}, 4, {v(t3)}")
    E(f"v_lshl_add_u32 {v(vKN)}, {v(t2)}, 7, {v(t3)}"); E(f"v_add_u32 {v(vKN)}, {L_KVN}, {v(vKN)}")
    E(f"v_add_u32 {v(vKD)}, {L_KVD}, {v(t3)}")
    E(f"v_cmp_le_u32 vcc, 4, {v(t2)}"); E(f"v_add_u32 {v(vKD+2)}, 128, {v(vKD)}")
    E(f"v_cndmask_b32 {v(vKD+1)}, {v(vKD)}, {v(vKD+2)}, vcc")
    G.valu(2, E.l)
    xt_loads = [(("xt",), [f"s_add_u32 m0, s60, {n*4096}", "s_nop 0", f"buffer_load_dwordx4 {v(xa+n)}, {s(SX,4)}, {'s59' if n == 2 else 's58'} offen lds"]) for n in range(3)]
    QW = take(wo_loads, 24)
    Q1 = take(w1_loads, 18 - PF["kvE"])
    for y in G2q: G.put(2, y)
    G.put(2, ("lw", ("csq",), 2))
    E = Emit()
    for r in range(0, 12, 2):
        E(f"v_pk_add_f32 {v(CSQ+r,2)}, {v(CSQ+r,2)}, {v(80+r,2)}"); E(f"v_pk_add_f32 {v(92+r,2)}, {v(92+r,2)}, {v(104+r,2)}")
    for r in range(0, 12, 2): E(f"v_pk_add_f32 {v(CSQ+r,2)}, {v(CSQ+r,2)}, {v(92+r,2)}")
    G.valu(2, E.l)
    for s_ in range(20):
        if s_ == PF["kvf"]:
            A("s_barrier")
        if s_ < 19:
            for t in range(3): G.ds(0, ("q", s_+1, t), q_rd(s_+1, t))
        if s_ < PF["kvc"]:
            for x in take(QW, 2 if s_ % 2 == 0 else 1): G.vmem(1, x)
            if s_ >= PF["kvf"] and s_ % 2 == 1:
                for x in take(Q1, 1 if QW else 2): G.vmem(1, x)
        lg.wait(("q", s_, 2))
        for t in range(3):
            G.mfma(v(AQ(0,t),4), v(BFr(s_%2,t),4), XF(s_,0), "0" if s_ == 0 else None)
            G.mfma(v(AQ(1,t),4), v(BFr(s_%2,t),4), XF(s_,1), "0" if s_ == 0 else None, budget=1 if t == 2 else 2)
    G.flush()
    stamp(A, 6)
    Q1 = QW + wo_loads + Q1
    PQ = 36
    E = Emit()
    for mt in range(2):
        for t in range(3):
            for r in (0, 2): E(f"v_pk_fma_f32 {v(AQ(mt,t)+r,2)}, {v(CSQ+4*t+r,2)}, {v(nl+2*mt,2)}, {v(AQ(mt,t)+r,2)} op_sel_hi:[1,0,1]")
            for r in (0, 2): phi2(E, AQ(mt,t)+r, rl+2*mt, rl2+2*mt, TM+8+r, True)
            for h in range(2): E(f"v_cvt_pk_bf16_f32 {v(PQ+8*mt+2*t+h)}, {v(AQ(mt,t)+2*h)}, {v(AQ(mt,t)+2*h+1)}")
        E(f"v_mov_b64 {v(PQ+8*mt+6,2)}, 0")
    GAr = lambda i: 76 + 4*i if i < 10 else 156 + 4*(i-10)
    GS = 140; GM = 144
    def g_loads():
        A(f"buffer_load_dwordx2 {v(fl,2)}, {v(fl+2)}, {s(SWS,4)}, s53 offen sc1")
        A("s_mov_b64 exec, s[10:11]")
        for i in range(16):
            hi, lo = (i*KV_STRIDE) & ~4095, (i*KV_STRIDE) & 4095
            A(f"s_mov_b32 s64, {hi}")
            A(f"buffer_load_dwordx4 {v(GAr(i),4)}, {v(g1)}, {s(SWS,4)}, s64 offen offset:{lo} sc1")
        A("s_mov_b64 exec, -1")
    ng = PF["gat"]
    for x in E.l[:ng]: A(x)
    g_loads()
    for x in E.l[ng:]: A(x)
    stamp(A, 5)
    A("s_mov_b32 s96, 0")
    A("s_branch KV_chk")
    A.label("KV_poll")
    g_loads()
    A.label("KV_chk")
    A("s_mov_b64 exec, s[10:11]")
    for i in range(0, 16, 2):
        A(f"s_waitcnt vmcnt({14-i})")
        b, c = GAr(i), GAr(i+1)
        if i == 0:
            for r in (0, 2): A(f"v_pk_add_f32 {v(GS+r,2)}, {v(b+r,2)}, {v(c+r,2)}")
            A(f"v_max3_u32 {v(GM)}, {v(b)}, {v(b+1)}, {v(b+2)}")
            A(f"v_max3_u32 {v(GM+1)}, {v(b+3)}, {v(c)}, {v(c+1)}")
            A(f"v_max3_u32 {v(GM)}, {v(GM)}, {v(c+2)}, {v(c+3)}")
        else:
            for r in (0, 2): A(f"v_pk_add_f32 {v(GS+r,2)}, {v(GS+r,2)}, {v(b+r,2)}")
            A(f"v_max3_u32 {v(GM)}, {v(GM)}, {v(b)}, {v(b+1)}"); A(f"v_max3_u32 {v(GM+1)}, {v(GM+1)}, {v(b+2)}, {v(b+3)}")
            for r in (0, 2): A(f"v_pk_add_f32 {v(GS+r,2)}, {v(GS+r,2)}, {v(c+r,2)}")
            A(f"v_max3_u32 {v(GM)}, {v(GM)}, {v(c)}, {v(c+1)}"); A(f"v_max3_u32 {v(GM+1)}, {v(GM+1)}, {v(c+2)}, {v(c+3)}")
    A(f"v_max_u32 {v(GM)}, {v(GM)}, {v(GM+1)}")
    A(f"v_cmp_eq_u32 s[62:63], -1, {v(GM)}")
    A("s_mov_b64 exec, -1")
    A(f"v_cmp_ne_u64 vcc, {s(NON,2)}, {v(fl,2)}")
    A("s_add_u32 s96, s96, 1"); A("s_or_b64 vcc, vcc, s[62:63]")
    A("s_cbranch_vccz KV_done")
    A(f"s_cmp_lt_u32 s96, {SPIN}"); A("s_cbranch_scc1 KV_poll")
    A.label("KV_done")
    vm.drained()
    A(f"v_cvt_pk_bf16_f32 {v(GS)}, {v(GS)}, {v(GS+1)}"); A(f"v_cvt_pk_bf16_f32 {v(GS+1)}, {v(GS+2)}, {v(GS+3)}")
    A("s_mov_b64 exec, s[10:11]")
    A(f"ds_write_b64 {v(g2)}, {v(GS,2)}")
    A("s_mov_b64 exec, -1")
    AN = 100; AD = 124; ON = 156; OD = 76; OP = 56
    A("s_waitcnt lgkmcnt(0)"); A("s_barrier")
    Q1 = xt_loads + Q1 + w2_loads
    stamp(A, 7)
    for te in range(3):
        for st in range(2):
            lg.issue(("d", te), f"ds_read_b128 {v(AD+8*te+4*st,4)}, {v(vKD+te)} offset:{st*64}")
            lg.issue(("n", te), f"ds_read_b128 {v(AN+8*te+4*st,4)}, {v(vKN)} offset:{te*2048+st*64}")
    for x in take(Q1, PF["oB"]): vm.issue(*x)
    for x in take(Q1, PF["oE"]): G.vmem(1, x)
    def o_tail(te):
        L = []
        for r in range(0, 8, 2): L.append(f"v_pk_add_f32 {v(OD+8*te+r,2)}, {v(OD+8*te+r,2)}, s[76:77]")
        for r in range(8): L.append(f"v_rcp_f32 {v(OD+8*te+r)}, {v(OD+8*te+r)}")
        return L
    for te in range(3):
        lg.wait(("n", te))
        for (acc_, aop) in ((OD, AD), (ON, AN)):
            for mt in range(2): G.mfma(v(acc_+8*te+4*mt,4), v(aop+8*te,4), v(PQ+8*mt,4), "0")
            for mt in range(2): G.mfma(v(acc_+8*te+4*mt,4), v(aop+8*te+4,4), v(PQ+8*mt+4,4))
    G.flush()
    for te in range(3):
        for x in take(Q1, PF["oT"]): vm.issue(*x)
        for x in o_tail(te): A(x)
        for r in range(0, 8, 2): A(f"v_pk_mul_f32 {v(ON+8*te+r,2)}, {v(ON+8*te+r,2)}, {v(OD+8*te+r,2)}")
        for h in range(4): A(f"v_cvt_pk_bf16_f32 {v(OP+4*te+h)}, {v(ON+8*te+2*h)}, {v(ON+8*te+2*h+1)}")
        for h in range(2): A(f"v_permlane16_swap_b32 {v(OP+4*te+h)}, {v(OP+4*te+2+h)}")
        if te == 2: A("s_mov_b64 exec, 0xffffffff")
        for x in dual(f"buffer_store_dwordx4 {v(OP+4*te,4)}, {v(vOA)}, SRD, {s(sO)} offen offset:{te*512}"): vm.issue(("ost",), x)
    A("s_mov_b64 exec, -1")
    ACC = 40; AF = 120; HRES = 246
    acc = lambda m, t: ACC + (m*5+t)*4
    vRw, vRr = 10, 11
    u0, u1, u2, u3, u4 = 4, 5, 6, 7, 8
    def k_setup(E, KO, WSA, lred, KQ):
        E(f"s_mul_i32 s61, s26, {KQ}"); E(f"s_lshl_b32 s62, {s(SJ)}, 2")
        for m in range(4):
            E(f"s_add_u32 s60, s26, {m}"); E("s_and_b32 s60, s60, 3")
            E(f"s_mul_i32 s64, s60, 15360"); E(f"s_add_u32 s64, s64, {lred+max(m-1,0)*5120}"); E(f"v_add_u32 {v(vRw+2+m if m else vRr)}, s64, {v(vL16)}")
            E("s_add_u32 s60, s60, s62"); E(f"s_mul_i32 s60, s60, {KO}"); E("s_add_u32 s60, s60, s61"); E("s_lshl_b32 s60, s60, 8")
            E(f"s_add_u32 {s(52+m)}, s60, {WSA}")
    def k_gemm(KS, bfrag, nwin, st0, cinit, side, lateb=(), shadow=None):
        seq = [(m, sp) for m in (1, 2, 3, 0) for sp in range(KS)]
        al = []
        for m in (1, 2, 3, 0):
            n0 = len(al)
            al += run_loads(lambda k: ("a", n0+k), lambda k: v(AF+4*((n0+k) % nwin),4), 52+m, KS)
        poll(66, 18)
        stamp(A, st0)
        nl = PF["kinit"]; pend = []
        lateb = list(lateb)
        for x in al[:nl-len(lateb)//2]: vm.issue(*x)
        if lateb:
            nl -= len(lateb)//2
            for x in lateb: vm.issue(*x)
        if shadow: shadow()
        for n, (m, sp) in enumerate(seq):
            if n < KS:
                for t in range(5):
                    if vm.pending(("w2", sp*5+t)): vm.wait(("w2", sp*5+t))
            while nl < len(seq) and nl - nwin < n and nl - n <= PF["kfly"]:
                G.vmem(1, al[nl]); nl += 1
            if nl >= len(seq) and side: G.vmem(1, side.pop(0))
            if any(y[0] == "vm" and y[1] == ("a", n) for y in G.q[1]): G.flush(1)
            vm.wait(("a", n))
            if STAMPS and os.environ.get("KST") == "4" and KS == 12 and sp % 6 == 0:
                A("s_memtime s[98:99]"); A("s_waitcnt lgkmcnt(0)"); A(f"v_writelane_b32 v3, s98, {52 + n//6}")
            if m == 0 and sp == 0: G.flush(2)
            for t in range(5):
                if pend and ((t == 2 and (KS < 6 or sp % 2 == 1)) ): G.ds(0, ("rw",), pend.pop(0))
                G.mfma(v(acc(m,t),4), bfrag(sp*5+t), v(AF+4*(n % nwin),4), (cinit(t) if m == 0 else "0") if sp == 0 else None, budget=1 if t == 4 else 2)
            if sp == KS-1 and m != 0:
                assert not pend
                pend = [f"ds_write_b128 {v(vRw+2+m)}, {v(acc(m,t),4)} offset:{t*1024}" for t in range(5)]
        G.flush()
    def red_read(RD):
        A("s_waitcnt lgkmcnt(0)"); A("s_barrier"); lg.drained()
        for t in range(5):
            for sl in range(3): lg.issue(("r", t), f"ds_read_b128 {v(RD+(t*3+sl)*4,4)}, {v(vRr)} offset:{sl*5120+t*1024}")
    def red_sum(RD, t, dst):
        for h in range(2):
            A(f"v_pk_add_f32 {v(acc(0,t)+2*h,2)}, {v(acc(0,t)+2*h,2)}, {v(RD+(t*3)*4+2*h,2)}")
            A(f"v_pk_add_f32 {v(RD+(t*3+1)*4+2*h,2)}, {v(RD+(t*3+1)*4+2*h,2)}, {v(RD+(t*3+2)*4+2*h,2)}")
        for h in range(2): A(f"v_pk_add_f32 {v(acc(0,t)+2*h,2)}, {v(acc(0,t)+2*h,2)}, {v(RD+(t*3+1)*4+2*h,2)}")
        for h in range(2): A(f"v_cvt_pk_bf16_f32 {v(dst+h)}, {v(acc(0,t)+2*h)}, {v(acc(0,t)+2*h+1)}")
    CSA, CSB = 212, 216; vCa, vCb = 220, 221; vONE3 = 20; XC = 224
    XCr = lambda t: 224 + 4*t if t < 3 else 200 + 4*(t-3)
    E = Emit()
    E(f"s_lshl_b32 s66, {s(SI)}, 7"); E(f"s_add_u32 s66, s66, {WS_FO}"); E(f"s_lshl_b32 s97, {s(SG)}, 3"); E("s_add_u32 s97, s97, s66")
    k_setup(E, 80, WS_O, L_RED2, 20)
    for r in range(0, 6, 2): E(f"v_mov_b64 {v(vW1b+r,2)}, {v(vW1+r,2)}")
    E(f"v_and_b32 {v(u0)}, 15, v1"); E(f"v_lshrrev_b32 {v(u1)}, 4, v1")
    E("s_mul_i32 s62, s26, 2560"); E(f"s_add_u32 s62, s62, {L_XT}")
    E(f"v_mul_u32_u24 {v(9)}, 160, {v(u0)}"); E(f"v_lshl_add_u32 {v(9)}, {v(u1)}, 3, {v(9)}"); E(f"v_add_u32 {v(9)}, s62, {v(9)}")
    merge(A, vm, E.l, take(Q1, PF["oS"]), every=3)
    vm.wait(("ost",)); A("s_barrier")
    set_flag(97, True)
    stamp(A, 8)
    for x in take(Q1, PF["oF"]): vm.issue(*x)
    vB = [12, 16, 17, 9]
    def p2_shadow():
        for t in range(5): lg.issue(("x",), f"ds_read_b64 {v(24+2*t,2)}, {v(9)} offset:{t*32}")
        A(f"v_lshrrev_b32 {v(u2)}, 2, v1"); A(f"v_mul_u32_u24 {v(u2)}, 192, {v(u2)}"); A(f"v_and_b32 {v(u3)}, 3, v1"); A(f"v_lshl_add_u32 {v(u2)}, {v(u3)}, 3, {v(u2)}")
        A(f"v_and_b32 {v(u3)}, 1, {v(u1)}")
        A("s_mul_i32 s62, s26, 5"); A("s_add_u32 s62, s62, 1"); A("s_mul_i32 s62, s62, 43"); A("s_lshr_b32 s62, s62, 7")
        A(f"v_xor_b32 {v(vCa)}, s62, {v(u3)}"); A(f"v_lshl_add_u32 {v(vCa)}, {v(vCa)}, 5, {v(u2)}")
        A("s_lshr_b32 s62, s26, 1"); A("s_mul_i32 s62, s62, 3"); A("s_add_u32 s62, s62, 1"); A("s_and_b32 s63, s26, 1"); A("s_mul_i32 s63, s63, 6144")
        A(f"v_xor_b32 {v(vCb)}, s62, {v(u3)}"); A(f"v_lshl_add_u32 {v(vCb)}, {v(vCb)}, 5, {v(u2)}"); A(f"v_add_u32 {v(vCb)}, s63, {v(vCb)}")
        A(f"v_add_u32 {v(vCa+2)}, 61440, {v(vCa)}"); A(f"v_add_u32 {v(vCb+2)}, 61440, {v(vCb)}")
        A(f"v_lshlrev_b32 {v(u3)}, 5, {v(u3)}"); A(f"v_add_u32 {v(vB[0])}, {v(u2)}, {v(u3)}"); A(f"v_sub_u32 {v(vB[1])}, {v(u2)}, {v(u3)}")
        lg.wait(("x",))
        for t in range(5):
            for h in range(2):
                A(f"v_lshlrev_b32 {v(XCr(t)+2*h)}, 16, {v(24+2*t+h)}"); A(f"v_and_b32 {v(XCr(t)+2*h+1)}, 0xffff0000, {v(24+2*t+h)}")
        A(f"v_add_u32 {v(vB[2])}, 61440, {v(vB[0])}"); A(f"v_add_u32 {v(vB[3])}, 61440, {v(vB[1])}")
    assert all(x[0][0] in ("w2", "tch") for x in Q1), "loads needed by P2 must be issued before its poll"
    tw = []
    if PF["tw1"]:
        tw = [(("tch",), ["s_lshr_b32 s64, s2, 3", "s_lshl_b32 s64, s64, 2", "s_add_u32 s64, s64, s26", "s_mul_i32 s64, s64, 6144", f"s_add_u32 s64, s64, {384*3072}",
                          f"v_min_u32 {v(240)}, 47, v1", f"v_lshlrev_b32 {v(240)}, 7, {v(240)}", f"buffer_load_dword {v(241)}, {v(240)}, {s(SW,4)}, s64 offen"])]
    early_w2 = 60 - len(Q1) + PF["p2G"]
    assert early_w2 <= 39
    k_gemm(5, lambda k: a(WOF(k),4), 18, 9, lambda t: v(XCr(t),4), tw + take(Q1, PF["p2G"]), shadow=p2_shadow)
    stamp(A, 10)
    RD = AF
    red_read(RD)
    for x in take(Q1, PF["p2B"]): vm.issue(*x)
    P = 24; vS, vQ = 36, 37
    A(f"v_mov_b64 {v(vS,2)}, 0"); A(f"v_mov_b64 {v(P+10,2)}, 0")
    A(f"s_lshl_b32 s66, {s(SI)}, 7"); A(f"s_add_u32 s66, s66, {WS_FH}"); A(f"s_lshl_b32 s97, {s(SG)}, 3"); A("s_add_u32 s97, s97, s66")
    for t in range(5):
        lg.wait(("r", t))
        red_sum(RD, t, HRES+2*t)
        if t == 1:
            lg.wait(("r", 4)); A("s_barrier")
        if t >= 1:
            for x in take(w1_loads, PF["p2E"]): vm.issue(*x)
        if t in (1, 3, 4):
            pr_ = t//2
            A(f"v_mov_b64 {v(P+4*pr_,2)}, {v(HRES+4*pr_,2)}")
            if t < 4: A(f"v_mov_b64 {v(P+4*pr_+2,2)}, {v(HRES+4*pr_+2,2)}")
            for h in range(2): A(f"v_permlane16_swap_b32 {v(P+4*pr_+h)}, {v(P+4*pr_+2+h)}")
            if pr_ == 2: A("s_mov_b32 exec_lo, 0xffff"); A("s_mov_b32 exec_hi, 0xffff")
            for x in dual(f"buffer_store_dwordx4 {v(P+4*pr_,4)}, {v(vHA)}, SRD, {s(sH)} offen offset:{pr_*1024}"): vm.issue(("hst",), x)
    A("s_mov_b64 exec, -1")
    for r in range(2):
        A(f"v_dot2_f32_bf16 {v(32+r)}, {v(HRES+r)}, {v(vONE3)}, 0"); A(f"v_dot2_f32_bf16 {v(34+r)}, {v(HRES+r)}, {v(HRES+r)}, 0")
    for r in range(2, 10):
        A(f"v_dot2_f32_bf16 {v(32+r%2)}, {v(HRES+r)}, {v(vONE3)}, {v(32+r%2)}"); A(f"v_dot2_f32_bf16 {v(34+r%2)}, {v(HRES+r)}, {v(HRES+r)}, {v(34+r%2)}")
    A(f"v_add_f32 {v(vS)}, {v(32)}, {v(33)}"); A(f"v_add_f32 {v(vQ)}, {v(34)}, {v(35)}")
    for op in ("v_permlane16_swap_b32", "v_permlane32_swap_b32"):
        A(f"v_mov_b64 {v(34,2)}, {v(vS,2)}")
        A(f"{op} {v(34)}, {v(vS)}"); A(f"{op} {v(35)}, {v(vQ)}")
        A(f"v_pk_add_f32 {v(vS,2)}, {v(vS,2)}, {v(34,2)}")
    A("s_mov_b64 exec, 0xffff")
    for x in dual(f"buffer_store_dwordx2 {v(vS,2)}, {v(vSA)}, SRD, {s(sST)} offen"): vm.issue(("hst",), x)
    A("s_mov_b64 exec, -1")
    vB1 = 120
    srd(A, SD, 14, 3072)
    A(f"s_mul_i32 s59, {s(SG)}, 192"); A(f"v_lshlrev_b32 {v(u3)}, 3, {v(u1)}")
    for t in range(6): vm.issue(("b1",), f"buffer_load_dwordx2 {v(vB1+2*t,2)}, {v(u3)}, {s(SD,4)}, s59 offen offset:{t*32}")
    def cs_frs(steps):
        fr = []
        for s_ in steps:
            fr.append((CSA, vCa + 2*(s_ >= 10), (s_ % 10)*6144))
            if s_ % 2 == 0: fr.append((CSB, vCb + 2*(s_ >= 10), (s_ % 10)*6144))
        return fr
    for x in take(w1_loads, PF["hW"]) + take(Q1, PF["hA"]): vm.issue(*x)
    A(f"s_lshl_b32 s54, {s(SI)}, 3"); A("s_lshl_b32 s55, s26, 1"); A("s_add_u32 s54, s54, s55"); A(f"s_mul_i32 s54, s54, {HS*256}"); A(f"s_add_u32 s54, s54, {WS_H}")
    A(f"s_add_u32 s55, s54, {HS*256}")
    A(f"s_lshl_b32 s52, {s(SI)}, 7"); A("s_lshl_b32 s53, s26, 5"); A("s_add_u32 s52, s52, s53"); A("s_lshl_b32 s52, s52, 3"); A(f"s_add_u32 s52, s52, {WS_ST}")
    A("s_add_u32 s53, s52, 16384")
    A(f"v_lshlrev_b32 {v(u2)}, 15, {v(u1)}"); A(f"v_lshl_or_b32 {v(u2)}, {v(u0)}, 3, {v(u2)}")
    A("s_lshl_b32 s60, s26, 7"); A(f"s_add_u32 s60, s60, {L_CS3}")
    A(f"v_lshlrev_b32 {v(u3)}, 4, {v(u1)}"); A(f"v_add_u32 {v(u4)}, s60, {v(u3)}"); A(f"v_add_u32 {v(14)}, {L_CS3}, {v(u3)}")
    seen = set(); fr = cs_frs(range(12)); TMP = 48
    def cs_rd(n, TMP, ad, off): return [f"ds_read_b64_tr_b16 {v(TMP+4*(n%12)+2*jj,2)}, {v(ad)} offset:{off+jj*3072}" for jj in range(2)]
    def cs_run(n0, n1):
        for n in range(n0, min(n0+6, n1)):
            for x in cs_rd(n, TMP, *fr[n][1:]): lg.issue(("c", n), x)
        for n in range(n0, n1):
            d = fr[n][0]
            if n + 6 < n1:
                for x in cs_rd(n+6, TMP, *fr[n+6][1:]): lg.issue(("c", n+6), x)
            lg.wait(("c", n))
            mfma(A, v(d,4), v(TMP+4*(n%12),4), v(vONE3,4), None if d in seen else "0"); seen.add(d)
    cs_run(0, PF["cs1"])
    vm.wait(("hst",)); A("s_barrier")
    set_flag(97, True)
    stamp(A, 11)
    ACC3 = 48; BF = 96; AW = 144; NW3 = 12; BU = 200; CS = 144; vST = 24
    acc3 = lambda t, mt: ACC3 + (t*2+mt)*4
    for x in take(Q1, PF["hS"]): vm.issue(*x)
    BUr = lambda t: 200 + 4*t if t < 3 else 224 + 4*(t-3)
    def b3(s_, t): return [f"ds_read_b64_tr_b16 {v(BF+(s_%2)*24+4*t+2*jj,2)}, {v(vB[(t%2)+2*(s_//10)])} offset:{(s_%10)*6144+t*32+jj*3072}" for jj in range(2)]
    a0 = run_loads(lambda k: ("a", 2*k), lambda k: v(AW+4*((2*k) % NW3),4), 54, 20)
    a1 = run_loads(lambda k: ("a", 2*k+1), lambda k: v(AW+4*((2*k+1) % NW3),4), 55, 20)
    al = [x for p in zip(a0, a1) for x in p]
    poll(66, 18)
    stamp(A, 13)
    nl = PF["p3init"]
    for x in al[:nl]: vm.issue(*x)
    cs_run(PF["cs1"], 18)
    for t in range(6):
        for h in range(2):
            A(f"v_lshlrev_b32 {v(BUr(t)+2*h)}, 16, {v(vB1+2*t+h)}"); A(f"v_and_b32 {v(BUr(t)+2*h+1)}, 0xffff0000, {v(vB1+2*t+h)}")
    for t in range(6):
        for x in b3(0, t): lg.issue(("b", 0, t), x)
    st_loads = [(("st", 2*mt+cc), f"buffer_load_dwordx2 {v(vST+mt*4+cc*2,2)}, {v(u2)}, {s(SWS,4)}, {s(52+cc)} offen offset:{mt*128} sc1") for mt in range(2) for cc in range(2)]
    side = st_loads + w1_loads + take(Q1, PF["p3L"])
    G.put(2, ("vw", ("st", 3), 3))
    E = Emit()
    for mt in range(2): E(f"v_pk_add_f32 {v(vST+4*mt,2)}, {v(vST+4*mt,2)}, {v(vST+4*mt+2,2)}")
    for op in ("v_permlane16_swap_b32", "v_permlane32_swap_b32"):
        for mt in range(2): E(f"v_mov_b64 {v(vST+4*mt+2,2)}, {v(vST+4*mt,2)}")
        for mt in range(2):
            b = vST + 4*mt
            E(f"{op} {v(b+2)}, {v(b)}"); E(f"{op} {v(b+3)}, {v(b+1)}")
        for mt in range(2): E(f"v_pk_add_f32 {v(vST+4*mt,2)}, {v(vST+4*mt,2)}, {v(vST+4*mt+2,2)}")
    ln_stats2(E, [(vST, vST+1), (vST+4, vST+5)], [vST+2, vST+6])
    for mt in range(2):
        b = vST + 4*mt
        E(f"v_mul_f32 {v(b)}, {v(b)}, {v(b+1)}"); E(f"v_mov_b32 {v(b+2)}, {v(b+1)}")
    G.valu(2, E.l)
    fr2 = cs_frs(range(12, 20)); CQ = [36, 40, 44, 32]
    wb = PF["w1b"]; c0 = wb + 1
    assert c0 + 7 <= 19
    for s_ in range(20):
        if s_ == wb:
            if any(y[0] == "vm" and y[1] == ("w1", 4) for y in G.q[1]): G.flush(1)
            assert not any(x[0] == ("w1", 4) for x in side)
            vm.wait(("w1", 4)); A("s_barrier")
        if s_ == c0 + 7:
            if any(y[0] == "blk" for y in G.q[2]): G.flush(2)
            lg.wait(("cw",)); A("s_barrier")
        if s_ < 19:
            for t in range(6):
                for x in b3(s_+1, t): G.ds(0, ("b", s_+1, t), x)
        k = s_ - wb
        if 0 <= k < 6:
            for n in range(2):
                d, ad, off = fr2[2*k+n]
                for jj in range(2): G.ds(0, ("c2", k), f"ds_read_b64_tr_b16 {v(CQ[2*(k%2)+n]+2*jj,2)}, {v(ad)} offset:{off+jj*3072}")
        while nl < 40 and nl - NW3 < 2*s_ and nl - 2*s_ <= PF["p3fly"]:
            G.vmem(1, al[nl]); nl += 1
        for x in take(side, 2 if s_ < PF["p3f"] else 1): G.vmem(1, x)
        if any(y[0] == "vm" and y[1] in (("a", 2*s_), ("a", 2*s_+1)) for y in G.q[1]): G.flush(1)
        vm.wait(("a", 2*s_+1))
        if STAMPS and os.environ.get("KST") == "3" and s_ % 3 == 0 and s_ < 24:
            A("s_memtime s[98:99]"); A("s_waitcnt lgkmcnt(0)"); A(f"v_writelane_b32 v3, s98, {52 + s_//3}"); lg.drained()
        if s_ == 19:
            for t in range(6): G.ds(0, ("cs",), f"ds_read_b128 {v(BF+4*t,4)}, {v(14)} offset:{[0,1,2,4,5,6][t]*64}")
            G.ds(0, ("cs",), f"ds_read_b128 {v(CSA,4)}, {v(14)} offset:{3*64}"); G.ds(0, ("cs",), f"ds_read_b128 {v(CSB,4)}, {v(14)} offset:{7*64}")
        for t in range(6):
            if t in (0, 3):
                while ("b", s_, t+2) not in lg.seen or any(y[0] == "ds" and y[1] == ("b", s_, t+2) for y in G.q[0]): G.run(G.q[0].popleft())
                lg.wait(("b", s_, t+2))
            if t == 3 and 1 <= k < 7:
                while any(y[0] == "ds" and y[1] == ("c2", k-1) for y in G.q[0]): G.run(G.q[0].popleft())
                lg.wait(("c2", k-1))
                for n in range(2): G.mfma(v(fr2[2*(k-1)+n][0],4), v(CQ[2*((k-1)%2)+n],4), v(vONE3,4))
            G.mfma(v(acc3(t,0),4), v(BF+(s_%2)*24+4*t,4), v(AW+4*((2*s_) % NW3),4), "0" if s_ == 0 else None)
            G.mfma(v(acc3(t,1),4), v(BF+(s_%2)*24+4*t,4), v(AW+4*((2*s_+1) % NW3),4), "0" if s_ == 0 else None, budget=1 if t in (2, 5) else 2)
        if k == 6:
            G.q[2].appendleft(("blk", [("i", "s_mov_b32 exec_lo, 0x00010001"), ("i", "s_mov_b32 exec_hi, 0x00010001"),
                              ("ds", ("cw",), f"ds_write_b128 {v(u4)}, {v(CSA,4)}"), ("ds", ("cw",), f"ds_write_b128 {v(u4)}, {v(CSB,4)} offset:64"),
                              ("i", "s_mov_b64 exec, -1")]))
    for x in side: G.vmem(1, x)
    G.flush()
    stamp(A, 14)
    CS = BF
    lg.wait(("cs",))
    for r in (0, 2):
        A(f"v_pk_add_f32 {v(CS+4+r,2)}, {v(CS+4+r,2)}, {v(CSA+r,2)}"); A(f"v_pk_add_f32 {v(CS+16+r,2)}, {v(CS+16+r,2)}, {v(CSB+r,2)}")
    P = 144; U = 168
    side = []
    for x in take(Q1, PF["rB"]): vm.issue(*x)
    for t in range(6):
        for mt in range(2):
            b = vST + 4*mt
            for r in (0, 2): A(f"v_pk_fma_f32 {v(U+4*mt+r,2)}, {v(CS+4*t+r,2)}, {v(b,2)}, {v(BUr(t)+r,2)} op_sel_hi:[1,0,1]")
        for mt in range(2):
            b = vST + 4*mt
            for r in (0, 2): A(f"v_pk_fma_f32 {v(U+4*mt+r,2)}, {v(acc3(t,mt)+r,2)}, {v(b+2,2)}, {v(U+4*mt+r,2)} op_sel_hi:[1,0,1]")
        for r in range(8): A(f"v_max_f32 {v(U+r)}, 0, {v(U+r)}")
        for x in take(side, PF["rEn"]): vm.issue(*x)
        for r in range(0, 8, 2): A(f"v_pk_mul_f32 {v(U+r,2)}, {v(U+r,2)}, {v(U+r,2)}")
        for h in range(4): A(f"v_cvt_pk_bf16_f32 {v(P+4*t+h)}, {v(U+2*h)}, {v(U+2*h+1)}")
        for h in range(2): A(f"v_permlane16_swap_b32 {v(P+4*t+h)}, {v(P+4*t+2+h)}")
        for x in dual(f"buffer_store_dwordx4 {v(P+4*t,4)}, {v(vRA)}, SRD, {s(sR)} offen offset:{t*512}"): vm.issue(("rst",), x)
    srd(A, SD, 18, 1280); srd(A, SW, 20, 2048*1280)
    vB2 = 20
    A(f"s_mul_i32 s63, {s(SC)}, 160"); A(f"v_lshlrev_b32 {v(u3)}, 3, {v(u1)}")
    for t in range(5): vm.issue(("b2",), f"buffer_load_dwordx2 {v(vB2+2*t,2)}, {v(u3)}, {s(SD,4)}, s63 offen offset:{t*32}")
    L_OUT = 61440; OA = 30
    E = Emit()
    E(f"s_lshl_b32 s66, {s(SI)}, 7"); E(f"s_add_u32 s66, s66, {WS_FR}"); E(f"s_lshl_b32 s97, {s(SG)}, 3"); E("s_add_u32 s97, s97, s66")
    k_setup(E, RS_, WS_R, 0, RQ)
    merge(A, vm, E.l, side + take(Q1, PF["rS"]))
    vm.wait(("rst",)); A("s_barrier")
    set_flag(97, True)
    stamp(A, 15)
    for x in take(Q1, PF["rF"]): vm.issue(*x)
    assert len(Q1) <= 15, len(Q1)
    HC = 216
    def p4_shadow():
        A("s_mul_i32 s63, s26, 2816"); A(f"s_add_u32 s63, s63, {L_OUT}")
        A(f"v_mul_u32_u24 {v(9)}, 176, {v(u0)}"); A(f"v_lshl_add_u32 {v(9)}, {v(u1)}, 3, {v(9)}"); A(f"v_add_u32 {v(9)}, s63, {v(9)}")
        for n in range(3):
            A(f"v_add_u32 {v(u2)}, {64*n}, v1")
            A(f"v_mul_u32_u24 {v(u3)}, 6554, {v(u2)}"); A(f"v_lshrrev_b32 {v(u3)}, 16, {v(u3)}")
            A(f"v_lshlrev_b32 {v(u2)}, 4, {v(u2)}")
            A(f"v_lshl_add_u32 {v(u4)}, {v(u3)}, 4, {v(u2)}"); A(f"v_add_u32 {v(OA+n)}, s63, {v(u4)}")
            A(f"v_mul_u32_u24 {v(u3)}, 1120, {v(u3)}"); A(f"v_add_u32 {v(OA+3+n)}, {v(u3)}, {v(u2)}")
        A(f"s_lshl_b32 s58, {s(SJ)}, 6"); A("s_lshl_b32 s59, s26, 4"); A("s_add_u32 s58, s58, s59"); A("s_mul_i32 s58, s58, 1280")
        A(f"s_mul_i32 s59, {s(SC)}, 160"); A("s_add_u32 s58, s58, s59")
        E = Emit()
        for t in range(5):
            for h in range(2):
                E(f"v_lshlrev_b32 {v(36)}, 16, {v(HRES+2*t+h)}"); E(f"v_and_b32 {v(37)}, 0xffff0000, {v(HRES+2*t+h)}")
                E(f"v_lshlrev_b32 {v(38)}, 16, {v(vB2+2*t+h)}"); E(f"v_and_b32 {v(39)}, 0xffff0000, {v(vB2+2*t+h)}")
                E(f"v_pk_add_f32 {v(HC+4*t+2*h,2)}, {v(36,2)}, {v(38,2)}")
        for x in E.l: A(x)
    k_gemm(12, lambda k: a(4+4*k,4), 24, 16, lambda t: v(HC+4*t,4), [], Q1, shadow=p4_shadow)
    stamp(A, 17)
    red_read(RD)
    P = 200
    for t in range(5):
        lg.wait(("r", t))
        red_sum(RD, t, P+2*t)
        A(f"ds_write_b64 {v(9)}, {v(P+2*t,2)} offset:{t*32}")
    A("s_waitcnt lgkmcnt(0)")
    for n in range(3): A(f"ds_read_b128 {v(RD+4*n,4)}, {v(OA+n)}")
    for n in range(3):
        A(f"s_waitcnt lgkmcnt({2-n})")
        if n == 2: A("s_mov_b64 exec, 0xffffffff")
        A(f"buffer_store_dwordx4 {v(RD+4*n,4)}, {v(OA+3+n)}, {s(SW,4)}, s58 offen {os.environ.get('OUTF', '')}")
    if STAMPS:
        A("s_mov_b64 exec, -1")
        stamp(A, 18)
        A("s_waitcnt vmcnt(0)")
        stamp(A, 19)
        A("s_cmp_lg_u32 s26, 0"); A("s_cbranch_scc1 L_end")
        A("s_lshl_b32 s100, s2, 8"); A(f"s_add_u32 s100, s100, {WS_TS}")
        A("v_lshlrev_b32 v2, 2, v1")
        A(f"buffer_store_dword v3, v2, {s(SWS,4)}, s100 offen")
    A.label("L_end")
    A("s_endpgm")
    return kd(K, 512, accum=256)

def main(path, stamps=False):
    global STAMPS
    STAMPS = stamps
    A = Asm()
    kds = [gen(A)]
    L = [l.strip() if l.strip().endswith(":") else l for l in A.lines]
    X = os.environ.get("EXP", "").split(",")
    import re
    if "nob" in X: L = [l for l in L if not ("s82 offen" in l and " lds" in l)]
    if "now1" in X: L = [l for l in L if not ("s80 offen lds" in l)]
    if "noag" in X: L = [l for l in L if not ("buffer_load_dwordx4 a[" in l)]
    if "noa" in X: L = [l for l in L if not re.search(r"buffer_load_dwordx4 v\[\d+:\d+\], v2, s\[40:43\], s5[2-5]", l)]
    if "nods" in X: L = [l for l in L if not ("ds_read" in l)]
    SEC = os.environ.get("SEC")
    if SEC:
        a_, b_, pats = SEC.split(":")
        i0 = next(i for i, l in enumerate(L) if l.strip() == f"; @S{a_}") + (6 if STAMPS else 1)
        i1 = next(i for i, l in enumerate(L) if l.strip() == f"; @S{b_}")
        L = L[:i0] + [l for l in L[i0:i1] if not any(re.match(p, l.strip()) for p in pats.split("+"))] + L[i1:]
    lines, n = hazard.fix(L)
    open(path, "w").write(file_text(["; @launch grid=(256,1,1) block=(256,1,1) lds=163840"], "\n".join(lines) + "\n", kds))
    print("nops inserted:", n, "lines:", len(lines))
STAMP_NAMES = {0:"start",1:"dma issued",26:"first loads out",27:"setup done",2:"unit staged",25:"late setup 1",20:"FW set",21:"x staged",22:"FW polled",23:"B0 arrived",
               3:"KV gemm",4:"kv stored",6:"Q gemm",28:"kv flags ok",5:"Q epi done",7:"gathered",8:"o flag",9:"o polled",10:"P2 gemm",11:"h flag",13:"h polled",
               14:"P3 gemm",15:"r flag",16:"r polled",17:"P4 gemm",18:"out issued",19:"out done"}
if __name__ == "__main__":
    main(sys.argv[1] if len(sys.argv) > 1 else "v29.s")
SPACE = dict(kvE=[0,3,6,8,10,12], kvEv=[1,2,4,8], oB=[2,4,6,8,10], oE=[0,2,4,6], oS=[2,4,6,8,10], oF=[0,2,4,6], p2G=[0,2,4,6,8], p2B=[0,2,4,6,8,10], p2E=[0,1,2,3],
             hW=[0,3,6,9,12], hA=[0,2,4,6,8], hS=[0,2,4,6], p3f=[0,4,6,8,10], p3L=[4,6,8,10,12,14,16], rB=[4,6,8,10,12], rEn=[0], rS=[0,2,4,6,8], rF=[0,2,4,6,8],
             w1b=[6,8,9,10,11], cs1=[0,6,9,12,18], kinit=[6,8,10,12], kfly=[8,10,12], p3init=[6,8,10,12], p3fly=[8,10,11], binit=[8,10,12,14], bq=[5,6,7,8], ls=[13,14,15,16],
             x0=[2,4,6,8], x1=[0,2,4,6], x1b=[2,4,6,8], x2=[4,6,8,10], smx=[4,6,8,9], gat=[0,20,40,60,90], tw1=[0,1], kvf=[1,2,3,4], kvc=[14,16,17,18,20], opc=[4,5,6,7], fwc=[7,8,9], w1t=[0,1])
```

```python
import sys, os
from collections import deque
sys.path.insert(0, "dev")
from asmgen import *
import hazard

PADH = int(os.environ.get("PADH", "4")); PADR = int(os.environ.get("PADR", "4")); PADX = int(os.environ.get("PADX", "0")); PADW = int(os.environ.get("PADW", "1"))
HS = 80 + PADH; RQ = 48 + PADR; RS_ = 4*RQ + PADX; W2K = 60 + PADW
WS_O  = 0
WS_H  = WS_O + 2621440
WS_R  = WS_H + 128*HS*256
WS_WO = WS_R + 128*RS_*256
WS_W2 = WS_WO + 819200
WS_KV = WS_W2 + 32*W2K*1024
KV_STRIDE = 3584
WS_ST = WS_KV + 256*KV_STRIDE
WS_FP = WS_ST + 131072
WS_FKV = WS_FP + 2048
WS_FO = WS_FKV + 2048
WS_FH = WS_FO + 2048
WS_FR = WS_FH + 2048
WS_FL = WS_FR + 2048
WS_FW = WS_FL + 2048
WS_CP = WS_FW + 2048
WS_WQ = WS_CP + 131072
WS_TS = WS_WQ + 16*153600
WS_END = WS_TS + 256*256
LOG2E = 0x3fb8aa3b; EPS6 = 0x358637bd; EPS5 = 0x3727c5ac; INV640 = 0x3acccccd; ONES = 0x3f803f80
SPIN = 40000
STAMPS = False
OPT = dict(slow=int(os.environ.get("SLOW", "0")))
PF = dict(w2t=0, tlb=0, cw=1, w1b=11, tw1=0, cs1=9, gat=0, w1t=1, x0=6, x1=4, x1b=6, x2=8, opc=5, fwc=8, smx=8, binit=12, bq=7, ls=14, fpchk=18, kvE=12, kvEv=2, kvf=2, kvc=17,
          qE=0, qEv=5, oB=8, oE=4, oT=0, oS=8, oF=0, p2G=5, p2B=8, p2E=0, hW=0, hA=6, hS=0, p3f=6, p3L=7, rB=10, rEn=0, rS=4, rF=4,
          kinit=10, kfly=10, p3init=10, p3fly=10)
for k in list(PF):
    if os.environ.get("PF_"+k): PF[k] = int(os.environ["PF_"+k])

def stamp(A, n):
    A.comment(f"@S{n}")
    if not STAMPS: return
    A("s_memrealtime s[100:101]"); A("s_memtime s[98:99]"); A("s_waitcnt lgkmcnt(0)")
    A(f"v_writelane_b32 v3, s100, {n}"); A(f"v_writelane_b32 v3, s98, {n+32}")

class Cnt:
    def __init__(self, A, name, cap): self.A = A; self.q = []; self.name = name; self.cap = cap; self.seen = set(); self.cnt = 0
    def issue(self, tag, txt):
        for l in (txt if isinstance(txt, list) else [txt]): self.A(l)
        self.q.append(tag); self.seen.add(tag); self.cnt += 1
        assert self.name != "vmcnt" or len(self.q) <= 63
    def pending(self, tag): return tag in self.q
    def wait(self, tag):
        assert tag in self.seen, tag
        if tag not in self.q: return
        idx = len(self.q) - 1 - self.q[::-1].index(tag)
        n = len(self.q) - 1 - idx
        self.A(f"s_waitcnt {self.name}({min(n, self.cap)})")
        self.q = self.q[idx+1:] if n <= self.cap else self.q[len(self.q)-self.cap:]
    def drained(self): self.q = []
    def mark(self): return self.cnt
    def wait_mark(self, m):
        n = self.cnt - m
        self.A(f"s_waitcnt {self.name}({n})")
        if len(self.q) > n: self.q = self.q[len(self.q)-n:] if n else []

class Emit:
    def __init__(self): self.l = []
    def __call__(self, t): self.l.append(t)

TRC = int(os.environ.get('TRC', '8')); HEAVY = int(os.environ.get('HEAVY', '1')); MAXV = int(os.environ.get('MAXV', '2'))
import re
def unpk(l):
    m = re.match(r"v_mov_b64 v\[(\d+):\d+\], (.*)$", l)
    if m:
        d = int(m.group(1)); mm = re.match(r"v\[(\d+):", m.group(2))
        return [f"v_mov_b32 v{d+h}, " + (f"v{int(mm.group(1))+h}" if mm else m.group(2)) for h in range(2)]
    m = re.match(r"v_pk_(add|mul|fma)_f32 (.*?)( op_sel_hi:\[[\d,]+\])?$", l)
    if not m: return [l]
    ops = [o.strip() for o in m.group(2).split(",")]
    hi = [int(c) for c in re.findall(r"\d", m.group(3))] if m.group(3) else [1, 1, 1]
    def el(o, h): k, b = o[0], int(re.match(r".\[(\d+)", o).group(1)); return f"{k}{b+h}"
    out = []
    for h in range(2):
        srcs = [el(o, h if (h == 0 or hi[i]) else 0) for i, o in enumerate(ops[1:])]
        if m.group(1) != "fma" and srcs[1][0] == "s": srcs = srcs[::-1]
        out.append(f"v_{m.group(1)}_f32 {el(ops[0], h)}, " + ", ".join(srcs))
    return out
class Gaps:
    def __init__(self, A, vm, lg): self.A = A; self.vm = vm; self.lg = lg; self.q = [deque(), deque(), deque()]
    def put(self, pr, x): self.q[pr].append(x)
    def valu(self, pr, lines):
        for l in lines:
            for x in unpk(l): self.q[pr].append(("i", x))
    def vmem(self, pr, op):
        tag, txt = op
        txt = txt if isinstance(txt, list) else [txt]
        k = next(i for i, l in enumerate(txt) if l.startswith("buffer_"))
        for l in txt[:k]: self.q[pr].append(("i", l))
        self.q[pr].append(("vm", tag, txt[k]))
        for l in txt[k+1:]: self.q[pr].append(("i", l))
    def ds(self, pr, tag, txt): self.q[pr].append(("ds", tag, txt))
    def cost(self, x):
        if x[0] == "vm": return 2
        if x[0] == "i" and x[1].startswith(("v_pk", "v_exp", "v_rcp", "v_sqrt", "v_perm", "v_mov_b64")): return HEAVY
        if x[0] == "ds" and "write_b128" in x[2]: return 2
        if x[0] == "blk": return len(x[1])
        if x[0] in ("lw", "vw"): return 1 if (self.lg if x[0] == "lw" else self.vm).pending(x[1]) else 0
        return 1
    def ready(self, x):
        if x[0] == "vw": return x[1] in self.vm.seen and (not self.vm.pending(x[1]) or len(self.vm.q) - 1 - self.vm.q.index(x[1]) >= x[2] or self.force)
        if x[0] == "lw": return not self.lg.pending(x[1]) or len(self.lg.q) - 1 - self.lg.q.index(x[1]) >= x[2] or self.force
        return True
    force = False
    def run(self, x):
        if x[0] == "i": self.A(x[1])
        elif x[0] == "vm": self.vm.issue(x[1], x[2])
        elif x[0] == "ds": self.lg.issue(x[1], x[2])
        elif x[0] == "lw": self.lg.wait(x[1])
        elif x[0] == "vw": self.vm.wait(x[1])
        elif x[0] == "blk":
            for y in x[1]: self.run(y)
    def fill(self, budget=2):
        full = budget; nv = 0; ld = 16
        for q in self.q:
            while q and budget > 0 and self.ready(q[0]):
                c = self.cost(q[0])
                if c > budget and budget < full: break
                if q[0][0] == "ds":
                    lc = 16 if "b128" in q[0][2] else TRC
                    if lc > ld: break
                    ld -= lc
                if q[0][0] == "i" and q[0][1].startswith("v_"):
                    if nv >= MAXV: break
                    nv += 1
                self.run(q.popleft()); budget -= c
    def mfma(self, d, x, y, c=None, budget=2):
        self.A(f"v_mfma_f32_16x16x32_bf16 {d}, {x}, {y}, {d if c is None else c}")
        self.fill(budget)
    def flush(self, pr=None):
        self.force = True
        for i, q in enumerate(self.q):
            if pr is None or i == pr:
                while q: self.run(q.popleft())
        self.force = False

def merge(A, vm, stream, side, every=None):
    n = len(stream); k = len(side)
    step = every if every else max(1, n // (k + 1))
    j = 0
    for i, t in enumerate(stream):
        A(t)
        if (i + 1) % step == 0 and j < k:
            vm.issue(*side[j]); j += 1
    while j < k:
        vm.issue(*side[j]); j += 1

def mfma(A, d, x, y, c=None):
    A(f"v_mfma_f32_16x16x32_bf16 {d}, {x}, {y}, {d if c is None else c}")

def kperm(A, dst, p, t1, t2):
    A(f"v_and_b32 {v(t1)}, 12, {v(p)}"); A(f"v_lshlrev_b32 {v(t1)}, 1, {v(t1)}")
    A(f"v_lshrrev_b32 {v(t2)}, 4, {v(p)}"); A(f"v_lshlrev_b32 {v(t2)}, 2, {v(t2)}")
    A(f"v_and_b32 {v(dst)}, 3, {v(p)}")
    A(f"v_or3_b32 {v(dst)}, {v(dst)}, {v(t1)}, {v(t2)}")

def ln_stats2(E, pairs, tmps):
    def each(f):
        for k, (a_, b_) in enumerate(pairs): f(a_, b_, tmps[k])
    def rnd(r): return [f"v_cvt_pk_bf16_f32 {v(r)}, {v(r)}, {v(r)}", f"v_and_b32 {v(r)}, 0xffff0000, {v(r)}"]
    each(lambda a_, b_, t: E(f"v_mul_f32 {v(a_)}, s93, {v(a_)}"))
    each(lambda a_, b_, t: E(f"v_mul_f32 {v(t)}, {v(a_)}, {v(a_)}"))
    each(lambda a_, b_, t: E(f"v_fma_f32 {v(b_)}, {v(b_)}, s93, -{v(t)}"))
    each(lambda a_, b_, t: E(f"v_max_f32 {v(b_)}, 0, {v(b_)}"))
    each(lambda a_, b_, t: E(rnd(b_)[0])); each(lambda a_, b_, t: E(rnd(a_)[0]))
    each(lambda a_, b_, t: E(rnd(b_)[1])); each(lambda a_, b_, t: E(rnd(a_)[1]))
    each(lambda a_, b_, t: E(f"v_add_f32 {v(b_)}, 0x{EPS5:x}, {v(b_)}"))
    each(lambda a_, b_, t: E(f"v_xor_b32 {v(a_)}, 0x80000000, {v(a_)}"))
    each(lambda a_, b_, t: E(rnd(b_)[0])); each(lambda a_, b_, t: E(rnd(b_)[1]))
    each(lambda a_, b_, t: E(f"v_sqrt_f32 {v(b_)}, {v(b_)}"))
    each(lambda a_, b_, t: E(rnd(b_)[0])); each(lambda a_, b_, t: E(rnd(b_)[1]))
    each(lambda a_, b_, t: E(f"v_rcp_f32 {v(b_)}, {v(b_)}"))

def take(Q, n):
    out = Q[:n]; del Q[:n]; return out

def gen(A):
    K = NAME + "_kernel"
    kernel_begin(A, K)
    SI, SG, SJ, SC = 30, 31, 28, 29
    SX, SW, SWS, SD, SP = 32, 36, 40, 44, 48
    NON = 94
    vL16 = 2
    vm = Cnt(A, "vmcnt", 63); lg = Cnt(A, "lgkmcnt", 15); G = Gaps(A, vm, lg)
    sMODE = 84
    def dual(txt):
        k = "O" if f"{s(sO)} offen" in txt else ("R" if f"{s(sR)} offen" in txt else "H")
        return [txt.replace("SRD", s(SWS,4)) + (" sc1" if k in os.environ.get("WT", "OHR") else "")]
    vNF = 242
    def set_flag(off_sgpr, both=False):
        lab = A.newlabel("nf"); slow = A.newlabel("sl")
        A("s_cmp_lg_u32 s26, 0"); A(f"s_cbranch_scc1 {lab}")
        A("s_mov_b64 exec, 1")
        x = f"buffer_store_dwordx2 {v(vNF,2)}, {v(vNF+2)}, {s(SWS,4)}, {s(off_sgpr)} offen"
        if both:
            A(f"s_cmp_lg_u32 {s(sMODE)}, 1"); A(f"s_cbranch_scc1 {slow}")
            A(x); A("s_mov_b64 exec, -1"); A(f"s_branch {lab}")
            A.label(slow)
            A("buffer_wbl2 sc1"); A("s_waitcnt vmcnt(0)")
        A(x + " sc1")
        A("s_mov_b64 exec, -1")
        A.label(lab)
    def poll(off_sgpr, tmp):
        lab = A.newlabel("pl"); done = A.newlabel("pd")
        A("s_mov_b32 s96, 0")
        A.label(lab)
        A(f"buffer_load_dwordx2 {v(tmp,2)}, {v(vSA)}, {s(SWS,4)}, {s(off_sgpr)} offen sc1")
        A("s_waitcnt vmcnt(0)")
        A(f"v_cmp_ne_u64 vcc, {s(NON,2)}, {v(tmp,2)}")
        A("s_add_u32 s96, s96, 1")
        A(f"s_cbranch_vccz {done}")
        A(f"s_cmp_lt_u32 s96, {SPIN}"); A(f"s_cbranch_scc1 {lab}")
        A.label(done)
        vm.drained()
    def run_loads(tag, dst, sbase, n, flags="sc1"):
        ops = []
        for k in range(n):
            t = [f"buffer_load_dwordx4 {dst(k)}, {v(vL16)}, {s(SWS,4)}, {s(sbase)} offen offset:{(k%4)*1024} {flags}"]
            if k % 4 == 3 and k + 1 < n: t.append(f"s_add_u32 {s(sbase)}, {s(sbase)}, 4096")
            ops.append((tag(k), t))
        return ops

    MISC = 155648
    L_KVN = MISC; L_KVD = MISC + 6144; L_RSTD = MISC + 6400; L_CS = L_RSTD + 1024
    L_PACK = 126976; L_XR = 12288; NXR = 7; L_Q = 102400; L_XT = 139264; L_RED2 = 77824; L_CS3 = L_RSTD; L_KR = 69632; L_CP = 153600
    t0, t1, t2, t3, t4, t5 = range(24, 30)
    vXa, vXb, vU, vUr = 4, 5, 6, 7
    vXr = [8, 9]; vBa = [10, 11, 12]; vQ7 = 13; vUo = 14; vCSa = 15
    vSw, vSr, vC0, vC1, vC2 = 16, 17, 30, 31, 32
    vONE = 20
    vBF = 36; vAK = 76; vAQ = 116; vAS = 148; vASS = 214
    XF = lambda s_, mt: a((2*s_+mt)*4, 4)
    BFr = lambda b, t: vBF + (b*5+t)*4
    AK = lambda mt, t: vAK + (mt*5+t)*4
    AQ = lambda mt, t: vAQ + (mt*3+t)*4
    OPA = 222; g0, g1, g2, pr, fl, xa = 226, 227, 228, 229, 230, 233
    vOA, vHA, vRA, vSA = 236, 237, 238, 239
    sO, sH, sR, sST, sKV = 4, 5, 6, 7, 8
    RS = 156; NM = 164; RL2 = 172; CSK = 180; rl = 190; nl = 194; rl2 = 198; CSQ = 202
    A("s_cmp_ge_u32 s2, 256"); A("s_cbranch_scc1 L_end")
    if STAMPS: A("v_mov_b32 v3, 0")
    stamp(A, 0)
    A("s_load_dwordx4 s[4:7], s[0:1], 0")
    if PF["cw"]:
        A(f"s_cmp_ge_u32 s2, {8*PF['cw']}"); A("s_cbranch_scc1 CW_skip")
        A("s_getpc_b64 s[60:61]"); A.label("CW_pc"); A(f"v_lshlrev_b32 {v(33)}, 7, v0"); A(f"v_min_u32 {v(33)}, L_end-CW_pc, {v(33)}")
        A(f"global_load_dword {v(35)}, {v(33)}, s[60:61]")
        A.label("CW_skip")
    A("v_lshrrev_b32 v2, 6, v0"); A("v_and_b32 v1, 63, v0"); A("v_readfirstlane_b32 s26, v2")
    A("s_and_b32 s27, s2, 7"); A(f"s_bfe_u32 s53, s2, 0x10003"); A(f"s_lshl1_add_u32 {s(SI)}, s27, s53"); A(f"s_lshr_b32 {s(SG)}, s2, 4")
    A(f"v_lshrrev_b32 {v(t0)}, 4, v1")
    A(f"v_lshlrev_b32 {v(t2)}, 2, {v(t0)}"); A(f"v_and_b32 {v(t1)}, 15, v1"); A(f"v_xor_b32 {v(t1)}, {v(t1)}, {v(t2)}"); A(f"v_min_u32 {v(t1)}, 14, {v(t1)}")
    A(f"v_mul_u32_u24 {v(t2)}, 52, {v(t1)}"); A(f"v_lshrrev_b32 {v(t2)}, 8, {v(t2)}")
    A(f"v_add_u32 {v(t3)}, 1, {v(t2)}"); A(f"v_cmp_eq_u32 vcc, 2, {v(t2)}"); A(f"v_cndmask_b32 {v(t3)}, {v(t3)}, 0, vcc")
    A(f"v_mul_u32_u24 {v(t3)}, 80, {v(t3)}"); A(f"v_mul_u32_u24 {v(t2)}, 5, {v(t2)}"); A(f"v_sub_u32 {v(t1)}, {v(t1)}, {v(t2)}")
    A(f"v_mul_u32_u24 {v(t0)}, 240, {v(t0)}"); A(f"v_add3_u32 {v(t1)}, {v(t1)}, {v(t3)}, {v(t0)}"); A(f"v_lshlrev_b32 {v(vU)}, 4, {v(t1)}")
    A(f"s_mul_i32 s56, {s(SI)}, 10"); A("s_add_u32 s56, s56, s26"); A(f"s_mul_i32 s56, s56, {4*3840}"); A(f"s_mul_i32 s53, {s(SG)}, 80"); A("s_add_u32 s56, s56, s53")
    A(f"s_add_u32 s57, s56, {16*3840}"); A(f"s_add_u32 s58, s56, {32*3840}")
    A("s_cmp_ge_u32 s26, 2"); A("s_cselect_b32 s58, 0x7fffffff, s58")
    A("s_lshl_b32 s83, s26, 10")
    A(f"s_mov_b32 {s(SW+2)}, {640*3840}"); A(f"s_mov_b32 {s(SW+3)}, 0x00020000"); A("s_mov_b32 m0, s83")
    A("s_waitcnt lgkmcnt(0)")
    A(f"s_mov_b32 {s(SW)}, s6"); A(f"s_and_b32 {s(SW+1)}, s7, 0xffff")
    for n in range(3): vm.issue(("u",), ([f"s_add_u32 m0, s83, {n*4096}", "s_nop 0"] if n else []) + [f"buffer_load_dwordx4 {v(vU)}, {s(SW,4)}, {s(56+n)} offen lds"])
    A("s_load_dwordx8 s[8:15], s[0:1], 16")
    A("s_load_dwordx8 s[16:23], s[0:1], 48")
    A("s_load_dwordx2 s[24:25], s[0:1], 80")
    A(f"s_memrealtime {s(NON,2)}")
    A(f"v_lshlrev_b32 {v(vL16)}, 4, v1")
    A(f"s_and_b32 s53, {s(SG)}, 1"); A(f"s_lshl1_add_u32 {s(SJ)}, {s(SI)}, s53"); A(f"s_lshr_b32 {s(SC)}, {s(SG)}, 1")
    A(f"s_mul_i32 s68, {s(SI)}, 5"); A("s_cmp_ge_u32 s26, 2"); A("s_cselect_b32 s69, 1, 0"); A("s_mov_b32 s67, 0")
    A(f"v_lshlrev_b32 {v(34)}, 7, v1")
    A(f"s_lshl_b32 s52, {s(SI)}, 4"); A(f"s_add_u32 s52, s52, {s(SG)}"); A("s_lshl_b32 s52, s52, 2"); A("s_add_u32 s52, s52, s26"); A("s_mul_i32 s52, s52, 2560")
    def x_ops(c):
        return [(("x", c), [f"s_add_u32 m0, s59, {(c%NXR)*4096+mt*2048+h*1024}", f"s_movk_i32 s63, {c*128+mt*20480}" if h == 0 else "s_nop 0",
                            f"buffer_load_dwordx4 {v(vXb if h else vXa)}, {s(SX,4)}, s63 offen lds"]) for mt in range(2) for h in range(2)]
    srd(A, SX, 4, 2048*1280)
    A("s_mov_b64 exec, 0xfffff")
    vm.issue(("tch",), f"buffer_load_dword {v(35)}, {v(34)}, {s(SX,4)}, s52 offen")
    A("s_mov_b64 exec, -1")
    A(f"v_lshrrev_b32 {v(t0)}, 3, v1"); A(f"v_and_b32 {v(t1)}, 7, v1"); A(f"v_lshrrev_b32 {v(t2)}, 1, {v(t0)}")
    A(f"v_xor_b32 {v(t3)}, {v(t1)}, {v(t2)}"); A(f"v_xor_b32 {v(t4)}, 4, {v(t3)}")
    A(f"s_lshl_b32 s54, {s(SI)}, 7"); A("s_lshl_b32 s53, s26, 5"); A("s_add_u32 s54, s54, s53")
    A(f"v_add_u32 {v(t0)}, s54, {v(t0)}"); A(f"v_mul_u32_u24 {v(t0)}, 1280, {v(t0)}")
    A(f"v_lshl_add_u32 {v(vXa)}, {v(t3)}, 4, {v(t0)}"); A(f"v_lshl_add_u32 {v(vXb)}, {v(t4)}, 4, {v(t0)}")
    A(f"v_add_u32 {v(vXb)}, {8*1280}, {v(vXb)}")
    A(f"s_mul_i32 s59, s26, {NXR*4096}"); A(f"s_add_u32 s59, s59, {L_XR}")
    A("s_waitcnt lgkmcnt(0)")
    if PF["w1t"]:
        srd(A, SP, 12, 640*3072)
        if PF["w1t"] == 1:
            A("s_lshl_b32 s53, s2, 2"); A("s_add_u32 s53, s53, s26"); A("s_mul_i32 s53, s53, 1920"); A("s_mov_b64 exec, 0x7fff")
            vm.issue(("tch",), f"buffer_load_dword {v(35)}, {v(34)}, {s(SP,4)}, s53 offen")
        else:
            A("s_lshr_b32 s53, s2, 3"); A("s_lshl_b32 s53, s53, 2"); A("s_add_u32 s53, s53, s26"); A("s_mul_i32 s53, s53, 15360"); A("s_mov_b64 exec, 0xfffffffffffffff" if False else "s_mov_b64 exec, -1")
            vm.issue(("tch",), f"buffer_load_dword {v(35)}, {v(34)}, {s(SP,4)}, s53 offen")
            A("s_add_u32 s53, s53, 7168")
            vm.issue(("tch",), f"buffer_load_dword {v(35)}, {v(34)}, {s(SP,4)}, s53 offen")
        A("s_mov_b64 exec, -1")
    if PF["w2t"]:
        A("s_lshl_b32 s53, s2, 2"); A("s_add_u32 s53, s53, s26"); A("s_mul_i32 s60, s53, 1920"); A("s_mul_i32 s61, s53, 896")
        srd(A, SP, 16, 1536*1280); A("s_mov_b64 exec, 0x7fff")
        vm.issue(("tch",), f"buffer_load_dword {v(35)}, {v(34)}, {s(SP,4)}, s60 offen")
        if PF["w2t"] == 2:
            srd(A, SP, 8, 640*1280); A("s_mov_b64 exec, 0x7f")
            vm.issue(("tch",), f"buffer_load_dword {v(35)}, {v(34)}, {s(SP,4)}, s61 offen")
        A("s_mov_b64 exec, -1")
    stamp(A, 1)
    srd(A, SD, 22, 256)
    A("s_xor_b32 s53, s2, 2"); A("s_or_b32 s53, s53, s26"); A("s_cmp_lg_u32 s53, 0"); A("s_cbranch_scc1 N_skip")
    A(f"v_mov_b32 {v(t0)}, {s(NON)}"); A(f"v_mov_b32 {v(t1)}, {s(NON+1)}"); A(f"v_mov_b32 {v(t2)}, 0")
    A("s_mov_b64 exec, 1")
    A(f"buffer_store_dwordx2 {v(t0,2)}, {v(t2)}, {s(SD,4)}, 0 offen sc1")
    A("s_mov_b64 exec, -1")
    A.label("N_skip")
    srd(A, SWS, 24, WS_END)
    if PF["tlb"]:
        lab = "TL_skip"
        if PF["tlb"] == 1: A("s_cmp_lg_u32 s26, 3"); A(f"s_cbranch_scc1 {lab}")
        else: A("s_lshr_b32 s53, s2, 3"); A("s_or_b32 s53, s53, s26"); A("s_cmp_lg_u32 s53, 1"); A(f"s_cbranch_scc1 {lab}")
        A(f"v_lshlrev_b32 {v(33)}, 20, v1"); A(f"s_mov_b64 exec, {hex((1 << (WS_END >> 20)) - 1)}")
        A(f"buffer_load_dword {v(35)}, {v(33)}, {s(SWS,4)}, 0 offen")
        srd(A, SP, 20, 2048*1280); A("s_mov_b64 exec, 7")
        A(f"buffer_load_dword {v(35)}, {v(33)}, {s(SP,4)}, 0 offen")
        srd(A, SP, 14, 3072); A("s_mov_b64 exec, 1")
        A(f"buffer_load_dword {v(35)}, {v(33)}, {s(SP,4)}, 0 offen")
        srd(A, SP, 18, 1280)
        A(f"buffer_load_dword {v(35)}, {v(33)}, {s(SP,4)}, 0 offen")
        A("s_mov_b64 exec, -1")
        A.label(lab)
    PAD = vBF + 8
    for j in range(4):
        A(f"v_lshrrev_b32 {v(t0)}, 3, v1"); A(f"v_add_u32 {v(t0)}, {8*j}, {v(t0)}")
        kperm(A, t1, t0, t2, t3)
        A(f"v_bfe_u32 {v(t2)}, v1, 1, 2"); A(f"v_bfe_u32 {v(t3)}, {v(t0)}, 1, 2"); A(f"v_xor_b32 {v(t2)}, {v(t2)}, {v(t3)}")
        A(f"v_and_b32 {v(t3)}, 1, v1"); A(f"v_lshl_or_b32 {v(t2)}, {v(t2)}, 1, {v(t3)}")
        A(f"v_mul_u32_u24 {v(t1)}, 1280, {v(t1)}"); A(f"v_lshl_add_u32 {v(PAD+j)}, {v(t2)}, 4, {v(t1)}")
    A("s_lshl_b32 s80, s2, 1"); A("s_add_u32 s80, s80, s26")
    A("s_cmp_lt_u32 s2, 240"); A("s_cselect_b32 s90, 2, 0")
    A("s_and_b32 s53, s2, 1"); A("s_add_u32 s53, s53, 2"); A("s_cmp_eq_u32 s53, s26"); A("s_cselect_b32 s91, 1, 0")
    A("s_cmp_lt_u32 s2, 200"); A("s_cselect_b32 s91, s91, 0")
    A("s_cmp_lt_u32 s26, 2"); A("s_cselect_b32 s90, s90, s91"); A("s_cselect_b32 s80, s80, s2")
    A(f"s_cselect_b64 {s(SP,2)}, s[16:17], s[8:9]"); A("s_cselect_b32 s86, 12, 5"); A(f"s_mov_b32 s85, {WS_WO}"); A(f"s_cselect_b32 s85, {WS_W2}, s85")
    A(f"s_mov_b32 {s(SP+2)}, {640*1280}"); A(f"s_cselect_b32 {s(SP+2)}, {1536*1280}, {s(SP+2)}")
    A(f"s_and_b32 {s(SP+1)}, {s(SP+1)}, 0xffff"); A(f"s_mov_b32 {s(SP+3)}, 0x00020000")
    A("s_mul_i32 s78, s80, 6554"); A("s_lshr_b32 s78, s78, 16"); A("s_mul_i32 s79, s78, 10"); A("s_sub_u32 s79, s80, s79")
    A("s_mul_i32 s87, s78, 40960"); A("s_lshl_b32 s88, s79, 7"); A("s_add_u32 s87, s87, s88")
    A("s_lshl_b32 s81, s26, 12"); A(f"s_add_u32 s81, s81, {L_PACK}")
    A("s_cmp_eq_u32 s90, 0"); A("s_cselect_b32 s87, 0x7fffffff, s87")
    op_txt = [[f"s_add_u32 m0, s81, {j*1024}", "s_nop 0", f"buffer_load_dwordx4 {v(PAD+j)}, {s(SP,4)}, s87 offen lds"] for j in range(4)]
    A("s_cmp_lg_u32 s90, 1"); A("s_cbranch_scc1 E_no")
    for x in op_txt:
        for y in x: A(y)
    A("s_mov_b32 s87, 0x7fffffff")
    A.label("E_no")
    op_loads = [(("op",), x) for x in op_txt]
    XQ = []
    for c in range(NXR): XQ += x_ops(c)
    for x in take(XQ, PF["x0"]): vm.issue(*x)
    stamp(A, 26)
    sDST = [16, 17, 89, 91]
    A("s_mul_i32 s84, s86, 20"); A("s_mul_i32 s88, s78, 5")
    A("s_mul_i32 s60, s78, 43"); A("s_lshr_b32 s60, s60, 9"); A(f"s_mul_i32 s60, s60, {PADW}")
    A("s_cmp_lt_u32 s26, 2"); A("s_cselect_b32 s60, s60, 0"); A(f"s_cselect_b32 s61, {4*PADW}, 0"); A("s_add_u32 s88, s88, s60"); A("s_add_u32 s84, s84, s61")
    for j in range(4):
        A("s_lshl_b32 s60, s79, 2"); A(f"s_add_u32 s60, s60, {j}"); A("s_mul_i32 s61, s60, 52"); A("s_lshr_b32 s61, s61, 8")
        A("s_mul_i32 s62, s61, 5"); A("s_sub_u32 s60, s60, s62"); A("s_mul_i32 s61, s61, s84"); A("s_add_u32 s60, s60, s61"); A("s_add_u32 s60, s60, s88")
        A("s_lshl_b32 s60, s60, 10"); A(f"s_add_u32 {s(sDST[j])}, s60, s85")
    A("s_cmp_eq_u32 s90, 0")
    for j in range(4): A(f"s_cselect_b32 {s(sDST[j])}, 0x7fffffff, {s(sDST[j])}")
    A(f"v_lshrrev_b32 {v(t0)}, 4, v1"); A("s_and_b32 s60, s26, 1"); A("s_lshl_b32 s60, s60, 2"); A(f"v_add_u32 {v(t0)}, s60, {v(t0)}")
    A(f"v_bfe_u32 {v(t1)}, v1, 2, 2"); A(f"v_lshlrev_b32 {v(t2)}, 1, {v(t1)}"); A(f"v_xor_b32 {v(t2)}, {v(t2)}, {v(t0)}")
    A(f"v_lshlrev_b32 {v(t1)}, 8, {v(t1)}"); A(f"v_lshl_or_b32 {v(t1)}, {v(t2)}, 5, {v(t1)}")
    A(f"v_and_b32 {v(t2)}, 3, v1"); A(f"v_lshl_or_b32 {v(t1)}, {v(t2)}, 3, {v(t1)}")
    A("s_lshr_b32 s60, s26, 1"); A("s_lshl_b32 s61, s60, 11"); A(f"v_add_u32 {v(vUr)}, s61, {v(t1)}")
    A(f"v_and_b32 {v(t1)}, 15, v1")
    A(f"v_lshlrev_b32 {v(t2)}, 2, v0"); A(f"v_add_u32 {v(vCSa)}, {L_RSTD}, {v(t2)}"); A(f"v_add_u32 {v(33)}, {L_RSTD}, {v(vL16)}")
    A(f"v_cmp_le_u32 s[70:71], 5, {v(t0)}"); A(f"v_cmp_eq_u32 s[72:73], 7, {v(t0)}"); A(f"v_cmp_le_u32 s[74:75], 8, {v(t1)}")
    A(f"v_add_u32 {v(t2)}, -5, {v(t0)}"); A(f"v_cndmask_b32 {v(t2)}, {v(t0)}, {v(t2)}, s[70:71]")
    A(f"v_lshlrev_b32 {v(t2)}, 10, {v(t2)}"); A(f"v_lshl_or_b32 {v(vUo)}, {v(t1)}, 4, {v(t2)}")
    A("s_and_b64 s[74:75], s[74:75], s[72:73]"); A("s_not_b64 s[74:75], s[74:75]")
    A("s_add_u32 s61, s68, s60")
    A(f"s_mul_i32 s62, {s(SG)}, 153600"); A(f"s_add_u32 s82, s62, {WS_WQ}")
    for r in range(4): A(f"v_mov_b32 {v(vONE+r)}, 0x{ONES:x}")
    UA = 48; UF = 52
    for r in range(3):
        A(f"s_add_u32 s62, s61, {2*r}")
        A("s_lshr_b32 s63, s62, 2"); A("s_and_b32 s62, s62, 3"); A("s_lshl_b32 s62, s62, 8")
        A("s_mul_i32 s64, s63, 5120"); A("s_add_u32 s64, s64, s62")
        A("s_lshr_b32 s65, s63, 1"); A("s_mul_i32 s65, s65, 5120"); A("s_add_u32 s65, s65, s62"); A("s_add_u32 s65, s65, 102400")
        A("s_and_b32 s63, s63, 1"); A("s_lshl_b32 s62, s63, 7"); A("s_add_u32 s62, s62, s65"); A("s_add_u32 s62, s62, 2048")
        A("s_lshl_b32 s63, s63, 11"); A("s_add_u32 s65, s65, s63")
        A(f"v_mov_b32 {v(t0)}, s64"); A(f"v_mov_b32 {v(t1)}, s65"); A(f"v_mov_b32 {v(t2)}, s62")
        A(f"v_cndmask_b32 {v(t0)}, {v(t0)}, {v(t1)}, s[70:71]"); A(f"v_cndmask_b32 {v(t0)}, {v(t0)}, {v(t2)}, s[72:73]")
        A(f"v_add_u32 {v(UA+r)}, {v(t0)}, {v(vUo)}")
    A("s_cmp_eq_u32 s69, 1"); A("s_cselect_b32 s56, 0x7fffffff, s82"); A("s_cmp_eq_u32 s67, 1"); A("s_cselect_b32 s57, 0x7fffffff, s82")
    A(f"s_lshl_b32 s62, {s(SG)}, 4"); A(f"s_add_u32 s62, s62, {s(SI)}"); A("s_lshl_b32 s55, s62, 9"); A(f"s_add_u32 s55, s55, {WS_CP}")
    A("s_lshl_b32 s97, s62, 3"); A(f"s_add_u32 s97, s97, {WS_FW}")
    A(f"v_mov_b32 {v(vNF+2)}, 0")
    stamp(A, 27)
    vm.wait(("u",)); A("s_barrier")
    stamp(A, 2)
    for r in range(3):
        for jj in range(2): lg.issue(("uf", r), f"ds_read_b64_tr_b16 {v(UF+4*r+2*jj,2)}, {v(vUr)} offset:{r*4096+jj*1024}")
    vm.issue(("non",), f"buffer_load_dwordx2 {v(vNF,2)}, {v(vNF+2)}, {s(SD,4)}, 0 offen sc1")
    A("s_mov_b64 exec, s[74:75]")
    for r in range(3):
        lg.wait(("uf", r))
        vm.issue(("ust",), f"buffer_store_dwordx4 {v(UF+4*r,4)}, {v(UA+r)}, {s(SWS,4)}, {'s56' if r == 2 else 's57'} offen sc1")
    A("s_mov_b64 exec, -1")
    for r in range(4): A(f"v_dot2_f32_bf16 {v(68+r)}, {v(UF+r)}, {v(vONE)}, 0")
    for r in range(4, 12): A(f"v_dot2c_f32_bf16 {v(68+r%4)}, {v(UF+r)}, {v(vONE)}")
    for x in take(XQ, PF["x1"]): vm.issue(*x)
    A(f"v_pk_add_f32 {v(68,2)}, {v(68,2)}, {v(70,2)}"); A(f"v_add_f32 {v(68)}, {v(68)}, {v(69)}")
    A(f"ds_write_b32 {v(vCSa)}, {v(68)}")
    A("s_waitcnt lgkmcnt(0)"); A("s_barrier")
    A("s_cmp_lg_u32 s26, 1"); A("s_cbranch_scc1 CS_skip")
    A("s_mov_b64 exec, 0xffffffff")
    A(f"ds_read_b128 {v(UF,4)}, {v(33)}"); A(f"ds_read_b128 {v(UF+4,4)}, {v(33)} offset:512"); A("s_waitcnt lgkmcnt(0)")
    for r in (0, 2): A(f"v_pk_add_f32 {v(UF+r,2)}, {v(UF+r,2)}, {v(UF+4+r,2)}")
    A(f"buffer_store_dwordx4 {v(UF,4)}, {v(vL16)}, {s(SWS,4)}, s55 offen sc1")
    A("s_mov_b64 exec, -1")
    A.label("CS_skip")
    mk = vm.mark()
    l0, l1, l2, l3, l4 = 68, 69, 70, 71, 72
    E = Emit()
    E(f"v_and_b32 {v(l0)}, 15, v1"); E(f"v_lshrrev_b32 {v(l1)}, 4, v1"); E(f"v_bfe_u32 {v(l2)}, v1, 1, 3")
    E(f"v_xor_b32 {v(l2)}, {v(l1)}, {v(l2)}"); E(f"v_lshl_add_u32 {v(l2)}, {v(l0)}, 3, {v(l2)}"); E(f"v_lshlrev_b32 {v(l2)}, 4, {v(l2)}")
    E(f"v_add_u32 {v(vXr[0])}, s59, {v(l2)}"); E(f"v_xor_b32 {v(vXr[1])}, 64, {v(vXr[0])}"); E(f"v_lshlrev_b32 {v(vSA)}, 3, {v(l0)}")
    E(f"v_lshrrev_b32 {v(l0)}, 2, v1"); E(f"v_bfe_u32 {v(l1)}, v1, 3, 2")
    E(f"v_lshlrev_b32 {v(l0)}, 7, {v(l0)}"); E(f"v_lshl_or_b32 {v(l0)}, {v(l1)}, 5, {v(l0)}")
    E(f"v_and_b32 {v(l1)}, 3, v1"); E(f"v_lshl_or_b32 {v(l0)}, {v(l1)}, 3, {v(l0)}")
    for t in range(4): E(f"v_xor_b32 {v(OPA+t)}, {t*32}, {v(l0)}"); E(f"v_add_u32 {v(OPA+t)}, s81, {v(OPA+t)}")
    E(f"v_mov_b64 {v(l2,2)}, 0"); E(f"v_mov_b64 {v(l4,2)}, 0")
    E(f"v_lshlrev_b32 {v(l0)}, 4, v0"); E(f"v_min_u32 {v(l1)}, {6384-4096}, {v(l0)}")
    E(f"v_add_u32 {v(l0)}, {L_KVN}, {v(l0)}"); E(f"v_add_u32 {v(l1)}, {L_KVN+4096}, {v(l1)}")
    E(f"ds_write_b128 {v(l0)}, {v(l2,4)}"); E(f"ds_write_b128 {v(l1)}, {v(l2,4)}")
    E(f"v_mov_b32 {v(vBa[0])}, {v(vL16)}"); E(f"v_add_u32 {v(vBa[1])}, 51200, {v(vL16)}"); E(f"v_add_u32 {v(vBa[2])}, {L_Q}, {v(vL16)}")
    E(f"s_lshl_b32 s66, {s(SG)}, 7"); E(f"s_add_u32 s66, s66, {WS_FW}")
    E(f"s_lshl_b32 s67, {s(SG)}, 2"); E("s_add_u32 s67, s67, s26"); E("s_lshl_b32 s67, s67, 11"); E(f"s_add_u32 s67, s67, {WS_CP}")
    E("s_mul_i32 s69, s26, 5120"); E("s_add_u32 s82, s82, s69")
    E(f"s_lshl_b32 s9, {s(SI)}, 4"); E(f"s_add_u32 s9, s9, {s(SG)}"); E("s_lshl_b32 s9, s9, 3"); E(f"s_add_u32 s9, s9, {WS_FP}")
    E("s_getreg_b32 s92, hwreg(HW_REG_XCC_ID, 0, 4)")
    E(f"s_mul_i32 s65, {s(SG)}, {16*KV_STRIDE}"); E(f"s_add_u32 s65, s65, {WS_KV}")
    E(f"v_lshlrev_b32 {v(g1)}, 4, v0"); E(f"v_add_u32 {v(g1)}, s65, {v(g1)}")
    E(f"v_cmp_gt_u32 vcc, 210, v0"); E("s_mov_b64 s[10:11], vcc")
    E(f"s_mul_i32 {s(sKV)}, {s(SI)}, {KV_STRIDE}")
    E(f"v_mov_b64 {v(64,2)}, -1"); E(f"v_mov_b64 {v(66,2)}, -1")
    merge(A, vm, E.l, take(XQ, PF["x1b"]))
    stamp(A, 25)
    vm.wait(("non",))
    A("s_mov_b32 s96, 0")
    A.label("N_l")
    A(f"v_readfirstlane_b32 {s(NON)}, {v(vNF)}"); A(f"v_readfirstlane_b32 {s(NON+1)}, {v(vNF+1)}")
    A(f"s_or_b32 s62, {s(NON)}, {s(NON+1)}"); A("s_cmp_lg_u32 s62, 0"); A("s_cbranch_scc1 N_d")
    A(f"buffer_load_dwordx2 {v(vNF,2)}, {v(vNF+2)}, {s(SD,4)}, 0 offen sc1"); A("s_waitcnt vmcnt(0)")
    A("s_add_u32 s96, s96, 1"); A(f"s_cmp_lt_u32 s96, {SPIN}"); A("s_cbranch_scc1 N_l")
    A.label("N_d")
    vm.wait_mark(mk)
    A("s_barrier")
    set_flag(97)
    stamp(A, 20)
    A("s_mov_b64 exec, s[10:11]")
    vm.issue(("pre",), f"buffer_store_dwordx4 {v(64,4)}, {v(g1)}, {s(SWS,4)}, {s(sKV)} offen sc1")
    A("s_mov_b64 exec, -1")
    A("s_cmp_lg_u32 s90, 1"); A("s_cbranch_scc1 E_nob")
    for t in range(4):
        for jj in range(2): A(f"ds_read_b64_tr_b16 {v(vAK+4*t+2*jj,2)}, {v(OPA+t)} offset:{jj*2048}")
    for t in range(4):
        A(f"s_waitcnt lgkmcnt({6-2*t})")
        A(f"buffer_store_dwordx4 {v(vAK+4*t,4)}, {v(vL16)}, {s(SWS,4)}, {s(sDST[t])} offen sc1")
        A(f"s_mov_b32 {s(sDST[t])}, 0x7fffffff")
    A.label("E_nob")
    for x in take(XQ, PF["x2"]): vm.issue(*x)
    A(f"s_lshl_b32 s62, {s(NON+1)}, 4"); A("s_or_b32 s92, s92, s62")
    A(f"v_mov_b32 {v(t0)}, {s(NON)}"); A(f"v_mov_b32 {v(t1)}, s92")
    E = Emit()
    E(f"v_and_b32 {v(l0)}, 15, v1"); E(f"v_lshrrev_b32 {v(l1)}, 4, v1"); E("s_lshl_b32 s64, s26, 7")
    E(f"v_lshl_add_u32 {v(vSw)}, {v(l0)}, 2, s64"); E(f"v_add_u32 {v(vSw)}, {L_RSTD}, {v(vSw)}")
    E(f"v_lshl_add_u32 {v(vSr)}, {v(l1)}, 4, s64"); E(f"v_add_u32 {v(vSr)}, {L_RSTD}, {v(vSr)}")
    E(f"v_and_b32 {v(vC0)}, 0x1f0, {v(vL16)}"); E("s_lshl_b32 s64, s26, 9"); E(f"s_add_u32 s64, s64, {L_CP}"); E(f"v_add_u32 {v(vC0)}, s64, {v(vC0)}")
    E(f"v_lshlrev_b32 {v(vC1)}, 2, {v(l0)}"); E(f"v_add_u32 {v(vC1)}, {L_CP}, {v(vC1)}")
    E(f"v_lshlrev_b32 {v(vC2)}, 4, {v(l1)}"); E(f"v_add_u32 {v(vC2)}, {L_CP+320}, {v(vC2)}")
    E(f"v_and_b32 {v(l2)}, 3, v1")
    E(f"v_cmp_eq_u32 s[70:71], 1, {v(l2)}"); E(f"v_cmp_eq_u32 s[72:73], 2, {v(l2)}"); E(f"v_cmp_eq_u32 s[74:75], 3, {v(l2)}")
    E(f"v_bfe_u32 {v(l2)}, v1, 2, 2"); E(f"v_cmp_eq_u32 s[60:61], {v(l2)}, {v(l1)}")
    E(f"s_mov_b32 s93, 0x{INV640:x}")
    E(f"s_mov_b32 s78, 0x{LOG2E:x}"); E(f"s_mov_b32 s79, 0x{EPS6:x}"); E("s_mov_b32 s77, s79"); E("s_mov_b32 s76, s79")
    E(f"v_lshlrev_b32 {v(fl+2)}, 3, v0")
    E(f"s_lshl_b32 s52, {s(SI)}, 7"); E(f"s_add_u32 s52, s52, {WS_FP}"); E(f"s_mov_b32 s53, {WS_FP}")
    E(f"v_and_b32 {v(vQ7)}, 0x37f, {v(vL16)}"); E(f"v_add_u32 {v(vQ7)}, {L_Q+4096}, {v(vQ7)}")
    E(f"v_bfe_u32 {v(l1)}, v1, 4, 1"); E(f"v_lshrrev_b32 {v(l2)}, 5, v1")
    E(f"v_lshlrev_b32 {v(l2)}, 8, {v(l2)}"); E(f"v_lshl_or_b32 {v(l2)}, {v(l0)}, 4, {v(l2)}")
    E(f"v_mul_u32_u24 {v(vOA)}, {80*256}, {v(l1)}"); E(f"v_add_u32 {v(vOA)}, {v(vOA)}, {v(l2)}")
    E(f"v_mul_u32_u24 {v(vRA)}, {RS_*256}, {v(l1)}"); E(f"v_add_u32 {v(vRA)}, {v(vRA)}, {v(l2)}")
    E(f"v_lshl_add_u32 {v(vHA)}, {v(l1)}, 9, {v(l2)}")
    E(f"s_lshl_b32 s64, {s(SI)}, 3"); E("s_lshl_b32 s65, s26, 1"); E("s_add_u32 s64, s64, s65")
    E(f"s_mul_i32 {s(sO)}, s64, 80"); E(f"s_mul_i32 s65, {s(SG)}, 5"); E(f"s_add_u32 {s(sO)}, {s(sO)}, s65"); E(f"s_lshl_b32 {s(sO)}, {s(sO)}, 8"); E(f"s_add_u32 {s(sO)}, {s(sO)}, {WS_O}")
    E(f"s_mul_i32 {s(sR)}, s64, {RS_}"); E(f"s_mul_i32 s65, {s(SG)}, 12"); E(f"s_add_u32 {s(sR)}, {s(sR)}, s65"); E(f"s_lshr_b32 s65, {s(SG)}, 2"); E(f"s_mul_i32 s65, s65, {PADR}"); E(f"s_add_u32 {s(sR)}, {s(sR)}, s65"); E(f"s_lshl_b32 {s(sR)}, {s(sR)}, 8"); E(f"s_add_u32 {s(sR)}, {s(sR)}, {WS_R}")
    E(f"s_lshl_b32 s64, {s(SJ)}, 2"); E("s_add_u32 s64, s64, s26")
    E(f"s_mul_i32 {s(sH)}, s64, {HS}"); E(f"s_mul_i32 s65, {s(SC)}, 10"); E(f"s_add_u32 {s(sH)}, {s(sH)}, s65"); E(f"s_lshl_b32 {s(sH)}, {s(sH)}, 8"); E(f"s_add_u32 {s(sH)}, {s(sH)}, {WS_H}")
    E(f"s_lshl_b32 s65, {s(SC)}, 7"); E("s_add_u32 s64, s64, s65"); E(f"s_lshl_b32 {s(sST)}, s64, 7"); E(f"s_add_u32 {s(sST)}, {s(sST)}, {WS_ST}")
    E(f"v_mul_u32_u24 {v(l0)}, 13108, v0"); E(f"v_lshrrev_b32 {v(l0)}, 16, {v(l0)}")
    E(f"v_mul_u32_u24 {v(l1)}, 5, {v(l0)}"); E(f"v_sub_u32 {v(l1)}, v0, {v(l1)}")
    E(f"v_cmp_le_u32 vcc, 21, {v(l0)}"); E(f"v_cndmask_b32 {v(l2)}, 0, 1, vcc")
    E(f"v_mul_u32_u24 {v(l3)}, 21, {v(l2)}"); E(f"v_sub_u32 {v(l0)}, {v(l0)}, {v(l3)}")
    E(f"v_mul_u32_u24 {v(l3)}, 5, {v(l2)}"); E(f"v_add_u32 {v(l1)}, {v(l1)}, {v(l3)}")
    E(f"v_mul_u32_u24 {v(l3)}, 20, {v(l2)}"); E(f"v_add_u32 {v(l3)}, {v(l3)}, {v(l0)}")
    E(f"v_add_u32 {v(l4)}, 40, {v(l3)}"); E(f"v_cmp_eq_u32 vcc, 20, {v(l0)}"); E(f"v_cndmask_b32 {v(l4)}, {v(l4)}, 32, vcc")
    E(f"v_lshlrev_b32 {v(l3)}, 7, {v(l3)}"); E(f"v_add_u32 {v(l3)}, {L_KVN}, {v(l3)}")
    E(f"v_lshlrev_b32 {v(l2)}, 7, {v(l2)}"); E(f"v_add_u32 {v(l2)}, {L_KVD}, {v(l2)}")
    E(f"v_cndmask_b32 {v(l3)}, {v(l3)}, {v(l2)}, vcc")
    E(f"v_lshrrev_b32 {v(l0)}, 2, {v(l1)}"); E(f"v_and_b32 {v(l1)}, 3, {v(l1)}")
    E(f"v_lshrrev_b32 {v(l2)}, 1, {v(l0)}"); E(f"v_lshl_add_u32 {v(l3)}, {v(l2)}, 6, {v(l3)}")
    E(f"v_lshl_add_u32 {v(l3)}, {v(l1)}, 4, {v(l3)}")
    E(f"v_and_b32 {v(l2)}, 1, {v(l0)}"); E(f"v_lshl_add_u32 {v(g2)}, {v(l2)}, 3, {v(l3)}")
    E(f"v_lshrrev_b32 {v(l2)}, 4, {v(l4)}"); E(f"v_add_u32 {v(l2)}, -2, {v(l2)}")
    E(f"v_mul_u32_u24 {v(l3)}, 5, {v(l0)}"); E(f"v_lshrrev_b32 {v(l3)}, 1, {v(l3)}")
    E(f"v_add_u32 {v(l2)}, {v(l2)}, {v(l3)}"); E(f"v_lshlrev_b32 {v(l2)}, 10, {v(l2)}")
    E(f"v_and_b32 {v(l4)}, 15, {v(l4)}"); E(f"v_lshl_add_u32 {v(l4)}, {v(l1)}, 4, {v(l4)}")
    E(f"v_lshl_add_u32 {v(g0)}, {v(l4)}, 4, {v(l2)}"); E(f"v_add_u32 {v(g0)}, {L_KR}, {v(g0)}")
    G.valu(2, E.l)
    def stat_m(s_):
        for mt in range(2):
            G.mfma(v(vAS+4*mt,4), v(vONE,4), XF(s_,mt), "0" if s_ == 0 else None)
            G.mfma(v(vASS+4*mt,4), XF(s_,mt), XF(s_,mt), "0" if s_ == 0 else None)
    for x in take(XQ, 99): G.vmem(1, x)
    sm = 0
    for c in range(10):
        if ("x", c) not in vm.seen or any(y[0] == "vm" and y[1] == ("x", c) for y in G.q[1]): G.flush(1)
        vm.wait(("x", c))
        for sp in range(2):
            for mt in range(2): lg.issue(("xf", c), f"ds_read_b128 {XF(2*c+sp,mt)}, {v(vXr[sp])} offset:{(c%NXR)*4096+mt*2048}")
        if c >= 1:
            lg.wait(("xf", c-1))
            if c - 1 + NXR < 10:
                for x in x_ops(c-1+NXR): G.vmem(1, x)
            if c == PF["opc"]:
                for x in op_loads: G.vmem(1, x)
            if c == PF["fwc"]: G.vmem(1, (("fw",), f"buffer_load_dwordx2 {v(t4,2)}, {v(vSA)}, {s(SWS,4)}, s66 offen sc1"))
            if c - 1 < PF["smx"]: stat_m(sm); stat_m(sm+1); sm += 2
    G.flush(1)
    stamp(A, 21)
    A("s_waitcnt lgkmcnt(0)"); lg.drained()
    A("s_barrier")
    vm.wait(("fw",))
    A("s_mov_b32 s96, 0"); A("s_branch FW_c")
    A.label("FW_l")
    A(f"buffer_load_dwordx2 {v(t4,2)}, {v(vSA)}, {s(SWS,4)}, s66 offen sc1")
    A("s_waitcnt vmcnt(0)")
    A.label("FW_c")
    A(f"v_cmp_ne_u64 s[62:63], {s(NON,2)}, {v(t4,2)}")
    A("s_add_u32 s96, s96, 1")
    A("s_cmp_eq_u64 s[62:63], 0"); A("s_cbranch_scc1 FW_d")
    A(f"s_cmp_lt_u32 s96, {SPIN}"); A("s_cbranch_scc1 FW_l")
    A.label("FW_d")
    stamp(A, 22)
    def b_round(r, track=True):
        ops = []
        for j in range(5):
            pre = []
            if j == 0: pre = [f"s_add_u32 m0, s69, {r*20480}"] + ([f"s_add_u32 s82, s82, {20480-4096}"] if r else ["s_nop 0"])
            if j == 4: pre = [f"s_add_u32 m0, s69, {r*20480+4096}", "s_add_u32 s82, s82, 4096"]
            ops.append((("B", r), pre + [f"buffer_load_dwordx4 {v(vL16)}, {s(SWS,4)}, s82 offen offset:{(j%4)*1024} sc1 lds"]))
        return ops
    CP = 116
    cp_loads = run_loads(lambda k: ("cp",), lambda k: v(CP+4*k,4), 67, 2)
    QB = [x for r in range(5) for x in b_round(r)] + cp_loads
    QQ = [x for r in range(5, 7) for x in b_round(r)]
    for x in take(QB, PF["binit"]): vm.issue(*x)
    A("s_cmp_lg_u32 s26, 0"); A("s_cbranch_scc1 FP_skip")
    A("s_mov_b64 exec, 1")
    A(f"buffer_store_dwordx2 {v(t0,2)}, {v(vNF+2)}, {s(SWS,4)}, s9 offen sc1")
    A("s_mov_b64 exec, -1")
    A.label("FP_skip")
    while sm < 20: stat_m(sm); sm += 1
    G.flush()
    vm.wait(("B", 0))
    for t in range(4):
        for jj in range(2): lg.issue(("of",), f"ds_read_b64_tr_b16 {a(160+4*t+2*jj,2)}, {v(OPA+t)} offset:{jj*2048}")
    A("s_barrier")
    stamp(A, 23)
    for k in range(3):
        for mt in range(2):
            q_ = vASS + 4*mt
            G.put(2, ("i", f"v_cndmask_b32 {v(q_)}, {v(q_)}, {v(q_+1+k)}, s[{70+2*k}:{71+2*k}]"))
    E = Emit(); ln_stats2(E, [(vAS, vASS), (vAS+4, vASS+4)], [t4, t5]); G.valu(2, E.l)
    blk = [("i", "s_mov_b64 exec, s[60:61]")]
    for mt in range(2):
        blk += [("ds", ("sw",), f"ds_write_b32 {v(vSw)}, {v(vASS+4*mt)} offset:{mt*64}"), ("ds", ("sw",), f"ds_write_b32 {v(vSw)}, {v(vAS+4*mt)} offset:{512+mt*64}")]
    G.put(2, ("blk", blk + [("i", "s_mov_b64 exec, -1")]))
    G.put(2, ("lw", ("sw",), 3))
    for mt in range(2):
        G.ds(2, ("sr",), f"ds_read_b128 {v(NM+4*mt,4)}, {v(vSr)} offset:{512+mt*64}"); G.ds(2, ("sr",), f"ds_read_b128 {v(RS+4*mt,4)}, {v(vSr)} offset:{mt*64}")
        G.ds(2, ("sr",), f"ds_read_b32 {v(rl+2*mt)}, {v(vSw)} offset:{mt*64}"); G.ds(2, ("sr",), f"ds_read_b32 {v(nl+2*mt)}, {v(vSw)} offset:{512+mt*64}")
    vW1 = 214; vW1b = 192
    E = Emit()
    G.put(2, ("lw", ("sr",), 3))
    for r in range(0, 8, 2): E(f"v_pk_mul_f32 {v(RL2+r,2)}, {v(RS+r,2)}, s[78:79] op_sel_hi:[1,0]")
    for mt in range(2): E(f"v_mul_f32 {v(rl2+2*mt)}, s78, {v(rl+2*mt)}")
    G.valu(2, E.l)
    G.put(2, ("vw", ("cp",), 4))
    E = Emit()
    for r in (0, 2): E(f"v_pk_add_f32 {v(CP+r,2)}, {v(CP+r,2)}, {v(CP+4+r,2)}")
    for r in (0, 2): E(f"v_mov_b64 {v(CP+4+r,2)}, {v(CP+r,2)}")
    for r in range(4): E(f"v_permlane32_swap_b32 {v(CP+4+r)}, {v(CP+r)}")
    for r in (0, 2): E(f"v_pk_add_f32 {v(CP+r,2)}, {v(CP+r,2)}, {v(CP+4+r,2)}")
    G.valu(2, E.l)
    G.ds(2, ("csw",), f"ds_write_b128 {v(vC0)}, {v(CP,4)}")
    G2b = []
    for w in range(4):
        for t in range(5): G2b.append(("ds", ("csr",), f"ds_read_b32 {v(CSK+2*t if w == 0 else CP+5*(w-1)+t)}, {v(vC1)} offset:{w*512+t*64}"))
    G2b.append(("lw", ("csr",), 2))
    for t in range(5):
        G2b += [("i", f"v_add_f32 {v(CSK+2*t)}, {v(CSK+2*t)}, {v(CP+t)}"), ("i", f"v_add_f32 {v(CP+5+t)}, {v(CP+5+t)}, {v(CP+10+t)}")]
    for t in range(5): G2b.append(("i", f"v_add_f32 {v(CSK+2*t)}, {v(CSK+2*t)}, {v(CP+5+t)}"))
    G2q = []
    for w in range(4):
        for t in range(3): G2q.append(("ds", ("csq",), f"ds_read_b128 {v(CSQ+4*t if w == 0 else 80+12*(w-1)+4*t,4)}, {v(vC2)} offset:{w*512+t*64}"))
    E = Emit()
    E(f"s_lshl_b32 s56, {s(SC)}, 2"); E("s_add_u32 s56, s56, s26"); E(f"s_mul_i32 s57, s56, {W2K*1024}"); E(f"s_add_u32 s57, s57, {WS_W2}")
    E("s_mul_i32 s56, s56, 25600"); E(f"s_add_u32 s56, s56, {WS_WO}")
    E(f"s_mul_i32 s80, {s(SG)}, 192"); E("s_mul_i32 s81, s26, 98304"); E("s_add_u32 s80, s80, s81"); E("s_mul_i32 s81, s26, 6144")
    E("s_lshl_b32 s64, s26, 13"); E(f"s_add_u32 s64, s64, {L_KR}"); E(f"v_add_u32 {v(33)}, s64, {v(vL16)}")
    E(f"v_and_b32 {v(34)}, 15, v1"); E(f"v_cmp_gt_u32 s[58:59], 8, {v(34)}")
    srd(E, SW, 12, 640*3072)
    for j in range(3):
        E(f"v_add_u32 {v(t2)}, {64*j}, v1"); E(f"v_mul_u32_u24 {v(t3)}, 5462, {v(t2)}"); E(f"v_lshrrev_b32 {v(t3)}, 16, {v(t3)}")
        E(f"v_mul_u32_u24 {v(t4)}, 12, {v(t3)}"); E(f"v_sub_u32 {v(t2)}, {v(t2)}, {v(t4)}")
        E(f"v_bfe_u32 {v(t4)}, {v(t3)}, 2, 1"); E(f"v_lshlrev_b32 {v(t4)}, 1, {v(t4)}"); E(f"v_xor_b32 {v(t2)}, {v(t2)}, {v(t4)}")
        E(f"v_and_b32 {v(t4)}, 12, {v(t3)}"); E(f"v_add_u32 {v(t3)}, {v(t3)}, {v(t4)}")
        E(f"v_mul_u32_u24 {v(t3)}, 3072, {v(t3)}"); E(f"v_lshl_add_u32 {v(vW1+j)}, {v(t2)}, 4, {v(t3)}"); E(f"v_add_u32 {v(vW1+3+j)}, 12288, {v(vW1+j)}")
    G.valu(2, E.l)
    late_st = [(("lst",), f"buffer_store_dwordx4 {a(160+4*t,4)}, {v(vL16)}, {s(SWS,4)}, {s(sDST[t])} offen sc1") for t in range(4)]
    def kv_rd(s_, t): return f"ds_read_b128 {v(BFr(s_%2,t),4)}, {v(vBa[s_//10])} offset:{(s_%10)*5120+t*1024}"
    for t in range(5): lg.issue(("b", 0, t), kv_rd(0, t))
    for s_ in range(20):
        if s_ % 4 == 3 and s_ < 19:
            assert ("B", s_//4+1) in vm.seen and not any(y[0] == "vm" and y[1] == ("B", s_//4+1) for y in G.q[1])
            if s_ == 15:
                while any(y[0] == "ds" and y[1] == ("csw",) for y in G.q[2]): G.force = True; G.run(G.q[2].popleft()); G.force = False
                lg.wait(("csw",))
            vm.wait(("B", s_//4+1)); A("s_barrier")
            if s_ == 15:
                for y in reversed(G2b): G.q[2].appendleft(y)
        if s_ < 19:
            for t in range(5): G.ds(0, ("b", s_+1, t), kv_rd(s_+1, t))
        for x in take(QB, 3): G.vmem(1, x)
        if not QB and s_ >= PF["bq"]:
            for x in take(QQ, 2): G.vmem(1, x)
            if not QQ and s_ == PF["ls"] - 1:
                blk = [("i", "s_cmp_ge_u32 s26, 2"), ("i", "s_cbranch_scc1 B7_skip")]
                for x in b_round(7): blk += [("i", y) for y in x[1]]
                G.put(1, ("blk", blk + [("i", "B7_skip:")]))
        if s_ >= PF["ls"]:
            for x in take(late_st, 1): G.vmem(1, x)
        if s_ == PF["fpchk"]:
            G.vmem(1, (("fp",), f"buffer_load_dwordx2 {v(fl,2)}, {v(fl+2)}, {s(SWS,4)}, s53 offen sc1"))
            G.vmem(1, (("fp",), f"buffer_load_dwordx2 {v(t0,2)}, {v(vSA)}, {s(SWS,4)}, s52 offen sc1"))
        for t in range(5):
            if t in (0, 3): lg.wait(("b", s_, 2 if t == 0 else 4))
            G.mfma(v(AK(0,t),4), XF(s_,0), v(BFr(s_%2,t),4), "0" if s_ == 0 else None)
            G.mfma(v(AK(1,t),4), XF(s_,1), v(BFr(s_%2,t),4), "0" if s_ == 0 else None, budget=1 if t in (2, 4) else 2)
    assert not QB and not QQ and not late_st
    G.flush()
    stamp(A, 3)
    PK = 36; PV = 48; KVP = 76; TM = 60
    def phi2(E, c, rs, r2, tmp, bc):
        sel2 = " op_sel_hi:[1,0]" if bc else ""; sel3 = " op_sel_hi:[1,0,1]" if bc else ""
        E(f"v_pk_mul_f32 {v(tmp,2)}, {v(c,2)}, {v(r2,2)}{sel2}")
        E(f"v_pk_fma_f32 {v(c,2)}, {v(c,2)}, {v(rs,2)}, s[76:77]{sel3}")
        E(f"v_exp_f32 {v(tmp)}, {v(tmp)} clamp"); E(f"v_exp_f32 {v(tmp+1)}, {v(tmp+1)} clamp")
        E(f"v_max_f32 {v(c)}, s79, {v(c)}"); E(f"v_max_f32 {v(c+1)}, s79, {v(c+1)}")
        E(f"v_pk_add_f32 {v(c,2)}, {v(c,2)}, {v(tmp,2)}")
    def w1_load(r, j):
        pre = [f"s_add_u32 m0, s81, {W1L(r)+j*1024}"]
        pre.append(f"s_add_u32 s80, s80, {4*98304}" if (j == 0 and r) else "s_nop 0")
        return (("w1", r), pre + [f"buffer_load_dwordx4 {v((vW1 if r < 3 else vW1b)+j)}, {s(SW,4)}, s80 offen lds"])
    W1L = lambda r: r*24576
    w1_loads = [w1_load(r, j) for r in range(5) for j in range(6)]
    E = Emit()
    for t in (2, 3, 4, 0, 1):
        for mt in range(2):
            for r in (0, 2): E(f"v_pk_fma_f32 {v(AK(mt,t)+r,2)}, {v(NM+4*mt+r,2)}, {v(CSK+2*t,2)}, {v(AK(mt,t)+r,2)} op_sel_hi:[1,0,1]")
        if t >= 2:
            for mt in range(2):
                for r in (0, 2): E(f"v_pk_mul_f32 {v(TM+4*mt+r,2)}, {v(AK(mt,t)+r,2)}, {v(RS+4*mt+r,2)}")
            for mt in range(2):
                for h in range(2): E(f"v_cvt_pk_bf16_f32 {v(PV+4*(t-2)+2*mt+h)}, {v(TM+4*mt+2*h)}, {v(TM+4*mt+2*h+1)}")
        if t <= 2:
            for mt in range(2):
                for r in (0, 2): phi2(E, AK(mt,t)+r, RS+4*mt+r, RL2+4*mt+r, TM+8+4*mt+r, False)
            for mt in range(2):
                for h in range(2): E(f"v_cvt_pk_bf16_f32 {v(PK+4*t+2*mt+h)}, {v(AK(mt,t)+2*h)}, {v(AK(mt,t)+2*h+1)}")
        if t == 2:
            for r in range(4): E(f"v_cndmask_b32 {v(PV+r)}, {v(PV+r)}, {v(vONE)}, s[58:59]")
    mkq = vm.mark()
    merge(A, vm, E.l, take(w1_loads, PF["kvE"]), every=PF["kvEv"])
    prods = [(2,2),(2,3),(2,4),(0,2),(0,3),(1,2),(1,3),(1,4)]
    pidx = {(0,2):0,(0,3):1,(1,2):2,(1,3):3,(1,4):4,(2,2):5,(2,3):6,(2,4):7}
    for (ta, tb) in prods: mfma(A, v(KVP+4*pidx[(ta,tb)],4), v(PK+4*ta,4), v(PV+4*(tb-2),4), "0")
    fpc = [f"v_lshrrev_b32 {v(t2)}, 4, {v(fl+1)}", f"v_lshrrev_b32 {v(t3)}, 4, {v(t1)}",
           f"v_xor_b32 {v(t2)}, {s(NON+1)}, {v(t2)}", f"v_xor_b32 {v(t3)}, {s(NON+1)}, {v(t3)}",
           f"v_xor_b32 {v(t4)}, {s(NON)}, {v(fl)}", f"v_xor_b32 {v(t5)}, {s(NON)}, {v(t0)}",
           f"v_or3_b32 {v(t2)}, {v(t2)}, {v(t3)}, {v(t4)}", f"v_or_b32 {v(t2)}, {v(t2)}, {v(t5)}"]
    vm.wait_mark(mkq)
    A("s_mov_b32 s96, 0")
    for (ta, tb) in prods: A(f"ds_write_b128 {v(33)}, {v(KVP+4*pidx[(ta,tb)],4)} offset:{pidx[(ta,tb)]*1024}")
    A.label("FP_l")
    for x in fpc: A(x)
    A(f"v_cmp_ne_u32 vcc, 0, {v(t2)}")
    A("s_add_u32 s96, s96, 1")
    A("s_cbranch_vccz FP_d")
    A(f"buffer_load_dwordx2 {v(fl,2)}, {v(fl+2)}, {s(SWS,4)}, s53 offen sc1")
    A(f"buffer_load_dwordx2 {v(t0,2)}, {v(vSA)}, {s(SWS,4)}, s52 offen sc1"); A("s_waitcnt vmcnt(0)")
    A(f"s_cmp_lt_u32 s96, {SPIN}"); A("s_cbranch_scc1 FP_l")
    A.label("FP_d")
    A(f"v_cmp_ne_u32 vcc, s92, {v(t1)}")
    A("s_lshl_b32 s97, s2, 3"); A(f"s_add_u32 s97, s97, {WS_FL}")
    A("s_waitcnt lgkmcnt(0)"); A("s_barrier")
    for w in range(4): A(f"ds_read_b128 {v(KVP+4*w,4)}, {v(g0)} offset:{w*8192}")
    def q_rd(s_, t):
        if t < 2: return f"ds_read_b128 {v(BFr(s_%2,t),4)}, {v(vBa[2])} offset:{(s_//2)*5120+((s_%2)*2+t)*1024}"
        return f"ds_read_b128 {v(BFr(s_%2,t),4)}, {v(vQ7)} offset:{(s_//2)*5120+(s_%2)*128}"
    lg.drained()
    for t in range(3): lg.issue(("q", 0, t), q_rd(0, t))
    A("s_cmp_eq_u64 vcc, 0")
    if OPT["slow"]: A("s_cmp_eq_u32 s26, 99")
    A(f"s_cselect_b32 {s(sMODE)}, 1, 0")
    A("s_mov_b32 s61, -2")
    A("s_waitcnt lgkmcnt(3)")
    for r in (0, 2):
        A(f"v_pk_add_f32 {v(KVP+r,2)}, {v(KVP+r,2)}, {v(KVP+4+r,2)}"); A(f"v_pk_add_f32 {v(KVP+8+r,2)}, {v(KVP+8+r,2)}, {v(KVP+12+r,2)}")
    for r in (0, 2): A(f"v_pk_add_f32 {v(KVP+r,2)}, {v(KVP+r,2)}, {v(KVP+8+r,2)}")
    for r in range(4): A(f"v_min_u32 {v(KVP+r)}, s61, {v(KVP+r)}")
    A("s_mov_b64 exec, s[10:11]")
    vm.issue(("kvst",), f"buffer_store_dwordx4 {v(KVP,4)}, {v(g1)}, {s(SWS,4)}, {s(sKV)} offen sc1")
    A("s_mov_b64 exec, -1")
    set_flag(97)
    stamp(A, 4)
    WOF = lambda k: 160 + 4*k if k < 24 else 0
    wo_loads = run_loads(lambda k: ("wo",), lambda k: a(WOF(k),4), 56, 25)
    w2_loads = run_loads(lambda k: ("w2", k), lambda k: a(4+4*k,4), 57, 60)
    E = Emit()
    A(f"s_mov_b32 s53, {WS_FL}")
    E(f"s_lshl_b32 s62, {s(SJ)}, 6"); E("s_mul_i32 s62, s62, 1280"); E(f"s_mul_i32 s64, {s(SC)}, 160"); E("s_add_u32 s58, s62, s64")
    for n in range(3):
        E(f"v_add_u32 {v(t2)}, {256*n}, v0")
        E(f"v_mul_u32_u24 {v(t3)}, 6554, {v(t2)}"); E(f"v_lshrrev_b32 {v(t3)}, 16, {v(t3)}")
        E(f"v_mul_u32_u24 {v(xa+n)}, 1120, {v(t3)}"); E(f"v_lshl_add_u32 {v(xa+n)}, {v(t2)}, 4, {v(xa+n)}")
    G.valu(2, E.l)
    G.put(2, ("blk", [("i", "s_cmp_ge_u32 s26, 2"), ("i", "s_cselect_b32 s59, 0x7fffffff, s58")]))
    E = Emit()
    E(f"s_add_u32 s60, s83, {L_XT}")
    vKN, vKD = 16, 17
    E(f"v_and_b32 {v(t2)}, 15, v1"); E(f"v_lshrrev_b32 {v(t3)}, 4, v1"); E(f"v_lshlrev_b32 {v(t3)}, 4, {v(t3)}")
    E(f"v_lshl_add_u32 {v(vKN)}, {v(t2)}, 7, {v(t3)}"); E(f"v_add_u32 {v(vKN)}, {L_KVN}, {v(vKN)}")
    E(f"v_add_u32 {v(vKD)}, {L_KVD}, {v(t3)}")
    E(f"v_cmp_le_u32 vcc, 4, {v(t2)}"); E(f"v_add_u32 {v(vKD+2)}, 128, {v(vKD)}")
    E(f"v_cndmask_b32 {v(vKD+1)}, {v(vKD)}, {v(vKD+2)}, vcc")
    G.valu(2, E.l)
    xt_loads = [(("xt",), [f"s_add_u32 m0, s60, {n*4096}", "s_nop 0", f"buffer_load_dwordx4 {v(xa+n)}, {s(SX,4)}, {'s59' if n == 2 else 's58'} offen lds"]) for n in range(3)]
    QW = take(wo_loads, 24)
    Q1 = take(w1_loads, 18 - PF["kvE"])
    for y in G2q: G.put(2, y)
    G.put(2, ("lw", ("csq",), 2))
    E = Emit()
    for r in range(0, 12, 2):
        E(f"v_pk_add_f32 {v(CSQ+r,2)}, {v(CSQ+r,2)}, {v(80+r,2)}"); E(f"v_pk_add_f32 {v(92+r,2)}, {v(92+r,2)}, {v(104+r,2)}")
    for r in range(0, 12, 2): E(f"v_pk_add_f32 {v(CSQ+r,2)}, {v(CSQ+r,2)}, {v(92+r,2)}")
    G.valu(2, E.l)
    for s_ in range(20):
        if s_ == PF["kvf"]:
            A("s_barrier")
        if s_ < 19:
            for t in range(3): G.ds(0, ("q", s_+1, t), q_rd(s_+1, t))
        if s_ < PF["kvc"]:
            for x in take(QW, 2 if s_ % 2 == 0 else 1): G.vmem(1, x)
            if s_ >= PF["kvf"] and s_ % 2 == 1:
                for x in take(Q1, 1 if QW else 2): G.vmem(1, x)
        lg.wait(("q", s_, 2))
        for t in range(3):
            G.mfma(v(AQ(0,t),4), v(BFr(s_%2,t),4), XF(s_,0), "0" if s_ == 0 else None)
            G.mfma(v(AQ(1,t),4), v(BFr(s_%2,t),4), XF(s_,1), "0" if s_ == 0 else None, budget=1 if t == 2 else 2)
    G.flush()
    stamp(A, 6)
    Q1 = QW + wo_loads + Q1
    PQ = 36
    E = Emit()
    for mt in range(2):
        for t in range(3):
            for r in (0, 2): E(f"v_pk_fma_f32 {v(AQ(mt,t)+r,2)}, {v(CSQ+4*t+r,2)}, {v(nl+2*mt,2)}, {v(AQ(mt,t)+r,2)} op_sel_hi:[1,0,1]")
            for r in (0, 2): phi2(E, AQ(mt,t)+r, rl+2*mt, rl2+2*mt, TM+8+r, True)
            for h in range(2): E(f"v_cvt_pk_bf16_f32 {v(PQ+8*mt+2*t+h)}, {v(AQ(mt,t)+2*h)}, {v(AQ(mt,t)+2*h+1)}")
        E(f"v_mov_b64 {v(PQ+8*mt+6,2)}, 0")
    GAr = lambda i: 76 + 4*i if i < 10 else 156 + 4*(i-10)
    GS = 140; GM = 144
    def g_loads():
        A(f"buffer_load_dwordx2 {v(fl,2)}, {v(fl+2)}, {s(SWS,4)}, s53 offen sc1")
        A("s_mov_b64 exec, s[10:11]")
        for i in range(16):
            hi, lo = (i*KV_STRIDE) & ~4095, (i*KV_STRIDE) & 4095
            A(f"s_mov_b32 s64, {hi}")
            A(f"buffer_load_dwordx4 {v(GAr(i),4)}, {v(g1)}, {s(SWS,4)}, s64 offen offset:{lo} sc1")
        A("s_mov_b64 exec, -1")
    ng = PF["gat"]
    for x in E.l[:ng]: A(x)
    g_loads()
    for x in E.l[ng:]: A(x)
    stamp(A, 5)
    A("s_mov_b32 s96, 0")
    A("s_branch KV_chk")
    A.label("KV_poll")
    g_loads()
    A.label("KV_chk")
    A("s_mov_b64 exec, s[10:11]")
    for i in range(0, 16, 2):
        A(f"s_waitcnt vmcnt({14-i})")
        b, c = GAr(i), GAr(i+1)
        if i == 0:
            for r in (0, 2): A(f"v_pk_add_f32 {v(GS+r,2)}, {v(b+r,2)}, {v(c+r,2)}")
            A(f"v_max3_u32 {v(GM)}, {v(b)}, {v(b+1)}, {v(b+2)}")
            A(f"v_max3_u32 {v(GM+1)}, {v(b+3)}, {v(c)}, {v(c+1)}")
            A(f"v_max3_u32 {v(GM)}, {v(GM)}, {v(c+2)}, {v(c+3)}")
        else:
            for r in (0, 2): A(f"v_pk_add_f32 {v(GS+r,2)}, {v(GS+r,2)}, {v(b+r,2)}")
            A(f"v_max3_u32 {v(GM)}, {v(GM)}, {v(b)}, {v(b+1)}"); A(f"v_max3_u32 {v(GM+1)}, {v(GM+1)}, {v(b+2)}, {v(b+3)}")
            for r in (0, 2): A(f"v_pk_add_f32 {v(GS+r,2)}, {v(GS+r,2)}, {v(c+r,2)}")
            A(f"v_max3_u32 {v(GM)}, {v(GM)}, {v(c)}, {v(c+1)}"); A(f"v_max3_u32 {v(GM+1)}, {v(GM+1)}, {v(c+2)}, {v(c+3)}")
    A(f"v_max_u32 {v(GM)}, {v(GM)}, {v(GM+1)}")
    A(f"v_cmp_eq_u32 s[62:63], -1, {v(GM)}")
    A("s_mov_b64 exec, -1")
    A(f"v_cmp_ne_u64 vcc, {s(NON,2)}, {v(fl,2)}")
    A("s_add_u32 s96, s96, 1"); A("s_or_b64 vcc, vcc, s[62:63]")
    A("s_cbranch_vccz KV_done")
    A(f"s_cmp_lt_u32 s96, {SPIN}"); A("s_cbranch_scc1 KV_poll")
    A.label("KV_done")
    vm.drained()
    A(f"v_cvt_pk_bf16_f32 {v(GS)}, {v(GS)}, {v(GS+1)}"); A(f"v_cvt_pk_bf16_f32 {v(GS+1)}, {v(GS+2)}, {v(GS+3)}")
    A("s_mov_b64 exec, s[10:11]")
    A(f"ds_write_b64 {v(g2)}, {v(GS,2)}")
    A("s_mov_b64 exec, -1")
    AN = 100; AD = 124; ON = 156; OD = 76; OP = 56
    A("s_waitcnt lgkmcnt(0)"); A("s_barrier")
    Q1 = xt_loads + Q1 + w2_loads
    stamp(A, 7)
    for te in range(3):
        for st in range(2):
            lg.issue(("d", te), f"ds_read_b128 {v(AD+8*te+4*st,4)}, {v(vKD+te)} offset:{st*64}")
            lg.issue(("n", te), f"ds_read_b128 {v(AN+8*te+4*st,4)}, {v(vKN)} offset:{te*2048+st*64}")
    for x in take(Q1, PF["oB"]): vm.issue(*x)
    for x in take(Q1, PF["oE"]): G.vmem(1, x)
    def o_tail(te):
        L = []
        for r in range(0, 8, 2): L.append(f"v_pk_add_f32 {v(OD+8*te+r,2)}, {v(OD+8*te+r,2)}, s[76:77]")
        for r in range(8): L.append(f"v_rcp_f32 {v(OD+8*te+r)}, {v(OD+8*te+r)}")
        return L
    for te in range(3):
        lg.wait(("n", te))
        for (acc_, aop) in ((OD, AD), (ON, AN)):
            for mt in range(2): G.mfma(v(acc_+8*te+4*mt,4), v(aop+8*te,4), v(PQ+8*mt,4), "0")
            for mt in range(2): G.mfma(v(acc_+8*te+4*mt,4), v(aop+8*te+4,4), v(PQ+8*mt+4,4))
    G.flush()
    for te in range(3):
        for x in take(Q1, PF["oT"]): vm.issue(*x)
        for x in o_tail(te): A(x)
        for r in range(0, 8, 2): A(f"v_pk_mul_f32 {v(ON+8*te+r,2)}, {v(ON+8*te+r,2)}, {v(OD+8*te+r,2)}")
        for h in range(4): A(f"v_cvt_pk_bf16_f32 {v(OP+4*te+h)}, {v(ON+8*te+2*h)}, {v(ON+8*te+2*h+1)}")
        for h in range(2): A(f"v_permlane16_swap_b32 {v(OP+4*te+h)}, {v(OP+4*te+2+h)}")
        if te == 2: A("s_mov_b64 exec, 0xffffffff")
        for x in dual(f"buffer_store_dwordx4 {v(OP+4*te,4)}, {v(vOA)}, SRD, {s(sO)} offen offset:{te*512}"): vm.issue(("ost",), x)
    A("s_mov_b64 exec, -1")
    ACC = 40; AF = 120; HRES = 246
    acc = lambda m, t: ACC + (m*5+t)*4
    vRw, vRr = 10, 11
    u0, u1, u2, u3, u4 = 4, 5, 6, 7, 8
    def k_setup(E, KO, WSA, lred, KQ):
        E(f"s_mul_i32 s61, s26, {KQ}"); E(f"s_lshl_b32 s62, {s(SJ)}, 2")
        for m in range(4):
            E(f"s_add_u32 s60, s26, {m}"); E("s_and_b32 s60, s60, 3")
            E(f"s_mul_i32 s64, s60, 15360"); E(f"s_add_u32 s64, s64, {lred+max(m-1,0)*5120}"); E(f"v_add_u32 {v(vRw+2+m if m else vRr)}, s64, {v(vL16)}")
            E("s_add_u32 s60, s60, s62"); E(f"s_mul_i32 s60, s60, {KO}"); E("s_add_u32 s60, s60, s61"); E("s_lshl_b32 s60, s60, 8")
            E(f"s_add_u32 {s(52+m)}, s60, {WSA}")
    def k_gemm(KS, bfrag, nwin, st0, cinit, side, lateb=(), shadow=None):
        seq = [(m, sp) for m in (1, 2, 3, 0) for sp in range(KS)]
        al = []
        for m in (1, 2, 3, 0):
            n0 = len(al)
            al += run_loads(lambda k: ("a", n0+k), lambda k: v(AF+4*((n0+k) % nwin),4), 52+m, KS)
        poll(66, 18)
        stamp(A, st0)
        nl = PF["kinit"]; pend = []
        lateb = list(lateb)
        for x in al[:nl-len(lateb)//2]: vm.issue(*x)
        if lateb:
            nl -= len(lateb)//2
            for x in lateb: vm.issue(*x)
        if shadow: shadow()
        for n, (m, sp) in enumerate(seq):
            if n < KS:
                for t in range(5):
                    if vm.pending(("w2", sp*5+t)): vm.wait(("w2", sp*5+t))
            while nl < len(seq) and nl - nwin < n and nl - n <= PF["kfly"]:
                G.vmem(1, al[nl]); nl += 1
            if nl >= len(seq) and side: G.vmem(1, side.pop(0))
            if any(y[0] == "vm" and y[1] == ("a", n) for y in G.q[1]): G.flush(1)
            vm.wait(("a", n))
            if STAMPS and os.environ.get("KST") == "4" and KS == 12 and sp % 6 == 0:
                A("s_memtime s[98:99]"); A("s_waitcnt lgkmcnt(0)"); A(f"v_writelane_b32 v3, s98, {52 + n//6}")
            if m == 0 and sp == 0: G.flush(2)
            for t in range(5):
                if pend and ((t == 2 and (KS < 6 or sp % 2 == 1)) ): G.ds(0, ("rw",), pend.pop(0))
                G.mfma(v(acc(m,t),4), bfrag(sp*5+t), v(AF+4*(n % nwin),4), (cinit(t) if m == 0 else "0") if sp == 0 else None, budget=1 if t == 4 else 2)
            if sp == KS-1 and m != 0:
                assert not pend
                pend = [f"ds_write_b128 {v(vRw+2+m)}, {v(acc(m,t),4)} offset:{t*1024}" for t in range(5)]
        G.flush()
    def red_read(RD):
        A("s_waitcnt lgkmcnt(0)"); A("s_barrier"); lg.drained()
        for t in range(5):
            for sl in range(3): lg.issue(("r", t), f"ds_read_b128 {v(RD+(t*3+sl)*4,4)}, {v(vRr)} offset:{sl*5120+t*1024}")
    def red_sum(RD, t, dst):
        for h in range(2):
            A(f"v_pk_add_f32 {v(acc(0,t)+2*h,2)}, {v(acc(0,t)+2*h,2)}, {v(RD+(t*3)*4+2*h,2)}")
            A(f"v_pk_add_f32 {v(RD+(t*3+1)*4+2*h,2)}, {v(RD+(t*3+1)*4+2*h,2)}, {v(RD+(t*3+2)*4+2*h,2)}")
        for h in range(2): A(f"v_pk_add_f32 {v(acc(0,t)+2*h,2)}, {v(acc(0,t)+2*h,2)}, {v(RD+(t*3+1)*4+2*h,2)}")
        for h in range(2): A(f"v_cvt_pk_bf16_f32 {v(dst+h)}, {v(acc(0,t)+2*h)}, {v(acc(0,t)+2*h+1)}")
    CSA, CSB = 212, 216; vCa, vCb = 220, 221; vONE3 = 20; XC = 224
    XCr = lambda t: 224 + 4*t if t < 3 else 200 + 4*(t-3)
    E = Emit()
    E(f"s_lshl_b32 s66, {s(SI)}, 7"); E(f"s_add_u32 s66, s66, {WS_FO}"); E(f"s_lshl_b32 s97, {s(SG)}, 3"); E("s_add_u32 s97, s97, s66")
    k_setup(E, 80, WS_O, L_RED2, 20)
    for r in range(0, 6, 2): E(f"v_mov_b64 {v(vW1b+r,2)}, {v(vW1+r,2)}")
    E(f"v_and_b32 {v(u0)}, 15, v1"); E(f"v_lshrrev_b32 {v(u1)}, 4, v1")
    E("s_mul_i32 s62, s26, 2560"); E(f"s_add_u32 s62, s62, {L_XT}")
    E(f"v_mul_u32_u24 {v(9)}, 160, {v(u0)}"); E(f"v_lshl_add_u32 {v(9)}, {v(u1)}, 3, {v(9)}"); E(f"v_add_u32 {v(9)}, s62, {v(9)}")
    merge(A, vm, E.l, take(Q1, PF["oS"]), every=3)
    vm.wait(("ost",)); A("s_barrier")
    set_flag(97, True)
    stamp(A, 8)
    for x in take(Q1, PF["oF"]): vm.issue(*x)
    vB = [12, 16, 17, 9]
    def p2_shadow():
        for t in range(5): lg.issue(("x",), f"ds_read_b64 {v(24+2*t,2)}, {v(9)} offset:{t*32}")
        A(f"v_lshrrev_b32 {v(u2)}, 2, v1"); A(f"v_mul_u32_u24 {v(u2)}, 192, {v(u2)}"); A(f"v_and_b32 {v(u3)}, 3, v1"); A(f"v_lshl_add_u32 {v(u2)}, {v(u3)}, 3, {v(u2)}")
        A(f"v_and_b32 {v(u3)}, 1, {v(u1)}")
        A("s_mul_i32 s62, s26, 5"); A("s_add_u32 s62, s62, 1"); A("s_mul_i32 s62, s62, 43"); A("s_lshr_b32 s62, s62, 7")
        A(f"v_xor_b32 {v(vCa)}, s62, {v(u3)}"); A(f"v_lshl_add_u32 {v(vCa)}, {v(vCa)}, 5, {v(u2)}")
        A("s_lshr_b32 s62, s26, 1"); A("s_mul_i32 s62, s62, 3"); A("s_add_u32 s62, s62, 1"); A("s_and_b32 s63, s26, 1"); A("s_mul_i32 s63, s63, 6144")
        A(f"v_xor_b32 {v(vCb)}, s62, {v(u3)}"); A(f"v_lshl_add_u32 {v(vCb)}, {v(vCb)}, 5, {v(u2)}"); A(f"v_add_u32 {v(vCb)}, s63, {v(vCb)}")
        A(f"v_add_u32 {v(vCa+2)}, 61440, {v(vCa)}"); A(f"v_add_u32 {v(vCb+2)}, 61440, {v(vCb)}")
        A(f"v_lshlrev_b32 {v(u3)}, 5, {v(u3)}"); A(f"v_add_u32 {v(vB[0])}, {v(u2)}, {v(u3)}"); A(f"v_sub_u32 {v(vB[1])}, {v(u2)}, {v(u3)}")
        lg.wait(("x",))
        for t in range(5):
            for h in range(2):
                A(f"v_lshlrev_b32 {v(XCr(t)+2*h)}, 16, {v(24+2*t+h)}"); A(f"v_and_b32 {v(XCr(t)+2*h+1)}, 0xffff0000, {v(24+2*t+h)}")
        A(f"v_add_u32 {v(vB[2])}, 61440, {v(vB[0])}"); A(f"v_add_u32 {v(vB[3])}, 61440, {v(vB[1])}")
    assert all(x[0][0] in ("w2", "tch") for x in Q1), "loads needed by P2 must be issued before its poll"
    tw = []
    if PF["tw1"]:
        tw = [(("tch",), ["s_lshr_b32 s64, s2, 3", "s_lshl_b32 s64, s64, 2", "s_add_u32 s64, s64, s26", "s_mul_i32 s64, s64, 6144", f"s_add_u32 s64, s64, {384*3072}",
                          f"v_min_u32 {v(240)}, 47, v1", f"v_lshlrev_b32 {v(240)}, 7, {v(240)}", f"buffer_load_dword {v(241)}, {v(240)}, {s(SW,4)}, s64 offen"])]
    early_w2 = 60 - len(Q1) + PF["p2G"]
    assert early_w2 <= 39
    k_gemm(5, lambda k: a(WOF(k),4), 18, 9, lambda t: v(XCr(t),4), tw + take(Q1, PF["p2G"]), shadow=p2_shadow)
    stamp(A, 10)
    RD = AF
    red_read(RD)
    for x in take(Q1, PF["p2B"]): vm.issue(*x)
    P = 24; vS, vQ = 36, 37
    A(f"v_mov_b64 {v(vS,2)}, 0"); A(f"v_mov_b64 {v(P+10,2)}, 0")
    A(f"s_lshl_b32 s66, {s(SI)}, 7"); A(f"s_add_u32 s66, s66, {WS_FH}"); A(f"s_lshl_b32 s97, {s(SG)}, 3"); A("s_add_u32 s97, s97, s66")
    for t in range(5):
        lg.wait(("r", t))
        red_sum(RD, t, HRES+2*t)
        if t == 1:
            lg.wait(("r", 4)); A("s_barrier")
        if t >= 1:
            for x in take(w1_loads, PF["p2E"]): vm.issue(*x)
        if t in (1, 3, 4):
            pr_ = t//2
            A(f"v_mov_b64 {v(P+4*pr_,2)}, {v(HRES+4*pr_,2)}")
            if t < 4: A(f"v_mov_b64 {v(P+4*pr_+2,2)}, {v(HRES+4*pr_+2,2)}")
            for h in range(2): A(f"v_permlane16_swap_b32 {v(P+4*pr_+h)}, {v(P+4*pr_+2+h)}")
            if pr_ == 2: A("s_mov_b32 exec_lo, 0xffff"); A("s_mov_b32 exec_hi, 0xffff")
            for x in dual(f"buffer_store_dwordx4 {v(P+4*pr_,4)}, {v(vHA)}, SRD, {s(sH)} offen offset:{pr_*1024}"): vm.issue(("hst",), x)
    A("s_mov_b64 exec, -1")
    for r in range(2):
        A(f"v_dot2_f32_bf16 {v(32+r)}, {v(HRES+r)}, {v(vONE3)}, 0"); A(f"v_dot2_f32_bf16 {v(34+r)}, {v(HRES+r)}, {v(HRES+r)}, 0")
    for r in range(2, 10):
        A(f"v_dot2_f32_bf16 {v(32+r%2)}, {v(HRES+r)}, {v(vONE3)}, {v(32+r%2)}"); A(f"v_dot2_f32_bf16 {v(34+r%2)}, {v(HRES+r)}, {v(HRES+r)}, {v(34+r%2)}")
    A(f"v_add_f32 {v(vS)}, {v(32)}, {v(33)}"); A(f"v_add_f32 {v(vQ)}, {v(34)}, {v(35)}")
    for op in ("v_permlane16_swap_b32", "v_permlane32_swap_b32"):
        A(f"v_mov_b64 {v(34,2)}, {v(vS,2)}")
        A(f"{op} {v(34)}, {v(vS)}"); A(f"{op} {v(35)}, {v(vQ)}")
        A(f"v_pk_add_f32 {v(vS,2)}, {v(vS,2)}, {v(34,2)}")
    A("s_mov_b64 exec, 0xffff")
    for x in dual(f"buffer_store_dwordx2 {v(vS,2)}, {v(vSA)}, SRD, {s(sST)} offen"): vm.issue(("hst",), x)
    A("s_mov_b64 exec, -1")
    vB1 = 120
    srd(A, SD, 14, 3072)
    A(f"s_mul_i32 s59, {s(SG)}, 192"); A(f"v_lshlrev_b32 {v(u3)}, 3, {v(u1)}")
    for t in range(6): vm.issue(("b1",), f"buffer_load_dwordx2 {v(vB1+2*t,2)}, {v(u3)}, {s(SD,4)}, s59 offen offset:{t*32}")
    def cs_frs(steps):
        fr = []
        for s_ in steps:
            fr.append((CSA, vCa + 2*(s_ >= 10), (s_ % 10)*6144))
            if s_ % 2 == 0: fr.append((CSB, vCb + 2*(s_ >= 10), (s_ % 10)*6144))
        return fr
    for x in take(w1_loads, PF["hW"]) + take(Q1, PF["hA"]): vm.issue(*x)
    A(f"s_lshl_b32 s54, {s(SI)}, 3"); A("s_lshl_b32 s55, s26, 1"); A("s_add_u32 s54, s54, s55"); A(f"s_mul_i32 s54, s54, {HS*256}"); A(f"s_add_u32 s54, s54, {WS_H}")
    A(f"s_add_u32 s55, s54, {HS*256}")
    A(f"s_lshl_b32 s52, {s(SI)}, 7"); A("s_lshl_b32 s53, s26, 5"); A("s_add_u32 s52, s52, s53"); A("s_lshl_b32 s52, s52, 3"); A(f"s_add_u32 s52, s52, {WS_ST}")
    A("s_add_u32 s53, s52, 16384")
    A(f"v_lshlrev_b32 {v(u2)}, 15, {v(u1)}"); A(f"v_lshl_or_b32 {v(u2)}, {v(u0)}, 3, {v(u2)}")
    A("s_lshl_b32 s60, s26, 7"); A(f"s_add_u32 s60, s60, {L_CS3}")
    A(f"v_lshlrev_b32 {v(u3)}, 4, {v(u1)}"); A(f"v_add_u32 {v(u4)}, s60, {v(u3)}"); A(f"v_add_u32 {v(14)}, {L_CS3}, {v(u3)}")
    seen = set(); fr = cs_frs(range(12)); TMP = 48
    def cs_rd(n, TMP, ad, off): return [f"ds_read_b64_tr_b16 {v(TMP+4*(n%12)+2*jj,2)}, {v(ad)} offset:{off+jj*3072}" for jj in range(2)]
    def cs_run(n0, n1):
        for n in range(n0, min(n0+6, n1)):
            for x in cs_rd(n, TMP, *fr[n][1:]): lg.issue(("c", n), x)
        for n in range(n0, n1):
            d = fr[n][0]
            if n + 6 < n1:
                for x in cs_rd(n+6, TMP, *fr[n+6][1:]): lg.issue(("c", n+6), x)
            lg.wait(("c", n))
            mfma(A, v(d,4), v(TMP+4*(n%12),4), v(vONE3,4), None if d in seen else "0"); seen.add(d)
    cs_run(0, PF["cs1"])
    vm.wait(("hst",)); A("s_barrier")
    set_flag(97, True)
    stamp(A, 11)
    ACC3 = 48; BF = 96; AW = 144; NW3 = 12; BU = 200; CS = 144; vST = 24
    acc3 = lambda t, mt: ACC3 + (t*2+mt)*4
    for x in take(Q1, PF["hS"]): vm.issue(*x)
    BUr = lambda t: 200 + 4*t if t < 3 else 224 + 4*(t-3)
    def b3(s_, t): return [f"ds_read_b64_tr_b16 {v(BF+(s_%2)*24+4*t+2*jj,2)}, {v(vB[(t%2)+2*(s_//10)])} offset:{(s_%10)*6144+t*32+jj*3072}" for jj in range(2)]
    a0 = run_loads(lambda k: ("a", 2*k), lambda k: v(AW+4*((2*k) % NW3),4), 54, 20)
    a1 = run_loads(lambda k: ("a", 2*k+1), lambda k: v(AW+4*((2*k+1) % NW3),4), 55, 20)
    al = [x for p in zip(a0, a1) for x in p]
    poll(66, 18)
    stamp(A, 13)
    nl = PF["p3init"]
    for x in al[:nl]: vm.issue(*x)
    cs_run(PF["cs1"], 18)
    for t in range(6):
        for h in range(2):
            A(f"v_lshlrev_b32 {v(BUr(t)+2*h)}, 16, {v(vB1+2*t+h)}"); A(f"v_and_b32 {v(BUr(t)+2*h+1)}, 0xffff0000, {v(vB1+2*t+h)}")
    for t in range(6):
        for x in b3(0, t): lg.issue(("b", 0, t), x)
    st_loads = [(("st", 2*mt+cc), f"buffer_load_dwordx2 {v(vST+mt*4+cc*2,2)}, {v(u2)}, {s(SWS,4)}, {s(52+cc)} offen offset:{mt*128} sc1") for mt in range(2) for cc in range(2)]
    side = st_loads + w1_loads + take(Q1, PF["p3L"])
    G.put(2, ("vw", ("st", 3), 3))
    E = Emit()
    for mt in range(2): E(f"v_pk_add_f32 {v(vST+4*mt,2)}, {v(vST+4*mt,2)}, {v(vST+4*mt+2,2)}")
    for op in ("v_permlane16_swap_b32", "v_permlane32_swap_b32"):
        for mt in range(2): E(f"v_mov_b64 {v(vST+4*mt+2,2)}, {v(vST+4*mt,2)}")
        for mt in range(2):
            b = vST + 4*mt
            E(f"{op} {v(b+2)}, {v(b)}"); E(f"{op} {v(b+3)}, {v(b+1)}")
        for mt in range(2): E(f"v_pk_add_f32 {v(vST+4*mt,2)}, {v(vST+4*mt,2)}, {v(vST+4*mt+2,2)}")
    ln_stats2(E, [(vST, vST+1), (vST+4, vST+5)], [vST+2, vST+6])
    for mt in range(2):
        b = vST + 4*mt
        E(f"v_mul_f32 {v(b)}, {v(b)}, {v(b+1)}"); E(f"v_mov_b32 {v(b+2)}, {v(b+1)}")
    G.valu(2, E.l)
    fr2 = cs_frs(range(12, 20)); CQ = [36, 40, 44, 32]
    wb = PF["w1b"]; c0 = wb + 1
    assert c0 + 7 <= 19
    for s_ in range(20):
        if s_ == wb:
            if any(y[0] == "vm" and y[1] == ("w1", 4) for y in G.q[1]): G.flush(1)
            assert not any(x[0] == ("w1", 4) for x in side)
            vm.wait(("w1", 4)); A("s_barrier")
        if s_ == c0 + 7:
            if any(y[0] == "blk" for y in G.q[2]): G.flush(2)
            lg.wait(("cw",)); A("s_barrier")
        if s_ < 19:
            for t in range(6):
                for x in b3(s_+1, t): G.ds(0, ("b", s_+1, t), x)
        k = s_ - wb
        if 0 <= k < 6:
            for n in range(2):
                d, ad, off = fr2[2*k+n]
                for jj in range(2): G.ds(0, ("c2", k), f"ds_read_b64_tr_b16 {v(CQ[2*(k%2)+n]+2*jj,2)}, {v(ad)} offset:{off+jj*3072}")
        while nl < 40 and nl - NW3 < 2*s_ and nl - 2*s_ <= PF["p3fly"]:
            G.vmem(1, al[nl]); nl += 1
        for x in take(side, 2 if s_ < PF["p3f"] else 1): G.vmem(1, x)
        if any(y[0] == "vm" and y[1] in (("a", 2*s_), ("a", 2*s_+1)) for y in G.q[1]): G.flush(1)
        vm.wait(("a", 2*s_+1))
        if STAMPS and os.environ.get("KST") == "3" and s_ % 3 == 0 and s_ < 24:
            A("s_memtime s[98:99]"); A("s_waitcnt lgkmcnt(0)"); A(f"v_writelane_b32 v3, s98, {52 + s_//3}"); lg.drained()
        if s_ == 19:
            for t in range(6): G.ds(0, ("cs",), f"ds_read_b128 {v(BF+4*t,4)}, {v(14)} offset:{[0,1,2,4,5,6][t]*64}")
            G.ds(0, ("cs",), f"ds_read_b128 {v(CSA,4)}, {v(14)} offset:{3*64}"); G.ds(0, ("cs",), f"ds_read_b128 {v(CSB,4)}, {v(14)} offset:{7*64}")
        for t in range(6):
            if t in (0, 3):
                while ("b", s_, t+2) not in lg.seen or any(y[0] == "ds" and y[1] == ("b", s_, t+2) for y in G.q[0]): G.run(G.q[0].popleft())
                lg.wait(("b", s_, t+2))
            if t == 3 and 1 <= k < 7:
                while any(y[0] == "ds" and y[1] == ("c2", k-1) for y in G.q[0]): G.run(G.q[0].popleft())
                lg.wait(("c2", k-1))
                for n in range(2): G.mfma(v(fr2[2*(k-1)+n][0],4), v(CQ[2*((k-1)%2)+n],4), v(vONE3,4))
            G.mfma(v(acc3(t,0),4), v(BF+(s_%2)*24+4*t,4), v(AW+4*((2*s_) % NW3),4), "0" if s_ == 0 else None)
            G.mfma(v(acc3(t,1),4), v(BF+(s_%2)*24+4*t,4), v(AW+4*((2*s_+1) % NW3),4), "0" if s_ == 0 else None, budget=1 if t in (2, 5) else 2)
        if k == 6:
            G.q[2].appendleft(("blk", [("i", "s_mov_b32 exec_lo, 0x00010001"), ("i", "s_mov_b32 exec_hi, 0x00010001"),
                              ("ds", ("cw",), f"ds_write_b128 {v(u4)}, {v(CSA,4)}"), ("ds", ("cw",), f"ds_write_b128 {v(u4)}, {v(CSB,4)} offset:64"),
                              ("i", "s_mov_b64 exec, -1")]))
    for x in side: G.vmem(1, x)
    G.flush()
    stamp(A, 14)
    CS = BF
    lg.wait(("cs",))
    for r in (0, 2):
        A(f"v_pk_add_f32 {v(CS+4+r,2)}, {v(CS+4+r,2)}, {v(CSA+r,2)}"); A(f"v_pk_add_f32 {v(CS+16+r,2)}, {v(CS+16+r,2)}, {v(CSB+r,2)}")
    P = 144; U = 168
    side = []
    for x in take(Q1, PF["rB"]): vm.issue(*x)
    for t in range(6):
        for mt in range(2):
            b = vST + 4*mt
            for r in (0, 2): A(f"v_pk_fma_f32 {v(U+4*mt+r,2)}, {v(CS+4*t+r,2)}, {v(b,2)}, {v(BUr(t)+r,2)} op_sel_hi:[1,0,1]")
        for mt in range(2):
            b = vST + 4*mt
            for r in (0, 2): A(f"v_pk_fma_f32 {v(U+4*mt+r,2)}, {v(acc3(t,mt)+r,2)}, {v(b+2,2)}, {v(U+4*mt+r,2)} op_sel_hi:[1,0,1]")
        for r in range(8): A(f"v_max_f32 {v(U+r)}, 0, {v(U+r)}")
        for x in take(side, PF["rEn"]): vm.issue(*x)
        for r in range(0, 8, 2): A(f"v_pk_mul_f32 {v(U+r,2)}, {v(U+r,2)}, {v(U+r,2)}")
        for h in range(4): A(f"v_cvt_pk_bf16_f32 {v(P+4*t+h)}, {v(U+2*h)}, {v(U+2*h+1)}")
        for h in range(2): A(f"v_permlane16_swap_b32 {v(P+4*t+h)}, {v(P+4*t+2+h)}")
        for x in dual(f"buffer_store_dwordx4 {v(P+4*t,4)}, {v(vRA)}, SRD, {s(sR)} offen offset:{t*512}"): vm.issue(("rst",), x)
    srd(A, SD, 18, 1280); srd(A, SW, 20, 2048*1280)
    vB2 = 20
    A(f"s_mul_i32 s63, {s(SC)}, 160"); A(f"v_lshlrev_b32 {v(u3)}, 3, {v(u1)}")
    for t in range(5): vm.issue(("b2",), f"buffer_load_dwordx2 {v(vB2+2*t,2)}, {v(u3)}, {s(SD,4)}, s63 offen offset:{t*32}")
    L_OUT = 61440; OA = 30
    E = Emit()
    E(f"s_lshl_b32 s66, {s(SI)}, 7"); E(f"s_add_u32 s66, s66, {WS_FR}"); E(f"s_lshl_b32 s97, {s(SG)}, 3"); E("s_add_u32 s97, s97, s66")
    k_setup(E, RS_, WS_R, 0, RQ)
    merge(A, vm, E.l, side + take(Q1, PF["rS"]))
    vm.wait(("rst",)); A("s_barrier")
    set_flag(97, True)
    stamp(A, 15)
    for x in take(Q1, PF["rF"]): vm.issue(*x)
    assert len(Q1) <= 15, len(Q1)
    HC = 216
    def p4_shadow():
        A("s_mul_i32 s63, s26, 2816"); A(f"s_add_u32 s63, s63, {L_OUT}")
        A(f"v_mul_u32_u24 {v(9)}, 176, {v(u0)}"); A(f"v_lshl_add_u32 {v(9)}, {v(u1)}, 3, {v(9)}"); A(f"v_add_u32 {v(9)}, s63, {v(9)}")
        for n in range(3):
            A(f"v_add_u32 {v(u2)}, {64*n}, v1")
            A(f"v_mul_u32_u24 {v(u3)}, 6554, {v(u2)}"); A(f"v_lshrrev_b32 {v(u3)}, 16, {v(u3)}")
            A(f"v_lshlrev_b32 {v(u2)}, 4, {v(u2)}")
            A(f"v_lshl_add_u32 {v(u4)}, {v(u3)}, 4, {v(u2)}"); A(f"v_add_u32 {v(OA+n)}, s63, {v(u4)}")
            A(f"v_mul_u32_u24 {v(u3)}, 1120, {v(u3)}"); A(f"v_add_u32 {v(OA+3+n)}, {v(u3)}, {v(u2)}")
        A(f"s_lshl_b32 s58, {s(SJ)}, 6"); A("s_lshl_b32 s59, s26, 4"); A("s_add_u32 s58, s58, s59"); A("s_mul_i32 s58, s58, 1280")
        A(f"s_mul_i32 s59, {s(SC)}, 160"); A("s_add_u32 s58, s58, s59")
        E = Emit()
        for t in range(5):
            for h in range(2):
                E(f"v_lshlrev_b32 {v(36)}, 16, {v(HRES+2*t+h)}"); E(f"v_and_b32 {v(37)}, 0xffff0000, {v(HRES+2*t+h)}")
                E(f"v_lshlrev_b32 {v(38)}, 16, {v(vB2+2*t+h)}"); E(f"v_and_b32 {v(39)}, 0xffff0000, {v(vB2+2*t+h)}")
                E(f"v_pk_add_f32 {v(HC+4*t+2*h,2)}, {v(36,2)}, {v(38,2)}")
        for x in E.l: A(x)
    k_gemm(12, lambda k: a(4+4*k,4), 24, 16, lambda t: v(HC+4*t,4), [], Q1, shadow=p4_shadow)
    stamp(A, 17)
    red_read(RD)
    P = 200
    for t in range(5):
        lg.wait(("r", t))
        red_sum(RD, t, P+2*t)
        A(f"ds_write_b64 {v(9)}, {v(P+2*t,2)} offset:{t*32}")
    A("s_waitcnt lgkmcnt(0)")
    for n in range(3): A(f"ds_read_b128 {v(RD+4*n,4)}, {v(OA+n)}")
    for n in range(3):
        A(f"s_waitcnt lgkmcnt({2-n})")
        if n == 2: A("s_mov_b64 exec, 0xffffffff")
        A(f"buffer_store_dwordx4 {v(RD+4*n,4)}, {v(OA+3+n)}, {s(SW,4)}, s58 offen {os.environ.get('OUTF', '')}")
    if STAMPS:
        A("s_mov_b64 exec, -1")
        stamp(A, 18)
        A("s_waitcnt vmcnt(0)")
        stamp(A, 19)
        A("s_cmp_lg_u32 s26, 0"); A("s_cbranch_scc1 L_end")
        A("s_lshl_b32 s100, s2, 8"); A(f"s_add_u32 s100, s100, {WS_TS}")
        A("v_lshlrev_b32 v2, 2, v1")
        A(f"buffer_store_dword v3, v2, {s(SWS,4)}, s100 offen")
    A.label("L_end")
    A("s_endpgm")
    return kd(K, 512, accum=256)

def main(path, stamps=False):
    global STAMPS
    STAMPS = stamps
    A = Asm()
    kds = [gen(A)]
    L = [l.strip() if l.strip().endswith(":") else l for l in A.lines]
    X = os.environ.get("EXP", "").split(",")
    import re
    if "nob" in X: L = [l for l in L if not ("s82 offen" in l and " lds" in l)]
    if "now1" in X: L = [l for l in L if not ("s80 offen lds" in l)]
    if "noag" in X: L = [l for l in L if not ("buffer_load_dwordx4 a[" in l)]
    if "noa" in X: L = [l for l in L if not re.search(r"buffer_load_dwordx4 v\[\d+:\d+\], v2, s\[40:43\], s5[2-5]", l)]
    if "nods" in X: L = [l for l in L if not ("ds_read" in l)]
    SEC = os.environ.get("SEC")
    if SEC:
        a_, b_, pats = SEC.split(":")
        i0 = next(i for i, l in enumerate(L) if l.strip() == f"; @S{a_}") + (6 if STAMPS else 1)
        i1 = next(i for i, l in enumerate(L) if l.strip() == f"; @S{b_}")
        L = L[:i0] + [l for l in L[i0:i1] if not any(re.match(p, l.strip()) for p in pats.split("+"))] + L[i1:]
    lines, n = hazard.fix(L)
    open(path, "w").write(file_text(["; @launch grid=(256,1,1) block=(256,1,1) lds=163840"], "\n".join(lines) + "\n", kds))
    print("nops inserted:", n, "lines:", len(lines))
STAMP_NAMES = {0:"start",1:"dma issued",26:"first loads out",27:"setup done",2:"unit staged",25:"late setup 1",20:"FW set",21:"x staged",22:"FW polled",23:"B0 arrived",
               3:"KV gemm",4:"kv stored",6:"Q gemm",28:"kv flags ok",5:"Q epi done",7:"gathered",8:"o flag",9:"o polled",10:"P2 gemm",11:"h flag",13:"h polled",
               14:"P3 gemm",15:"r flag",16:"r polled",17:"P4 gemm",18:"out issued",19:"out done"}
if __name__ == "__main__":
    main(sys.argv[1] if len(sys.argv) > 1 else "v29.s")
SPACE = dict(kvE=[0,3,6,8,10,12], kvEv=[1,2,4,8], oB=[2,4,6,8,10], oE=[0,2,4,6], oS=[2,4,6,8,10], oF=[0,2,4,6], p2G=[0,2,4,6,8], p2B=[0,2,4,6,8,10], p2E=[0,1,2,3],
             hW=[0,3,6,9,12], hA=[0,2,4,6,8], hS=[0,2,4,6], p3f=[0,4,6,8,10], p3L=[4,6,8,10,12,14,16], rB=[4,6,8,10,12], rEn=[0], rS=[0,2,4,6,8], rF=[0,2,4,6,8],
             w1b=[6,8,9,10,11], cs1=[0,6,9,12,18], kinit=[6,8,10,12], kfly=[8,10,12], p3init=[6,8,10,12], p3fly=[8,10,11], binit=[8,10,12,14], bq=[5,6,7,8], ls=[13,14,15,16],
             x0=[2,4,6,8], x1=[0,2,4,6], x1b=[2,4,6,8], x2=[4,6,8,10], smx=[4,6,8,9], gat=[0,20,40,60,90], tw1=[0,1], kvf=[1,2,3,4], kvc=[14,16,17,18,20], opc=[4,5,6,7], fwc=[7,8,9], w1t=[0,1])
```

```python
import sys, os
from collections import deque
sys.path.insert(0, "dev")
from asmgen import *
import hazard

PADH = int(os.environ.get("PADH", "4")); PADR = int(os.environ.get("PADR", "4")); PADX = int(os.environ.get("PADX", "0")); PADW = int(os.environ.get("PADW", "1"))
HS = 80 + PADH; RQ = 48 + PADR; RS_ = 4*RQ + PADX; W2K = 60 + PADW
WS_O  = 0
WS_H  = WS_O + 2621440
WS_R  = WS_H + 128*HS*256
WS_WO = WS_R + 128*RS_*256
WS_W2 = WS_WO + 819200
WS_KV = WS_W2 + 32*W2K*1024
KV_STRIDE = 3584
WS_ST = WS_KV + 256*KV_STRIDE
WS_FP = WS_ST + 131072
WS_FKV = WS_FP + 2048
WS_FO = WS_FKV + 2048
WS_FH = WS_FO + 2048
WS_FR = WS_FH + 2048
WS_FL = WS_FR + 2048
WS_FW = WS_FL + 2048
WS_CP = WS_FW + 2048
WS_WQ = WS_CP + 131072
WS_C1 = WS_WQ + 16*153600
WS_TS = WS_C1 + 131072
WS_END = WS_TS + 256*256
LOG2E = 0x3fb8aa3b; EPS6 = 0x358637bd; EPS5 = 0x3727c5ac; INV640 = 0x3acccccd; ONES = 0x3f803f80
SPIN = 40000
STAMPS = False
OPT = dict(slow=int(os.environ.get("SLOW", "0")))
PF = dict(w2t=0, tlb=0, cw=1, w1b=11, tw1=0, cs1=9, gat=0, w1t=1, x0=6, x1=4, x1b=6, x2=8, opc=5, fwc=8, smx=8, binit=12, bq=7, ls=14, fpchk=18, kvE=12, kvEv=2, kvf=2, kvc=17,
          qE=0, qEv=5, oB=8, oE=4, oT=0, oS=8, oF=0, p2G=5, p2B=8, p2E=0, hW=0, hA=6, hS=0, p3f=6, p3L=7, rB=10, rEn=0, rS=4, rF=4,
          kinit=10, kfly=10, p3init=10, p3fly=10)
for k in list(PF):
    if os.environ.get("PF_"+k): PF[k] = int(os.environ["PF_"+k])

def stamp(A, n):
    A.comment(f"@S{n}")
    if not STAMPS: return
    A("s_memrealtime s[100:101]"); A("s_memtime s[98:99]"); A("s_waitcnt lgkmcnt(0)")
    A(f"v_writelane_b32 v3, s100, {n}"); A(f"v_writelane_b32 v3, s98, {n+32}")

class Cnt:
    def __init__(self, A, name, cap): self.A = A; self.q = []; self.name = name; self.cap = cap; self.seen = set(); self.cnt = 0
    def issue(self, tag, txt):
        for l in (txt if isinstance(txt, list) else [txt]): self.A(l)
        self.q.append(tag); self.seen.add(tag); self.cnt += 1
        assert self.name != "vmcnt" or len(self.q) <= 63
    def pending(self, tag): return tag in self.q
    def wait(self, tag):
        assert tag in self.seen, tag
        if tag not in self.q: return
        idx = len(self.q) - 1 - self.q[::-1].index(tag)
        n = len(self.q) - 1 - idx
        self.A(f"s_waitcnt {self.name}({min(n, self.cap)})")
        self.q = self.q[idx+1:] if n <= self.cap else self.q[len(self.q)-self.cap:]
    def drained(self): self.q = []
    def mark(self): return self.cnt
    def wait_mark(self, m):
        n = self.cnt - m
        self.A(f"s_waitcnt {self.name}({n})")
        if len(self.q) > n: self.q = self.q[len(self.q)-n:] if n else []

class Emit:
    def __init__(self): self.l = []
    def __call__(self, t): self.l.append(t)

TRC = int(os.environ.get('TRC', '8')); HEAVY = int(os.environ.get('HEAVY', '1')); MAXV = int(os.environ.get('MAXV', '2'))
import re
def unpk(l):
    m = re.match(r"v_mov_b64 v\[(\d+):\d+\], (.*)$", l)
    if m:
        d = int(m.group(1)); mm = re.match(r"v\[(\d+):", m.group(2))
        return [f"v_mov_b32 v{d+h}, " + (f"v{int(mm.group(1))+h}" if mm else m.group(2)) for h in range(2)]
    m = re.match(r"v_pk_(add|mul|fma)_f32 (.*?)( op_sel_hi:\[[\d,]+\])?$", l)
    if not m: return [l]
    ops = [o.strip() for o in m.group(2).split(",")]
    hi = [int(c) for c in re.findall(r"\d", m.group(3))] if m.group(3) else [1, 1, 1]
    def el(o, h): k, b = o[0], int(re.match(r".\[(\d+)", o).group(1)); return f"{k}{b+h}"
    out = []
    for h in range(2):
        srcs = [el(o, h if (h == 0 or hi[i]) else 0) for i, o in enumerate(ops[1:])]
        if m.group(1) != "fma" and srcs[1][0] == "s": srcs = srcs[::-1]
        out.append(f"v_{m.group(1)}_f32 {el(ops[0], h)}, " + ", ".join(srcs))
    return out
class Gaps:
    def __init__(self, A, vm, lg): self.A = A; self.vm = vm; self.lg = lg; self.q = [deque(), deque(), deque()]
    def put(self, pr, x): self.q[pr].append(x)
    def valu(self, pr, lines):
        for l in lines:
            for x in unpk(l): self.q[pr].append(("i", x))
    def vmem(self, pr, op):
        tag, txt = op
        txt = txt if isinstance(txt, list) else [txt]
        k = next(i for i, l in enumerate(txt) if l.startswith("buffer_"))
        for l in txt[:k]: self.q[pr].append(("i", l))
        self.q[pr].append(("vm", tag, txt[k]))
        for l in txt[k+1:]: self.q[pr].append(("i", l))
    def ds(self, pr, tag, txt): self.q[pr].append(("ds", tag, txt))
    def cost(self, x):
        if x[0] == "vm": return 2
        if x[0] == "i" and x[1].startswith(("v_pk", "v_exp", "v_rcp", "v_sqrt", "v_perm", "v_mov_b64")): return HEAVY
        if x[0] == "ds" and "write_b128" in x[2]: return 2
        if x[0] == "blk": return len(x[1])
        if x[0] in ("lw", "vw"): return 1 if (self.lg if x[0] == "lw" else self.vm).pending(x[1]) else 0
        return 1
    def ready(self, x):
        if x[0] == "vw": return x[1] in self.vm.seen and (not self.vm.pending(x[1]) or len(self.vm.q) - 1 - self.vm.q.index(x[1]) >= x[2] or self.force)
        if x[0] == "lw": return not self.lg.pending(x[1]) or len(self.lg.q) - 1 - self.lg.q.index(x[1]) >= x[2] or self.force
        return True
    force = False
    def run(self, x):
        if x[0] == "i": self.A(x[1])
        elif x[0] == "vm": self.vm.issue(x[1], x[2])
        elif x[0] == "ds": self.lg.issue(x[1], x[2])
        elif x[0] == "lw": self.lg.wait(x[1])
        elif x[0] == "vw": self.vm.wait(x[1])
        elif x[0] == "blk":
            for y in x[1]: self.run(y)
    def fill(self, budget=2):
        full = budget; nv = 0; ld = 16
        for q in self.q:
            while q and budget > 0 and self.ready(q[0]):
                c = self.cost(q[0])
                if c > budget and budget < full: break
                if q[0][0] == "ds":
                    lc = 16 if "b128" in q[0][2] else TRC
                    if lc > ld: break
                    ld -= lc
                if q[0][0] == "i" and q[0][1].startswith("v_"):
                    if nv >= MAXV: break
                    nv += 1
                self.run(q.popleft()); budget -= c
    def mfma(self, d, x, y, c=None, budget=2):
        self.A(f"v_mfma_f32_16x16x32_bf16 {d}, {x}, {y}, {d if c is None else c}")
        self.fill(budget)
    def flush(self, pr=None):
        self.force = True
        for i, q in enumerate(self.q):
            if pr is None or i == pr:
                while q: self.run(q.popleft())
        self.force = False

def merge(A, vm, stream, side, every=None):
    n = len(stream); k = len(side)
    step = every if every else max(1, n // (k + 1))
    j = 0
    for i, t in enumerate(stream):
        A(t)
        if (i + 1) % step == 0 and j < k:
            vm.issue(*side[j]); j += 1
    while j < k:
        vm.issue(*side[j]); j += 1

def mfma(A, d, x, y, c=None):
    A(f"v_mfma_f32_16x16x32_bf16 {d}, {x}, {y}, {d if c is None else c}")

def kperm(A, dst, p, t1, t2):
    A(f"v_and_b32 {v(t1)}, 12, {v(p)}"); A(f"v_lshlrev_b32 {v(t1)}, 1, {v(t1)}")
    A(f"v_lshrrev_b32 {v(t2)}, 4, {v(p)}"); A(f"v_lshlrev_b32 {v(t2)}, 2, {v(t2)}")
    A(f"v_and_b32 {v(dst)}, 3, {v(p)}")
    A(f"v_or3_b32 {v(dst)}, {v(dst)}, {v(t1)}, {v(t2)}")

def ln_stats2(E, pairs, tmps):
    def each(f):
        for k, (a_, b_) in enumerate(pairs): f(a_, b_, tmps[k])
    def rnd(r): return [f"v_cvt_pk_bf16_f32 {v(r)}, {v(r)}, {v(r)}", f"v_and_b32 {v(r)}, 0xffff0000, {v(r)}"]
    each(lambda a_, b_, t: E(f"v_mul_f32 {v(a_)}, s93, {v(a_)}"))
    each(lambda a_, b_, t: E(f"v_mul_f32 {v(t)}, {v(a_)}, {v(a_)}"))
    each(lambda a_, b_, t: E(f"v_fma_f32 {v(b_)}, {v(b_)}, s93, -{v(t)}"))
    each(lambda a_, b_, t: E(f"v_max_f32 {v(b_)}, 0, {v(b_)}"))
    each(lambda a_, b_, t: E(rnd(b_)[0])); each(lambda a_, b_, t: E(rnd(a_)[0]))
    each(lambda a_, b_, t: E(rnd(b_)[1])); each(lambda a_, b_, t: E(rnd(a_)[1]))
    each(lambda a_, b_, t: E(f"v_add_f32 {v(b_)}, 0x{EPS5:x}, {v(b_)}"))
    each(lambda a_, b_, t: E(f"v_xor_b32 {v(a_)}, 0x80000000, {v(a_)}"))
    each(lambda a_, b_, t: E(rnd(b_)[0])); each(lambda a_, b_, t: E(rnd(b_)[1]))
    each(lambda a_, b_, t: E(f"v_sqrt_f32 {v(b_)}, {v(b_)}"))
    each(lambda a_, b_, t: E(rnd(b_)[0])); each(lambda a_, b_, t: E(rnd(b_)[1]))
    each(lambda a_, b_, t: E(f"v_rcp_f32 {v(b_)}, {v(b_)}"))

def take(Q, n):
    out = Q[:n]; del Q[:n]; return out

def gen(A):
    K = NAME + "_kernel"
    kernel_begin(A, K)
    SI, SG, SJ, SC = 30, 31, 28, 29
    SX, SW, SWS, SD, SP = 32, 36, 40, 44, 48
    NON = 94
    vL16 = 2
    vm = Cnt(A, "vmcnt", 63); lg = Cnt(A, "lgkmcnt", 15); G = Gaps(A, vm, lg)
    sMODE = 84
    def dual(txt):
        k = "O" if f"{s(sO)} offen" in txt else ("R" if f"{s(sR)} offen" in txt else "H")
        return [txt.replace("SRD", s(SWS,4)) + (" sc1" if k in os.environ.get("WT", "OHR") else "")]
    vNF = 242
    def set_flag(off_sgpr, both=False):
        lab = A.newlabel("nf"); slow = A.newlabel("sl")
        A("s_cmp_lg_u32 s26, 0"); A(f"s_cbranch_scc1 {lab}")
        A("s_mov_b64 exec, 1")
        x = f"buffer_store_dwordx2 {v(vNF,2)}, {v(vNF+2)}, {s(SWS,4)}, {s(off_sgpr)} offen"
        if both:
            A(f"s_cmp_lg_u32 {s(sMODE)}, 1"); A(f"s_cbranch_scc1 {slow}")
            A(x); A("s_mov_b64 exec, -1"); A(f"s_branch {lab}")
            A.label(slow)
            A("buffer_wbl2 sc1"); A("s_waitcnt vmcnt(0)")
        A(x + " sc1")
        A("s_mov_b64 exec, -1")
        A.label(lab)
    def poll(off_sgpr, tmp):
        lab = A.newlabel("pl"); done = A.newlabel("pd")
        A("s_mov_b32 s96, 0")
        A.label(lab)
        A(f"buffer_load_dwordx2 {v(tmp,2)}, {v(vSA)}, {s(SWS,4)}, {s(off_sgpr)} offen sc1")
        A("s_waitcnt vmcnt(0)")
        A(f"v_cmp_ne_u64 vcc, {s(NON,2)}, {v(tmp,2)}")
        A("s_add_u32 s96, s96, 1")
        A(f"s_cbranch_vccz {done}")
        A(f"s_cmp_lt_u32 s96, {SPIN}"); A(f"s_cbranch_scc1 {lab}")
        A.label(done)
        vm.drained()
    def run_loads(tag, dst, sbase, n, flags="sc1"):
        ops = []
        for k in range(n):
            t = [f"buffer_load_dwordx4 {dst(k)}, {v(vL16)}, {s(SWS,4)}, {s(sbase)} offen offset:{(k%4)*1024} {flags}"]
            if k % 4 == 3 and k + 1 < n: t.append(f"s_add_u32 {s(sbase)}, {s(sbase)}, 4096")
            ops.append((tag(k), t))
        return ops

    MISC = 155648
    L_KVN = MISC; L_KVD = MISC + 6144; L_RSTD = MISC + 6400; L_CS = L_RSTD + 1024
    L_PACK = 126976; L_XR = 12288; NXR = 7; L_Q = 102400; L_XT = 139264; L_RED2 = 77824; L_CS3 = L_RSTD; L_KR = 69632; L_CP = 153600; L_W1U = 143360; L_C1 = 151552
    t0, t1, t2, t3, t4, t5 = range(24, 30)
    vXa, vXb, vU, vUr = 4, 5, 6, 7
    vXr = [8, 9]; vBa = [10, 11, 12]; vQ7 = 13; vUo = 14; vCSa = 15
    vSw, vSr, vC0, vC1, vC2 = 16, 17, 30, 31, 32
    vONE = 20
    vBF = 36; vAK = 76; vAQ = 116; vAS = 148; vASS = 214
    XF = lambda s_, mt: a((2*s_+mt)*4, 4)
    BFr = lambda b, t: vBF + (b*5+t)*4
    AK = lambda mt, t: vAK + (mt*5+t)*4
    AQ = lambda mt, t: vAQ + (mt*3+t)*4
    OPA = 222; g0, g1, g2, pr, fl, xa = 226, 227, 228, 229, 230, 233
    vOA, vHA, vRA, vSA = 236, 237, 238, 239
    sO, sH, sR, sST, sKV = 4, 5, 6, 7, 8
    RS = 156; NM = 164; RL2 = 172; CSK = 180; rl = 190; nl = 194; rl2 = 198; CSQ = 202
    A("s_cmp_ge_u32 s2, 256"); A("s_cbranch_scc1 L_end")
    if STAMPS: A("v_mov_b32 v3, 0")
    stamp(A, 0)
    A("s_load_dwordx4 s[4:7], s[0:1], 0")
    if PF["cw"]:
        A(f"s_cmp_ge_u32 s2, {8*PF['cw']}"); A("s_cbranch_scc1 CW_skip")
        A("s_getpc_b64 s[60:61]"); A.label("CW_pc"); A(f"v_lshlrev_b32 {v(33)}, 7, v0"); A(f"v_min_u32 {v(33)}, L_end-CW_pc, {v(33)}")
        A(f"global_load_dword {v(35)}, {v(33)}, s[60:61]")
        A.label("CW_skip")
    A("v_lshrrev_b32 v2, 6, v0"); A("v_and_b32 v1, 63, v0"); A("v_readfirstlane_b32 s26, v2")
    A("s_and_b32 s27, s2, 7"); A(f"s_bfe_u32 s53, s2, 0x10003"); A(f"s_lshl1_add_u32 {s(SI)}, s27, s53"); A(f"s_lshr_b32 {s(SG)}, s2, 4")
    A(f"v_lshrrev_b32 {v(t0)}, 4, v1")
    A(f"v_lshlrev_b32 {v(t2)}, 2, {v(t0)}"); A(f"v_and_b32 {v(t1)}, 15, v1"); A(f"v_xor_b32 {v(t1)}, {v(t1)}, {v(t2)}"); A(f"v_min_u32 {v(t1)}, 14, {v(t1)}")
    A(f"v_mul_u32_u24 {v(t2)}, 52, {v(t1)}"); A(f"v_lshrrev_b32 {v(t2)}, 8, {v(t2)}")
    A(f"v_add_u32 {v(t3)}, 1, {v(t2)}"); A(f"v_cmp_eq_u32 vcc, 2, {v(t2)}"); A(f"v_cndmask_b32 {v(t3)}, {v(t3)}, 0, vcc")
    A(f"v_mul_u32_u24 {v(t3)}, 80, {v(t3)}"); A(f"v_mul_u32_u24 {v(t2)}, 5, {v(t2)}"); A(f"v_sub_u32 {v(t1)}, {v(t1)}, {v(t2)}")
    A(f"v_mul_u32_u24 {v(t0)}, 240, {v(t0)}"); A(f"v_add3_u32 {v(t1)}, {v(t1)}, {v(t3)}, {v(t0)}"); A(f"v_lshlrev_b32 {v(vU)}, 4, {v(t1)}")
    A(f"s_mul_i32 s56, {s(SI)}, 10"); A("s_add_u32 s56, s56, s26"); A(f"s_mul_i32 s56, s56, {4*3840}"); A(f"s_mul_i32 s53, {s(SG)}, 80"); A("s_add_u32 s56, s56, s53")
    A(f"s_add_u32 s57, s56, {16*3840}"); A(f"s_add_u32 s58, s56, {32*3840}")
    A("s_cmp_ge_u32 s26, 2"); A("s_cselect_b32 s58, 0x7fffffff, s58")
    A("s_lshl_b32 s83, s26, 10")
    A(f"s_mov_b32 {s(SW+2)}, {640*3840}"); A(f"s_mov_b32 {s(SW+3)}, 0x00020000"); A("s_mov_b32 m0, s83")
    A("s_waitcnt lgkmcnt(0)")
    A(f"s_mov_b32 {s(SW)}, s6"); A(f"s_and_b32 {s(SW+1)}, s7, 0xffff")
    for n in range(3): vm.issue(("u",), ([f"s_add_u32 m0, s83, {n*4096}", "s_nop 0"] if n else []) + [f"buffer_load_dwordx4 {v(vU)}, {s(SW,4)}, {s(56+n)} offen lds"])
    A("s_load_dwordx8 s[8:15], s[0:1], 16")
    A("s_load_dwordx8 s[16:23], s[0:1], 48")
    A("s_load_dwordx2 s[24:25], s[0:1], 80")
    A(f"s_memrealtime {s(NON,2)}")
    A(f"v_lshlrev_b32 {v(vL16)}, 4, v1")
    A(f"s_and_b32 s53, {s(SG)}, 1"); A(f"s_lshl1_add_u32 {s(SJ)}, {s(SI)}, s53"); A(f"s_lshr_b32 {s(SC)}, {s(SG)}, 1")
    A(f"s_mul_i32 s68, {s(SI)}, 5"); A("s_cmp_ge_u32 s26, 2"); A("s_cselect_b32 s69, 1, 0"); A("s_mov_b32 s67, 0")
    A(f"v_lshlrev_b32 {v(34)}, 7, v1")
    A(f"s_lshl_b32 s52, {s(SI)}, 4"); A(f"s_add_u32 s52, s52, {s(SG)}"); A("s_lshl_b32 s52, s52, 2"); A("s_add_u32 s52, s52, s26"); A("s_mul_i32 s52, s52, 2560")
    def x_ops(c):
        return [(("x", c), [f"s_add_u32 m0, s59, {(c%NXR)*4096+mt*2048+h*1024}", f"s_movk_i32 s63, {c*128+mt*20480}" if h == 0 else "s_nop 0",
                            f"buffer_load_dwordx4 {v(vXb if h else vXa)}, {s(SX,4)}, s63 offen lds"]) for mt in range(2) for h in range(2)]
    srd(A, SX, 4, 2048*1280)
    A("s_mov_b64 exec, 0xfffff")
    vm.issue(("tch",), f"buffer_load_dword {v(35)}, {v(34)}, {s(SX,4)}, s52 offen")
    A("s_mov_b64 exec, -1")
    A(f"v_lshrrev_b32 {v(t0)}, 3, v1"); A(f"v_and_b32 {v(t1)}, 7, v1"); A(f"v_lshrrev_b32 {v(t2)}, 1, {v(t0)}")
    A(f"v_xor_b32 {v(t3)}, {v(t1)}, {v(t2)}"); A(f"v_xor_b32 {v(t4)}, 4, {v(t3)}")
    A(f"s_lshl_b32 s54, {s(SI)}, 7"); A("s_lshl_b32 s53, s26, 5"); A("s_add_u32 s54, s54, s53")
    A(f"v_add_u32 {v(t0)}, s54, {v(t0)}"); A(f"v_mul_u32_u24 {v(t0)}, 1280, {v(t0)}")
    A(f"v_lshl_add_u32 {v(vXa)}, {v(t3)}, 4, {v(t0)}"); A(f"v_lshl_add_u32 {v(vXb)}, {v(t4)}, 4, {v(t0)}")
    A(f"v_add_u32 {v(vXb)}, {8*1280}, {v(vXb)}")
    A(f"s_mul_i32 s59, s26, {NXR*4096}"); A(f"s_add_u32 s59, s59, {L_XR}")
    A("s_waitcnt lgkmcnt(0)")
    srd(A, SP, 12, 640*3072)
    A(f"s_mul_i32 s60, {s(SI)}, {40*3072}"); A(f"s_mul_i32 s61, {s(SG)}, 192"); A("s_add_u32 s60, s60, s61"); A("s_lshl_b32 s61, s26, 7")
    for j in range(2):
        A(f"v_add_u32 {v(t0)}, s61, v1")
        if j: A(f"v_add_u32 {v(t0)}, 64, {v(t0)}")
        A(f"v_mul_u32_u24 {v(t1)}, 5462, {v(t0)}"); A(f"v_lshrrev_b32 {v(t1)}, 16, {v(t1)}")
        A(f"v_mul_u32_u24 {v(t1)}, {3072-192}, {v(t1)}"); A(f"v_lshl_add_u32 {v(t1)}, {v(t0)}, 4, {v(t1)}")
        vm.issue(("w1u",), [f"s_lshl_b32 s62, s26, 11", f"s_add_u32 m0, s62, {L_W1U+j*1024}", "s_nop 0", f"buffer_load_dwordx4 {v(t1)}, {s(SP,4)}, s60 offen lds"])
    if PF["w2t"]:
        A("s_lshl_b32 s53, s2, 2"); A("s_add_u32 s53, s53, s26"); A("s_mul_i32 s60, s53, 1920"); A("s_mul_i32 s61, s53, 896")
        srd(A, SP, 16, 1536*1280); A("s_mov_b64 exec, 0x7fff")
        vm.issue(("tch",), f"buffer_load_dword {v(35)}, {v(34)}, {s(SP,4)}, s60 offen")
        if PF["w2t"] == 2:
            srd(A, SP, 8, 640*1280); A("s_mov_b64 exec, 0x7f")
            vm.issue(("tch",), f"buffer_load_dword {v(35)}, {v(34)}, {s(SP,4)}, s61 offen")
        A("s_mov_b64 exec, -1")
    stamp(A, 1)
    srd(A, SD, 22, 256)
    A("s_xor_b32 s53, s2, 2"); A("s_or_b32 s53, s53, s26"); A("s_cmp_lg_u32 s53, 0"); A("s_cbranch_scc1 N_skip")
    A(f"v_mov_b32 {v(t0)}, {s(NON)}"); A(f"v_mov_b32 {v(t1)}, {s(NON+1)}"); A(f"v_mov_b32 {v(t2)}, 0")
    A("s_mov_b64 exec, 1")
    A(f"buffer_store_dwordx2 {v(t0,2)}, {v(t2)}, {s(SD,4)}, 0 offen sc1")
    A("s_mov_b64 exec, -1")
    A.label("N_skip")
    srd(A, SWS, 24, WS_END)
    if PF["tlb"]:
        lab = "TL_skip"
        if PF["tlb"] == 1: A("s_cmp_lg_u32 s26, 3"); A(f"s_cbranch_scc1 {lab}")
        else: A("s_lshr_b32 s53, s2, 3"); A("s_or_b32 s53, s53, s26"); A("s_cmp_lg_u32 s53, 1"); A(f"s_cbranch_scc1 {lab}")
        A(f"v_lshlrev_b32 {v(33)}, 20, v1"); A(f"s_mov_b64 exec, {hex((1 << (WS_END >> 20)) - 1)}")
        A(f"buffer_load_dword {v(35)}, {v(33)}, {s(SWS,4)}, 0 offen")
        srd(A, SP, 20, 2048*1280); A("s_mov_b64 exec, 7")
        A(f"buffer_load_dword {v(35)}, {v(33)}, {s(SP,4)}, 0 offen")
        srd(A, SP, 14, 3072); A("s_mov_b64 exec, 1")
        A(f"buffer_load_dword {v(35)}, {v(33)}, {s(SP,4)}, 0 offen")
        srd(A, SP, 18, 1280)
        A(f"buffer_load_dword {v(35)}, {v(33)}, {s(SP,4)}, 0 offen")
        A("s_mov_b64 exec, -1")
        A.label(lab)
    PAD = vBF + 8
    for j in range(4):
        A(f"v_lshrrev_b32 {v(t0)}, 3, v1"); A(f"v_add_u32 {v(t0)}, {8*j}, {v(t0)}")
        kperm(A, t1, t0, t2, t3)
        A(f"v_bfe_u32 {v(t2)}, v1, 1, 2"); A(f"v_bfe_u32 {v(t3)}, {v(t0)}, 1, 2"); A(f"v_xor_b32 {v(t2)}, {v(t2)}, {v(t3)}")
        A(f"v_and_b32 {v(t3)}, 1, v1"); A(f"v_lshl_or_b32 {v(t2)}, {v(t2)}, 1, {v(t3)}")
        A(f"v_mul_u32_u24 {v(t1)}, 1280, {v(t1)}"); A(f"v_lshl_add_u32 {v(PAD+j)}, {v(t2)}, 4, {v(t1)}")
    A("s_lshl_b32 s80, s2, 1"); A("s_add_u32 s80, s80, s26")
    A("s_cmp_lt_u32 s2, 240"); A("s_cselect_b32 s90, 2, 0")
    A("s_and_b32 s53, s2, 1"); A("s_add_u32 s53, s53, 2"); A("s_cmp_eq_u32 s53, s26"); A("s_cselect_b32 s91, 1, 0")
    A("s_cmp_lt_u32 s2, 200"); A("s_cselect_b32 s91, s91, 0")
    A("s_cmp_lt_u32 s26, 2"); A("s_cselect_b32 s90, s90, s91"); A("s_cselect_b32 s80, s80, s2")
    A(f"s_cselect_b64 {s(SP,2)}, s[16:17], s[8:9]"); A("s_cselect_b32 s86, 12, 5"); A(f"s_mov_b32 s85, {WS_WO}"); A(f"s_cselect_b32 s85, {WS_W2}, s85")
    A(f"s_mov_b32 {s(SP+2)}, {640*1280}"); A(f"s_cselect_b32 {s(SP+2)}, {1536*1280}, {s(SP+2)}")
    A(f"s_and_b32 {s(SP+1)}, {s(SP+1)}, 0xffff"); A(f"s_mov_b32 {s(SP+3)}, 0x00020000")
    A("s_mul_i32 s78, s80, 6554"); A("s_lshr_b32 s78, s78, 16"); A("s_mul_i32 s79, s78, 10"); A("s_sub_u32 s79, s80, s79")
    A("s_mul_i32 s87, s78, 40960"); A("s_lshl_b32 s88, s79, 7"); A("s_add_u32 s87, s87, s88")
    A("s_lshl_b32 s81, s26, 12"); A(f"s_add_u32 s81, s81, {L_PACK}")
    A("s_cmp_eq_u32 s90, 0"); A("s_cselect_b32 s87, 0x7fffffff, s87")
    op_txt = [[f"s_add_u32 m0, s81, {j*1024}", "s_nop 0", f"buffer_load_dwordx4 {v(PAD+j)}, {s(SP,4)}, s87 offen lds"] for j in range(4)]
    A("s_cmp_lg_u32 s90, 1"); A("s_cbranch_scc1 E_no")
    for x in op_txt:
        for y in x: A(y)
    A("s_mov_b32 s87, 0x7fffffff")
    A.label("E_no")
    op_loads = [(("op",), x) for x in op_txt]
    XQ = []
    for c in range(NXR): XQ += x_ops(c)
    for x in take(XQ, PF["x0"]): vm.issue(*x)
    stamp(A, 26)
    sDST = [16, 17, 89, 91]
    A("s_mul_i32 s84, s86, 20"); A("s_mul_i32 s88, s78, 5")
    A("s_mul_i32 s60, s78, 43"); A("s_lshr_b32 s60, s60, 9"); A(f"s_mul_i32 s60, s60, {PADW}")
    A("s_cmp_lt_u32 s26, 2"); A("s_cselect_b32 s60, s60, 0"); A(f"s_cselect_b32 s61, {4*PADW}, 0"); A("s_add_u32 s88, s88, s60"); A("s_add_u32 s84, s84, s61")
    for j in range(4):
        A("s_lshl_b32 s60, s79, 2"); A(f"s_add_u32 s60, s60, {j}"); A("s_mul_i32 s61, s60, 52"); A("s_lshr_b32 s61, s61, 8")
        A("s_mul_i32 s62, s61, 5"); A("s_sub_u32 s60, s60, s62"); A("s_mul_i32 s61, s61, s84"); A("s_add_u32 s60, s60, s61"); A("s_add_u32 s60, s60, s88")
        A("s_lshl_b32 s60, s60, 10"); A(f"s_add_u32 {s(sDST[j])}, s60, s85")
    A("s_cmp_eq_u32 s90, 0")
    for j in range(4): A(f"s_cselect_b32 {s(sDST[j])}, 0x7fffffff, {s(sDST[j])}")
    A(f"v_lshrrev_b32 {v(t0)}, 4, v1"); A("s_and_b32 s60, s26, 1"); A("s_lshl_b32 s60, s60, 2"); A(f"v_add_u32 {v(t0)}, s60, {v(t0)}")
    A(f"v_bfe_u32 {v(t1)}, v1, 2, 2"); A(f"v_lshlrev_b32 {v(t2)}, 1, {v(t1)}"); A(f"v_xor_b32 {v(t2)}, {v(t2)}, {v(t0)}")
    A(f"v_lshlrev_b32 {v(t1)}, 8, {v(t1)}"); A(f"v_lshl_or_b32 {v(t1)}, {v(t2)}, 5, {v(t1)}")
    A(f"v_and_b32 {v(t2)}, 3, v1"); A(f"v_lshl_or_b32 {v(t1)}, {v(t2)}, 3, {v(t1)}")
    A("s_lshr_b32 s60, s26, 1"); A("s_lshl_b32 s61, s60, 11"); A(f"v_add_u32 {v(vUr)}, s61, {v(t1)}")
    A(f"v_and_b32 {v(t1)}, 15, v1")
    A(f"v_lshlrev_b32 {v(t2)}, 2, v0"); A(f"v_add_u32 {v(vCSa)}, {L_RSTD}, {v(t2)}"); A(f"v_add_u32 {v(33)}, {L_RSTD}, {v(vL16)}")
    A(f"v_cmp_le_u32 s[70:71], 5, {v(t0)}"); A(f"v_cmp_eq_u32 s[72:73], 7, {v(t0)}"); A(f"v_cmp_le_u32 s[74:75], 8, {v(t1)}")
    A(f"v_add_u32 {v(t2)}, -5, {v(t0)}"); A(f"v_cndmask_b32 {v(t2)}, {v(t0)}, {v(t2)}, s[70:71]")
    A(f"v_lshlrev_b32 {v(t2)}, 10, {v(t2)}"); A(f"v_lshl_or_b32 {v(vUo)}, {v(t1)}, 4, {v(t2)}")
    A("s_and_b64 s[74:75], s[74:75], s[72:73]"); A("s_not_b64 s[74:75], s[74:75]")
    A("s_add_u32 s61, s68, s60")
    A(f"s_mul_i32 s62, {s(SG)}, 153600"); A(f"s_add_u32 s82, s62, {WS_WQ}")
    for r in range(4): A(f"v_mov_b32 {v(vONE+r)}, 0x{ONES:x}")
    UA = 48; UF = 52
    for r in range(3):
        A(f"s_add_u32 s62, s61, {2*r}")
        A("s_lshr_b32 s63, s62, 2"); A("s_and_b32 s62, s62, 3"); A("s_lshl_b32 s62, s62, 8")
        A("s_mul_i32 s64, s63, 5120"); A("s_add_u32 s64, s64, s62")
        A("s_lshr_b32 s65, s63, 1"); A("s_mul_i32 s65, s65, 5120"); A("s_add_u32 s65, s65, s62"); A("s_add_u32 s65, s65, 102400")
        A("s_and_b32 s63, s63, 1"); A("s_lshl_b32 s62, s63, 7"); A("s_add_u32 s62, s62, s65"); A("s_add_u32 s62, s62, 2048")
        A("s_lshl_b32 s63, s63, 11"); A("s_add_u32 s65, s65, s63")
        A(f"v_mov_b32 {v(t0)}, s64"); A(f"v_mov_b32 {v(t1)}, s65"); A(f"v_mov_b32 {v(t2)}, s62")
        A(f"v_cndmask_b32 {v(t0)}, {v(t0)}, {v(t1)}, s[70:71]"); A(f"v_cndmask_b32 {v(t0)}, {v(t0)}, {v(t2)}, s[72:73]")
        A(f"v_add_u32 {v(UA+r)}, {v(t0)}, {v(vUo)}")
    A("s_cmp_eq_u32 s69, 1"); A("s_cselect_b32 s56, 0x7fffffff, s82"); A("s_cmp_eq_u32 s67, 1"); A("s_cselect_b32 s57, 0x7fffffff, s82")
    A(f"s_lshl_b32 s62, {s(SG)}, 4"); A(f"s_add_u32 s62, s62, {s(SI)}"); A("s_lshl_b32 s55, s62, 9"); A(f"s_add_u32 s55, s55, {WS_CP}")
    A("s_lshl_b32 s97, s62, 3"); A(f"s_add_u32 s97, s97, {WS_FW}")
    A(f"v_mov_b32 {v(vNF+2)}, 0")
    stamp(A, 27)
    vm.wait(("u",)); A("s_barrier")
    stamp(A, 2)
    for r in range(3):
        for jj in range(2): lg.issue(("uf", r), f"ds_read_b64_tr_b16 {v(UF+4*r+2*jj,2)}, {v(vUr)} offset:{r*4096+jj*1024}")
    vm.issue(("non",), f"buffer_load_dwordx2 {v(vNF,2)}, {v(vNF+2)}, {s(SD,4)}, 0 offen sc1")
    A("s_mov_b64 exec, s[74:75]")
    for r in range(3):
        lg.wait(("uf", r))
        vm.issue(("ust",), f"buffer_store_dwordx4 {v(UF+4*r,4)}, {v(UA+r)}, {s(SWS,4)}, {'s56' if r == 2 else 's57'} offen sc1")
    A("s_mov_b64 exec, -1")
    for r in range(4): A(f"v_dot2_f32_bf16 {v(68+r)}, {v(UF+r)}, {v(vONE)}, 0")
    for r in range(4, 12): A(f"v_dot2c_f32_bf16 {v(68+r%4)}, {v(UF+r)}, {v(vONE)}")
    for x in take(XQ, PF["x1"]): vm.issue(*x)
    A(f"v_pk_add_f32 {v(68,2)}, {v(68,2)}, {v(70,2)}"); A(f"v_add_f32 {v(68)}, {v(68)}, {v(69)}")
    A(f"ds_write_b32 {v(vCSa)}, {v(68)}")
    A("s_waitcnt lgkmcnt(0)"); A("s_barrier")
    A("s_cmp_lg_u32 s26, 1"); A("s_cbranch_scc1 CS_skip")
    A("s_mov_b64 exec, 0xffffffff")
    A(f"ds_read_b128 {v(UF,4)}, {v(33)}"); A(f"ds_read_b128 {v(UF+4,4)}, {v(33)} offset:512"); A("s_waitcnt lgkmcnt(0)")
    for r in (0, 2): A(f"v_pk_add_f32 {v(UF+r,2)}, {v(UF+r,2)}, {v(UF+4+r,2)}")
    A(f"buffer_store_dwordx4 {v(UF,4)}, {v(vL16)}, {s(SWS,4)}, s55 offen sc1")
    A("s_mov_b64 exec, -1")
    A.label("CS_skip")
    mk = vm.mark()
    l0, l1, l2, l3, l4 = 68, 69, 70, 71, 72
    E = Emit()
    E(f"v_and_b32 {v(l0)}, 15, v1"); E(f"v_lshrrev_b32 {v(l1)}, 4, v1"); E(f"v_bfe_u32 {v(l2)}, v1, 1, 3")
    E(f"v_xor_b32 {v(l2)}, {v(l1)}, {v(l2)}"); E(f"v_lshl_add_u32 {v(l2)}, {v(l0)}, 3, {v(l2)}"); E(f"v_lshlrev_b32 {v(l2)}, 4, {v(l2)}")
    E(f"v_add_u32 {v(vXr[0])}, s59, {v(l2)}"); E(f"v_xor_b32 {v(vXr[1])}, 64, {v(vXr[0])}"); E(f"v_lshlrev_b32 {v(vSA)}, 3, {v(l0)}")
    E(f"v_lshrrev_b32 {v(l0)}, 2, v1"); E(f"v_bfe_u32 {v(l1)}, v1, 3, 2")
    E(f"v_lshlrev_b32 {v(l0)}, 7, {v(l0)}"); E(f"v_lshl_or_b32 {v(l0)}, {v(l1)}, 5, {v(l0)}")
    E(f"v_and_b32 {v(l1)}, 3, v1"); E(f"v_lshl_or_b32 {v(l0)}, {v(l1)}, 3, {v(l0)}")
    for t in range(4): E(f"v_xor_b32 {v(OPA+t)}, {t*32}, {v(l0)}"); E(f"v_add_u32 {v(OPA+t)}, s81, {v(OPA+t)}")
    E(f"v_mov_b64 {v(l2,2)}, 0"); E(f"v_mov_b64 {v(l4,2)}, 0")
    E(f"v_lshlrev_b32 {v(l0)}, 4, v0"); E(f"v_min_u32 {v(l1)}, {6384-4096}, {v(l0)}")
    E(f"v_add_u32 {v(l0)}, {L_KVN}, {v(l0)}"); E(f"v_add_u32 {v(l1)}, {L_KVN+4096}, {v(l1)}")
    E(f"ds_write_b128 {v(l0)}, {v(l2,4)}"); E(f"ds_write_b128 {v(l1)}, {v(l2,4)}")
    E(f"v_mov_b32 {v(vBa[0])}, {v(vL16)}"); E(f"v_add_u32 {v(vBa[1])}, 51200, {v(vL16)}"); E(f"v_add_u32 {v(vBa[2])}, {L_Q}, {v(vL16)}")
    E(f"s_lshl_b32 s66, {s(SG)}, 7"); E(f"s_add_u32 s66, s66, {WS_FW}")
    E(f"s_lshl_b32 s67, {s(SG)}, 2"); E("s_add_u32 s67, s67, s26"); E("s_lshl_b32 s67, s67, 11"); E(f"s_add_u32 s67, s67, {WS_CP}")
    E("s_mul_i32 s69, s26, 5120"); E("s_add_u32 s82, s82, s69")
    E(f"s_lshl_b32 s9, {s(SI)}, 4"); E(f"s_add_u32 s9, s9, {s(SG)}"); E("s_lshl_b32 s9, s9, 3"); E(f"s_add_u32 s9, s9, {WS_FP}")
    E("s_getreg_b32 s92, hwreg(HW_REG_XCC_ID, 0, 4)")
    E(f"s_mul_i32 s65, {s(SG)}, {16*KV_STRIDE}"); E(f"s_add_u32 s65, s65, {WS_KV}")
    E(f"v_lshlrev_b32 {v(g1)}, 4, v0"); E(f"v_add_u32 {v(g1)}, s65, {v(g1)}")
    E(f"v_cmp_gt_u32 vcc, 210, v0"); E("s_mov_b64 s[10:11], vcc")
    E(f"s_mul_i32 {s(sKV)}, {s(SI)}, {KV_STRIDE}")
    E(f"v_mov_b64 {v(64,2)}, -1"); E(f"v_mov_b64 {v(66,2)}, -1")
    merge(A, vm, E.l, take(XQ, PF["x1b"]))
    stamp(A, 25)
    vm.wait(("non",))
    A("s_mov_b32 s96, 0")
    A.label("N_l")
    A(f"v_readfirstlane_b32 {s(NON)}, {v(vNF)}"); A(f"v_readfirstlane_b32 {s(NON+1)}, {v(vNF+1)}")
    A(f"s_or_b32 s62, {s(NON)}, {s(NON+1)}"); A("s_cmp_lg_u32 s62, 0"); A("s_cbranch_scc1 N_d")
    A(f"buffer_load_dwordx2 {v(vNF,2)}, {v(vNF+2)}, {s(SD,4)}, 0 offen sc1"); A("s_waitcnt vmcnt(0)")
    A("s_add_u32 s96, s96, 1"); A(f"s_cmp_lt_u32 s96, {SPIN}"); A("s_cbranch_scc1 N_l")
    A.label("N_d")
    vm.wait_mark(mk)
    A("s_barrier")
    set_flag(97)
    stamp(A, 20)
    A("s_mov_b64 exec, s[10:11]")
    vm.issue(("pre",), f"buffer_store_dwordx4 {v(64,4)}, {v(g1)}, {s(SWS,4)}, {s(sKV)} offen sc1")
    A("s_mov_b64 exec, -1")
    A("s_cmp_lg_u32 s90, 1"); A("s_cbranch_scc1 E_nob")
    for t in range(4):
        for jj in range(2): A(f"ds_read_b64_tr_b16 {v(vAK+4*t+2*jj,2)}, {v(OPA+t)} offset:{jj*2048}")
    for t in range(4):
        A(f"s_waitcnt lgkmcnt({6-2*t})")
        A(f"buffer_store_dwordx4 {v(vAK+4*t,4)}, {v(vL16)}, {s(SWS,4)}, {s(sDST[t])} offen sc1")
        A(f"s_mov_b32 {s(sDST[t])}, 0x7fffffff")
    A.label("E_nob")
    C = Emit()
    c0 = 92
    for r in range(2):
        C(f"v_lshrrev_b32 {v(l0)}, 4, v0")
        if r: C(f"v_add_u32 {v(l0)}, 16, {v(l0)}")
        C(f"v_mul_u32_u24 {v(l1)}, 43, {v(l0)}"); C(f"v_lshrrev_b32 {v(l1)}, 8, {v(l1)}")
        C(f"v_mul_u32_u24 {v(l2)}, 6, {v(l1)}"); C(f"v_sub_u32 {v(l0)}, {v(l0)}, {v(l2)}")
        C(f"v_bfe_u32 {v(l2)}, v1, 2, 2"); C(f"v_lshl_add_u32 {v(l2)}, {v(l1)}, 3, {v(l2)}"); C(f"v_mul_u32_u24 {v(l2)}, 192, {v(l2)}")
        C(f"v_and_b32 {v(l3)}, 3, v1"); C(f"v_lshl_add_u32 {v(l2)}, {v(l3)}, 3, {v(l2)}"); C(f"v_lshl_add_u32 {v(l2)}, {v(l0)}, 5, {v(l2)}")
        C(f"v_add_u32 {v(100+r)}, {L_W1U}, {v(l2)}")
        C(f"ds_read_b64_tr_b16 {v(c0+4*r,2)}, {v(100+r)}"); C(f"ds_read_b64_tr_b16 {v(c0+4*r+2,2)}, {v(100+r)} offset:768")
        C(f"v_mul_u32_u24 {v(l1)}, 96, {v(l1)}"); C(f"v_lshl_add_u32 {v(l1)}, {v(l0)}, 4, {v(l1)}"); C(f"v_and_b32 {v(l3)}, 15, v1"); C(f"v_add_lshl_u32 {v(102+r)}, {v(l1)}, {v(l3)}, 2")
    C("s_waitcnt lgkmcnt(0)")
    for r in range(2): C(f"v_dot2_f32_bf16 {v(104+r)}, {v(c0+4*r)}, {v(vONE)}, 0")
    for k in range(1, 4):
        for r in range(2): C(f"v_dot2_f32_bf16 {v(104+r)}, {v(c0+4*r+k)}, {v(vONE)}, {v(104+r)}")
    for r in range(2): C(f"ds_write_b32 {v(102+r)}, {v(104+r)}")
    merge(A, vm, C.l, take(XQ, PF["x2"]))
    A(f"s_lshl_b32 s62, {s(NON+1)}, 4"); A("s_or_b32 s92, s92, s62")
    A(f"v_mov_b32 {v(t0)}, {s(NON)}"); A(f"v_mov_b32 {v(t1)}, s92")
    E = Emit()
    E(f"v_and_b32 {v(l0)}, 15, v1"); E(f"v_lshrrev_b32 {v(l1)}, 4, v1"); E("s_lshl_b32 s64, s26, 7")
    E(f"v_lshl_add_u32 {v(vSw)}, {v(l0)}, 2, s64"); E(f"v_add_u32 {v(vSw)}, {L_RSTD}, {v(vSw)}")
    E(f"v_lshl_add_u32 {v(vSr)}, {v(l1)}, 4, s64"); E(f"v_add_u32 {v(vSr)}, {L_RSTD}, {v(vSr)}")
    E(f"v_and_b32 {v(vC0)}, 0x1f0, {v(vL16)}"); E("s_lshl_b32 s64, s26, 9"); E(f"s_add_u32 s64, s64, {L_CP}"); E(f"v_add_u32 {v(vC0)}, s64, {v(vC0)}")
    E(f"v_lshlrev_b32 {v(vC1)}, 2, {v(l0)}"); E(f"v_add_u32 {v(vC1)}, {L_CP}, {v(vC1)}")
    E(f"v_lshlrev_b32 {v(vC2)}, 4, {v(l1)}"); E(f"v_add_u32 {v(vC2)}, {L_CP+320}, {v(vC2)}")
    E(f"v_and_b32 {v(l2)}, 3, v1")
    E(f"v_cmp_eq_u32 s[70:71], 1, {v(l2)}"); E(f"v_cmp_eq_u32 s[72:73], 2, {v(l2)}"); E(f"v_cmp_eq_u32 s[74:75], 3, {v(l2)}")
    E(f"v_bfe_u32 {v(l2)}, v1, 2, 2"); E(f"v_cmp_eq_u32 s[60:61], {v(l2)}, {v(l1)}")
    E(f"s_mov_b32 s93, 0x{INV640:x}")
    E(f"s_mov_b32 s78, 0x{LOG2E:x}"); E(f"s_mov_b32 s79, 0x{EPS6:x}"); E("s_mov_b32 s77, s79"); E("s_mov_b32 s76, s79")
    E(f"v_lshlrev_b32 {v(fl+2)}, 3, v0")
    E(f"s_lshl_b32 s52, {s(SI)}, 7"); E(f"s_add_u32 s52, s52, {WS_FP}"); E(f"s_mov_b32 s53, {WS_FP}")
    E(f"v_and_b32 {v(vQ7)}, 0x37f, {v(vL16)}"); E(f"v_add_u32 {v(vQ7)}, {L_Q+4096}, {v(vQ7)}")
    E(f"v_bfe_u32 {v(l1)}, v1, 4, 1"); E(f"v_lshrrev_b32 {v(l2)}, 5, v1")
    E(f"v_lshlrev_b32 {v(l2)}, 8, {v(l2)}"); E(f"v_lshl_or_b32 {v(l2)}, {v(l0)}, 4, {v(l2)}")
    E(f"v_mul_u32_u24 {v(vOA)}, {80*256}, {v(l1)}"); E(f"v_add_u32 {v(vOA)}, {v(vOA)}, {v(l2)}")
    E(f"v_mul_u32_u24 {v(vRA)}, {RS_*256}, {v(l1)}"); E(f"v_add_u32 {v(vRA)}, {v(vRA)}, {v(l2)}")
    E(f"v_lshl_add_u32 {v(vHA)}, {v(l1)}, 9, {v(l2)}")
    E(f"s_lshl_b32 s64, {s(SI)}, 3"); E("s_lshl_b32 s65, s26, 1"); E("s_add_u32 s64, s64, s65")
    E(f"s_mul_i32 {s(sO)}, s64, 80"); E(f"s_mul_i32 s65, {s(SG)}, 5"); E(f"s_add_u32 {s(sO)}, {s(sO)}, s65"); E(f"s_lshl_b32 {s(sO)}, {s(sO)}, 8"); E(f"s_add_u32 {s(sO)}, {s(sO)}, {WS_O}")
    E(f"s_mul_i32 {s(sR)}, s64, {RS_}"); E(f"s_mul_i32 s65, {s(SG)}, 12"); E(f"s_add_u32 {s(sR)}, {s(sR)}, s65"); E(f"s_lshr_b32 s65, {s(SG)}, 2"); E(f"s_mul_i32 s65, s65, {PADR}"); E(f"s_add_u32 {s(sR)}, {s(sR)}, s65"); E(f"s_lshl_b32 {s(sR)}, {s(sR)}, 8"); E(f"s_add_u32 {s(sR)}, {s(sR)}, {WS_R}")
    E(f"s_lshl_b32 s64, {s(SJ)}, 2"); E("s_add_u32 s64, s64, s26")
    E(f"s_mul_i32 {s(sH)}, s64, {HS}"); E(f"s_mul_i32 s65, {s(SC)}, 10"); E(f"s_add_u32 {s(sH)}, {s(sH)}, s65"); E(f"s_lshl_b32 {s(sH)}, {s(sH)}, 8"); E(f"s_add_u32 {s(sH)}, {s(sH)}, {WS_H}")
    E(f"s_lshl_b32 s65, {s(SC)}, 7"); E("s_add_u32 s64, s64, s65"); E(f"s_lshl_b32 {s(sST)}, s64, 7"); E(f"s_add_u32 {s(sST)}, {s(sST)}, {WS_ST}")
    E(f"v_mul_u32_u24 {v(l0)}, 13108, v0"); E(f"v_lshrrev_b32 {v(l0)}, 16, {v(l0)}")
    E(f"v_mul_u32_u24 {v(l1)}, 5, {v(l0)}"); E(f"v_sub_u32 {v(l1)}, v0, {v(l1)}")
    E(f"v_cmp_le_u32 vcc, 21, {v(l0)}"); E(f"v_cndmask_b32 {v(l2)}, 0, 1, vcc")
    E(f"v_mul_u32_u24 {v(l3)}, 21, {v(l2)}"); E(f"v_sub_u32 {v(l0)}, {v(l0)}, {v(l3)}")
    E(f"v_mul_u32_u24 {v(l3)}, 5, {v(l2)}"); E(f"v_add_u32 {v(l1)}, {v(l1)}, {v(l3)}")
    E(f"v_mul_u32_u24 {v(l3)}, 20, {v(l2)}"); E(f"v_add_u32 {v(l3)}, {v(l3)}, {v(l0)}")
    E(f"v_add_u32 {v(l4)}, 40, {v(l3)}"); E(f"v_cmp_eq_u32 vcc, 20, {v(l0)}"); E(f"v_cndmask_b32 {v(l4)}, {v(l4)}, 32, vcc")
    E(f"v_lshlrev_b32 {v(l3)}, 7, {v(l3)}"); E(f"v_add_u32 {v(l3)}, {L_KVN}, {v(l3)}")
    E(f"v_lshlrev_b32 {v(l2)}, 7, {v(l2)}"); E(f"v_add_u32 {v(l2)}, {L_KVD}, {v(l2)}")
    E(f"v_cndmask_b32 {v(l3)}, {v(l3)}, {v(l2)}, vcc")
    E(f"v_lshrrev_b32 {v(l0)}, 2, {v(l1)}"); E(f"v_and_b32 {v(l1)}, 3, {v(l1)}")
    E(f"v_lshrrev_b32 {v(l2)}, 1, {v(l0)}"); E(f"v_lshl_add_u32 {v(l3)}, {v(l2)}, 6, {v(l3)}")
    E(f"v_lshl_add_u32 {v(l3)}, {v(l1)}, 4, {v(l3)}")
    E(f"v_and_b32 {v(l2)}, 1, {v(l0)}"); E(f"v_lshl_add_u32 {v(g2)}, {v(l2)}, 3, {v(l3)}")
    E(f"v_lshrrev_b32 {v(l2)}, 4, {v(l4)}"); E(f"v_add_u32 {v(l2)}, -2, {v(l2)}")
    E(f"v_mul_u32_u24 {v(l3)}, 5, {v(l0)}"); E(f"v_lshrrev_b32 {v(l3)}, 1, {v(l3)}")
    E(f"v_add_u32 {v(l2)}, {v(l2)}, {v(l3)}"); E(f"v_lshlrev_b32 {v(l2)}, 10, {v(l2)}")
    E(f"v_and_b32 {v(l4)}, 15, {v(l4)}"); E(f"v_lshl_add_u32 {v(l4)}, {v(l1)}, 4, {v(l4)}")
    E(f"v_lshl_add_u32 {v(g0)}, {v(l4)}, 4, {v(l2)}"); E(f"v_add_u32 {v(g0)}, {L_KR}, {v(g0)}")
    G.valu(2, E.l)
    def stat_m(s_):
        for mt in range(2):
            G.mfma(v(vAS+4*mt,4), v(vONE,4), XF(s_,mt), "0" if s_ == 0 else None)
            G.mfma(v(vASS+4*mt,4), XF(s_,mt), XF(s_,mt), "0" if s_ == 0 else None)
    for x in take(XQ, 99): G.vmem(1, x)
    sm = 0
    for c in range(10):
        if ("x", c) not in vm.seen or any(y[0] == "vm" and y[1] == ("x", c) for y in G.q[1]): G.flush(1)
        vm.wait(("x", c))
        for sp in range(2):
            for mt in range(2): lg.issue(("xf", c), f"ds_read_b128 {XF(2*c+sp,mt)}, {v(vXr[sp])} offset:{(c%NXR)*4096+mt*2048}")
        if c >= 1:
            lg.wait(("xf", c-1))
            if c - 1 + NXR < 10:
                for x in x_ops(c-1+NXR): G.vmem(1, x)
            if c == PF["opc"]:
                for x in op_loads: G.vmem(1, x)
            if c == PF["fwc"]: G.vmem(1, (("fw",), f"buffer_load_dwordx2 {v(t4,2)}, {v(vSA)}, {s(SWS,4)}, s66 offen sc1"))
            if c - 1 < PF["smx"]: stat_m(sm); stat_m(sm+1); sm += 2
    G.flush(1)
    stamp(A, 21)
    A("s_waitcnt lgkmcnt(0)"); lg.drained()
    A("s_barrier")
    A("s_cmp_lg_u32 s26, 0"); A("s_cbranch_scc1 C1_skip")
    A("s_mov_b64 exec, 0xffffff")
    for k in range(5): A(f"ds_read_b128 {v(c0+4*k,4)}, {v(vL16)} offset:{k*384}")
    A(f"s_add_u32 s62, s55, {WS_C1-WS_CP}")
    A("s_waitcnt lgkmcnt(0)")
    for r in (0, 2):
        A(f"v_pk_add_f32 {v(c0+r,2)}, {v(c0+r,2)}, {v(c0+4+r,2)}"); A(f"v_pk_add_f32 {v(c0+8+r,2)}, {v(c0+8+r,2)}, {v(c0+12+r,2)}")
    for r in (0, 2):
        A(f"v_pk_add_f32 {v(c0+r,2)}, {v(c0+r,2)}, {v(c0+16+r,2)}")
    for r in (0, 2): A(f"v_pk_add_f32 {v(c0+r,2)}, {v(c0+r,2)}, {v(c0+8+r,2)}")
    A(f"buffer_store_dwordx4 {v(c0,4)}, {v(vL16)}, {s(SWS,4)}, s62 offen sc1")
    A("s_mov_b64 exec, -1")
    A.label("C1_skip")
    vm.wait(("fw",))
    A("s_mov_b32 s96, 0"); A("s_branch FW_c")
    A.label("FW_l")
    A(f"buffer_load_dwordx2 {v(t4,2)}, {v(vSA)}, {s(SWS,4)}, s66 offen sc1")
    A("s_waitcnt vmcnt(0)")
    A.label("FW_c")
    A(f"v_cmp_ne_u64 s[62:63], {s(NON,2)}, {v(t4,2)}")
    A("s_add_u32 s96, s96, 1")
    A("s_cmp_eq_u64 s[62:63], 0"); A("s_cbranch_scc1 FW_d")
    A(f"s_cmp_lt_u32 s96, {SPIN}"); A("s_cbranch_scc1 FW_l")
    A.label("FW_d")
    stamp(A, 22)
    def b_round(r, track=True):
        ops = []
        for j in range(5):
            pre = []
            if j == 0: pre = [f"s_add_u32 m0, s69, {r*20480}"] + ([f"s_add_u32 s82, s82, {20480-4096}"] if r else ["s_nop 0"])
            if j == 4: pre = [f"s_add_u32 m0, s69, {r*20480+4096}", "s_add_u32 s82, s82, 4096"]
            ops.append((("B", r), pre + [f"buffer_load_dwordx4 {v(vL16)}, {s(SWS,4)}, s82 offen offset:{(j%4)*1024} sc1 lds"]))
        return ops
    CP = 116
    cp_loads = run_loads(lambda k: ("cp",), lambda k: v(CP+4*k,4), 67, 2)
    QB = [x for r in range(5) for x in b_round(r)] + cp_loads
    QQ = [x for r in range(5, 7) for x in b_round(r)]
    for x in take(QB, PF["binit"]): vm.issue(*x)
    while sm < 20: stat_m(sm); sm += 1
    G.flush()
    vm.wait(("B", 0))
    for t in range(4):
        for jj in range(2): lg.issue(("of",), f"ds_read_b64_tr_b16 {a(160+4*t+2*jj,2)}, {v(OPA+t)} offset:{jj*2048}")
    A("s_barrier")
    A("s_cmp_lg_u32 s26, 0"); A("s_cbranch_scc1 FP_skip")
    A("s_mov_b64 exec, 1")
    A(f"buffer_store_dwordx2 {v(t0,2)}, {v(vNF+2)}, {s(SWS,4)}, s9 offen sc1")
    A("s_mov_b64 exec, -1")
    A.label("FP_skip")
    stamp(A, 23)
    for k in range(3):
        for mt in range(2):
            q_ = vASS + 4*mt
            G.put(2, ("i", f"v_cndmask_b32 {v(q_)}, {v(q_)}, {v(q_+1+k)}, s[{70+2*k}:{71+2*k}]"))
    E = Emit(); ln_stats2(E, [(vAS, vASS), (vAS+4, vASS+4)], [t4, t5]); G.valu(2, E.l)
    blk = [("i", "s_mov_b64 exec, s[60:61]")]
    for mt in range(2):
        blk += [("ds", ("sw",), f"ds_write_b32 {v(vSw)}, {v(vASS+4*mt)} offset:{mt*64}"), ("ds", ("sw",), f"ds_write_b32 {v(vSw)}, {v(vAS+4*mt)} offset:{512+mt*64}")]
    G.put(2, ("blk", blk + [("i", "s_mov_b64 exec, -1")]))
    G.put(2, ("lw", ("sw",), 3))
    for mt in range(2):
        G.ds(2, ("sr",), f"ds_read_b128 {v(NM+4*mt,4)}, {v(vSr)} offset:{512+mt*64}"); G.ds(2, ("sr",), f"ds_read_b128 {v(RS+4*mt,4)}, {v(vSr)} offset:{mt*64}")
        G.ds(2, ("sr",), f"ds_read_b32 {v(rl+2*mt)}, {v(vSw)} offset:{mt*64}"); G.ds(2, ("sr",), f"ds_read_b32 {v(nl+2*mt)}, {v(vSw)} offset:{512+mt*64}")
    vW1 = 214; vW1b = 192
    E = Emit()
    G.put(2, ("lw", ("sr",), 3))
    for r in range(0, 8, 2): E(f"v_pk_mul_f32 {v(RL2+r,2)}, {v(RS+r,2)}, s[78:79] op_sel_hi:[1,0]")
    for mt in range(2): E(f"v_mul_f32 {v(rl2+2*mt)}, s78, {v(rl+2*mt)}")
    G.valu(2, E.l)
    G.put(2, ("vw", ("cp",), 4))
    E = Emit()
    for r in (0, 2): E(f"v_pk_add_f32 {v(CP+r,2)}, {v(CP+r,2)}, {v(CP+4+r,2)}")
    for r in (0, 2): E(f"v_mov_b64 {v(CP+4+r,2)}, {v(CP+r,2)}")
    for r in range(4): E(f"v_permlane32_swap_b32 {v(CP+4+r)}, {v(CP+r)}")
    for r in (0, 2): E(f"v_pk_add_f32 {v(CP+r,2)}, {v(CP+r,2)}, {v(CP+4+r,2)}")
    G.valu(2, E.l)
    G.ds(2, ("csw",), f"ds_write_b128 {v(vC0)}, {v(CP,4)}")
    G2b = []
    for w in range(4):
        for t in range(5): G2b.append(("ds", ("csr",), f"ds_read_b32 {v(CSK+2*t if w == 0 else CP+5*(w-1)+t)}, {v(vC1)} offset:{w*512+t*64}"))
    G2b.append(("lw", ("csr",), 2))
    for t in range(5):
        G2b += [("i", f"v_add_f32 {v(CSK+2*t)}, {v(CSK+2*t)}, {v(CP+t)}"), ("i", f"v_add_f32 {v(CP+5+t)}, {v(CP+5+t)}, {v(CP+10+t)}")]
    for t in range(5): G2b.append(("i", f"v_add_f32 {v(CSK+2*t)}, {v(CSK+2*t)}, {v(CP+5+t)}"))
    G2q = []
    for w in range(4):
        for t in range(3): G2q.append(("ds", ("csq",), f"ds_read_b128 {v(CSQ+4*t if w == 0 else 80+12*(w-1)+4*t,4)}, {v(vC2)} offset:{w*512+t*64}"))
    E = Emit()
    E(f"s_lshl_b32 s56, {s(SC)}, 2"); E("s_add_u32 s56, s56, s26"); E(f"s_mul_i32 s57, s56, {W2K*1024}"); E(f"s_add_u32 s57, s57, {WS_W2}")
    E("s_mul_i32 s56, s56, 25600"); E(f"s_add_u32 s56, s56, {WS_WO}")
    E(f"s_mul_i32 s80, {s(SG)}, 192"); E("s_mul_i32 s81, s26, 98304"); E("s_add_u32 s80, s80, s81"); E("s_mul_i32 s81, s26, 6144")
    E("s_lshl_b32 s64, s26, 13"); E(f"s_add_u32 s64, s64, {L_KR}"); E(f"v_add_u32 {v(33)}, s64, {v(vL16)}")
    E(f"v_and_b32 {v(34)}, 15, v1"); E(f"v_cmp_gt_u32 s[58:59], 8, {v(34)}")
    srd(E, SW, 12, 640*3072)
    for j in range(3):
        E(f"v_add_u32 {v(t2)}, {64*j}, v1"); E(f"v_mul_u32_u24 {v(t3)}, 5462, {v(t2)}"); E(f"v_lshrrev_b32 {v(t3)}, 16, {v(t3)}")
        E(f"v_mul_u32_u24 {v(t4)}, 12, {v(t3)}"); E(f"v_sub_u32 {v(t2)}, {v(t2)}, {v(t4)}")
        E(f"v_bfe_u32 {v(t4)}, {v(t3)}, 2, 1"); E(f"v_lshlrev_b32 {v(t4)}, 1, {v(t4)}"); E(f"v_xor_b32 {v(t2)}, {v(t2)}, {v(t4)}")
        E(f"v_and_b32 {v(t4)}, 12, {v(t3)}"); E(f"v_add_u32 {v(t3)}, {v(t3)}, {v(t4)}")
        E(f"v_mul_u32_u24 {v(t3)}, 3072, {v(t3)}"); E(f"v_lshl_add_u32 {v(vW1+j)}, {v(t2)}, 4, {v(t3)}"); E(f"v_add_u32 {v(vW1+3+j)}, 12288, {v(vW1+j)}")
    G.valu(2, E.l)
    late_st = [(("lst",), f"buffer_store_dwordx4 {a(160+4*t,4)}, {v(vL16)}, {s(SWS,4)}, {s(sDST[t])} offen sc1") for t in range(4)]
    def kv_rd(s_, t): return f"ds_read_b128 {v(BFr(s_%2,t),4)}, {v(vBa[s_//10])} offset:{(s_%10)*5120+t*1024}"
    for t in range(5): lg.issue(("b", 0, t), kv_rd(0, t))
    for s_ in range(20):
        if s_ % 4 == 3 and s_ < 19:
            assert ("B", s_//4+1) in vm.seen and not any(y[0] == "vm" and y[1] == ("B", s_//4+1) for y in G.q[1])
            if s_ == 15:
                while any(y[0] == "ds" and y[1] == ("csw",) for y in G.q[2]): G.force = True; G.run(G.q[2].popleft()); G.force = False
                lg.wait(("csw",))
            vm.wait(("B", s_//4+1)); A("s_barrier")
            if s_ == 15:
                for y in reversed(G2b): G.q[2].appendleft(y)
        if s_ < 19:
            for t in range(5): G.ds(0, ("b", s_+1, t), kv_rd(s_+1, t))
        for x in take(QB, 3): G.vmem(1, x)
        if not QB and s_ >= PF["bq"]:
            for x in take(QQ, 2): G.vmem(1, x)
            if not QQ and s_ == PF["ls"] - 1:
                blk = [("i", "s_cmp_ge_u32 s26, 2"), ("i", "s_cbranch_scc1 B7_skip")]
                for x in b_round(7): blk += [("i", y) for y in x[1]]
                G.put(1, ("blk", blk + [("i", "B7_skip:")]))
        if s_ >= PF["ls"]:
            for x in take(late_st, 1): G.vmem(1, x)
        if s_ == PF["fpchk"]:
            G.vmem(1, (("fp",), f"buffer_load_dwordx2 {v(fl,2)}, {v(fl+2)}, {s(SWS,4)}, s53 offen sc1"))
            G.vmem(1, (("fp",), f"buffer_load_dwordx2 {v(t0,2)}, {v(vSA)}, {s(SWS,4)}, s52 offen sc1"))
        for t in range(5):
            if t in (0, 3): lg.wait(("b", s_, 2 if t == 0 else 4))
            G.mfma(v(AK(0,t),4), XF(s_,0), v(BFr(s_%2,t),4), "0" if s_ == 0 else None)
            G.mfma(v(AK(1,t),4), XF(s_,1), v(BFr(s_%2,t),4), "0" if s_ == 0 else None, budget=1 if t in (2, 4) else 2)
    assert not QB and not QQ and not late_st
    G.flush()
    stamp(A, 3)
    PK = 36; PV = 48; KVP = 76; TM = 60
    def phi2(E, c, rs, r2, tmp, bc):
        sel2 = " op_sel_hi:[1,0]" if bc else ""; sel3 = " op_sel_hi:[1,0,1]" if bc else ""
        E(f"v_pk_mul_f32 {v(tmp,2)}, {v(c,2)}, {v(r2,2)}{sel2}")
        E(f"v_pk_fma_f32 {v(c,2)}, {v(c,2)}, {v(rs,2)}, s[76:77]{sel3}")
        E(f"v_exp_f32 {v(tmp)}, {v(tmp)} clamp"); E(f"v_exp_f32 {v(tmp+1)}, {v(tmp+1)} clamp")
        E(f"v_max_f32 {v(c)}, s79, {v(c)}"); E(f"v_max_f32 {v(c+1)}, s79, {v(c+1)}")
        E(f"v_pk_add_f32 {v(c,2)}, {v(c,2)}, {v(tmp,2)}")
    def w1_load(r, j):
        pre = [f"s_add_u32 m0, s81, {W1L(r)+j*1024}"]
        pre.append(f"s_add_u32 s80, s80, {4*98304}" if (j == 0 and r) else "s_nop 0")
        return (("w1", r), pre + [f"buffer_load_dwordx4 {v((vW1 if r < 3 else vW1b)+j)}, {s(SW,4)}, s80 offen lds"])
    W1L = lambda r: r*24576
    w1_loads = [w1_load(r, j) for r in range(5) for j in range(6)]
    E = Emit()
    for t in (2, 3, 4, 0, 1):
        for mt in range(2):
            for r in (0, 2): E(f"v_pk_fma_f32 {v(AK(mt,t)+r,2)}, {v(NM+4*mt+r,2)}, {v(CSK+2*t,2)}, {v(AK(mt,t)+r,2)} op_sel_hi:[1,0,1]")
        if t >= 2:
            for mt in range(2):
                for r in (0, 2): E(f"v_pk_mul_f32 {v(TM+4*mt+r,2)}, {v(AK(mt,t)+r,2)}, {v(RS+4*mt+r,2)}")
            for mt in range(2):
                for h in range(2): E(f"v_cvt_pk_bf16_f32 {v(PV+4*(t-2)+2*mt+h)}, {v(TM+4*mt+2*h)}, {v(TM+4*mt+2*h+1)}")
        if t <= 2:
            for mt in range(2):
                for r in (0, 2): phi2(E, AK(mt,t)+r, RS+4*mt+r, RL2+4*mt+r, TM+8+4*mt+r, False)
            for mt in range(2):
                for h in range(2): E(f"v_cvt_pk_bf16_f32 {v(PK+4*t+2*mt+h)}, {v(AK(mt,t)+2*h)}, {v(AK(mt,t)+2*h+1)}")
        if t == 2:
            for r in range(4): E(f"v_cndmask_b32 {v(PV+r)}, {v(PV+r)}, {v(vONE)}, s[58:59]")
    mkq = vm.mark()
    merge(A, vm, E.l, take(w1_loads, PF["kvE"]), every=PF["kvEv"])
    prods = [(2,2),(2,3),(2,4),(0,2),(0,3),(1,2),(1,3),(1,4)]
    pidx = {(0,2):0,(0,3):1,(1,2):2,(1,3):3,(1,4):4,(2,2):5,(2,3):6,(2,4):7}
    for (ta, tb) in prods: mfma(A, v(KVP+4*pidx[(ta,tb)],4), v(PK+4*ta,4), v(PV+4*(tb-2),4), "0")
    fpc = [f"v_lshrrev_b32 {v(t2)}, 4, {v(fl+1)}", f"v_lshrrev_b32 {v(t3)}, 4, {v(t1)}",
           f"v_xor_b32 {v(t2)}, {s(NON+1)}, {v(t2)}", f"v_xor_b32 {v(t3)}, {s(NON+1)}, {v(t3)}",
           f"v_xor_b32 {v(t4)}, {s(NON)}, {v(fl)}", f"v_xor_b32 {v(t5)}, {s(NON)}, {v(t0)}",
           f"v_or3_b32 {v(t2)}, {v(t2)}, {v(t3)}, {v(t4)}", f"v_or_b32 {v(t2)}, {v(t2)}, {v(t5)}"]
    vm.wait_mark(mkq)
    A("s_mov_b32 s96, 0")
    for (ta, tb) in prods: A(f"ds_write_b128 {v(33)}, {v(KVP+4*pidx[(ta,tb)],4)} offset:{pidx[(ta,tb)]*1024}")
    A.label("FP_l")
    for x in fpc: A(x)
    A(f"v_cmp_ne_u32 vcc, 0, {v(t2)}")
    A("s_add_u32 s96, s96, 1")
    A("s_cbranch_vccz FP_d")
    A(f"buffer_load_dwordx2 {v(fl,2)}, {v(fl+2)}, {s(SWS,4)}, s53 offen sc1")
    A(f"buffer_load_dwordx2 {v(t0,2)}, {v(vSA)}, {s(SWS,4)}, s52 offen sc1"); A("s_waitcnt vmcnt(0)")
    A(f"s_cmp_lt_u32 s96, {SPIN}"); A("s_cbranch_scc1 FP_l")
    A.label("FP_d")
    A(f"v_cmp_ne_u32 vcc, s92, {v(t1)}")
    A("s_lshl_b32 s97, s2, 3"); A(f"s_add_u32 s97, s97, {WS_FL}")
    A("s_waitcnt lgkmcnt(0)"); A("s_barrier")
    for w in range(4): A(f"ds_read_b128 {v(KVP+4*w,4)}, {v(g0)} offset:{w*8192}")
    def q_rd(s_, t):
        if t < 2: return f"ds_read_b128 {v(BFr(s_%2,t),4)}, {v(vBa[2])} offset:{(s_//2)*5120+((s_%2)*2+t)*1024}"
        return f"ds_read_b128 {v(BFr(s_%2,t),4)}, {v(vQ7)} offset:{(s_//2)*5120+(s_%2)*128}"
    lg.drained()
    for t in range(3): lg.issue(("q", 0, t), q_rd(0, t))
    A("s_cmp_eq_u64 vcc, 0")
    if OPT["slow"]: A("s_cmp_eq_u32 s26, 99")
    A(f"s_cselect_b32 {s(sMODE)}, 1, 0")
    A("s_mov_b32 s61, -2")
    A("s_waitcnt lgkmcnt(3)")
    for r in (0, 2):
        A(f"v_pk_add_f32 {v(KVP+r,2)}, {v(KVP+r,2)}, {v(KVP+4+r,2)}"); A(f"v_pk_add_f32 {v(KVP+8+r,2)}, {v(KVP+8+r,2)}, {v(KVP+12+r,2)}")
    for r in (0, 2): A(f"v_pk_add_f32 {v(KVP+r,2)}, {v(KVP+r,2)}, {v(KVP+8+r,2)}")
    for r in range(4): A(f"v_min_u32 {v(KVP+r)}, s61, {v(KVP+r)}")
    A("s_mov_b64 exec, s[10:11]")
    vm.issue(("kvst",), f"buffer_store_dwordx4 {v(KVP,4)}, {v(g1)}, {s(SWS,4)}, {s(sKV)} offen sc1")
    A("s_mov_b64 exec, -1")
    set_flag(97)
    stamp(A, 4)
    WOF = lambda k: 160 + 4*k if k < 24 else 0
    wo_loads = run_loads(lambda k: ("wo",), lambda k: a(WOF(k),4), 56, 25)
    w2_loads = run_loads(lambda k: ("w2", k), lambda k: a(4+4*k,4), 57, 60)
    E = Emit()
    A(f"s_mov_b32 s53, {WS_FL}")
    E(f"s_lshl_b32 s62, {s(SJ)}, 6"); E("s_mul_i32 s62, s62, 1280"); E(f"s_mul_i32 s64, {s(SC)}, 160"); E("s_add_u32 s58, s62, s64")
    for n in range(3):
        E(f"v_add_u32 {v(t2)}, {256*n}, v0")
        E(f"v_mul_u32_u24 {v(t3)}, 6554, {v(t2)}"); E(f"v_lshrrev_b32 {v(t3)}, 16, {v(t3)}")
        E(f"v_mul_u32_u24 {v(xa+n)}, 1120, {v(t3)}"); E(f"v_lshl_add_u32 {v(xa+n)}, {v(t2)}, 4, {v(xa+n)}")
    G.valu(2, E.l)
    G.put(2, ("blk", [("i", "s_cmp_ge_u32 s26, 2"), ("i", "s_cselect_b32 s59, 0x7fffffff, s58")]))
    E = Emit()
    E(f"s_add_u32 s60, s83, {L_XT}")
    vKN, vKD = 16, 17
    E(f"v_and_b32 {v(t2)}, 15, v1"); E(f"v_lshrrev_b32 {v(t3)}, 4, v1"); E(f"v_lshlrev_b32 {v(t3)}, 4, {v(t3)}")
    E(f"v_lshl_add_u32 {v(vKN)}, {v(t2)}, 7, {v(t3)}"); E(f"v_add_u32 {v(vKN)}, {L_KVN}, {v(vKN)}")
    E(f"v_add_u32 {v(vKD)}, {L_KVD}, {v(t3)}")
    E(f"v_cmp_le_u32 vcc, 4, {v(t2)}"); E(f"v_add_u32 {v(vKD+2)}, 128, {v(vKD)}")
    E(f"v_cndmask_b32 {v(vKD+1)}, {v(vKD)}, {v(vKD+2)}, vcc")
    G.valu(2, E.l)
    xt_loads = [(("xt",), [f"s_add_u32 m0, s60, {n*4096}", "s_nop 0", f"buffer_load_dwordx4 {v(xa+n)}, {s(SX,4)}, {'s59' if n == 2 else 's58'} offen lds"]) for n in range(3)]
    QW = take(wo_loads, 24)
    A(f"s_add_u32 s67, s67, {WS_C1-WS_CP}")
    for x in run_loads(lambda k: ("c1", k), lambda k: v(148+4*k,4), 67, 2): G.vmem(1, x)
    Q1 = take(w1_loads, 18 - PF["kvE"])
    for y in G2q: G.put(2, y)
    G.put(2, ("lw", ("csq",), 2))
    E = Emit()
    for r in range(0, 12, 2):
        E(f"v_pk_add_f32 {v(CSQ+r,2)}, {v(CSQ+r,2)}, {v(80+r,2)}"); E(f"v_pk_add_f32 {v(92+r,2)}, {v(92+r,2)}, {v(104+r,2)}")
    for r in range(0, 12, 2): E(f"v_pk_add_f32 {v(CSQ+r,2)}, {v(CSQ+r,2)}, {v(92+r,2)}")
    G.valu(2, E.l)
    for s_ in range(20):
        if s_ == PF["kvf"]:
            A("s_barrier")
        if s_ < 19:
            for t in range(3): G.ds(0, ("q", s_+1, t), q_rd(s_+1, t))
        if s_ < PF["kvc"]:
            for x in take(QW, 2 if s_ % 2 == 0 else 1): G.vmem(1, x)
            if s_ >= PF["kvf"] and s_ % 2 == 1:
                for x in take(Q1, 1 if QW else 2): G.vmem(1, x)
        lg.wait(("q", s_, 2))
        for t in range(3):
            G.mfma(v(AQ(0,t),4), v(BFr(s_%2,t),4), XF(s_,0), "0" if s_ == 0 else None)
            G.mfma(v(AQ(1,t),4), v(BFr(s_%2,t),4), XF(s_,1), "0" if s_ == 0 else None, budget=1 if t == 2 else 2)
    G.flush()
    stamp(A, 6)
    Q1 = QW + wo_loads + Q1
    PQ = 36
    E = Emit()
    for mt in range(2):
        for t in range(3):
            for r in (0, 2): E(f"v_pk_fma_f32 {v(AQ(mt,t)+r,2)}, {v(CSQ+4*t+r,2)}, {v(nl+2*mt,2)}, {v(AQ(mt,t)+r,2)} op_sel_hi:[1,0,1]")
            for r in (0, 2): phi2(E, AQ(mt,t)+r, rl+2*mt, rl2+2*mt, TM+8+r, True)
            for h in range(2): E(f"v_cvt_pk_bf16_f32 {v(PQ+8*mt+2*t+h)}, {v(AQ(mt,t)+2*h)}, {v(AQ(mt,t)+2*h+1)}")
        E(f"v_mov_b64 {v(PQ+8*mt+6,2)}, 0")
    GAr = lambda i: 76 + 4*i if i < 10 else 156 + 4*(i-10)
    GS = 140; GM = 144
    def g_loads():
        A(f"buffer_load_dwordx2 {v(fl,2)}, {v(fl+2)}, {s(SWS,4)}, s53 offen sc1")
        A("s_mov_b64 exec, s[10:11]")
        for i in range(16):
            hi, lo = (i*KV_STRIDE) & ~4095, (i*KV_STRIDE) & 4095
            A(f"s_mov_b32 s64, {hi}")
            A(f"buffer_load_dwordx4 {v(GAr(i),4)}, {v(g1)}, {s(SWS,4)}, s64 offen offset:{lo} sc1")
        A("s_mov_b64 exec, -1")
    ng = PF["gat"]
    for x in E.l[:ng]: A(x)
    g_loads()
    for x in E.l[ng:]: A(x)
    stamp(A, 5)
    A("s_mov_b32 s96, 0")
    A("s_branch KV_chk")
    A.label("KV_poll")
    g_loads()
    A.label("KV_chk")
    A("s_mov_b64 exec, s[10:11]")
    for i in range(0, 16, 2):
        A(f"s_waitcnt vmcnt({14-i})")
        b, c = GAr(i), GAr(i+1)
        if i == 0:
            for r in (0, 2): A(f"v_pk_add_f32 {v(GS+r,2)}, {v(b+r,2)}, {v(c+r,2)}")
            A(f"v_max3_u32 {v(GM)}, {v(b)}, {v(b+1)}, {v(b+2)}")
            A(f"v_max3_u32 {v(GM+1)}, {v(b+3)}, {v(c)}, {v(c+1)}")
            A(f"v_max3_u32 {v(GM)}, {v(GM)}, {v(c+2)}, {v(c+3)}")
        else:
            for r in (0, 2): A(f"v_pk_add_f32 {v(GS+r,2)}, {v(GS+r,2)}, {v(b+r,2)}")
            A(f"v_max3_u32 {v(GM)}, {v(GM)}, {v(b)}, {v(b+1)}"); A(f"v_max3_u32 {v(GM+1)}, {v(GM+1)}, {v(b+2)}, {v(b+3)}")
            for r in (0, 2): A(f"v_pk_add_f32 {v(GS+r,2)}, {v(GS+r,2)}, {v(c+r,2)}")
            A(f"v_max3_u32 {v(GM)}, {v(GM)}, {v(c)}, {v(c+1)}"); A(f"v_max3_u32 {v(GM+1)}, {v(GM+1)}, {v(c+2)}, {v(c+3)}")
    A(f"v_max_u32 {v(GM)}, {v(GM)}, {v(GM+1)}")
    A(f"v_cmp_eq_u32 s[62:63], -1, {v(GM)}")
    A("s_mov_b64 exec, -1")
    A(f"v_cmp_ne_u64 vcc, {s(NON,2)}, {v(fl,2)}")
    A("s_add_u32 s96, s96, 1"); A("s_or_b64 vcc, vcc, s[62:63]")
    A("s_cbranch_vccz KV_done")
    A(f"s_cmp_lt_u32 s96, {SPIN}"); A("s_cbranch_scc1 KV_poll")
    A.label("KV_done")
    vm.drained()
    A(f"v_cvt_pk_bf16_f32 {v(GS)}, {v(GS)}, {v(GS+1)}"); A(f"v_cvt_pk_bf16_f32 {v(GS+1)}, {v(GS+2)}, {v(GS+3)}")
    A("s_mov_b64 exec, s[10:11]")
    A(f"ds_write_b64 {v(g2)}, {v(GS,2)}")
    A("s_mov_b64 exec, -1")
    AN = 100; AD = 124; ON = 156; OD = 76; OP = 56
    A("s_waitcnt lgkmcnt(0)"); A("s_barrier")
    Q1 = xt_loads + Q1 + w2_loads
    stamp(A, 7)
    for te in range(3):
        for st in range(2):
            lg.issue(("d", te), f"ds_read_b128 {v(AD+8*te+4*st,4)}, {v(vKD+te)} offset:{st*64}")
            lg.issue(("n", te), f"ds_read_b128 {v(AN+8*te+4*st,4)}, {v(vKN)} offset:{te*2048+st*64}")
    for x in take(Q1, PF["oB"]): vm.issue(*x)
    for x in take(Q1, PF["oE"]): G.vmem(1, x)
    E = Emit()
    for r in (0, 2): E(f"v_pk_add_f32 {v(148+r,2)}, {v(148+r,2)}, {v(152+r,2)}")
    for r in (0, 2): E(f"v_mov_b64 {v(152+r,2)}, {v(148+r,2)}")
    for r in range(4): E(f"v_permlane32_swap_b32 {v(152+r)}, {v(148+r)}")
    for r in (0, 2): E(f"v_pk_add_f32 {v(148+r,2)}, {v(148+r,2)}, {v(152+r,2)}")
    E(f"v_add_u32 {v(vC0)}, {L_C1-L_CP}, {v(vC0)}")
    G.valu(2, E.l); G.ds(2, ("c1w",), f"ds_write_b128 {v(vC0)}, {v(148,4)}")
    def o_tail(te):
        L = []
        for r in range(0, 8, 2): L.append(f"v_pk_add_f32 {v(OD+8*te+r,2)}, {v(OD+8*te+r,2)}, s[76:77]")
        for r in range(8): L.append(f"v_rcp_f32 {v(OD+8*te+r)}, {v(OD+8*te+r)}")
        return L
    for te in range(3):
        lg.wait(("n", te))
        for (acc_, aop) in ((OD, AD), (ON, AN)):
            for mt in range(2): G.mfma(v(acc_+8*te+4*mt,4), v(aop+8*te,4), v(PQ+8*mt,4), "0")
            for mt in range(2): G.mfma(v(acc_+8*te+4*mt,4), v(aop+8*te+4,4), v(PQ+8*mt+4,4))
    G.flush()
    for te in range(3):
        for x in take(Q1, PF["oT"]): vm.issue(*x)
        for x in o_tail(te): A(x)
        for r in range(0, 8, 2): A(f"v_pk_mul_f32 {v(ON+8*te+r,2)}, {v(ON+8*te+r,2)}, {v(OD+8*te+r,2)}")
        for h in range(4): A(f"v_cvt_pk_bf16_f32 {v(OP+4*te+h)}, {v(ON+8*te+2*h)}, {v(ON+8*te+2*h+1)}")
        for h in range(2): A(f"v_permlane16_swap_b32 {v(OP+4*te+h)}, {v(OP+4*te+2+h)}")
        if te == 2: A("s_mov_b64 exec, 0xffffffff")
        for x in dual(f"buffer_store_dwordx4 {v(OP+4*te,4)}, {v(vOA)}, SRD, {s(sO)} offen offset:{te*512}"): vm.issue(("ost",), x)
    A("s_mov_b64 exec, -1")
    ACC = 40; AF = 120; HRES = 246
    acc = lambda m, t: ACC + (m*5+t)*4
    vRw, vRr = 10, 11
    u0, u1, u2, u3, u4 = 4, 5, 6, 7, 8
    def k_setup(E, KO, WSA, lred, KQ):
        E(f"s_mul_i32 s61, s26, {KQ}"); E(f"s_lshl_b32 s62, {s(SJ)}, 2")
        for m in range(4):
            E(f"s_add_u32 s60, s26, {m}"); E("s_and_b32 s60, s60, 3")
            E(f"s_mul_i32 s64, s60, 15360"); E(f"s_add_u32 s64, s64, {lred+max(m-1,0)*5120}"); E(f"v_add_u32 {v(vRw+2+m if m else vRr)}, s64, {v(vL16)}")
            E("s_add_u32 s60, s60, s62"); E(f"s_mul_i32 s60, s60, {KO}"); E("s_add_u32 s60, s60, s61"); E("s_lshl_b32 s60, s60, 8")
            E(f"s_add_u32 {s(52+m)}, s60, {WSA}")
    def k_gemm(KS, bfrag, nwin, st0, cinit, side, lateb=(), shadow=None):
        seq = [(m, sp) for m in (1, 2, 3, 0) for sp in range(KS)]
        al = []
        for m in (1, 2, 3, 0):
            n0 = len(al)
            al += run_loads(lambda k: ("a", n0+k), lambda k: v(AF+4*((n0+k) % nwin),4), 52+m, KS)
        poll(66, 18)
        stamp(A, st0)
        nl = PF["kinit"]; pend = []
        lateb = list(lateb)
        for x in al[:nl-len(lateb)//2]: vm.issue(*x)
        if lateb:
            nl -= len(lateb)//2
            for x in lateb: vm.issue(*x)
        if shadow: shadow()
        for n, (m, sp) in enumerate(seq):
            if n < KS:
                for t in range(5):
                    if vm.pending(("w2", sp*5+t)): vm.wait(("w2", sp*5+t))
            while nl < len(seq) and nl - nwin < n and nl - n <= PF["kfly"]:
                G.vmem(1, al[nl]); nl += 1
            if nl >= len(seq) and side: G.vmem(1, side.pop(0))
            if any(y[0] == "vm" and y[1] == ("a", n) for y in G.q[1]): G.flush(1)
            vm.wait(("a", n))
            if STAMPS and os.environ.get("KST") == "4" and KS == 12 and sp % 6 == 0:
                A("s_memtime s[98:99]"); A("s_waitcnt lgkmcnt(0)"); A(f"v_writelane_b32 v3, s98, {52 + n//6}")
            if m == 0 and sp == 0: G.flush(2)
            for t in range(5):
                if pend and ((t == 2 and (KS < 6 or sp % 2 == 1)) ): G.ds(0, ("rw",), pend.pop(0))
                G.mfma(v(acc(m,t),4), bfrag(sp*5+t), v(AF+4*(n % nwin),4), (cinit(t) if m == 0 else "0") if sp == 0 else None, budget=1 if t == 4 else 2)
            if sp == KS-1 and m != 0:
                assert not pend
                pend = [f"ds_write_b128 {v(vRw+2+m)}, {v(acc(m,t),4)} offset:{t*1024}" for t in range(5)]
        G.flush()
    def red_read(RD):
        A("s_waitcnt lgkmcnt(0)"); A("s_barrier"); lg.drained()
        for t in range(5):
            for sl in range(3): lg.issue(("r", t), f"ds_read_b128 {v(RD+(t*3+sl)*4,4)}, {v(vRr)} offset:{sl*5120+t*1024}")
    def red_sum(RD, t, dst):
        for h in range(2):
            A(f"v_pk_add_f32 {v(acc(0,t)+2*h,2)}, {v(acc(0,t)+2*h,2)}, {v(RD+(t*3)*4+2*h,2)}")
            A(f"v_pk_add_f32 {v(RD+(t*3+1)*4+2*h,2)}, {v(RD+(t*3+1)*4+2*h,2)}, {v(RD+(t*3+2)*4+2*h,2)}")
        for h in range(2): A(f"v_pk_add_f32 {v(acc(0,t)+2*h,2)}, {v(acc(0,t)+2*h,2)}, {v(RD+(t*3+1)*4+2*h,2)}")
        for h in range(2): A(f"v_cvt_pk_bf16_f32 {v(dst+h)}, {v(acc(0,t)+2*h)}, {v(acc(0,t)+2*h+1)}")
    CSA, CSB = 212, 216; vCa, vCb = 220, 221; vONE3 = 20; XC = 224
    XCr = lambda t: 224 + 4*t if t < 3 else 200 + 4*(t-3)
    E = Emit()
    E(f"s_lshl_b32 s66, {s(SI)}, 7"); E(f"s_add_u32 s66, s66, {WS_FO}"); E(f"s_lshl_b32 s97, {s(SG)}, 3"); E("s_add_u32 s97, s97, s66")
    k_setup(E, 80, WS_O, L_RED2, 20)
    for r in range(0, 6, 2): E(f"v_mov_b64 {v(vW1b+r,2)}, {v(vW1+r,2)}")
    E(f"v_and_b32 {v(u0)}, 15, v1"); E(f"v_lshrrev_b32 {v(u1)}, 4, v1")
    E("s_mul_i32 s62, s26, 2560"); E(f"s_add_u32 s62, s62, {L_XT}")
    E(f"v_mul_u32_u24 {v(9)}, 160, {v(u0)}"); E(f"v_lshl_add_u32 {v(9)}, {v(u1)}, 3, {v(9)}"); E(f"v_add_u32 {v(9)}, s62, {v(9)}")
    merge(A, vm, E.l, take(Q1, PF["oS"]), every=3)
    lg.wait(("c1w",))
    vm.wait(("ost",)); A("s_barrier")
    set_flag(97, True)
    stamp(A, 8)
    for x in take(Q1, PF["oF"]): vm.issue(*x)
    vB = [12, 16, 17, 9]
    def p2_shadow():
        for t in range(5): lg.issue(("x",), f"ds_read_b64 {v(24+2*t,2)}, {v(9)} offset:{t*32}")
        A(f"v_and_b32 {v(212)}, 0x1f0, {v(vL16)}"); A(f"v_add_u32 {v(213)}, {L_C1}, {v(212)}"); A(f"v_add_u32 {v(212)}, {L_CS3}, {v(212)}")
        for w in range(4): lg.issue(("c1r",), f"ds_read_b128 {v(40+4*w,4)}, {v(213)} offset:{w*512}")
        A(f"v_lshrrev_b32 {v(u2)}, 2, v1"); A(f"v_mul_u32_u24 {v(u2)}, 192, {v(u2)}"); A(f"v_and_b32 {v(u3)}, 3, v1"); A(f"v_lshl_add_u32 {v(u2)}, {v(u3)}, 3, {v(u2)}")
        A(f"v_and_b32 {v(u3)}, 1, {v(u1)}")
        A(f"v_lshlrev_b32 {v(u3)}, 5, {v(u3)}"); A(f"v_add_u32 {v(vB[0])}, {v(u2)}, {v(u3)}"); A(f"v_sub_u32 {v(vB[1])}, {v(u2)}, {v(u3)}")
        lg.wait(("x",))
        for t in range(5):
            for h in range(2):
                A(f"v_lshlrev_b32 {v(XCr(t)+2*h)}, 16, {v(24+2*t+h)}"); A(f"v_and_b32 {v(XCr(t)+2*h+1)}, 0xffff0000, {v(24+2*t+h)}")
        lg.wait(("c1r",))
        for r in (0, 2):
            A(f"v_pk_add_f32 {v(40+r,2)}, {v(40+r,2)}, {v(44+r,2)}"); A(f"v_pk_add_f32 {v(48+r,2)}, {v(48+r,2)}, {v(52+r,2)}")
        for r in (0, 2): A(f"v_pk_add_f32 {v(40+r,2)}, {v(40+r,2)}, {v(48+r,2)}")
        lg.issue(("c1f",), f"ds_write_b128 {v(212)}, {v(40,4)}")
        A(f"v_add_u32 {v(vB[2])}, 61440, {v(vB[0])}"); A(f"v_add_u32 {v(vB[3])}, 61440, {v(vB[1])}")
    assert all(x[0][0] in ("w2", "tch") for x in Q1), "loads needed by P2 must be issued before its poll"
    tw = []
    if PF["tw1"]:
        tw = [(("tch",), ["s_lshr_b32 s64, s2, 3", "s_lshl_b32 s64, s64, 2", "s_add_u32 s64, s64, s26", "s_mul_i32 s64, s64, 6144", f"s_add_u32 s64, s64, {384*3072}",
                          f"v_min_u32 {v(240)}, 47, v1", f"v_lshlrev_b32 {v(240)}, 7, {v(240)}", f"buffer_load_dword {v(241)}, {v(240)}, {s(SW,4)}, s64 offen"])]
    early_w2 = 60 - len(Q1) + PF["p2G"]
    assert early_w2 <= 39
    k_gemm(5, lambda k: a(WOF(k),4), 18, 9, lambda t: v(XCr(t),4), tw + take(Q1, PF["p2G"]), shadow=p2_shadow)
    stamp(A, 10)
    RD = AF
    red_read(RD)
    for x in take(Q1, PF["p2B"]): vm.issue(*x)
    P = 24; vS, vQ = 36, 37
    A(f"v_mov_b64 {v(vS,2)}, 0"); A(f"v_mov_b64 {v(P+10,2)}, 0")
    A(f"s_lshl_b32 s66, {s(SI)}, 7"); A(f"s_add_u32 s66, s66, {WS_FH}"); A(f"s_lshl_b32 s97, {s(SG)}, 3"); A("s_add_u32 s97, s97, s66")
    for t in range(5):
        lg.wait(("r", t))
        red_sum(RD, t, HRES+2*t)
        if t == 1:
            lg.wait(("r", 4)); A("s_barrier")
        if t >= 1:
            for x in take(w1_loads, PF["p2E"]): vm.issue(*x)
        if t in (1, 3, 4):
            pr_ = t//2
            A(f"v_mov_b64 {v(P+4*pr_,2)}, {v(HRES+4*pr_,2)}")
            if t < 4: A(f"v_mov_b64 {v(P+4*pr_+2,2)}, {v(HRES+4*pr_+2,2)}")
            for h in range(2): A(f"v_permlane16_swap_b32 {v(P+4*pr_+h)}, {v(P+4*pr_+2+h)}")
            if pr_ == 2: A("s_mov_b32 exec_lo, 0xffff"); A("s_mov_b32 exec_hi, 0xffff")
            for x in dual(f"buffer_store_dwordx4 {v(P+4*pr_,4)}, {v(vHA)}, SRD, {s(sH)} offen offset:{pr_*1024}"): vm.issue(("hst",), x)
    A("s_mov_b64 exec, -1")
    for r in range(2):
        A(f"v_dot2_f32_bf16 {v(32+r)}, {v(HRES+r)}, {v(vONE3)}, 0"); A(f"v_dot2_f32_bf16 {v(34+r)}, {v(HRES+r)}, {v(HRES+r)}, 0")
    for r in range(2, 10):
        A(f"v_dot2_f32_bf16 {v(32+r%2)}, {v(HRES+r)}, {v(vONE3)}, {v(32+r%2)}"); A(f"v_dot2_f32_bf16 {v(34+r%2)}, {v(HRES+r)}, {v(HRES+r)}, {v(34+r%2)}")
    A(f"v_add_f32 {v(vS)}, {v(32)}, {v(33)}"); A(f"v_add_f32 {v(vQ)}, {v(34)}, {v(35)}")
    for op in ("v_permlane16_swap_b32", "v_permlane32_swap_b32"):
        A(f"v_mov_b64 {v(34,2)}, {v(vS,2)}")
        A(f"{op} {v(34)}, {v(vS)}"); A(f"{op} {v(35)}, {v(vQ)}")
        A(f"v_pk_add_f32 {v(vS,2)}, {v(vS,2)}, {v(34,2)}")
    A("s_mov_b64 exec, 0xffff")
    for x in dual(f"buffer_store_dwordx2 {v(vS,2)}, {v(vSA)}, SRD, {s(sST)} offen"): vm.issue(("hst",), x)
    A("s_mov_b64 exec, -1")
    vB1 = 120
    srd(A, SD, 14, 3072)
    A(f"s_mul_i32 s59, {s(SG)}, 192"); A(f"v_lshlrev_b32 {v(u3)}, 3, {v(u1)}")
    for t in range(6): vm.issue(("b1",), f"buffer_load_dwordx2 {v(vB1+2*t,2)}, {v(u3)}, {s(SD,4)}, s59 offen offset:{t*32}")
    for x in take(w1_loads, PF["hW"]) + take(Q1, PF["hA"]): vm.issue(*x)
    A(f"s_lshl_b32 s54, {s(SI)}, 3"); A("s_lshl_b32 s55, s26, 1"); A("s_add_u32 s54, s54, s55"); A(f"s_mul_i32 s54, s54, {HS*256}"); A(f"s_add_u32 s54, s54, {WS_H}")
    A(f"s_add_u32 s55, s54, {HS*256}")
    A(f"s_lshl_b32 s52, {s(SI)}, 7"); A("s_lshl_b32 s53, s26, 5"); A("s_add_u32 s52, s52, s53"); A("s_lshl_b32 s52, s52, 3"); A(f"s_add_u32 s52, s52, {WS_ST}")
    A("s_add_u32 s53, s52, 16384")
    A(f"v_lshlrev_b32 {v(u2)}, 15, {v(u1)}"); A(f"v_lshl_or_b32 {v(u2)}, {v(u0)}, 3, {v(u2)}")
    A(f"v_lshlrev_b32 {v(u3)}, 4, {v(u1)}"); A(f"v_add_u32 {v(14)}, {L_CS3}, {v(u3)}")
    vm.wait(("hst",)); A("s_barrier")
    set_flag(97, True)
    stamp(A, 11)
    ACC3 = 48; BF = 96; AW = 144; NW3 = 12; BU = 200; CS = 144; vST = 24
    acc3 = lambda t, mt: ACC3 + (t*2+mt)*4
    for x in take(Q1, PF["hS"]): vm.issue(*x)
    BUr = lambda t: 200 + 4*t if t < 3 else 224 + 4*(t-3)
    def b3(s_, t): return [f"ds_read_b64_tr_b16 {v(BF+(s_%2)*24+4*t+2*jj,2)}, {v(vB[(t%2)+2*(s_//10)])} offset:{(s_%10)*6144+t*32+jj*3072}" for jj in range(2)]
    a0 = run_loads(lambda k: ("a", 2*k), lambda k: v(AW+4*((2*k) % NW3),4), 54, 20)
    a1 = run_loads(lambda k: ("a", 2*k+1), lambda k: v(AW+4*((2*k+1) % NW3),4), 55, 20)
    al = [x for p in zip(a0, a1) for x in p]
    poll(66, 18)
    stamp(A, 13)
    nl = PF["p3init"]
    for x in al[:nl]: vm.issue(*x)
    for t in range(6):
        for h in range(2):
            A(f"v_lshlrev_b32 {v(BUr(t)+2*h)}, 16, {v(vB1+2*t+h)}"); A(f"v_and_b32 {v(BUr(t)+2*h+1)}, 0xffff0000, {v(vB1+2*t+h)}")
    for t in range(6):
        for x in b3(0, t): lg.issue(("b", 0, t), x)
    st_loads = [(("st", 2*mt+cc), f"buffer_load_dwordx2 {v(vST+mt*4+cc*2,2)}, {v(u2)}, {s(SWS,4)}, {s(52+cc)} offen offset:{mt*128} sc1") for mt in range(2) for cc in range(2)]
    side = st_loads + w1_loads + take(Q1, PF["p3L"])
    G.put(2, ("vw", ("st", 3), 3))
    E = Emit()
    for mt in range(2): E(f"v_pk_add_f32 {v(vST+4*mt,2)}, {v(vST+4*mt,2)}, {v(vST+4*mt+2,2)}")
    for op in ("v_permlane16_swap_b32", "v_permlane32_swap_b32"):
        for mt in range(2): E(f"v_mov_b64 {v(vST+4*mt+2,2)}, {v(vST+4*mt,2)}")
        for mt in range(2):
            b = vST + 4*mt
            E(f"{op} {v(b+2)}, {v(b)}"); E(f"{op} {v(b+3)}, {v(b+1)}")
        for mt in range(2): E(f"v_pk_add_f32 {v(vST+4*mt,2)}, {v(vST+4*mt,2)}, {v(vST+4*mt+2,2)}")
    ln_stats2(E, [(vST, vST+1), (vST+4, vST+5)], [vST+2, vST+6])
    for mt in range(2):
        b = vST + 4*mt
        E(f"v_mul_f32 {v(b)}, {v(b)}, {v(b+1)}"); E(f"v_mov_b32 {v(b+2)}, {v(b+1)}")
    G.valu(2, E.l)
    wb = PF["w1b"]
    for s_ in range(20):
        if s_ == wb:
            if any(y[0] == "vm" and y[1] == ("w1", 4) for y in G.q[1]): G.flush(1)
            assert not any(x[0] == ("w1", 4) for x in side)
            vm.wait(("w1", 4)); A("s_barrier")
        if s_ < 19:
            for t in range(6):
                for x in b3(s_+1, t): G.ds(0, ("b", s_+1, t), x)
        while nl < 40 and nl - NW3 < 2*s_ and nl - 2*s_ <= PF["p3fly"]:
            G.vmem(1, al[nl]); nl += 1
        for x in take(side, 2 if s_ < PF["p3f"] else 1): G.vmem(1, x)
        if any(y[0] == "vm" and y[1] in (("a", 2*s_), ("a", 2*s_+1)) for y in G.q[1]): G.flush(1)
        vm.wait(("a", 2*s_+1))
        if STAMPS and os.environ.get("KST") == "3" and s_ % 3 == 0 and s_ < 24:
            A("s_memtime s[98:99]"); A("s_waitcnt lgkmcnt(0)"); A(f"v_writelane_b32 v3, s98, {52 + s_//3}"); lg.drained()
        if s_ == 19:
            for t in range(6): G.ds(0, ("cs",), f"ds_read_b128 {v(BF+4*t,4)}, {v(14)} offset:{t*64}")
        for t in range(6):
            if t in (0, 3):
                while ("b", s_, t+2) not in lg.seen or any(y[0] == "ds" and y[1] == ("b", s_, t+2) for y in G.q[0]): G.run(G.q[0].popleft())
                lg.wait(("b", s_, t+2))
            G.mfma(v(acc3(t,0),4), v(BF+(s_%2)*24+4*t,4), v(AW+4*((2*s_) % NW3),4), "0" if s_ == 0 else None)
            G.mfma(v(acc3(t,1),4), v(BF+(s_%2)*24+4*t,4), v(AW+4*((2*s_+1) % NW3),4), "0" if s_ == 0 else None, budget=1 if t in (2, 5) else 2)
    for x in side: G.vmem(1, x)
    G.flush()
    stamp(A, 14)
    CS = BF
    lg.wait(("cs",))
    P = 144; U = 168
    side = []
    for x in take(Q1, PF["rB"]): vm.issue(*x)
    for t in range(6):
        for mt in range(2):
            b = vST + 4*mt
            for r in (0, 2): A(f"v_pk_fma_f32 {v(U+4*mt+r,2)}, {v(CS+4*t+r,2)}, {v(b,2)}, {v(BUr(t)+r,2)} op_sel_hi:[1,0,1]")
        for mt in range(2):
            b = vST + 4*mt
            for r in (0, 2): A(f"v_pk_fma_f32 {v(U+4*mt+r,2)}, {v(acc3(t,mt)+r,2)}, {v(b+2,2)}, {v(U+4*mt+r,2)} op_sel_hi:[1,0,1]")
        for r in range(8): A(f"v_max_f32 {v(U+r)}, 0, {v(U+r)}")
        for x in take(side, PF["rEn"]): vm.issue(*x)
        for r in range(0, 8, 2): A(f"v_pk_mul_f32 {v(U+r,2)}, {v(U+r,2)}, {v(U+r,2)}")
        for h in range(4): A(f"v_cvt_pk_bf16_f32 {v(P+4*t+h)}, {v(U+2*h)}, {v(U+2*h+1)}")
        for h in range(2): A(f"v_permlane16_swap_b32 {v(P+4*t+h)}, {v(P+4*t+2+h)}")
        for x in dual(f"buffer_store_dwordx4 {v(P+4*t,4)}, {v(vRA)}, SRD, {s(sR)} offen offset:{t*512}"): vm.issue(("rst",), x)
    srd(A, SD, 18, 1280); srd(A, SW, 20, 2048*1280)
    vB2 = 20
    A(f"s_mul_i32 s63, {s(SC)}, 160"); A(f"v_lshlrev_b32 {v(u3)}, 3, {v(u1)}")
    for t in range(5): vm.issue(("b2",), f"buffer_load_dwordx2 {v(vB2+2*t,2)}, {v(u3)}, {s(SD,4)}, s63 offen offset:{t*32}")
    L_OUT = 61440; OA = 30
    E = Emit()
    E(f"s_lshl_b32 s66, {s(SI)}, 7"); E(f"s_add_u32 s66, s66, {WS_FR}"); E(f"s_lshl_b32 s97, {s(SG)}, 3"); E("s_add_u32 s97, s97, s66")
    k_setup(E, RS_, WS_R, 0, RQ)
    merge(A, vm, E.l, side + take(Q1, PF["rS"]))
    vm.wait(("rst",)); A("s_barrier")
    set_flag(97, True)
    stamp(A, 15)
    for x in take(Q1, PF["rF"]): vm.issue(*x)
    assert len(Q1) <= 15, len(Q1)
    HC = 216
    def p4_shadow():
        A("s_mul_i32 s63, s26, 2816"); A(f"s_add_u32 s63, s63, {L_OUT}")
        A(f"v_mul_u32_u24 {v(9)}, 176, {v(u0)}"); A(f"v_lshl_add_u32 {v(9)}, {v(u1)}, 3, {v(9)}"); A(f"v_add_u32 {v(9)}, s63, {v(9)}")
        for n in range(3):
            A(f"v_add_u32 {v(u2)}, {64*n}, v1")
            A(f"v_mul_u32_u24 {v(u3)}, 6554, {v(u2)}"); A(f"v_lshrrev_b32 {v(u3)}, 16, {v(u3)}")
            A(f"v_lshlrev_b32 {v(u2)}, 4, {v(u2)}")
            A(f"v_lshl_add_u32 {v(u4)}, {v(u3)}, 4, {v(u2)}"); A(f"v_add_u32 {v(OA+n)}, s63, {v(u4)}")
            A(f"v_mul_u32_u24 {v(u3)}, 1120, {v(u3)}"); A(f"v_add_u32 {v(OA+3+n)}, {v(u3)}, {v(u2)}")
        A(f"s_lshl_b32 s58, {s(SJ)}, 6"); A("s_lshl_b32 s59, s26, 4"); A("s_add_u32 s58, s58, s59"); A("s_mul_i32 s58, s58, 1280")
        A(f"s_mul_i32 s59, {s(SC)}, 160"); A("s_add_u32 s58, s58, s59")
        E = Emit()
        for t in range(5):
            for h in range(2):
                E(f"v_lshlrev_b32 {v(36)}, 16, {v(HRES+2*t+h)}"); E(f"v_and_b32 {v(37)}, 0xffff0000, {v(HRES+2*t+h)}")
                E(f"v_lshlrev_b32 {v(38)}, 16, {v(vB2+2*t+h)}"); E(f"v_and_b32 {v(39)}, 0xffff0000, {v(vB2+2*t+h)}")
                E(f"v_pk_add_f32 {v(HC+4*t+2*h,2)}, {v(36,2)}, {v(38,2)}")
        for x in E.l: A(x)
    k_gemm(12, lambda k: a(4+4*k,4), 24, 16, lambda t: v(HC+4*t,4), [], Q1, shadow=p4_shadow)
    stamp(A, 17)
    red_read(RD)
    P = 200
    for t in range(5):
        lg.wait(("r", t))
        red_sum(RD, t, P+2*t)
        A(f"ds_write_b64 {v(9)}, {v(P+2*t,2)} offset:{t*32}")
    A("s_waitcnt lgkmcnt(0)")
    for n in range(3): A(f"ds_read_b128 {v(RD+4*n,4)}, {v(OA+n)}")
    for n in range(3):
        A(f"s_waitcnt lgkmcnt({2-n})")
        if n == 2: A("s_mov_b64 exec, 0xffffffff")
        A(f"buffer_store_dwordx4 {v(RD+4*n,4)}, {v(OA+3+n)}, {s(SW,4)}, s58 offen {os.environ.get('OUTF', '')}")
    if STAMPS:
        A("s_mov_b64 exec, -1")
        stamp(A, 18)
        A("s_waitcnt vmcnt(0)")
        stamp(A, 19)
        A("s_cmp_lg_u32 s26, 0"); A("s_cbranch_scc1 L_end")
        A("s_lshl_b32 s100, s2, 8"); A(f"s_add_u32 s100, s100, {WS_TS}")
        A("v_lshlrev_b32 v2, 2, v1")
        A(f"buffer_store_dword v3, v2, {s(SWS,4)}, s100 offen")
    A.label("L_end")
    A("s_endpgm")
    return kd(K, 512, accum=256)

def main(path, stamps=False):
    global STAMPS
    STAMPS = stamps
    A = Asm()
    kds = [gen(A)]
    L = [l.strip() if l.strip().endswith(":") else l for l in A.lines]
    X = os.environ.get("EXP", "").split(",")
    import re
    if "nob" in X: L = [l for l in L if not ("s82 offen" in l and " lds" in l)]
    if "now1" in X: L = [l for l in L if not ("s80 offen lds" in l)]
    if "noag" in X: L = [l for l in L if not ("buffer_load_dwordx4 a[" in l)]
    if "noa" in X: L = [l for l in L if not re.search(r"buffer_load_dwordx4 v\[\d+:\d+\], v2, s\[40:43\], s5[2-5]", l)]
    if "nods" in X: L = [l for l in L if not ("ds_read" in l)]
    SEC = os.environ.get("SEC")
    if SEC:
        a_, b_, pats = SEC.split(":")
        i0 = next(i for i, l in enumerate(L) if l.strip() == f"; @S{a_}") + (6 if STAMPS else 1)
        i1 = next(i for i, l in enumerate(L) if l.strip() == f"; @S{b_}")
        L = L[:i0] + [l for l in L[i0:i1] if not any(re.match(p, l.strip()) for p in pats.split("+"))] + L[i1:]
    lines, n = hazard.fix(L)
    open(path, "w").write(file_text(["; @launch grid=(256,1,1) block=(256,1,1) lds=163840"], "\n".join(lines) + "\n", kds))
    print("nops inserted:", n, "lines:", len(lines))
STAMP_NAMES = {0:"start",1:"dma issued",26:"first loads out",27:"setup done",2:"unit staged",25:"late setup 1",20:"FW set",21:"x staged",22:"FW polled",23:"B0 arrived",
               3:"KV gemm",4:"kv stored",6:"Q gemm",28:"kv flags ok",5:"Q epi done",7:"gathered",8:"o flag",9:"o polled",10:"P2 gemm",11:"h flag",13:"h polled",
               14:"P3 gemm",15:"r flag",16:"r polled",17:"P4 gemm",18:"out issued",19:"out done"}
if __name__ == "__main__":
    main(sys.argv[1] if len(sys.argv) > 1 else "v30.s")
SPACE = dict(kvE=[0,3,6,8,10,12], kvEv=[1,2,4,8], oB=[2,4,6,8,10], oE=[0,2,4,6], oS=[2,4,6,8,10], oF=[0,2,4,6], p2G=[0,2,4,6,8], p2B=[0,2,4,6,8,10], p2E=[0,1,2,3],
             hW=[0,3,6,9,12], hA=[0,2,4,6,8], hS=[0,2,4,6], p3f=[0,4,6,8,10], p3L=[4,6,8,10,12,14,16], rB=[4,6,8,10,12], rEn=[0], rS=[0,2,4,6,8], rF=[0,2,4,6,8],
             w1b=[6,8,9,10,11], kinit=[6,8,10,12], kfly=[8,10,12], p3init=[6,8,10,12], p3fly=[8,10,11], binit=[8,10,12,14], bq=[5,6,7,8], ls=[13,14,15,16],
             x0=[2,4,6,8], x1=[0,2,4,6], x1b=[2,4,6,8], x2=[4,6,8,10], smx=[4,6,8,9], gat=[0,20,40,60,90], tw1=[0,1], kvf=[1,2,3,4], kvc=[14,16,17,18,20], opc=[4,5,6,7], fwc=[7,8,9])
```
